```python
import torch

def _softmax(x, axis=-1):
    return torch.softmax(x, dim=axis)
def _gelu(x):
    return torch.nn.functional.gelu(x, approximate="tanh")
def _silu(x):
    return torch.nn.functional.silu(x)
def _sigmoid(x):
    return torch.sigmoid(x)
def _layernorm(x, axis=-1, eps=1e-5):
    m = x.mean(dim=axis, keepdim=True)
    v = x.var(dim=axis, keepdim=True, unbiased=False)
    return (x - m) / torch.sqrt(v + eps)
def _scatter_add(tgt, idx, src, axis=0):
    return tgt.clone().index_add_(axis, idx, src)
def _segment_sum(src, seg, n):
    out = torch.zeros((n,) + src.shape[1:], dtype=src.dtype)
    return out.index_add_(0, seg, src)
def _pad(x, pw):
    flat = tuple(v for pair in reversed(pw) for v in pair)
    return torch.nn.functional.pad(x, flat)

kernel_name = 'concat_heads__sliding_block_cached__compressed_kv_cla__decode'

def setup_inputs():

    _w = (lambda a: (lambda t: t.to(torch.bfloat16) if t.is_floating_point() else t)(torch.as_tensor(a)))
    def _A_setup():
        B, Sq, D = 2, 1, 576
        Hq, Hkv, Sk, Dh = 32, 16, 8192, 128
        assert Hq % Hkv == 0, (Hq, Hkv)
        return {
            "x": _w((lambda *s: torch.randn(*s, dtype=torch.bfloat16) * 1.6)(B, Sq, D)),
            "k_cache": _w((lambda *s: torch.randn(*s, dtype=torch.bfloat16) * 1.6)(B, Hkv, Sk, Dh)),
            "v_cache": _w((lambda *s: torch.randn(*s, dtype=torch.bfloat16) * 0.05)(B, Hkv, Sk, Dh)),
            "wq": _w((lambda *s: torch.randn(*s, dtype=torch.bfloat16) * 1.6)(D, Hq * Dh) * (D ** -0.5)),
            "wo": _w((lambda *s: torch.randn(*s, dtype=torch.bfloat16) * 0.05)(Hq * Dh, D) * ((Hq * Dh) ** -0.5)),
        }
    _A_in = _A_setup()

    def _B_setup():
        B, H, Sq, Sk, D, M = 2, 32, 1, 8192, 128, 576
        Dc = 4 * D
        return {
            "x": _w((lambda *s: torch.randn(*s, dtype=torch.bfloat16) * 3.2)(B, Sq, M)),
            "c_kv": _w((lambda *s: torch.randn(*s, dtype=torch.bfloat16) * 0.1)(B, Sk, Dc)),
            "w_q": _w((lambda *s: torch.randn(*s, dtype=torch.bfloat16) * 6.4)(M, H, D) * (M ** -0.5)),
            "w_uk": _w((lambda *s: torch.randn(*s, dtype=torch.bfloat16) * 6.4)(Dc, H, D) * (Dc ** -0.5)),
            "w_uv": _w((lambda *s: torch.randn(*s, dtype=torch.bfloat16) * 0.1)(Dc, H, D) * (Dc ** -0.5)),
            "w_o": _w((lambda *s: torch.randn(*s, dtype=torch.bfloat16) * 0.1)(H, D, M) * ((H * D) ** -0.5)),
        }
    _B_in = _B_setup()

    return {
        "A_x": _A_in["x"],
        "A_k_cache": _A_in["k_cache"],
        "A_v_cache": _A_in["v_cache"],
        "A_wq": _A_in["wq"],
        "A_wo": _A_in["wo"],
        "B_x": _B_in["x"],
        "B_c_kv": _B_in["c_kv"],
        "B_w_q": _B_in["w_q"],
        "B_w_uk": _B_in["w_uk"],
        "B_w_uv": _B_in["w_uv"],
        "B_w_o": _B_in["w_o"],
    }

def reference(A_x, A_k_cache, A_v_cache, A_wq, A_wo, B_x, B_c_kv, B_w_q, B_w_uk, B_w_uv, B_w_o):
    def _A_ref(x, k_cache, v_cache, wq, wo):
        B, Sq, D = x.shape
        Hq, Dh = 32, 128
        Hkv, Sk = k_cache.shape[1], k_cache.shape[2]
        W = min(4096, max(256, Sk // 4))
        rep = Hq // Hkv
        q = (lambda x, *d: x.permute(*d))((x @ wq).reshape(B, Sq, Hq, Dh), 0, 2, 1, 3)
        k = (lambda x, n, axis: torch.repeat_interleave(x, n, dim=axis))(k_cache[:, :, Sk - W:, :], rep, axis=1)
        v = (lambda x, n, axis: torch.repeat_interleave(x, n, dim=axis))(v_cache[:, :, Sk - W:, :], rep, axis=1)
        scores = torch.einsum("bhqd,bhkd->bhqk", q, k) * (Dh ** -0.5)
        p = _softmax(scores, axis=-1)
        o = torch.einsum("bhqk,bhkd->bhqd", p, v)
        return (lambda x, *d: x.permute(*d))(o, 0, 2, 1, 3).reshape(B, Sq, Hq * Dh) @ wo

    def _B_ref(x, c_kv, w_q, w_uk, w_uv, w_o):
        B, Sq, M = x.shape[0], x.shape[1], x.shape[2]
        Sk = c_kv.shape[1]
        H, D = w_q.shape[1], w_q.shape[2]
        q = torch.einsum("bqm,mhd->bhqd", x, w_q)
        k = torch.einsum("bkc,chd->bhkd", c_kv, w_uk)
        v = torch.einsum("bkc,chd->bhkd", c_kv, w_uv)
        scores = torch.einsum("bhqd,bhkd->bhqk", q, k) * (D ** -0.5)
        off = Sk - Sq
        qi = torch.arange(Sq)[:, None]
        kj = torch.arange(Sk)[None, :]
        cmask = kj <= (qi + off)
        scores = torch.where(cmask[None, None], scores, -1e9)
        p = _softmax(scores, axis=-1)
        ctx = torch.einsum("bhqk,bhkd->bhqd", p, v)
        return torch.einsum("bhqd,hdm->bqm", ctx, w_o)

    a = _A_ref(A_x, A_k_cache, A_v_cache, A_wq, A_wo)
    b = _B_ref(B_x, B_c_kv, B_w_q, B_w_uk, B_w_uv, B_w_o)
    return torch.concatenate([a, b], axis=-1)
```

```python
import re

TRANS = ("v_exp_f32", "v_log_f32", "v_rcp_f32", "v_rsq_f32", "v_sqrt_f32", "v_sin_f32", "v_cos_f32")

def regs_of(tok):
    t = tok.strip()
    t = t.lstrip('-')
    if t.startswith('|') and t.endswith('|'):
        t = t[1:-1]
    m = re.fullmatch(r'abs\((.*)\)', t)
    if m: t = m.group(1)
    m = re.fullmatch(r'([vsa])(\d+)', t)
    if m: return [(m.group(1), int(m.group(2)))]
    m = re.fullmatch(r'([vsa])\[(\d+):(\d+)\]', t)
    if m: return [(m.group(1), i) for i in range(int(m.group(2)), int(m.group(3)) + 1)]
    if t == 'vcc': return [('s', 'vcc_lo'), ('s', 'vcc_hi')]
    if t in ('vcc_lo', 'vcc_hi'): return [('s', t)]
    if t == 'exec': return [('s', 'exec_lo'), ('s', 'exec_hi')]
    if t in ('exec_lo', 'exec_hi'): return [('s', t)]
    if t == 'm0': return [('s', 'm0')]
    return []

VCC = [('s', 'vcc_lo'), ('s', 'vcc_hi')]
EXEC = [('s', 'exec_lo'), ('s', 'exec_hi')]

def mfma_passes(op):
    if '32x32x16' in op or '32x32x8' in op: return 8
    if '16x16x32' in op or '16x16x16' in op: return 4
    if '4x4x4' in op: return 2
    raise ValueError(op)

class Ins:
    __slots__ = ('text', 'op', 'kind', 'wr', 'rd', 'dpp', 'trans', 'srcC', 'srcAB', 'passes', 'states',
                 'lds_dma', 'wide_store', 'label', 'target', 'lanesel', 'sgpr_const_rd', 'vmem_sgpr_rd')
    def __init__(self, text):
        self.text = text
        self.wr = []; self.rd = []; self.dpp = []; self.trans = False
        self.srcC = []; self.srcAB = []; self.passes = 0; self.states = 1
        self.lds_dma = False; self.wide_store = []; self.label = None; self.target = None
        self.lanesel = []; self.sgpr_const_rd = []; self.vmem_sgpr_rd = []
        s = text.split(';')[0].strip()
        if s.endswith(':'):
            self.label = s[:-1]; self.op = None; self.kind = 'label'; self.states = 0; return
        if not s or s.startswith('.'):
            self.op = None; self.kind = 'none'; self.states = 0; return
        parts = s.split(None, 1)
        op = parts[0]; self.op = op
        rest = parts[1] if len(parts) > 1 else ''
        toks = [t.strip() for t in rest.split(',')] if rest else []
        mods = ''
        if toks:
            last = toks[-1].split(None, 1)
        m = re.search(r'\s(op_sel|op_sel_hi|neg_lo|neg_hi|quad_perm)\b', ' ' + rest)
        if m:
            cut = m.start()
            mods = rest[cut:]; rest2 = rest[:cut]
            toks = [t.strip() for t in rest2.split(',')]
        ops = []
        for i, t in enumerate(toks):
            if i == len(toks) - 1:
                sp = t.split(None, 1)
                ops.append(sp[0] if sp else '')
                if len(sp) > 1: mods += ' ' + sp[1]
            else:
                ops.append(t)
        R = [regs_of(o) for o in ops]
        base = op
        for suf in ('_e32', '_e64', '_dpp', '_sdwa'):
            if base.endswith(suf): base = base[:-len(suf)]
        if op == 's_nop':
            self.kind = 'salu'; self.states = int(ops[0], 0) + 1; return
        if op.startswith('s_cbranch') or op == 's_branch':
            self.kind = 'branch'; self.target = ops[0]
            if 'vcc' in op: self.rd = VCC[:]
            if 'exec' in op: self.rd = EXEC[:]
            return
        if op.startswith('v_mfma'):
            self.kind = 'mfma'; self.passes = mfma_passes(op)
            self.wr = R[0]; self.srcAB = R[1] + R[2]; self.srcC = R[3]
            self.rd = self.srcAB + self.srcC
            return
        if op.startswith('v_'):
            self.kind = 'valu'
            self.trans = base in TRANS
            isdpp = ('row_' in mods) or ('quad_perm' in mods) or ('wave_' in mods)
            if base.startswith('v_cmp'):
                self.wr = R[0]; self.rd = sum(R[1:], [])
                if base.startswith('v_cmpx'): self.wr = self.wr + EXEC
            elif base in ('v_readfirstlane_b32', 'v_readlane_b32'):
                self.kind = 'readlane'
                self.wr = R[0]; self.rd = R[1]
                if len(R) > 2: self.lanesel = R[2]
            elif base == 'v_writelane_b32':
                self.wr = R[0]; self.rd = R[0] + R[1]
                if len(R) > 2: self.lanesel = R[2]
            elif base.startswith('v_permlane'):
                self.kind = 'permlane'
                self.wr = R[0] + R[1]; self.rd = R[0] + R[1]
            elif base in ('v_add_co_u32', 'v_sub_co_u32', 'v_subrev_co_u32'):
                self.wr = R[0] + R[1]; self.rd = sum(R[2:], [])
            elif base in ('v_addc_co_u32', 'v_subb_co_u32'):
                self.wr = R[0] + R[1]; self.rd = sum(R[2:], [])
            elif base == 'v_cndmask_b32':
                self.wr = R[0]; self.rd = sum(R[1:], [])
                if len(R) == 3: self.rd += VCC
            elif base in ('v_fmac_f32', 'v_dot2c_f32_bf16', 'v_pk_fmac_f16'):
                self.wr = R[0]; self.rd = sum(R, [])
            else:
                self.wr = R[0]; self.rd = sum(R[1:], [])
            if isdpp:
                self.dpp = R[1]
                self.rd = self.rd + R[0]
            self.sgpr_const_rd = [r for r in self.rd if r[0] == 's']
            return
        if op.startswith('ds_'):
            self.kind = 'ds'
            if op.startswith('ds_read') or op.startswith('ds_bpermute') or op.startswith('ds_permute') or op.startswith('ds_swizzle'):
                self.wr = R[0]; self.rd = sum(R[1:], [])
            else:
                self.rd = sum(R, [])
            return
        if op.startswith('buffer_') or op.startswith('global_'):
            self.kind = 'vmem'
            islds = bool(re.search(r'\blds\b', mods)) or '_lds_' in op
            if op.startswith('buffer_wbl2') or op.startswith('buffer_inv'):
                return
            if islds:
                self.lds_dma = True; self.rd = sum(R, []) + [('s', 'm0')]
            elif '_load' in op:
                self.wr = R[0]; self.rd = sum(R[1:], [])
            elif '_atomic' in op:
                if 'sc0' in mods:
                    self.wr = R[0]; self.rd = sum(R[1:], []) if op.startswith('global') else sum(R, [])
                else:
                    self.rd = sum(R, [])
            else:
                self.rd = sum(R, [])
                if 'x3' in op or 'x4' in op:
                    self.wide_store = R[0] if op.startswith('buffer') else R[1]
            self.vmem_sgpr_rd = [r for r in self.rd if r[0] == 's']
            return
        if op.startswith('s_'):
            self.kind = 'salu'
            if op.startswith('s_load') or op.startswith('s_buffer_load') or op.startswith('s_memtime') or op.startswith('s_memrealtime') or op.startswith('s_atomic'):
                self.kind = 'smem'; self.wr = R[0]; self.rd = sum(R[1:], []); return
            if op.startswith('s_cmp') or op in ('s_waitcnt', 's_barrier', 's_endpgm', 's_sleep', 's_setprio', 's_bitcmp0_b32', 's_bitcmp1_b32'):
                self.rd = sum(R, []); return
            if 'saveexec' in op:
                self.wr = R[0] + EXEC; self.rd = sum(R[1:], []) + EXEC; return
            self.wr = R[0] if R else []; self.rd = sum(R[1:], [])
            return
        raise ValueError('cannot classify: ' + text)

def need(prev, cur):
    n = 0
    def ov(a, b):
        if not a or not b: return False
        sb = set(b)
        return any(x in sb for x in a)
    pv = [r for r in prev.wr if r[0] in 'va']
    ps = [r for r in prev.wr if r[0] == 's']
    isvalu_prev = prev.kind in ('valu', 'readlane', 'permlane')
    isvalu_cur = cur.kind in ('valu', 'readlane', 'permlane')
    if isvalu_prev:
        if cur.kind == 'mfma' and ov(pv, cur.rd): n = max(n, 2)
        if cur.dpp and ov(pv, cur.dpp): n = max(n, 2)
        if cur.kind == 'permlane' and ov(pv, cur.rd): n = max(n, 2)
        if cur.kind == 'readlane' and ov(pv, cur.rd): n = max(n, 1)
        if prev.trans and isvalu_cur and not cur.trans and ov(pv, cur.rd + cur.wr): n = max(n, 1)
        if prev.trans and cur.kind in ('mfma',) and ov(pv, cur.rd): n = max(n, 2)
        if ps:
            if isvalu_cur and ov(ps, cur.sgpr_const_rd): n = max(n, 2)
            if isvalu_cur and ov(ps, cur.lanesel): n = max(n, 4)
            if cur.kind == 'vmem' and ov(ps, cur.vmem_sgpr_rd): n = max(n, 5)
            if cur.kind == 'branch' and ov(ps, cur.rd): n = max(n, 5)
            if cur.kind in ('salu', 'smem') and ov(ps, cur.rd): n = max(n, 1)
            if ov(ps, EXEC):
                if cur.dpp: n = max(n, 5)
                if cur.kind in ('readlane', 'permlane', 'mfma'): n = max(n, 4)
    if prev.kind == 'salu' and ov(ps, EXEC):
        if cur.kind == 'mfma': n = max(n, 4) if False else n
        if cur.dpp: n = max(n, 5) if False else n
    if prev.kind == 'salu' and ov(ps, [('s', 'm0')]):
        if cur.lds_dma: n = max(n, 1)
    if prev.kind == 'mfma':
        P = prev.passes
        tabl = {2: 5, 4: 8, 8: 12, 16: 20}[P]
        if cur.kind == 'mfma':
            if ov(prev.wr, cur.srcAB): n = max(n, tabl)
            if ov(prev.wr, cur.srcC):
                if list(prev.wr) == list(cur.srcC) and cur.passes == P:
                    n = max(n, 2 if P == 2 else 0)
                else:
                    n = max(n, {2: 4, 4: 6, 8: 10, 16: 18}[P])
            elif ov(prev.wr, cur.wr):
                n = max(n, {2: 4, 4: 6, 8: 10, 16: 18}[P])
        else:
            if ov(prev.wr, cur.rd) or ov(prev.wr, cur.wr): n = max(n, tabl)
            if isvalu_cur and ov(prev.srcC, cur.wr): n = max(n, {2: 1, 4: 3, 8: 7, 16: 15}[P])
    if prev.wide_store:
        if ov(prev.wide_store, cur.wr): n = max(n, 2 if isvalu_cur else 1)
    return n

WINDOW = 24

class Asm:
    def __init__(self):
        self.items = []
        self.uid = 0
    def raw(self, s):
        self.items.append(Ins('.' + '__raw__')); self.items[-1].text = s
    def __call__(self, s):
        for line in s.strip().split('\n'):
            line = line.strip()
            if not line or line.startswith(';'):
                if line: self.raw('    ' + line)
                continue
            self.items.append(Ins(line))
    def label(self, name):
        self.items.append(Ins(name + ':'))
    def newlabel(self, p='L'):
        self.uid += 1
        return '%s_%d' % (p, self.uid)
    def comment(self, s):
        self.raw('    ; ' + s)

    def _check_seq(self, seq_prev, seq_next):
        worst = 0
        dist_after = []
        d = 0
        for p in reversed(seq_prev):
            dist_after.append((p, d))
            d += p.states
            if d > WINDOW: break
        dn = 0
        for c in seq_next:
            if c.kind in ('label', 'none'): continue
            for p, da in dist_after:
                if p.kind in ('label', 'none'): continue
                r = need(p, c)
                if r > da + dn: worst = max(worst, r - da - dn)
            dn += c.states
            if dn > WINDOW: break
            if c.kind == 'branch' and c.op == 's_branch': break
        return worst

    def finalize(self):
        out = []
        ninserted = 0
        for ins in self.items:
            if ins.kind in ('label', 'none'):
                out.append(ins); continue
            d = 0; req = 0
            for p in reversed(out):
                if p.kind in ('label', 'none'): continue
                r = need(p, ins)
                if r > d: req = max(req, r - d)
                d += p.states
                if d > WINDOW: break
                if p.op in ('s_branch', 's_endpgm'): break
            while req > 0:
                k = min(req, 16)
                out.append(Ins('s_nop %d' % (k - 1))); ninserted += 1
                req -= k
            out.append(ins)
        labels = {i.label: n for n, i in enumerate(out) if i.kind == 'label'}
        changed = True; it = 0
        while changed and it < 10:
            changed = False; it += 1
            labels = {i.label: n for n, i in enumerate(out) if i.kind == 'label'}
            for n, ins in enumerate(out):
                if ins.kind == 'branch':
                    tgt = labels.get(ins.target)
                    if tgt is None: raise ValueError('unknown label ' + str(ins.target))
                    prev = [x for x in out[max(0, n - 60):n + 1]]
                    w = self._check_seq(prev, out[tgt:tgt + 60])
                    if w > 0:
                        out.insert(n, Ins('s_nop %d' % (min(w, 16) - 1))); ninserted += 1
                        changed = True
                        break
        self.out = out
        self.ninserted = ninserted
        lines = []
        for i in out:
            if i.kind == 'label': lines.append(i.text)
            elif i.kind == 'none': lines.append(i.text)
            else: lines.append('    ' + i.text)
        return '\n'.join(lines) + '\n'

def v(a, n=1):
    return 'v%d' % a if n == 1 else 'v[%d:%d]' % (a, a + n - 1)
def s(a, n=1):
    return 's%d' % a if n == 1 else 's[%d:%d]' % (a, a + n - 1)
```

```python
import sys, os, struct
sys.path.insert(0, os.path.dirname(os.path.abspath(__file__)))
from asmlib import Asm, v, s

NAME = "concat_heads__sliding_block_cached__compressed_kv_cla__decode"

class Cfg:
    nt_stream = True
    nt_w = True
    n1_ckv = 6
    spin_limit = 300000
    stamps = False

Q1   = 0x000000
QABS = 0x080000
QM   = 0x090000
OP   = 0x100000
OM   = 0x180000
BM   = 0x1C0000
BPART= 0x200000
OUTP = 0x600000
STMP = 0x900000
WS_SIZE = 268435456

IMG = 0
SCR = 131072
R1 = SCR; R2 = SCR + 8192; QL = SCR + 12288; QAL = SCR + 12800
QIMG = SCR
SX = SCR; MX = SCR + 16384; LS = SCR + 17408; PB = SCR + 18432
OW = SCR; ML = SCR + 8192
CW = SCR; CT = SCR + 4096
XL = SCR + 12288 + 1024; RL = SCR + 12288 + 2048
LDS_BYTES = 163840

S_W = 3; S_J = 4; S_TYPE = 5; S_H = 6; S_RQ = 7; S_T = 8
S_B = 9; S_S = 10; S_G = 11
S_PLO = 12; S_PHI = 13; S_SC = 14
P_AX, P_AK, P_AV, P_AWQ, P_AWO, P_BX, P_CKV, P_BWQ = 16, 18, 20, 22, 24, 26, 28, 30
P_WUK, P_WUV, P_BWO, P_OUT = 32, 34, 36, 38
P_DBG, P_WS = 40, 42
SRD_X = 44; SRD_W = 48; SRD_ST = 52; SRD_V = 56; SRD_WO = 60; SRD_WS = 64; SRD_U = 68; SRD_OUT = 72
ST = 76
S_CNT = 99
S_PB = 16
V_L, V_G4, V_N16, V_RS = 1, 2, 3, 4

SCALE_LOG2E = 0.08838834764831845 * 1.4426950408889634
def f32hex(x): return '0x%08x' % struct.unpack('<I', struct.pack('<f', x))[0]

class Gen:
    def __init__(self, cfg):
        self.c = cfg
        self.a = Asm()
        self.nstamp = 0

    def srd(self, dst, ptr, size):
        a = self.a
        a(f"s_mov_b32 {s(dst)}, {s(ptr)}")
        a(f"s_and_b32 {s(dst+1)}, {s(ptr+1)}, 0xffff")
        a(f"s_mov_b32 {s(dst+2)}, {size}")
        a(f"s_mov_b32 {s(dst+3)}, 0x20000")
    def srd_sel(self, dst, ptrA, ptrB, sizeA, sizeB):
        a = self.a
        a(f"s_cmp_eq_u32 {s(S_TYPE)}, 0")
        a(f"s_cselect_b32 {s(dst)}, {s(ptrA)}, {s(ptrB)}")
        a(f"s_cselect_b32 {s(dst+1)}, {s(ptrA+1)}, {s(ptrB+1)}")
        if sizeA == sizeB:
            a(f"s_mov_b32 {s(dst+2)}, {sizeA}")
        else:
            a(f"s_mov_b32 {s(dst+2)}, {sizeB}")
            a(f"s_cselect_b32 {s(dst+2)}, {sizeA}, {s(dst+2)}")
        a(f"s_and_b32 {s(dst+1)}, {s(dst+1)}, 0xffff")
        a(f"s_mov_b32 {s(dst+3)}, 0x20000")
    def set_exec(self, mask):
        a = self.a
        if mask == -1 or mask == (1<<64)-1:
            a("s_mov_b64 exec, -1"); return
        a(f"s_mov_b32 exec_lo, 0x{mask & 0xffffffff:08x}")
        a(f"s_mov_b32 exec_hi, 0x{mask >> 32:08x}")
    def ntw(self): return ' nt' if self.c.nt_w else ''
    def nts(self): return ' nt' if self.c.nt_stream else ''

    def stamp(self, idx):
        if not self.c.stamps: return
        a = self.a
        a(f"s_memrealtime s[96:97]")
        a(f"s_lshl_b32 s98, s2, 3")
        a(f"s_add_u32 s98, s98, {s(S_W)}")
        a(f"s_lshl_b32 s98, s98, 7")
        a(f"s_add_u32 s98, s98, {STMP + idx*8}")
        a(f"s_waitcnt lgkmcnt(0)")
        a(f"v_mov_b32 v254, s96")
        a(f"v_mov_b32 v255, s97")
        a(f"v_mov_b32 v253, 0")
        a(f"s_mov_b64 exec, 1")
        a(f"buffer_store_dwordx2 v[254:255], v253, {s(SRD_WS,4)}, s98 offen")
        a(f"s_mov_b64 exec, -1")

    def half_perm(self, L, F):
        a = self.a
        for i in range(4):
            for jj in range(2):
                lo = L + (2*jj)*4 + i; hi = L + (2*jj+1)*4 + i
                a(f"v_perm_b32 {v(F + (2*i)*2 + jj)}, {v(hi)}, {v(lo)}, {s(S_PLO)}")
                a(f"v_perm_b32 {v(F + (2*i+1)*2 + jj)}, {v(hi)}, {v(lo)}, {s(S_PHI)}")
    def full_perm(self, L, F):
        a = self.a
        for i in range(4):
            for jj in range(4):
                lo = L + (2*jj)*4 + i; hi = L + (2*jj+1)*4 + i
                a(f"v_perm_b32 {v(F + (2*i)*4 + jj)}, {v(hi)}, {v(lo)}, {s(S_PLO)}")
                a(f"v_perm_b32 {v(F + (2*i+1)*4 + jj)}, {v(hi)}, {v(lo)}, {s(S_PHI)}")
    def half_mfma(self, ACC, AF, F, first):
        a = self.a
        for c in range(8):
            cin = '0' if first else v(ACC + 4*c, 4)
            a(f"v_mfma_f32_16x16x16_bf16 {v(ACC+4*c,4)}, {v(AF,2)}, {v(F+2*c,2)}, {cin}")
    def xrow(self, op, x, t):
        a = self.a
        a(f"v_mov_b32 {v(t)}, {v(x)}")
        a(f"v_permlane16_swap_b32 {v(x)}, {v(t)}")
        a(f"{op} {v(x)}, {v(x)}, {v(t)}")
        a(f"v_mov_b32 {v(t)}, {v(x)}")
        a(f"v_permlane32_swap_b32 {v(x)}, {v(t)}")
        a(f"{op} {v(x)}, {v(x)}, {v(t)}")
    def xhalf(self, op, x, t):
        a = self.a
        a(f"v_mov_b32 {v(t)}, {v(x)}")
        a(f"v_permlane32_swap_b32 {v(x)}, {v(t)}")
        a(f"{op} {v(x)}, {v(x)}, {v(t)}")
    def inrow(self, op, x):
        a = self.a
        for r in (8, 4, 2, 1):
            a(f"{op}_dpp {v(x)}, {v(x)}, {v(x)} row_ror:{r} row_mask:0xf bank_mask:0xf")
    def barrier(self):
        self.a("s_waitcnt lgkmcnt(0)")
        self.a("s_barrier")

    def spin_scalar(self, load_fn, ok_fn):
        a = self.a
        L = a.newlabel('SP'); D = a.newlabel('SD')
        a(f"s_mov_b32 {s(S_CNT)}, 0")
        a.label(L)
        load_fn()
        a("s_waitcnt lgkmcnt(0)")
        ok_fn()
        a(f"s_cbranch_scc1 {D}")
        a(f"s_add_u32 {s(S_CNT)}, {s(S_CNT)}, 1")
        a(f"s_cmp_lt_u32 {s(S_CNT)}, {self.c.spin_limit}")
        a(f"s_cbranch_scc1 {L}")
        a.label(D)

    def retry_vec(self, load_fn, check_fn, first_wait, sleep=0):
        a = self.a
        C = a.newlabel('RC'); D = a.newlabel('RD')
        a(f"s_mov_b32 {s(S_CNT)}, 0")
        a(first_wait)
        a.label(C)
        check_fn()
        a("s_cmp_eq_u64 vcc, exec")
        a(f"s_cbranch_scc1 {D}")
        a(f"s_add_u32 {s(S_CNT)}, {s(S_CNT)}, 1")
        a(f"s_cmp_ge_u32 {s(S_CNT)}, {self.c.spin_limit}")
        a(f"s_cbranch_scc1 {D}")
        if sleep: a(f"s_sleep {sleep}")
        load_fn()
        a("s_waitcnt vmcnt(0)")
        a(f"s_branch {C}")
        a.label(D)

    def write_acc_rows(self, ACC, base, tmp=5):
        a = self.a
        a(f"v_and_b32 {v(tmp)}, 1, {v(V_G4)}")
        a(f"v_lshlrev_b32 {v(tmp)}, 9, {v(tmp)}")
        a(f"v_lshl_add_u32 {v(tmp)}, {v(V_N16)}, 5, {v(tmp)}")
        a(f"s_lshl_b32 {s(ST)}, {s(S_W)}, 10")
        a(f"s_add_u32 {s(ST)}, {s(ST)}, {base}")
        a(f"v_add_u32 {v(tmp)}, {s(ST)}, {v(tmp)}")
        for c in range(0, 8, 2):
            a(f"ds_write2_b32 {v(tmp)}, {v(ACC+4*c)}, {v(ACC+4*c+4)} offset0:{c} offset1:{c+1}")

    def checksum4(self, Q, X, t):
        a = self.a
        for j in range(4):
            q = Q + 4*j
            a(f"v_xor_b32 {v(t+j)}, {v(q)}, {v(q+1)}")
            a(f"v_xor_b32 {v(X)}, {v(q+2)}, {v(q+3)}")
            a(f"v_xor_b32 {v(t+j)}, {v(t+j)}, {v(X)}")
        for r in (8, 4, 2, 1):
            for j in range(4):
                a(f"v_xor_b32_dpp {v(t+j)}, {v(t+j)}, {v(t+j)} row_ror:{r} row_mask:0xf bank_mask:0xf")
        a(f"v_and_b32 {v(X)}, 1, {v(V_N16)}")
        a(f"v_cmp_eq_u32 vcc, 1, {v(X)}")
        a(f"v_cndmask_b32 {v(t)}, {v(t)}, {v(t+1)}, vcc")
        a(f"v_cndmask_b32 {v(t+2)}, {v(t+2)}, {v(t+3)}, vcc")
        a(f"v_and_b32 {v(X)}, 2, {v(V_N16)}")
        a(f"v_cmp_eq_u32 vcc, 2, {v(X)}")
        a(f"v_cndmask_b32 {v(X)}, {v(t)}, {v(t+2)}, vcc")

    def prologue(self):
        a = self.a
        a("s_cmp_ge_u32 s2, 256")
        a("s_cbranch_scc1 L_END")
        a("s_load_dwordx16 s[16:31], s[0:1], 0")
        a("s_load_dwordx8 s[32:39], s[0:1], 64")
        a("s_load_dwordx4 s[40:43], s[0:1], 96")
        a("s_memrealtime s[76:77]")
        a("v_lshrrev_b32 v5, 6, v0")
        a(f"v_and_b32 {v(V_L)}, 63, v0")
        a(f"v_readfirstlane_b32 {s(S_W)}, v5")
        a(f"v_lshrrev_b32 {v(V_G4)}, 4, {v(V_L)}")
        a(f"v_and_b32 {v(V_N16)}, 15, {v(V_L)}")
        a(f"v_bfe_u32 {v(V_RS)}, {v(V_N16)}, 2, 1")
        a(f"s_and_b32 {s(ST+2)}, s2, 7")
        a(f"s_lshr_b32 {s(ST+3)}, s2, 3")
        a(f"s_and_b32 {s(S_TYPE)}, {s(ST+3)}, 1")
        a(f"s_lshr_b32 {s(ST+3)}, {s(ST+3)}, 1")
        a(f"s_lshl_b32 {s(S_J)}, {s(ST+2)}, 4")
        a(f"s_add_u32 {s(S_J)}, {s(S_J)}, {s(ST+3)}")
        a(f"s_lshr_b32 {s(S_H)}, {s(S_J)}, 2")
        a(f"s_and_b32 {s(S_RQ)}, {s(S_J)}, 3")
        a(f"s_mov_b32 {s(S_PLO)}, 0x05040100")
        a(f"s_mov_b32 {s(S_PHI)}, 0x07060302")
        a(f"s_mov_b32 {s(S_SC)}, {f32hex(SCALE_LOG2E)}")
        a("s_waitcnt lgkmcnt(0)")
        LT = a.newlabel('LT')
        a("s_cmp_lg_u32 s2, 0")
        a(f"s_cbranch_scc1 {LT}")
        a(f"s_cmp_lg_u32 {s(S_W)}, 0")
        a(f"s_cbranch_scc1 {LT}")
        a(f"s_or_b32 {s(ST)}, {s(ST)}, 1")
        a(f"v_mov_b32 v5, {s(ST)}")
        a(f"v_mov_b32 v6, 0")
        a("s_mov_b64 exec, 1")
        a(f"global_store_dword v6, v5, {s(P_DBG,2)} sc0 sc1")
        a("s_mov_b64 exec, -1")
        a.label(LT)
        self.srd_sel(SRD_X, P_AX, P_BX, 2304, 2304)
        self.srd_sel(SRD_W, P_AWQ, P_BWQ, 4718592, 4718592)
        self.srd(SRD_WS, P_WS, WS_SIZE)
        self.stamp(0)

    def srds_rest(self):
        self.srd_sel(SRD_WO, P_AWO, P_BWO, 4718592, 4718592)
        self.srd_sel(SRD_ST, P_AK, P_CKV, 67108864, 16777216)
        self.srd_sel(SRD_V, P_AV, P_WUV, 67108864, 4194304)
        self.srd(SRD_U, P_WUK, 4194304)
        self.srd(SRD_OUT, P_OUT, 4608)

    XF, XF2, L1, L2, F1, ACC1 = 16, 18, 20, 36, 52, 68
    def p1_loads(self):
        a = self.a
        V_WQ, V_X = 5, 6
        a(f"v_lshlrev_b32 {v(V_WQ)}, 15, {v(V_G4)}")
        a(f"v_lshl_add_u32 {v(V_WQ)}, {v(V_N16)}, 4, {v(V_WQ)}")
        a(f"v_mul_u32_u24 {v(V_X)}, 1152, {v(V_RS)}")
        a(f"v_lshl_add_u32 {v(V_X)}, {v(V_G4)}, 3, {v(V_X)}")
        def loads(u_const, XFr, Lr):
            t = ST
            a(f"s_mul_i32 {s(t)}, {s(S_RQ)}, 144")
            if u_const is not None:
                a(f"s_add_u32 {s(t)}, {s(t)}, {16*u_const}")
            else:
                a(f"s_lshl_b32 {s(t+1)}, {s(S_W)}, 4")
                a(f"s_add_u32 {s(t)}, {s(t)}, {s(t+1)}")
            a(f"s_lshl_b32 {s(t+1)}, {s(t)}, 1")
            a(f"buffer_load_dwordx2 {v(XFr,2)}, {v(V_X)}, {s(SRD_X,4)}, {s(t+1)} offen")
            a(f"s_lshl_b32 {s(t)}, {s(t)}, 13")
            a(f"s_lshl_b32 {s(t+1)}, {s(S_H)}, 8")
            a(f"s_add_u32 {s(t)}, {s(t)}, {s(t+1)}")
            for jr in range(4):
                a(f"buffer_load_dwordx4 {v(Lr+4*jr,4)}, {v(V_WQ)}, {s(SRD_W,4)}, {s(t)} offen{self.ntw()}")
                if jr < 3: a(f"s_add_u32 {s(t)}, {s(t)}, 8192")
        LX = a.newlabel('LX')
        a(f"s_cmp_lg_u32 {s(S_W)}, 0")
        a(f"s_cbranch_scc1 {LX}")
        loads(8, self.XF2, self.L2)
        a.label(LX)
        loads(None, self.XF, self.L1)

    def p1_compute(self):
        a = self.a
        self.half_perm(self.L1, self.F1)
        self.half_mfma(self.ACC1, self.XF, self.F1, True)
        LY = a.newlabel('LY')
        a(f"s_cmp_lg_u32 {s(S_W)}, 0")
        a(f"s_cbranch_scc1 {LY}")
        self.half_perm(self.L2, self.L1)
        self.half_mfma(self.ACC1, self.XF2, self.L1, False)
        a.label(LY)
        self.write_acc_rows(self.ACC1, R1)
        self.barrier()
        self.spin_scalar(lambda: a(f"s_load_dword {s(S_T)}, {s(P_DBG,2)}, 0 glc"),
                         lambda: a(f"s_cmp_lg_u32 {s(S_T)}, 0"))
        LZ = a.newlabel('LZ')
        a(f"s_cmp_ge_u32 {s(S_W)}, 4")
        a(f"s_cbranch_scc1 {LZ}")
        a(f"v_lshlrev_b32 v5, 2, v0")
        a(f"v_add_u32 v5, {R1}, v5")
        for w in range(8):
            a(f"ds_read_b32 {v(20+w)}, v5 offset:{w*1024}")
        a(f"s_lshl_b32 {s(ST)}, {s(S_TYPE)}, 7")
        a(f"s_add_u32 {s(ST)}, {s(ST)}, {s(S_J)}")
        a(f"s_lshl_b32 {s(ST)}, {s(ST)}, 11")
        a(f"s_add_u32 {s(ST)}, {s(ST)}, {Q1}" if Q1 else "s_nop 0")
        a(f"v_lshlrev_b32 v6, 3, v0")
        a("s_waitcnt lgkmcnt(0)")
        a("v_add_f32 v20, v20, v21"); a("v_add_f32 v22, v22, v23"); a("v_add_f32 v24, v24, v25"); a("v_add_f32 v26, v26, v27")
        a("v_add_f32 v20, v20, v22"); a("v_add_f32 v24, v24, v26")
        a("v_add_f32 v20, v20, v24")
        a(f"v_mov_b32 v21, {s(S_T)}")
        a(f"buffer_store_dwordx2 v[20:21], v6, {s(SRD_WS,4)}, {s(ST)} offen sc0 sc1")
        a.label(LZ)

    def p2_gather(self, isA, after_issue, nafter):
        a = self.a
        t = ST
        if isA:
            a(f"s_lshr_b32 {s(t)}, {s(S_J)}, 3")
            a(f"s_lshl_b32 {s(t)}, {s(t)}, 1")
            a(f"s_lshr_b32 {s(t+1)}, {s(S_W)}, 2")
            a(f"s_add_u32 {s(t)}, {s(t)}, {s(t+1)}")
            a(f"s_bfe_u32 {s(t+2)}, {s(S_J)}, 0x10002")
        else:
            a(f"s_add_u32 {s(t)}, {s(S_H)}, 32")
            a(f"s_lshr_b32 {s(t+2)}, {s(S_W)}, 2")
        a(f"s_lshl_b32 {s(t)}, {s(t)}, 2")
        a(f"s_and_b32 {s(t+1)}, {s(S_W)}, 3")
        a(f"s_add_u32 {s(t)}, {s(t)}, {s(t+1)}")
        a(f"s_lshl_b32 {s(t)}, {s(t)}, 11")
        a(f"s_lshl_b32 {s(t+2)}, {s(t+2)}, 10")
        a(f"s_add_u32 {s(t)}, {s(t)}, {s(t+2)}")
        if Q1: a(f"s_add_u32 {s(t)}, {s(t)}, {Q1}")
        a(f"s_add_u32 {s(t+1)}, {s(t)}, {127*8}")
        self.spin_scalar(lambda: a(f"s_load_dwordx2 {s(S_PB,2)}, {s(P_WS,2)}, {s(t+1)} glc"),
                         lambda: a(f"s_cmp_eq_u32 {s(S_PB+1)}, {s(S_T)}"))
        G = 8
        a(f"v_lshlrev_b32 v5, 4, {v(V_L)}")
        ld = lambda: a(f"buffer_load_dwordx4 {v(G,4)}, v5, {s(SRD_WS,4)}, {s(t)} offen sc0 sc1")
        ld()
        a(f"s_mov_b32 {s(t+4)}, {s(t)}")
        after_issue()
        ld2 = lambda: (a(f"v_lshlrev_b32 v5, 4, {v(V_L)}"), a(f"buffer_load_dwordx4 {v(G,4)}, v5, {s(SRD_WS,4)}, {s(t+4)} offen sc0 sc1"))
        def chk():
            a(f"v_cmp_eq_u32 vcc, {s(S_T)}, {v(G+1)}")
            a(f"v_cmp_eq_u32 {s(S_PB,2)}, {s(S_T)}, {v(G+3)}")
            a(f"s_and_b64 vcc, vcc, {s(S_PB,2)}")
        self.retry_vec(ld2, chk, f"s_waitcnt vmcnt({nafter})")
        a(f"s_lshl_b32 {s(t)}, {s(S_W)}, 9")
        a(f"s_add_u32 {s(t)}, {s(t)}, {R2}")
        a(f"v_lshlrev_b32 v5, 3, {v(V_L)}")
        a(f"v_add_u32 v5, {s(t)}, v5")
        a(f"ds_write2_b32 v5, {v(G)}, {v(G+2)} offset0:0 offset1:1")
        self.barrier()
        LQ = a.newlabel('LQ')
        a(f"s_cmp_ge_u32 {s(S_W)}, 2")
        a(f"s_cbranch_scc1 {LQ}")
        a(f"s_lshl_b32 {s(t)}, {s(S_W)}, 11")
        a(f"s_add_u32 {s(t)}, {s(t)}, {R2}")
        a(f"v_lshlrev_b32 v5, 3, {v(V_L)}")
        a(f"v_add_u32 v5, {s(t)}, v5")
        for r in range(4):
            a(f"ds_read_b64 {v(8+2*r,2)}, v5 offset:{r*512}")
        a(f"s_lshl_b32 {s(t)}, {s(S_W)}, 8")
        a(f"s_add_u32 {s(t)}, {s(t)}, {QL}")
        a(f"v_lshlrev_b32 v5, 2, {v(V_L)}")
        a(f"v_add_u32 v5, {s(t)}, v5")
        a("s_waitcnt lgkmcnt(0)")
        a("v_add_f32 v8, v8, v10"); a("v_add_f32 v9, v9, v11"); a("v_add_f32 v12, v12, v14"); a("v_add_f32 v13, v13, v15")
        a("v_add_f32 v8, v8, v12"); a("v_add_f32 v9, v9, v13")
        a("v_cvt_pk_bf16_f32 v8, v8, v9")
        a("ds_write_b32 v5, v8")
        a.label(LQ)
        self.barrier()

    def read_q_frags(self, QF):
        a = self.a
        a(f"v_lshlrev_b32 v5, 8, {v(V_RS)}")
        a(f"v_lshl_add_u32 v5, {v(V_G4)}, 4, v5")
        a(f"v_add_u32 v5, {QL}, v5")
        for i in range(4):
            a(f"ds_read_b128 {v(QF+4*i,4)}, v5 offset:{i*64}")

    def wo_loads(self, L, Lx):
        a = self.a; t = ST
        a(f"v_lshrrev_b32 v5, 3, {v(V_N16)}")
        a(f"v_lshlrev_b32 v5, 2, v5")
        a(f"v_add_u32 v5, v5, {v(V_G4)}")
        a(f"v_mul_u32_u24 v5, {4*1152}, v5")
        a(f"v_and_b32 v6, 7, {v(V_N16)}")
        a(f"v_lshl_add_u32 v5, v6, 4, v5")
        a(f"s_mul_i32 {s(t)}, {s(S_J)}, {32*1152}")
        LX = a.newlabel('WX')
        a(f"s_cmp_lg_u32 {s(S_W)}, 0")
        a(f"s_cbranch_scc1 {LX}")
        a(f"s_add_u32 {s(t+1)}, {s(t)}, {8*128}")
        for jr in range(4):
            a(f"buffer_load_dwordx4 {v(Lx+4*jr,4)}, v5, {s(SRD_WO,4)}, {s(t+1)} offen offset:{jr*1152}{self.ntw()}")
        a.label(LX)
        a(f"s_lshl_b32 {s(t+1)}, {s(S_W)}, 7")
        a(f"s_add_u32 {s(t+1)}, {s(t+1)}, {s(t)}")
        for jr in range(4):
            a(f"buffer_load_dwordx4 {v(L+4*jr,4)}, v5, {s(SRD_WO,4)}, {s(t+1)} offen offset:{jr*1152}{self.ntw()}")

    def a_roles(self):
        a = self.a
        a(f"s_lshr_b32 {s(S_G)}, {s(S_J)}, 3")
        a(f"s_bfe_u32 {s(S_B)}, {s(S_J)}, 0x10002")
        a(f"s_and_b32 {s(S_S)}, {s(S_J)}, 3")
        t = ST + 8
        a(f"s_lshl_b32 {s(t)}, {s(S_B)}, 4")
        a(f"s_add_u32 {s(t)}, {s(t)}, {s(S_G)}")
        a(f"s_lshl_b32 {s(t)}, {s(t)}, 13")
        a(f"s_lshl_b32 {s(t+1)}, {s(S_S)}, 9")
        a(f"s_add_u32 {s(t)}, {s(t)}, {s(t+1)}")
        a(f"s_add_u32 {s(t)}, {s(t)}, 6144")
        a(f"s_lshl_b32 {s(t)}, {s(t)}, 8")
        a(f"s_lshl_b32 {s(t+1)}, {s(S_W)}, 14")
        a(f"s_add_u32 {s(15)}, {s(t)}, {s(t+1)}")
    def a_kdma(self):
        a = self.a; t = ST
        a(f"v_xor_b32 v7, {v(V_N16)}, {v(V_G4)}")
        a(f"v_lshlrev_b32 v7, 4, v7")
        a(f"v_lshl_add_u32 v7, {v(V_G4)}, 8, v7")
        for k in range(1, 4):
            a(f"v_xor_b32 {v(7+k)}, {k<<6}, v7")
        a(f"s_lshl_b32 {s(t)}, {s(S_W)}, 14")
        for kk in range(4):
            a(f"s_add_u32 m0, {s(t)}, {IMG + kk*4096}")
            a(f"s_add_u32 {s(t+1)}, s15, {kk*4096}")
            for k in range(4):
                a(f"buffer_load_dwordx4 {v(7+k)}, {s(SRD_ST,4)}, {s(t+1)} offen offset:{k*1024}{self.nts()} lds")

    def a_main(self):
        a = self.a; t = ST
        QF, KF, S, VL, WL, WLX, F, ACC = 16, 32, 64, 96, 160, 176, 192, 224
        def after():
            self.wo_extra_pending = None
            a(f"v_lshlrev_b32 v6, 10, {v(V_G4)}")
            a(f"v_lshl_add_u32 v6, {v(V_N16)}, 4, v6")
            for u in range(2):
                for j in range(8):
                    if j % 4 == 0:
                        a(f"s_add_u32 {s(t)}, s15, {(32*u + 16*(j>>2))*256}")
                    a(f"buffer_load_dwordx4 {v(VL + 32*u + 4*j,4)}, v6, {s(SRD_V,4)}, {s(t)} offen offset:{(j&3)*256}{self.nts()}")
            self.wo_loads(WL, WLX)
        self.p2_gather(True, after, 16 + 4)
        self.stamp(3)
        self.read_q_frags(QF)
        a(f"v_xor_b32 v5, {v(V_N16)}, {v(V_G4)}")
        a(f"v_lshlrev_b32 v5, 4, v5")
        a(f"v_lshl_add_u32 v5, {v(V_N16)}, 8, v5")
        a(f"s_lshl_b32 {s(t)}, {s(S_W)}, 14")
        a(f"v_add_u32 v5, {s(t)}, v5")
        for i in range(1, 4):
            a(f"v_xor_b32 {v(5+i)}, {i<<6}, v5")
        def kread(tt, dst):
            for i in range(4):
                a(f"ds_read_b128 {v(dst+4*i,4)}, {v(5+i)} offset:{IMG + tt*4096}")
        kread(0, KF); kread(1, KF+16)
        for tt in range(4):
            cur = KF + 16*(tt & 1)
            a(f"s_waitcnt lgkmcnt({4 if tt < 3 else 0})")
            for i in range(4):
                cin = '0' if i == 0 else v(S+4*tt,4)
                a(f"v_mfma_f32_16x16x32_bf16 {v(S+4*tt,4)}, {v(cur+4*i,4)}, {v(QF+4*i,4)}, {cin}")
            if tt + 2 < 4:
                kread(tt+2, cur)
        M, Lsum, T1 = 10, 11, 12
        a(f"v_max3_f32 {v(M)}, {v(S)}, {v(S+1)}, {v(S+2)}")
        for r in range(3, 15, 2):
            a(f"v_max3_f32 {v(M)}, {v(M)}, {v(S+r)}, {v(S+r+1)}")
        a(f"v_max_f32 {v(M)}, {v(M)}, {v(S+15)}")
        self.xrow('v_max_f32', M, T1)
        a(f"v_mul_f32 {v(M)}, {s(S_SC)}, {v(M)}")
        for r in range(16):
            a(f"v_fma_f32 {v(S+r)}, {v(S+r)}, {s(S_SC)}, -{v(M)}")
        for r in range(16):
            a(f"v_exp_f32 {v(S+r)}, {v(S+r)}")
        a(f"v_add_f32 {v(Lsum)}, {v(S)}, {v(S+1)}")
        for r in range(2, 16):
            a(f"v_add_f32 {v(Lsum)}, {v(Lsum)}, {v(S+r)}")
        self.xrow('v_add_f32', Lsum, T1)
        PF = 32
        for u in range(2):
            for q in range(4):
                a(f"v_cvt_pk_bf16_f32 {v(PF+4*u+q)}, {v(S+8*u+2*q)}, {v(S+8*u+2*q+1)}")
        self.stamp(4)
        for u in range(2):
            a(f"s_waitcnt vmcnt({(8 if u == 0 else 0) + 4})")
            self.full_perm(VL+32*u, F)
            for c in range(8):
                cin = '0' if u == 0 else v(ACC+4*c,4)
                a(f"v_mfma_f32_16x16x32_bf16 {v(ACC+4*c,4)}, {v(PF+4*u,4)}, {v(F+4*c,4)}, {cin}")
        self.stamp(5)
        a(f"s_lshl_b32 {s(t)}, {s(S_W)}, 4")
        a(f"s_add_u32 {s(t)}, {s(t)}, {ML}")
        a(f"v_lshlrev_b32 v5, 3, {v(V_RS)}")
        a(f"v_add_u32 v5, {s(t)}, v5")
        a(f"ds_write_b64 v5, {v(M,2)}")
        self.write_acc_rows(ACC, OW)
        self.barrier()
        LZ = a.newlabel('AZ')
        a(f"s_cmp_ge_u32 {s(S_W)}, 4")
        a(f"s_cbranch_scc1 {LZ}")
        a(f"v_lshlrev_b32 v5, 2, v0")
        a(f"v_add_u32 v5, {OW}, v5")
        for w in range(8):
            a(f"ds_read_b32 {v(20+w)}, v5 offset:{w*1024}")
        a(f"s_lshr_b32 {s(t)}, {s(S_W)}, 1")
        a(f"s_lshl_b32 {s(t+1)}, {s(t)}, 3")
        a(f"s_add_u32 {s(t+1)}, {s(t+1)}, {ML}")
        a(f"v_mov_b32 v6, {s(t+1)}")
        for w in range(8):
            a(f"ds_read_b64 {v(32+2*w,2)}, v6 offset:{w*16}")
        a(f"s_lshl_b32 {s(t+2)}, {s(S_G)}, 1")
        a(f"s_add_u32 {s(t+2)}, {s(t+2)}, {s(t)}")
        a(f"s_lshl_b32 {s(t+3)}, {s(t+2)}, 2")
        a(f"s_add_u32 {s(t+3)}, {s(t+3)}, {s(S_S)}")
        a(f"s_lshl_b32 {s(t+3)}, {s(t+3)}, 1")
        a(f"s_add_u32 {s(t+3)}, {s(t+3)}, {s(S_B)}")
        a(f"s_lshl_b32 {s(t+3)}, {s(t+3)}, 10")
        a(f"s_add_u32 {s(t+3)}, {s(t+3)}, {OP}")
        a(f"s_lshl_b32 {s(t+2)}, {s(t+2)}, 1")
        a(f"s_add_u32 {s(t+2)}, {s(t+2)}, {s(S_B)}")
        a(f"s_lshl_b32 {s(t+2)}, {s(t+2)}, 2")
        a(f"s_add_u32 {s(t+2)}, {s(t+2)}, {s(S_S)}")
        a(f"s_lshl_b32 {s(t+2)}, {s(t+2)}, 4")
        a(f"s_add_u32 {s(t+2)}, {s(t+2)}, {OM}")
        a(f"v_and_b32 v6, 127, v0")
        a(f"v_lshlrev_b32 v6, 3, v6")
        a("s_waitcnt lgkmcnt(0)")
        a("v_max3_f32 v8, v32, v34, v36"); a("v_max3_f32 v8, v8, v38, v40"); a("v_max3_f32 v8, v8, v42, v44"); a("v_max_f32 v8, v8, v46")
        for w in range(8):
            a(f"v_sub_f32 {v(32+2*w)}, {v(32+2*w)}, v8")
        for w in range(8):
            a(f"v_exp_f32 {v(32+2*w)}, {v(32+2*w)}")
        a("v_mul_f32 v12, v20, v32"); a("v_mul_f32 v9, v33, v32")
        for w in range(1, 8):
            a(f"v_fmac_f32 v12, {v(20+w)}, {v(32+2*w)}")
            a(f"v_fmac_f32 v9, {v(33+2*w)}, {v(32+2*w)}")
        a(f"v_mov_b32 v13, {s(S_T)}")
        a(f"buffer_store_dwordx2 v[12:13], v6, {s(SRD_WS,4)}, {s(t+3)} offen sc0 sc1")
        a(f"v_mov_b32 v10, {s(S_T)}")
        a(f"v_mov_b32 v11, 0")
        a(f"v_mov_b32 v6, 0")
        a(f"s_bitcmp1_b32 {s(S_W)}, 0")
        a(f"s_cbranch_scc1 {LZ}")
        a("s_mov_b64 exec, 1")
        a(f"buffer_store_dwordx4 v[8:11], v6, {s(SRD_WS,4)}, {s(t+2)} offen sc0 sc1")
        a("s_mov_b64 exec, -1")
        a.label(LZ)
        self.stamp(6)
        self.tail(WL, WLX)

    WUK = 100
    def b_roles(self):
        a = self.a
        a(f"s_lshr_b32 {s(S_B)}, {s(S_J)}, 6")
        a(f"s_and_b32 {s(S_S)}, {s(S_J)}, 63")
        t = ST + 8
        a(f"s_lshl_b32 {s(t)}, {s(S_J)}, 17")
        a(f"s_lshl_b32 {s(t+1)}, {s(S_W)}, 14")
        a(f"s_add_u32 s15, {s(t)}, {s(t+1)}")
    def ckv_dma(self, k0, k1):
        a = self.a; t = ST
        a(f"v_lshlrev_b32 v248, 4, {v(V_L)}")
        a(f"s_lshl_b32 {s(t)}, {s(S_W)}, 14")
        for k in range(k0, k1):
            f = ((k & 3) << 2) | ((k >> 2) & 3)
            a(f"v_xor_b32 v249, {f<<4}, v248")
            a(f"s_add_u32 m0, {s(t)}, {IMG + k*1024}")
            a(f"s_add_u32 {s(t+1)}, s15, {k*1024}")
            a(f"buffer_load_dwordx4 v249, {s(SRD_ST,4)}, {s(t+1)} offen{self.nts()} lds")
    def b_pre(self):
        a = self.a; t = ST
        a(f"v_lshlrev_b32 v7, 13, {v(V_N16)}")
        a(f"v_lshl_add_u32 v7, {v(V_G4)}, 4, v7")
        a(f"s_lshl_b32 {s(t)}, {s(S_RQ)}, 7")
        a(f"s_lshl_b32 {s(t+1)}, {s(S_W)}, 4")
        a(f"s_add_u32 {s(t)}, {s(t)}, {s(t+1)}")
        a(f"s_lshl_b32 {s(t)}, {s(t)}, 13")
        a(f"s_lshl_b32 {s(t+1)}, {s(S_H)}, 8")
        a(f"s_add_u32 {s(t)}, {s(t)}, {s(t+1)}")
        for i in range(4):
            a(f"buffer_load_dwordx4 {v(self.WUK+4*i,4)}, v7, {s(SRD_U,4)}, {s(t)} offen offset:{i*64}{self.ntw()}")
        self.ckv_dma(0, self.c.n1_ckv)

    def b_main(self):
        a = self.a; t = ST; c = self.c
        QF = 16
        self.p2_gather(False, lambda: self.ckv_dma(c.n1_ckv, 16), 16 - c.n1_ckv)
        self.stamp(3)
        self.read_q_frags(QF)
        a("s_waitcnt lgkmcnt(0)")
        AQ = 32
        for i in range(4):
            cin = '0' if i == 0 else v(AQ,4)
            a(f"v_mfma_f32_16x16x32_bf16 {v(AQ,4)}, {v(QF+4*i,4)}, {v(self.WUK+4*i,4)}, {cin}")
        a(f"v_and_b32 v5, 1, {v(V_G4)}")
        a(f"v_lshlrev_b32 v5, 8, v5")
        a(f"v_lshl_add_u32 v5, {v(V_N16)}, 1, v5")
        a(f"s_lshl_b32 {s(t)}, {s(S_W)}, 5")
        a(f"s_add_u32 {s(t)}, {s(t)}, {QAL}")
        a(f"v_add_u32 v5, {s(t)}, v5")
        a(f"v_cvt_pk_bf16_f32 v6, {v(AQ)}, {v(AQ)}")
        a(f"ds_write_b16 v5, v6")
        self.barrier()
        LP = a.newlabel('BP')
        a(f"s_cmp_lg_u32 {s(S_W)}, 0")
        a(f"s_cbranch_scc1 {LP}")
        a(f"v_and_b32 v5, 1, {v(V_G4)}")
        a(f"v_lshlrev_b32 v6, 8, v5")
        a(f"v_lshl_add_u32 v6, {v(V_N16)}, 4, v6")
        a(f"v_add_u32 v6, {QAL}, v6")
        a(f"ds_read_b128 v[8:11], v6")
        a(f"v_lshlrev_b32 v6, 15, v5")
        a(f"v_lshl_add_u32 v6, {v(V_N16)}, 4, v6")
        a(f"s_lshl_b32 {s(t)}, {s(S_J)}, 8")
        a(f"s_add_u32 {s(t)}, {s(t)}, {QABS}")
        a(f"v_lshlrev_b32 v7, 10, v5")
        a(f"s_lshl_b32 {s(t+1)}, {s(S_J)}, 3")
        a(f"s_add_u32 {s(t+1)}, {s(t+1)}, {QM}")
        a("s_waitcnt lgkmcnt(0)")
        a("v_xor_b32 v12, v8, v9"); a("v_xor_b32 v13, v10, v11"); a("v_xor_b32 v12, v12, v13")
        self.inrow('v_xor_b32', 12)
        a(f"v_mov_b32 v13, {s(S_T)}")
        self.set_exec(0xffffffff)
        a(f"buffer_store_dwordx4 v[8:11], v6, {s(SRD_WS,4)}, {s(t)} offen sc0 sc1")
        self.set_exec(0x00010001)
        a(f"buffer_store_dwordx2 v[12:13], v7, {s(SRD_WS,4)}, {s(t+1)} offen sc0 sc1")
        a("s_mov_b64 exec, -1")
        a.label(LP)
        self.barrier()
        self.stamp(4)
        WUVL, WL, WLX = 192, 208, 224
        GQ, GM = 32, 48
        a(f"s_lshl_b32 {s(t)}, {s(S_B)}, 10")
        a(f"s_lshl_b32 {s(t+1)}, {s(S_W)}, 7")
        a(f"s_add_u32 {s(t)}, {s(t)}, {s(t+1)}")
        a(f"s_add_u32 {s(t)}, {s(t)}, {QM}")
        for half in range(2):
            a(f"s_add_u32 {s(t+1)}, {s(t)}, {64*half}")
            def okf():
                a(f"s_xor_b32 {s(t+2)}, {s(S_PB+1)}, {s(S_T)}")
                for i in range(1, 8):
                    a(f"s_xor_b32 {s(t+3)}, {s(S_PB+2*i+1)}, {s(S_T)}")
                    a(f"s_or_b32 {s(t+2)}, {s(t+2)}, {s(t+3)}")
                a(f"s_cmp_eq_u32 {s(t+2)}, 0")
            self.spin_scalar(lambda: a(f"s_load_dwordx16 {s(S_PB,16)}, {s(P_WS,2)}, {s(t+1)} glc"), okf)
        a(f"s_mov_b32 {s(t+5)}, {s(t)}")
        a(f"s_lshl_b32 {s(t+4)}, {s(S_B)}, 15")
        a(f"s_lshl_b32 {s(t+1)}, {s(S_W)}, 12")
        a(f"s_add_u32 {s(t+4)}, {s(t+4)}, {s(t+1)}")
        a(f"s_add_u32 {s(t+4)}, {s(t+4)}, {QABS}")
        def ldq():
            a(f"v_lshlrev_b32 v5, 4, {v(V_L)}")
            for j in range(4):
                a(f"buffer_load_dwordx4 {v(GQ+4*j,4)}, v5, {s(SRD_WS,4)}, {s(t+4)} offen offset:{j*1024} sc0 sc1")
            a(f"v_and_b32 v6, 3, {v(V_N16)}")
            a(f"v_lshlrev_b32 v6, 5, v6")
            a(f"v_lshl_add_u32 v6, {v(V_G4)}, 3, v6")
            a(f"buffer_load_dwordx2 {v(GM,2)}, v6, {s(SRD_WS,4)}, {s(t+5)} offen sc0 sc1")
        ldq()
        a(f"v_lshlrev_b32 v7, 15, {v(V_G4)}")
        a(f"v_lshl_add_u32 v7, {v(V_N16)}, 4, v7")
        a(f"s_lshl_b32 {s(t)}, {s(S_RQ)}, 7")
        a(f"s_lshl_b32 {s(t+1)}, {s(S_W)}, 4")
        a(f"s_add_u32 {s(t)}, {s(t)}, {s(t+1)}")
        a(f"s_lshl_b32 {s(t)}, {s(t)}, 13")
        a(f"s_lshl_b32 {s(t+1)}, {s(S_H)}, 8")
        a(f"s_add_u32 {s(t)}, {s(t)}, {s(t+1)}")
        for jr in range(4):
            a(f"buffer_load_dwordx4 {v(WUVL+4*jr,4)}, v7, {s(SRD_V,4)}, {s(t)} offen{self.ntw()}")
            if jr < 3: a(f"s_add_u32 {s(t)}, {s(t)}, 8192")
        self.wo_loads(WL, WLX)
        def chkq():
            self.checksum4(GQ, 12, 8)
            a(f"v_cmp_eq_u32 vcc, v12, {v(GM)}")
            a(f"v_cmp_eq_u32 {s(S_PB,2)}, {s(S_T)}, {v(GM+1)}")
            a(f"s_and_b64 vcc, vcc, {s(S_PB,2)}")
        self.retry_vec(ldq, chkq, "s_waitcnt vmcnt(8)")
        for j in range(4):
            a(f"s_and_b32 {s(t)}, {s(S_W)}, 3")
            a(f"s_lshl_b32 {s(t)}, {s(t)}, 2")
            a(f"s_add_u32 {s(t)}, {s(t)}, {j}")
            a(f"s_lshl_b32 {s(t)}, {s(t)}, 4")
            a(f"v_lshlrev_b32 v5, 4, {v(V_L)}")
            a(f"v_xor_b32 v5, {s(t)}, v5")
            a(f"s_lshl_b32 {s(t+1)}, {s(S_W)}, 12")
            a(f"s_add_u32 {s(t+1)}, {s(t+1)}, {QIMG + j*1024}")
            a(f"v_add_u32 v5, {s(t+1)}, v5")
            a(f"ds_write_b128 v5, {v(GQ+4*j,4)}")
        self.barrier()
        self.stamp(5)
        AF, BF, SA = 128, 64, 16
        N32, HI = 8, 9
        a(f"v_and_b32 {v(N32)}, 31, {v(V_L)}")
        a(f"v_lshrrev_b32 {v(HI)}, 5, {v(V_L)}")
        a(f"s_and_b32 {s(t)}, {s(S_W)}, 3")
        a(f"s_lshr_b32 {s(t+1)}, {s(S_W)}, 2")
        a(f"v_and_b32 v5, 3, {v(N32)}")
        a(f"v_lshlrev_b32 v5, 2, v5")
        a(f"v_bfe_u32 v6, {v(N32)}, 2, 2")
        a(f"v_or_b32 v5, v5, v6")
        a(f"v_xor_b32 v5, v5, {v(HI)}")
        a(f"v_lshlrev_b32 v5, 4, v5")
        a(f"v_lshl_add_u32 v5, {v(N32)}, 10, v5")
        a(f"s_lshl_b32 {s(t+2)}, {s(t)}, 15")
        a(f"s_lshl_b32 {s(t+3)}, {s(t+1)}, 9")
        a(f"s_add_u32 {s(t+2)}, {s(t+2)}, {s(t+3)}")
        a(f"v_add_u32 v5, {s(t+2)}, v5")
        a(f"v_and_b32 v6, 15, {v(N32)}")
        a(f"v_xor_b32 v6, v6, {v(HI)}")
        a(f"v_lshlrev_b32 v6, 4, v6")
        a(f"v_lshl_add_u32 v6, {v(N32)}, 10, v6")
        a(f"s_add_u32 {s(t+3)}, {s(t+3)}, {QIMG}")
        a(f"v_add_u32 v6, {s(t+3)}, v6")
        for i in range(16):
            x = ((2*i) & 15) << 4
            if x == 0:
                ra, rb = 5, 6
            else:
                a(f"v_xor_b32 v10, {x}, v5"); a(f"v_xor_b32 v11, {x}, v6"); ra, rb = 10, 11
            off = 256 if i >= 8 else 0
            a(f"ds_read_b128 {v(AF+4*i,4)}, {v(ra)} offset:{off}")
            a(f"ds_read_b128 {v(BF+4*i,4)}, {v(rb)} offset:{off}")
        for i in range(16):
            rem = 30 - 2*i
            a(f"s_waitcnt lgkmcnt({min(rem,15)})")
            cin = '0' if i == 0 else v(SA,16)
            a(f"v_mfma_f32_32x32x16_bf16 {v(SA,16)}, {v(AF+4*i,4)}, {v(BF+4*i,4)}, {cin}")
        self.barrier()
        SK = 32
        a(f"s_lshl_b32 {s(t+2)}, {s(S_W)}, 11")
        a(f"s_add_u32 {s(t+2)}, {s(t+2)}, {SX}")
        a(f"v_lshlrev_b32 v5, 4, {v(V_L)}")
        a(f"v_add_u32 v5, {s(t+2)}, v5")
        a(f"s_xor_b32 {s(t+3)}, {s(S_W)}, 4")
        a(f"s_lshl_b32 {s(t+3)}, {s(t+3)}, 11")
        a(f"s_add_u32 {s(t+3)}, {s(t+3)}, {SX}")
        a(f"v_lshlrev_b32 v6, 4, {v(V_L)}")
        a(f"v_add_u32 v6, {s(t+3)}, v6")
        LC1 = a.newlabel('CH'); LC2 = a.newlabel('CH')
        a(f"s_cmp_eq_u32 {s(t+1)}, 0")
        a(f"s_cbranch_scc0 {LC1}")
        a(f"ds_write_b128 v5, {v(SA+8,4)}"); a(f"ds_write_b128 v5, {v(SA+12,4)} offset:1024")
        for r in range(8): a(f"v_mov_b32 {v(SK+r)}, {v(SA+r)}")
        a(f"s_branch {LC2}")
        a.label(LC1)
        a(f"ds_write_b128 v5, {v(SA,4)}"); a(f"ds_write_b128 v5, {v(SA+4,4)} offset:1024")
        for r in range(8): a(f"v_mov_b32 {v(SK+r)}, {v(SA+8+r)}")
        a.label(LC2)
        self.barrier()
        a(f"ds_read_b128 {v(40,4)}, v6"); a(f"ds_read_b128 {v(44,4)}, v6 offset:1024")
        a("s_waitcnt lgkmcnt(0)")
        for r in range(8): a(f"v_add_f32 {v(SK+r)}, {v(SK+r)}, {v(40+r)}")
        M, Lsum, T1 = 10, 11, 12
        a(f"v_max3_f32 {v(M)}, {v(SK)}, {v(SK+1)}, {v(SK+2)}")
        a(f"v_max3_f32 {v(M)}, {v(M)}, {v(SK+3)}, {v(SK+4)}")
        a(f"v_max3_f32 {v(M)}, {v(M)}, {v(SK+5)}, {v(SK+6)}")
        a(f"v_max_f32 {v(M)}, {v(M)}, {v(SK+7)}")
        self.xhalf('v_max_f32', M, T1)
        a(f"s_lshl_b32 {s(t+2)}, {s(S_W)}, 7")
        a(f"s_add_u32 {s(t+2)}, {s(t+2)}, {MX}")
        a(f"v_lshlrev_b32 v5, 2, {v(N32)}")
        a(f"v_add_u32 v6, {s(t+2)}, v5")
        a(f"ds_write_b32 v6, {v(M)}")
        self.barrier()
        a(f"v_add_u32 v6, {MX}, v5")
        for w in range(8):
            a(f"ds_read_b32 {v(40+w)}, v6 offset:{w*128}")
        a("s_waitcnt lgkmcnt(0)")
        a(f"v_max3_f32 {v(M)}, v40, v41, v42"); a(f"v_max3_f32 {v(M)}, {v(M)}, v43, v44"); a(f"v_max3_f32 {v(M)}, {v(M)}, v45, v46"); a(f"v_max_f32 {v(M)}, {v(M)}, v47")
        a(f"v_mul_f32 {v(M)}, {s(S_SC)}, {v(M)}")
        for r in range(8): a(f"v_fma_f32 {v(SK+r)}, {v(SK+r)}, {s(S_SC)}, -{v(M)}")
        for r in range(8): a(f"v_exp_f32 {v(SK+r)}, {v(SK+r)}")
        a(f"v_add_f32 {v(Lsum)}, {v(SK)}, {v(SK+1)}")
        for r in range(2, 8): a(f"v_add_f32 {v(Lsum)}, {v(Lsum)}, {v(SK+r)}")
        self.xhalf('v_add_f32', Lsum, T1)
        for q in range(4): a(f"v_cvt_pk_bf16_f32 {v(40+q)}, {v(SK+2*q)}, {v(SK+2*q+1)}")
        a(f"s_lshl_b32 {s(t+2)}, {s(t)}, 1")
        a(f"s_add_u32 {s(t+2)}, {s(t+2)}, {s(t+1)}")
        a(f"s_lshl_b32 {s(t+2)}, {s(t+2)}, 10")
        a(f"s_add_u32 {s(t+2)}, {s(t+2)}, {PB}")
        a(f"v_lshlrev_b32 v6, 4, {v(V_L)}")
        a(f"v_add_u32 v6, {s(t+2)}, v6")
        a(f"ds_write_b128 v6, {v(40,4)}")
        a(f"s_lshl_b32 {s(t+2)}, {s(S_W)}, 7")
        a(f"s_add_u32 {s(t+2)}, {s(t+2)}, {LS}")
        a(f"v_add_u32 v6, {s(t+2)}, v5")
        a(f"ds_write_b32 v6, {v(Lsum)}")
        self.barrier()
        self.stamp(6)
        ACC2, PF, TR = 64, 96, 128
        a(f"v_lshlrev_b32 v6, 4, {v(V_L)}")
        a(f"v_add_u32 v6, {PB}, v6")
        for ks in range(8):
            a(f"ds_read_b128 {v(PF+4*ks,4)}, v6 offset:{ks*1024}")
        a(f"v_add_u32 v6, {LS}, v5")
        for w in range(8):
            a(f"ds_read_b32 {v(40+w)}, v6 offset:{w*128}")
        a(f"v_lshrrev_b32 v5, 2, {v(V_N16)}")
        a(f"v_lshlrev_b32 v6, 2, v5")
        a(f"v_or_b32 v6, v6, {v(HI)}")
        a(f"v_and_b32 v7, 1, {v(V_G4)}")
        a(f"v_lshlrev_b32 v7, 1, v7")
        a(f"v_bfe_u32 v13, {v(V_N16)}, 1, 1")
        a(f"v_or_b32 v7, v7, v13")
        a(f"s_and_b32 {s(t+2)}, {s(S_W)}, 1")
        a(f"s_lshl_b32 {s(t+2)}, {s(t+2)}, 3")
        a(f"v_or_b32 v7, {s(t+2)}, v7")
        a(f"v_xor_b32 v6, v6, v7")
        a(f"v_lshlrev_b32 v6, 4, v6")
        a(f"v_and_b32 v7, 1, {v(V_N16)}")
        a(f"v_lshl_add_u32 v6, v7, 3, v6")
        a(f"v_lshl_add_u32 v5, {v(HI)}, 2, v5")
        a(f"v_lshl_add_u32 v6, v5, 10, v6")
        a(f"s_lshr_b32 {s(t+2)}, {s(S_W)}, 1")
        a(f"s_lshl_b32 {s(t+2)}, {s(t+2)}, 8")
        a(f"v_add_u32 v48, {s(t+2)}, v6")
        a(f"v_xor_b32 v49, 64, v48")
        a(f"v_xor_b32 v50, 32, v48")
        a(f"v_add_u32 v50, 8192, v50")
        a(f"v_xor_b32 v51, 64, v50")
        for r in range(4): a(f"v_add_u32 {v(52+r)}, 0x10000, {v(48+r)}")
        def trread(ks):
            base = 48 if ks < 4 else 52
            off = (ks & 3) * 16384
            d = TR + 8*ks
            for tt in range(2):
                a(f"ds_read_b64_tr_b16 {v(d+4*tt,2)}, {v(base+tt)} offset:{off}")
                a(f"ds_read_b64_tr_b16 {v(d+4*tt+2,2)}, {v(base+2+tt)} offset:{off}")
        for ks in range(3): trread(ks)
        for ks in range(8):
            if ks + 3 < 8:
                a("s_waitcnt lgkmcnt(8)")
            else:
                a(f"s_waitcnt lgkmcnt({4*(7-ks)})")
            for tt in range(2):
                cin = '0' if ks == 0 else v(ACC2+16*tt,16)
                a(f"v_mfma_f32_32x32x16_bf16 {v(ACC2+16*tt,16)}, {v(TR+8*ks+4*tt,4)}, {v(PF+4*ks,4)}, {cin}")
            if ks + 3 < 8: trread(ks+3)
        a("v_add_f32 v40, v40, v41"); a("v_add_f32 v42, v42, v43"); a("v_add_f32 v44, v44, v45"); a("v_add_f32 v46, v46, v47")
        a("v_add_f32 v40, v40, v42"); a("v_add_f32 v44, v44, v46")
        a(f"v_add_f32 {v(Lsum)}, v40, v44")
        a(f"v_rcp_f32 v13, {v(Lsum)}")
        self.barrier()
        self.stamp(7)
        for r in range(32): a(f"v_mul_f32 {v(ACC2+r)}, {v(ACC2+r)}, v13")
        for tt in range(2):
            for q in range(4):
                r0 = ACC2 + 16*tt + 4*q
                a(f"v_cvt_pk_bf16_f32 {v(r0)}, {v(r0)}, {v(r0+1)}")
                a(f"v_cvt_pk_bf16_f32 {v(r0+1)}, {v(r0+2)}, {v(r0+3)}")
        a(f"v_and_b32 v5, 15, {v(N32)}")
        a(f"s_and_b32 {s(t+2)}, {s(S_W)}, 1")
        a(f"s_lshl_b32 {s(t+2)}, {s(t+2)}, 3")
        a(f"v_xor_b32 v5, {s(t+2)}, v5")
        a(f"v_lshlrev_b32 v5, 4, v5")
        a(f"v_lshl_add_u32 v5, {v(HI)}, 3, v5")
        a(f"v_lshl_add_u32 v5, {v(N32)}, 10, v5")
        a(f"s_lshr_b32 {s(t+2)}, {s(S_W)}, 1")
        a(f"s_lshl_b32 {s(t+2)}, {s(t+2)}, 8")
        a(f"v_add_u32 v5, {s(t+2)}, v5")
        for tt in range(2):
            for q in range(4):
                x = (4*tt + q) << 4
                r0 = ACC2 + 16*tt + 4*q
                if x:
                    a(f"v_xor_b32 v6, {x}, v5"); ra = 6
                else: ra = 5
                a(f"ds_write_b64 {v(ra)}, {v(r0,2)}")
        a(f"v_lshlrev_b32 v6, 3, {v(N32)}")
        a(f"v_add_u32 v6, {MX}, v6")
        a(f"ds_write_b64 v6, {v(M,2)}")
        self.barrier()
        OR = 32
        for j in range(4):
            a(f"s_and_b32 {s(t+2)}, {s(S_W)}, 3")
            a(f"s_lshl_b32 {s(t+2)}, {s(t+2)}, 2")
            a(f"s_add_u32 {s(t+2)}, {s(t+2)}, {j}")
            a(f"s_lshl_b32 {s(t+2)}, {s(t+2)}, 4")
            a(f"v_lshlrev_b32 v5, 4, {v(V_L)}")
            a(f"v_xor_b32 v5, {s(t+2)}, v5")
            a(f"s_lshl_b32 {s(t+3)}, {s(S_W)}, 12")
            a(f"s_add_u32 {s(t+3)}, {s(t+3)}, {j*1024}")
            a(f"v_add_u32 v5, {s(t+3)}, v5")
            a(f"ds_read_b128 {v(OR+4*j,4)}, v5")
        a(f"v_and_b32 v6, 3, {v(V_N16)}")
        a(f"s_lshl_b32 {s(t+2)}, {s(S_W)}, 5")
        a(f"s_add_u32 {s(t+2)}, {s(t+2)}, {MX}")
        a(f"v_lshlrev_b32 v7, 3, v6")
        a(f"v_add_u32 v7, {s(t+2)}, v7")
        a(f"ds_read_b64 v[48:49], v7")
        a(f"s_lshl_b32 {s(t+2)}, {s(S_J)}, 15")
        a(f"s_lshl_b32 {s(t+3)}, {s(S_W)}, 12")
        a(f"s_add_u32 {s(t+2)}, {s(t+2)}, {s(t+3)}")
        a(f"s_add_u32 {s(t+2)}, {s(t+2)}, {BPART}")
        a(f"v_lshlrev_b32 v5, 4, {v(V_L)}")
        a("s_waitcnt lgkmcnt(0)")
        for j in range(4):
            a(f"buffer_store_dwordx4 {v(OR+4*j,4)}, v5, {s(SRD_WS,4)}, {s(t+2)} offen offset:{j*1024} sc0 sc1")
        self.checksum4(OR, 50, 8)
        a(f"v_mov_b32 v51, {s(S_T)}")
        a(f"v_lshlrev_b32 v6, 2, v6")
        a(f"v_add_u32 v6, v6, {v(V_G4)}")
        a(f"v_lshlrev_b32 v6, 11, v6")
        a(f"s_lshl_b32 {s(t+2)}, {s(S_W)}, 15")
        a(f"s_lshl_b32 {s(t+3)}, {s(S_J)}, 4")
        a(f"s_add_u32 {s(t+2)}, {s(t+2)}, {s(t+3)}")
        a(f"s_add_u32 {s(t+2)}, {s(t+2)}, {BM}")
        self.set_exec(0x000f000f000f000f)
        a(f"buffer_store_dwordx4 v[48:51], v6, {s(SRD_WS,4)}, {s(t+2)} offen sc0 sc1")
        a("s_mov_b64 exec, -1")
        self.stamp(8)
        WUVF = 240
        a("s_waitcnt vmcnt(5)")
        self.half_perm(WUVL, WUVF)
        DL, DM, DF, ACC = 16, 32, 36, 64
        a(f"s_lshl_b32 {s(t+4)}, {s(S_W)}, 4")
        a(f"s_lshl_b32 {s(t+4)}, {s(t+4)}, 15")
        a(f"s_lshl_b32 {s(t+2)}, {s(S_J)}, 8")
        a(f"s_add_u32 {s(t+4)}, {s(t+4)}, {s(t+2)}")
        a(f"s_add_u32 {s(t+4)}, {s(t+4)}, {BPART}")
        a(f"s_lshl_b32 {s(t+5)}, {s(S_J)}, 1")
        a(f"s_lshr_b32 {s(t+2)}, {s(S_W)}, 2")
        a(f"s_add_u32 {s(t+5)}, {s(t+5)}, {s(t+2)}")
        a(f"s_lshl_b32 {s(t+5)}, {s(t+5)}, 10")
        a(f"s_add_u32 {s(t+5)}, {s(t+5)}, {BM}")
        def ldp():
            a(f"v_lshlrev_b32 v5, 4, {v(V_L)}")
            a(f"buffer_load_dwordx4 {v(DM,4)}, v5, {s(SRD_WS,4)}, {s(t+5)} offen sc0 sc1")
            a(f"v_lshlrev_b32 v5, 17, {v(V_G4)}")
            a(f"v_lshl_add_u32 v5, {v(V_N16)}, 4, v5")
            for j in range(4):
                a(f"s_add_u32 {s(t+2)}, {s(t+4)}, {j*32768}")
                a(f"buffer_load_dwordx4 {v(DL+4*j,4)}, v5, {s(SRD_WS,4)}, {s(t+2)} offen sc0 sc1")
        def chkp():
            self.checksum4(DL, 12, 8)
            a(f"v_and_b32 v5, 3, {v(V_N16)}")
            a(f"v_lshl_add_u32 v5, {v(V_G4)}, 2, v5")
            a(f"s_and_b32 {s(t+2)}, {s(S_W)}, 3")
            a(f"s_lshl_b32 {s(t+2)}, {s(t+2)}, 4")
            a(f"v_add_u32 v5, {s(t+2)}, v5")
            a(f"v_lshlrev_b32 v5, 2, v5")
            a(f"ds_bpermute_b32 v6, v5, {v(DM+2)}")
            a("s_waitcnt lgkmcnt(0)")
            a(f"v_cmp_eq_u32 vcc, v12, v6")
            a(f"v_cmp_eq_u32 {s(S_PB,2)}, {s(S_T)}, {v(DM+3)}")
            a(f"s_and_b64 vcc, vcc, {s(S_PB,2)}")
        ldp()
        self.retry_vec(ldp, chkp, "s_waitcnt vmcnt(0)", sleep=1)
        self.stamp(9)
        self.half_perm(DL, DF)
        a(f"v_mov_b32 v8, {v(DM)}")
        self.inrow('v_max_f32', 8); self.xrow('v_max_f32', 8, 9)
        a(f"v_sub_f32 v8, {v(DM)}, v8")
        a(f"v_exp_f32 v8, v8")
        a(f"v_mul_f32 v8, v8, {v(DM+1)}")
        a(f"v_mov_b32 v10, v8")
        self.inrow('v_add_f32', 10); self.xrow('v_add_f32', 10, 9)
        a(f"v_rcp_f32 v10, v10")
        a(f"v_mul_f32 v8, v8, v10")
        a(f"s_and_b32 {s(t+2)}, {s(S_W)}, 3")
        a(f"s_lshl_b32 {s(t+2)}, {s(t+2)}, 6")
        a(f"v_lshlrev_b32 v5, 4, {v(V_G4)}")
        a(f"v_add_u32 v5, {s(t+2)}, v5")
        for j in range(4):
            if j: a(f"v_add_u32 v6, {4*j}, v5")
            a(f"ds_bpermute_b32 {v(12+j)}, {v(6 if j else 5)}, v8")
        a("s_waitcnt lgkmcnt(0)")
        self.hilo_frag(12, 52)
        self.half_mfma(ACC, 52, DF, True)
        for cc in range(8): a(f"v_add_f32 {v(ACC+4*cc)}, {v(ACC+4*cc)}, {v(ACC+4*cc+1)}")
        a(f"s_lshl_b32 {s(t+2)}, {s(S_W)}, 9")
        a(f"s_add_u32 {s(t+2)}, {s(t+2)}, {CW}")
        a(f"v_lshlrev_b32 v5, 5, {v(V_N16)}")
        a(f"v_add_u32 v5, {s(t+2)}, v5")
        self.set_exec(0xffff)
        for cc in range(0, 8, 2):
            a(f"ds_write2_b32 v5, {v(ACC+4*cc)}, {v(ACC+4*cc+4)} offset0:{cc} offset1:{cc+1}")
        a("s_mov_b64 exec, -1")
        self.barrier()
        a(f"v_lshlrev_b32 v5, 11, {v(V_RS)}")
        a(f"v_lshl_add_u32 v5, {v(V_G4)}, 4, v5")
        a(f"s_lshl_b32 {s(t+2)}, {s(S_W)}, 6")
        a(f"s_add_u32 {s(t+2)}, {s(t+2)}, {CW}")
        a(f"v_add_u32 v5, {s(t+2)}, v5")
        for q in range(4):
            a(f"ds_read_b128 {v(16+4*q,4)}, v5 offset:{q*512}")
        a("s_waitcnt lgkmcnt(0)")
        for j in range(4):
            a(f"v_add_f32 {v(16+j)}, {v(16+j)}, {v(20+j)}")
            a(f"v_add_f32 {v(24+j)}, {v(24+j)}, {v(28+j)}")
            a(f"v_add_f32 {v(12+j)}, {v(16+j)}, {v(24+j)}")
        self.hilo_frag(12, 52)
        self.half_mfma(ACC, 52, WUVF, True)
        for cc in range(8): a(f"v_add_f32 {v(ACC+4*cc)}, {v(ACC+4*cc)}, {v(ACC+4*cc+1)}")
        self.write_acc_rows(ACC, CT)
        self.barrier()
        LZ = a.newlabel('BZ')
        a(f"s_cmp_ge_u32 {s(S_W)}, 4")
        a(f"s_cbranch_scc1 {LZ}")
        a(f"v_lshlrev_b32 v5, 2, v0")
        a(f"v_add_u32 v5, {CT}, v5")
        for w in range(8):
            a(f"ds_read_b32 {v(20+w)}, v5 offset:{w*1024}")
        a(f"s_add_u32 {s(t+2)}, {s(S_J)}, 128")
        a(f"s_lshl_b32 {s(t+2)}, {s(t+2)}, 11")
        a(f"s_add_u32 {s(t+2)}, {s(t+2)}, {OP}")
        a(f"s_add_u32 {s(t+3)}, {s(S_H)}, 32")
        a(f"s_lshl_b32 {s(t+3)}, {s(t+3)}, 1")
        a(f"s_lshr_b32 {s(t+4)}, {s(S_W)}, 1")
        a(f"s_add_u32 {s(t+3)}, {s(t+3)}, {s(t+4)}")
        a(f"s_lshl_b32 {s(t+3)}, {s(t+3)}, 2")
        a(f"s_add_u32 {s(t+3)}, {s(t+3)}, {s(S_RQ)}")
        a(f"s_lshl_b32 {s(t+3)}, {s(t+3)}, 4")
        a(f"s_add_u32 {s(t+3)}, {s(t+3)}, {OM}")
        a(f"v_lshlrev_b32 v6, 3, v0")
        a("s_waitcnt lgkmcnt(0)")
        a("v_add_f32 v20, v20, v21"); a("v_add_f32 v22, v22, v23"); a("v_add_f32 v24, v24, v25"); a("v_add_f32 v26, v26, v27")
        a("v_add_f32 v20, v20, v22"); a("v_add_f32 v24, v24, v26")
        a("v_add_f32 v20, v20, v24")
        a(f"v_mov_b32 v21, {s(S_T)}")
        a(f"buffer_store_dwordx2 v[20:21], v6, {s(SRD_WS,4)}, {s(t+2)} offen sc0 sc1")
        a(f"v_mov_b32 v8, 0"); a(f"v_mov_b32 v9, 0.25"); a(f"v_mov_b32 v10, {s(S_T)}"); a("v_mov_b32 v11, 0")
        a(f"v_mov_b32 v6, 0")
        a(f"s_bitcmp1_b32 {s(S_W)}, 0")
        a(f"s_cbranch_scc1 {LZ}")
        a("s_mov_b64 exec, 1")
        a(f"buffer_store_dwordx4 v[8:11], v6, {s(SRD_WS,4)}, {s(t+3)} offen sc0 sc1")
        a("s_mov_b64 exec, -1")
        a.label(LZ)
        self.stamp(10)
        self.tail(WL, WLX)

    def hilo_frag(self, X, OUT):
        a = self.a
        a(f"v_cvt_pk_bf16_f32 {v(OUT)}, {v(X)}, {v(X+1)}")
        a(f"v_cvt_pk_bf16_f32 {v(OUT+1)}, {v(X+2)}, {v(X+3)}")
        a(f"v_lshlrev_b32 v8, 16, {v(OUT)}");   a(f"v_sub_f32 {v(X)}, {v(X)}, v8")
        a(f"v_and_b32 v8, 0xffff0000, {v(OUT)}"); a(f"v_sub_f32 {v(X+1)}, {v(X+1)}, v8")
        a(f"v_lshlrev_b32 v8, 16, {v(OUT+1)}"); a(f"v_sub_f32 {v(X+2)}, {v(X+2)}, v8")
        a(f"v_and_b32 v8, 0xffff0000, {v(OUT+1)}"); a(f"v_sub_f32 {v(X+3)}, {v(X+3)}, v8")
        a(f"v_cvt_pk_bf16_f32 v8, {v(X)}, {v(X+1)}")
        a(f"v_cvt_pk_bf16_f32 v9, {v(X+2)}, {v(X+3)}")
        a(f"v_and_b32 v10, 1, {v(V_N16)}")
        a(f"v_cmp_eq_u32 vcc, 1, v10")
        a(f"v_cndmask_b32 {v(OUT)}, {v(OUT)}, v8, vcc")
        a(f"v_cndmask_b32 {v(OUT+1)}, {v(OUT+1)}, v9, vcc")

    def tail(self, WL, WLX):
        a = self.a; t = ST
        WF, WFX, ACC, ACCX = 16, 32, 64, 96
        a("s_waitcnt vmcnt(0)")
        self.half_perm(WL, WF)
        LX = a.newlabel('TX')
        a(f"s_cmp_lg_u32 {s(S_W)}, 0")
        a(f"s_cbranch_scc1 {LX}")
        self.half_perm(WLX, WFX)
        a.label(LX)
        LG = a.newlabel('TG')
        a(f"s_cmp_ge_u32 {s(S_W)}, 2")
        a(f"s_cbranch_scc1 {LG}")
        a(f"s_lshl_b32 {s(t+4)}, {s(S_TYPE)}, 5")
        a(f"s_add_u32 {s(t+4)}, {s(t+4)}, {s(S_H)}")
        a(f"s_lshl_b32 {s(t+5)}, {s(t+4)}, 1")
        a(f"s_add_u32 {s(t+5)}, {s(t+5)}, {s(S_W)}")
        a(f"s_lshl_b32 {s(t+5)}, {s(t+5)}, 6")
        a(f"s_add_u32 {s(t+5)}, {s(t+5)}, {OM}")
        a(f"s_lshl_b32 {s(t+4)}, {s(t+4)}, 13")
        a(f"s_lshl_b32 {s(t+2)}, {s(S_W)}, 10")
        a(f"s_add_u32 {s(t+4)}, {s(t+4)}, {s(t+2)}")
        a(f"s_lshl_b32 {s(t+2)}, {s(S_RQ)}, 8")
        a(f"s_add_u32 {s(t+4)}, {s(t+4)}, {s(t+2)}")
        a(f"s_add_u32 {s(t+4)}, {s(t+4)}, {OP}")
        def ldt():
            a(f"v_lshlrev_b32 v5, 11, {v(V_G4)}")
            a(f"v_lshl_add_u32 v5, {v(V_N16)}, 4, v5")
            a(f"buffer_load_dwordx4 v[48:51], v5, {s(SRD_WS,4)}, {s(t+4)} offen sc0 sc1")
            a(f"v_lshlrev_b32 v5, 4, {v(V_G4)}")
            a(f"buffer_load_dwordx4 v[52:55], v5, {s(SRD_WS,4)}, {s(t+5)} offen sc0 sc1")
        def chkt():
            a(f"v_cmp_eq_u32 vcc, {s(S_T)}, v49")
            a(f"v_cmp_eq_u32 {s(S_PB,2)}, {s(S_T)}, v51")
            a(f"s_and_b64 vcc, vcc, {s(S_PB,2)}")
            a(f"v_cmp_eq_u32 {s(S_PB,2)}, {s(S_T)}, v54")
            a(f"s_and_b64 vcc, vcc, {s(S_PB,2)}")
        ldt()
        self.retry_vec(ldt, chkt, "s_waitcnt vmcnt(0)", sleep=1)
        a("v_mov_b32 v8, v52")
        self.xrow('v_max_f32', 8, 9)
        a("v_sub_f32 v8, v52, v8")
        a("v_exp_f32 v8, v8")
        a("v_mul_f32 v10, v8, v53")
        a("v_mul_f32 v12, v8, v48")
        a("v_mul_f32 v13, v8, v50")
        self.xrow('v_add_f32', 10, 9); self.xrow('v_add_f32', 12, 9); self.xrow('v_add_f32', 13, 9)
        a("v_rcp_f32 v10, v10")
        a("v_mul_f32 v12, v12, v10"); a("v_mul_f32 v13, v13, v10")
        a("v_cvt_pk_bf16_f32 v14, v12, v13")
        a("v_lshlrev_b32 v8, 16, v14"); a("v_sub_f32 v12, v12, v8")
        a("v_and_b32 v8, 0xffff0000, v14"); a("v_sub_f32 v13, v13, v8")
        a("v_cvt_pk_bf16_f32 v15, v12, v13")
        a(f"v_and_b32 v8, 1, {v(V_G4)}")
        a("v_cmp_eq_u32 vcc, 1, v8")
        a("v_cndmask_b32 v14, v14, v15, vcc")
        a(f"v_lshlrev_b32 v5, 6, v8")
        a(f"v_lshl_add_u32 v5, {v(V_N16)}, 2, v5")
        a(f"s_lshl_b32 {s(t+2)}, {s(S_W)}, 7")
        a(f"s_add_u32 {s(t+2)}, {s(t+2)}, {XL}")
        a(f"v_add_u32 v5, {s(t+2)}, v5")
        a("ds_write_b32 v5, v14")
        a.label(LG)
        self.barrier()
        self.stamp(11)
        a(f"v_lshlrev_b32 v5, 7, {v(V_RS)}")
        a(f"v_and_b32 v6, 1, {v(V_N16)}")
        a(f"v_lshl_add_u32 v5, v6, 6, v5")
        a(f"v_bfe_u32 v6, {v(V_N16)}, 1, 1")
        a(f"v_lshl_add_u32 v5, v6, 5, v5")
        a(f"v_lshl_add_u32 v5, {v(V_G4)}, 3, v5")
        a(f"v_add_u32 v5, {XL}, v5")
        a(f"ds_read_b64 v[48:49], v5")
        a("s_waitcnt lgkmcnt(0)")
        def outputs(ACCr, WFr, cg_const):
            self.half_mfma(ACCr, 48, WFr, True)
            a(f"v_cmp_gt_u32 vcc, 8, {v(V_N16)}")
            for cc in range(8):
                r = ACCr + 4*cc
                a(f"v_add_f32 {v(r)}, {v(r)}, {v(r+1)}")
                a(f"v_add_f32 {v(r+2)}, {v(r+2)}, {v(r+3)}")
            for cc in range(8):
                r = ACCr + 4*cc
                a(f"v_cndmask_b32 {v(r)}, {v(r+2)}, {v(r)}, vcc")
            for cc in range(8):
                r = ACCr + 4*cc
                a(f"v_add_f32_dpp {v(r)}, {v(r)}, {v(r)} row_ror:8 row_mask:0xf bank_mask:0xf")
            for cc in range(0, 8, 2):
                r = ACCr + 4*cc
                a(f"v_mov_b32 {v(r+2)}, {v(r+4)}")
                a(f"v_mov_b32 {v(r+1)}, {s(S_T)}")
                a(f"v_mov_b32 {v(r+3)}, {s(S_T)}")
            a(f"v_and_b32 v5, 1, {v(V_G4)}")
            a(f"v_mul_u32_u24 v5, {18*128*256}, v5")
            a(f"v_bfe_u32 v6, {v(V_N16)}, 2, 1")
            a(f"v_lshl_add_u32 v5, v6, 15, v5")
            a(f"v_and_b32 v6, 3, {v(V_N16)}")
            a(f"v_lshl_add_u32 v5, v6, 6, v5")
            a(f"s_mul_i32 {s(t+2)}, {s(S_TYPE)}, {2*18*128*256}")
            if cg_const is None:
                a(f"s_lshl_b32 {s(t+3)}, {s(S_W)}, 16")
                a(f"s_add_u32 {s(t+2)}, {s(t+2)}, {s(t+3)}")
            else:
                a(f"s_add_u32 {s(t+2)}, {s(t+2)}, {cg_const<<16}")
            a(f"s_lshl_b32 {s(t+3)}, {s(S_J)}, 8")
            a(f"s_add_u32 {s(t+2)}, {s(t+2)}, {s(t+3)}")
            a(f"s_add_u32 {s(t+2)}, {s(t+2)}, {OUTP}")
            self.set_exec(0x00ff00ff)
            for cc in range(0, 8, 2):
                a(f"buffer_store_dwordx4 {v(ACCr+4*cc,4)}, v5, {s(SRD_WS,4)}, {s(t+2)} offen offset:{cc*8} sc0 sc1")
            a("s_mov_b64 exec, -1")
        outputs(ACC, WF, None)
        LO = a.newlabel('TO')
        a(f"s_cmp_lg_u32 {s(S_W)}, 0")
        a(f"s_cbranch_scc1 {LO}")
        outputs(ACCX, WFX, 8)
        a.label(LO)
        self.stamp(12)
        a(f"s_cmp_ge_u32 {s(S_J)}, 36")
        a("s_cbranch_scc1 L_END")
        a(f"s_mul_i32 {s(t+4)}, {s(S_TYPE)}, 36")
        a(f"s_add_u32 {s(t+4)}, {s(t+4)}, {s(S_J)}")
        a(f"s_lshl_b32 {s(t+4)}, {s(t+4)}, 15")
        a(f"s_add_u32 {s(t+4)}, {s(t+4)}, {OUTP}")
        def ldf():
            a(f"v_lshlrev_b32 v5, 4, v0")
            for k in range(4):
                a(f"s_add_u32 {s(t+2)}, {s(t+4)}, {k*8192}")
                a(f"buffer_load_dwordx4 {v(16+4*k,4)}, v5, {s(SRD_WS,4)}, {s(t+2)} offen sc0 sc1")
        def chkf():
            a(f"v_cmp_eq_u32 vcc, {s(S_T)}, v17")
            for r in (19, 21, 23, 25, 27, 29, 31):
                a(f"v_cmp_eq_u32 {s(S_PB,2)}, {s(S_T)}, {v(r)}")
                a(f"s_and_b64 vcc, vcc, {s(S_PB,2)}")
        ldf()
        self.retry_vec(ldf, chkf, "s_waitcnt vmcnt(0)", sleep=1)
        a("v_add_f32 v16, v16, v20"); a("v_add_f32 v24, v24, v28"); a("v_add_f32 v16, v16, v24")
        a("v_add_f32 v17, v18, v22"); a("v_add_f32 v26, v26, v30"); a("v_add_f32 v17, v17, v26")
        self.xrow('v_add_f32', 16, 8); self.xrow('v_add_f32', 17, 8)
        a(f"s_lshl_b32 {s(t+2)}, {s(S_W)}, 7")
        a(f"s_add_u32 {s(t+2)}, {s(t+2)}, {RL}")
        a(f"v_lshlrev_b32 v5, 3, {v(V_N16)}")
        a(f"v_add_u32 v5, {s(t+2)}, v5")
        a(f"ds_write_b64 v5, v[16:17]")
        self.barrier()
        a(f"s_cmp_lg_u32 {s(S_W)}, 0")
        a("s_cbranch_scc1 L_END")
        a(f"v_lshlrev_b32 v5, 3, {v(V_N16)}")
        a(f"v_add_u32 v5, {RL}, v5")
        for w in range(8):
            a(f"ds_read_b64 {v(16+2*w,2)}, v5 offset:{w*128}")
        a(f"s_cmp_ge_u32 {s(S_J)}, 18")
        a(f"s_cselect_b32 {s(t+2)}, 1, 0")
        a(f"s_mul_i32 {s(t+3)}, {s(t+2)}, 18")
        a(f"s_sub_u32 {s(t+3)}, {s(S_J)}, {s(t+3)}")
        a(f"s_mul_i32 {s(t+2)}, {s(t+2)}, 2304")
        a(f"s_lshl_b32 {s(t+3)}, {s(t+3)}, 6")
        a(f"s_add_u32 {s(t+2)}, {s(t+2)}, {s(t+3)}")
        a(f"s_mul_i32 {s(t+3)}, {s(S_TYPE)}, 1152")
        a(f"s_add_u32 {s(t+2)}, {s(t+2)}, {s(t+3)}")
        a(f"v_lshlrev_b32 v5, 2, {v(V_N16)}")
        a("s_waitcnt lgkmcnt(0)")
        for w in range(1, 8):
            a(f"v_add_f32 v16, v16, {v(16+2*w)}")
            a(f"v_add_f32 v17, v17, {v(17+2*w)}")
        a("v_cvt_pk_bf16_f32 v16, v16, v17")
        self.set_exec(0xffff)
        a(f"buffer_store_dword v16, v5, {s(SRD_OUT,4)}, {s(t+2)} offen")
        a("s_mov_b64 exec, -1")
        self.stamp(13)
        a("s_branch L_END")

    def build(self):
        a = self.a; c = self.c
        self.prologue()
        self.p1_loads()
        self.srds_rest()
        a(f"s_cmp_eq_u32 {s(S_TYPE)}, 0")
        a("s_cbranch_scc0 L_B0")
        self.a_roles()
        self.a_kdma()
        a("s_waitcnt vmcnt(16)")
        self.stamp(1)
        self.p1_compute()
        self.stamp(2)
        self.a_main()
        a.label("L_B0")
        self.b_roles()
        self.b_pre()
        a(f"s_waitcnt vmcnt({4 + c.n1_ckv})")
        self.stamp(1)
        self.p1_compute()
        self.stamp(2)
        self.b_main()
        a.label("L_END")
        a("s_endpgm")
        body = a.finalize()
        hdr = open(os.path.join(os.path.dirname(os.path.abspath(__file__)), 'header.txt')).read()
        out = hdr
        out += f"; @launch grid=(256,1,1) block=(512,1,1) lds={LDS_BYTES}\n"
        out += f""".amdgcn_target "amdgcn-amd-amdhsa--gfx950"
.text
.globl {NAME}_kernel
.p2align 8
.type {NAME}_kernel,@function
{NAME}_kernel:
"""
        out += body
        out += f""".section .rodata,"a"
.p2align 6
.amdhsa_kernel {NAME}_kernel
  .amdhsa_next_free_vgpr 256
  .amdhsa_next_free_sgpr 102
  .amdhsa_accum_offset 256
  .amdhsa_group_segment_fixed_size 0
  .amdhsa_kernarg_size 112
  .amdhsa_user_sgpr_count 2
  .amdhsa_user_sgpr_kernarg_segment_ptr 1
  .amdhsa_system_sgpr_workgroup_id_x 1
.end_amdhsa_kernel
"""
        return out

if __name__ == '__main__':
    cfg = Cfg()
    outp = f"cdna_kernels/{NAME}.s"
    for arg in sys.argv[1:]:
        if arg.startswith('-o='): outp = arg[3:]
        elif '=' in arg:
            k, val = arg.split('=')
            setattr(cfg, k, type(getattr(cfg, k))(int(val)) if isinstance(getattr(cfg, k), (bool, int)) else val)
    g = Gen(cfg)
    txt = g.build()
    open(outp, 'w').write(txt)
    print("wrote", outp, "lines", txt.count('\n'), "nops inserted", g.a.ninserted)
```

```python
import sys, os, struct
sys.path.insert(0, os.path.dirname(os.path.abspath(__file__)))
from asmlib import Asm, v, s

NAME = "concat_heads__sliding_block_cached__compressed_kv_cla__decode"

class Cfg:
    nt_stream = True
    nt_w = True
    n1_ckv = 6
    spin_limit = 300000
    stamps = False

Q1   = 0x000000
QABS = 0x080000
QM   = 0x090000
EPOCH= 0x0A0000
OP   = 0x100000
OM   = 0x180000
BM   = 0x1C0000
BPART= 0x200000
OUTP = 0x600000
STMP = 0x900000
WS_SIZE = 268435456

IMG = 0
SCR = 131072
R1 = SCR; R2 = SCR + 8192; QL = SCR + 12288; QAL = SCR + 12800
QIMG = SCR
SX = SCR; MX = SCR + 16384; LS = SCR + 17408; PB = SCR + 18432
OW = SCR; ML = SCR + 8192
CW = SCR; CT = SCR + 4096
XL = SCR + 12288 + 1024; RL = SCR + 12288 + 2048
LDS_BYTES = 163840

S_W = 3; S_J = 4; S_TYPE = 5; S_H = 6; S_RQ = 7; S_T = 8
S_B = 9; S_S = 10; S_G = 11
S_PLO = 12; S_PHI = 13; S_SC = 14
P_AX, P_AK, P_AV, P_AWQ, P_AWO, P_BX, P_CKV, P_BWQ = 16, 18, 20, 22, 24, 26, 28, 30
P_WUK, P_WUV, P_BWO, P_OUT = 32, 34, 36, 38
P_DBG, P_WS = 40, 42
SRD_X = 44; SRD_W = 48; SRD_ST = 52; SRD_V = 56; SRD_WO = 60; SRD_WS = 64; SRD_U = 68; SRD_OUT = 72
ST = 76
S_CNT = 99
S_PB = 16
V_L, V_G4, V_N16, V_RS = 1, 2, 3, 4

SCALE_LOG2E = 0.08838834764831845 * 1.4426950408889634
def f32hex(x): return '0x%08x' % struct.unpack('<I', struct.pack('<f', x))[0]

class Gen:
    def __init__(self, cfg):
        self.c = cfg
        self.a = Asm()
        self.nstamp = 0

    def srd(self, dst, ptr, size):
        a = self.a
        a(f"s_mov_b32 {s(dst)}, {s(ptr)}")
        a(f"s_and_b32 {s(dst+1)}, {s(ptr+1)}, 0xffff")
        a(f"s_mov_b32 {s(dst+2)}, {size}")
        a(f"s_mov_b32 {s(dst+3)}, 0x20000")
    def srd_sel(self, dst, ptrA, ptrB, sizeA, sizeB):
        a = self.a
        a(f"s_cmp_eq_u32 {s(S_TYPE)}, 0")
        a(f"s_cselect_b32 {s(dst)}, {s(ptrA)}, {s(ptrB)}")
        a(f"s_cselect_b32 {s(dst+1)}, {s(ptrA+1)}, {s(ptrB+1)}")
        if sizeA == sizeB:
            a(f"s_mov_b32 {s(dst+2)}, {sizeA}")
        else:
            a(f"s_mov_b32 {s(dst+2)}, {sizeB}")
            a(f"s_cselect_b32 {s(dst+2)}, {sizeA}, {s(dst+2)}")
        a(f"s_and_b32 {s(dst+1)}, {s(dst+1)}, 0xffff")
        a(f"s_mov_b32 {s(dst+3)}, 0x20000")
    def set_exec(self, mask):
        a = self.a
        if mask == -1 or mask == (1<<64)-1:
            a("s_mov_b64 exec, -1"); return
        a(f"s_mov_b32 exec_lo, 0x{mask & 0xffffffff:08x}")
        a(f"s_mov_b32 exec_hi, 0x{mask >> 32:08x}")
    def ntw(self): return ' nt' if self.c.nt_w else ''
    def nts(self): return ' nt' if self.c.nt_stream else ''

    STSLOT = [86,87,88,89,90,91,92,93,94,95,32,33,34,35,36,37]
    def stamp(self, idx):
        if not self.c.stamps: return
        a = self.a
        a(f"s_memrealtime s[96:97]")
        a(f"s_waitcnt lgkmcnt(0)")
        a(f"s_mov_b32 s{self.STSLOT[idx]}, s96")
    def stamp_dump(self):
        if not self.c.stamps: return
        a = self.a
        a("v_mov_b32 v59, 0")
        for i, r in enumerate(self.STSLOT):
            a(f"v_writelane_b32 v59, s{r}, {i}")
        a(f"s_lshl_b32 s98, s2, 3")
        a(f"s_add_u32 s98, s98, {s(S_W)}")
        a(f"s_lshl_b32 s98, s98, 6")
        a(f"s_add_u32 s98, s98, {STMP}")
        a(f"v_lshlrev_b32 v58, 2, {v(V_L)}")
        self.set_exec(0xffff)
        a(f"buffer_store_dword v59, v58, {s(SRD_WS,4)}, s98 offen")
        self.set_exec(-1)

    def half_perm(self, L, F):
        a = self.a
        for i in range(4):
            for jj in range(2):
                lo = L + (2*jj)*4 + i; hi = L + (2*jj+1)*4 + i
                a(f"v_perm_b32 {v(F + (2*i)*2 + jj)}, {v(hi)}, {v(lo)}, {s(S_PLO)}")
                a(f"v_perm_b32 {v(F + (2*i+1)*2 + jj)}, {v(hi)}, {v(lo)}, {s(S_PHI)}")
    def full_perm(self, L, F):
        a = self.a
        for i in range(4):
            for jj in range(4):
                lo = L + (2*jj)*4 + i; hi = L + (2*jj+1)*4 + i
                a(f"v_perm_b32 {v(F + (2*i)*4 + jj)}, {v(hi)}, {v(lo)}, {s(S_PLO)}")
                a(f"v_perm_b32 {v(F + (2*i+1)*4 + jj)}, {v(hi)}, {v(lo)}, {s(S_PHI)}")
    def half_mfma(self, ACC, AF, F, first):
        a = self.a
        for c in range(8):
            cin = '0' if first else v(ACC + 4*c, 4)
            a(f"v_mfma_f32_16x16x16_bf16 {v(ACC+4*c,4)}, {v(AF,2)}, {v(F+2*c,2)}, {cin}")
    def xrow(self, op, x, t):
        a = self.a
        a(f"v_mov_b32 {v(t)}, {v(x)}")
        a(f"v_permlane16_swap_b32 {v(x)}, {v(t)}")
        a(f"{op} {v(x)}, {v(x)}, {v(t)}")
        a(f"v_mov_b32 {v(t)}, {v(x)}")
        a(f"v_permlane32_swap_b32 {v(x)}, {v(t)}")
        a(f"{op} {v(x)}, {v(x)}, {v(t)}")
    def xhalf(self, op, x, t):
        a = self.a
        a(f"v_mov_b32 {v(t)}, {v(x)}")
        a(f"v_permlane32_swap_b32 {v(x)}, {v(t)}")
        a(f"{op} {v(x)}, {v(x)}, {v(t)}")
    def inrow(self, op, x):
        a = self.a
        for r in (8, 4, 2, 1):
            a(f"{op}_dpp {v(x)}, {v(x)}, {v(x)} row_ror:{r} row_mask:0xf bank_mask:0xf")
    def barrier(self):
        self.a("s_waitcnt lgkmcnt(0)")
        self.a("s_barrier")

    def spin_scalar(self, load_fn, ok_fn):
        a = self.a
        L = a.newlabel('SP'); D = a.newlabel('SD')
        a(f"s_mov_b32 {s(S_CNT)}, 0")
        a.label(L)
        load_fn()
        a("s_waitcnt lgkmcnt(0)")
        ok_fn()
        a(f"s_cbranch_scc1 {D}")
        a(f"s_add_u32 {s(S_CNT)}, {s(S_CNT)}, 1")
        a(f"s_cmp_lt_u32 {s(S_CNT)}, {self.c.spin_limit}")
        a(f"s_cbranch_scc1 {L}")
        a.label(D)

    def retry_vec(self, load_fn, check_fn, first_wait, sleep=0):
        a = self.a
        C = a.newlabel('RC'); D = a.newlabel('RD')
        a(f"s_mov_b32 {s(S_CNT)}, 0")
        a(first_wait)
        a.label(C)
        check_fn()
        a("s_cmp_eq_u64 vcc, exec")
        a(f"s_cbranch_scc1 {D}")
        a(f"s_add_u32 {s(S_CNT)}, {s(S_CNT)}, 1")
        a(f"s_cmp_ge_u32 {s(S_CNT)}, {self.c.spin_limit}")
        a(f"s_cbranch_scc1 {D}")
        if sleep: a(f"s_sleep {sleep}")
        load_fn()
        a("s_waitcnt vmcnt(0)")
        a(f"s_branch {C}")
        a.label(D)

    def write_acc_rows(self, ACC, base, tmp=5):
        a = self.a
        a(f"v_and_b32 {v(tmp)}, 1, {v(V_G4)}")
        a(f"v_lshlrev_b32 {v(tmp)}, 9, {v(tmp)}")
        a(f"v_lshl_add_u32 {v(tmp)}, {v(V_N16)}, 5, {v(tmp)}")
        a(f"s_lshl_b32 {s(ST)}, {s(S_W)}, 10")
        a(f"s_add_u32 {s(ST)}, {s(ST)}, {base}")
        a(f"v_add_u32 {v(tmp)}, {s(ST)}, {v(tmp)}")
        for c in range(0, 8, 2):
            a(f"ds_write2_b32 {v(tmp)}, {v(ACC+4*c)}, {v(ACC+4*c+4)} offset0:{c} offset1:{c+1}")

    def checksum4(self, Q, X, t):
        a = self.a
        for j in range(4):
            q = Q + 4*j
            a(f"v_xor_b32 {v(t+j)}, {v(q)}, {v(q+1)}")
            a(f"v_xor_b32 {v(X)}, {v(q+2)}, {v(q+3)}")
            a(f"v_xor_b32 {v(t+j)}, {v(t+j)}, {v(X)}")
        for r in (8, 4, 2, 1):
            for j in range(4):
                a(f"v_xor_b32_dpp {v(t+j)}, {v(t+j)}, {v(t+j)} row_ror:{r} row_mask:0xf bank_mask:0xf")
        a(f"v_and_b32 {v(X)}, 1, {v(V_N16)}")
        a(f"v_cmp_eq_u32 vcc, 1, {v(X)}")
        a(f"v_cndmask_b32 {v(t)}, {v(t)}, {v(t+1)}, vcc")
        a(f"v_cndmask_b32 {v(t+2)}, {v(t+2)}, {v(t+3)}, vcc")
        a(f"v_and_b32 {v(X)}, 2, {v(V_N16)}")
        a(f"v_cmp_eq_u32 vcc, 2, {v(X)}")
        a(f"v_cndmask_b32 {v(X)}, {v(t)}, {v(t+2)}, vcc")

    def prologue(self):
        a = self.a
        a("s_cmp_ge_u32 s2, 256")
        a("s_cbranch_scc1 L_EXIT")
        a("s_load_dwordx16 s[16:31], s[0:1], 0")
        a("s_load_dwordx8 s[32:39], s[0:1], 64")
        a("s_load_dwordx4 s[40:43], s[0:1], 96")
        a("v_lshrrev_b32 v5, 6, v0")
        a(f"v_and_b32 {v(V_L)}, 63, v0")
        a(f"v_readfirstlane_b32 {s(S_W)}, v5")
        a(f"v_lshrrev_b32 {v(V_G4)}, 4, {v(V_L)}")
        a(f"v_and_b32 {v(V_N16)}, 15, {v(V_L)}")
        a(f"v_bfe_u32 {v(V_RS)}, {v(V_N16)}, 2, 1")
        a(f"s_and_b32 {s(ST+2)}, s2, 7")
        a(f"s_lshr_b32 {s(ST+3)}, s2, 3")
        a(f"s_and_b32 {s(S_TYPE)}, {s(ST+3)}, 1")
        a(f"s_lshr_b32 {s(ST+3)}, {s(ST+3)}, 1")
        a(f"s_lshl_b32 {s(S_J)}, {s(ST+2)}, 4")
        a(f"s_add_u32 {s(S_J)}, {s(S_J)}, {s(ST+3)}")
        a(f"s_lshr_b32 {s(S_H)}, {s(S_J)}, 2")
        a(f"s_and_b32 {s(S_RQ)}, {s(S_J)}, 3")
        a(f"s_mov_b32 {s(S_PLO)}, 0x05040100")
        a(f"s_mov_b32 {s(S_PHI)}, 0x07060302")
        a(f"s_mov_b32 {s(S_SC)}, {f32hex(SCALE_LOG2E)}")
        a("s_waitcnt lgkmcnt(0)")
        a(f"s_lshl_b32 {s(ST)}, {s(S_TYPE)}, 8")
        a(f"s_add_u32 {s(ST)}, {s(ST)}, {EPOCH}")
        a(f"s_load_dword {s(S_T)}, {s(P_WS,2)}, {s(ST)}")
        if self.c.stamps:
            for r in self.STSLOT[:10]: a(f"s_mov_b32 s{r}, 0")
        self.srd_sel(SRD_X, P_AX, P_BX, 2304, 2304)
        self.srd_sel(SRD_W, P_AWQ, P_BWQ, 4718592, 4718592)
        self.srd(SRD_WS, P_WS, WS_SIZE)
        self.stamp(0)

    def srds_rest(self):
        self.srd_sel(SRD_WO, P_AWO, P_BWO, 4718592, 4718592)
        self.srd_sel(SRD_ST, P_AK, P_CKV, 67108864, 16777216)
        self.srd_sel(SRD_V, P_AV, P_WUV, 67108864, 4194304)
        self.srd(SRD_U, P_WUK, 4194304)
        self.srd(SRD_OUT, P_OUT, 4608)
        if self.c.stamps:
            for r in self.STSLOT[10:]: self.a(f"s_mov_b32 s{r}, 0")

    XF, XF2, L1, L2, F1, ACC1 = 16, 18, 20, 36, 52, 68
    def p1_loads(self):
        a = self.a
        V_WQ, V_X = 5, 6
        a(f"v_lshlrev_b32 {v(V_WQ)}, 15, {v(V_G4)}")
        a(f"v_lshl_add_u32 {v(V_WQ)}, {v(V_N16)}, 4, {v(V_WQ)}")
        a(f"v_mul_u32_u24 {v(V_X)}, 1152, {v(V_RS)}")
        a(f"v_lshl_add_u32 {v(V_X)}, {v(V_G4)}, 3, {v(V_X)}")
        def loads(u_const, XFr, Lr):
            t = ST
            a(f"s_mul_i32 {s(t)}, {s(S_RQ)}, 144")
            if u_const is not None:
                a(f"s_add_u32 {s(t)}, {s(t)}, {16*u_const}")
            else:
                a(f"s_lshl_b32 {s(t+1)}, {s(S_W)}, 4")
                a(f"s_add_u32 {s(t)}, {s(t)}, {s(t+1)}")
            a(f"s_lshl_b32 {s(t+1)}, {s(t)}, 1")
            a(f"buffer_load_dwordx2 {v(XFr,2)}, {v(V_X)}, {s(SRD_X,4)}, {s(t+1)} offen")
            a(f"s_lshl_b32 {s(t)}, {s(t)}, 13")
            a(f"s_lshl_b32 {s(t+1)}, {s(S_H)}, 8")
            a(f"s_add_u32 {s(t)}, {s(t)}, {s(t+1)}")
            for jr in range(4):
                a(f"buffer_load_dwordx4 {v(Lr+4*jr,4)}, {v(V_WQ)}, {s(SRD_W,4)}, {s(t)} offen{self.ntw()}")
                if jr < 3: a(f"s_add_u32 {s(t)}, {s(t)}, 8192")
        LX = a.newlabel('LX')
        a(f"s_cmp_lg_u32 {s(S_W)}, 0")
        a(f"s_cbranch_scc1 {LX}")
        loads(8, self.XF2, self.L2)
        a.label(LX)
        loads(None, self.XF, self.L1)

    def p1_compute(self, first=True):
        a = self.a
        self.half_perm(self.L1, self.F1)
        self.half_mfma(self.ACC1, self.XF, self.F1, True)
        LY = a.newlabel('LY')
        a(f"s_cmp_lg_u32 {s(S_W)}, 0")
        a(f"s_cbranch_scc1 {LY}")
        self.half_perm(self.L2, self.L1)
        self.half_mfma(self.ACC1, self.XF2, self.L1, False)
        a.label(LY)
        self.write_acc_rows(self.ACC1, R1)
        self.barrier()
        if first: a(f"s_add_u32 {s(S_T)}, {s(S_T)}, 0x9e3779b9")
        LZ = a.newlabel('LZ')
        a(f"s_cmp_ge_u32 {s(S_W)}, 4")
        a(f"s_cbranch_scc1 {LZ}")
        a(f"v_lshlrev_b32 v5, 2, v0")
        a(f"v_add_u32 v5, {R1}, v5")
        for w in range(8):
            a(f"ds_read_b32 {v(20+w)}, v5 offset:{w*1024}")
        a(f"s_lshl_b32 {s(ST)}, {s(S_TYPE)}, 7")
        a(f"s_add_u32 {s(ST)}, {s(ST)}, {s(S_J)}")
        a(f"s_lshl_b32 {s(ST)}, {s(ST)}, 11")
        a(f"s_add_u32 {s(ST)}, {s(ST)}, {Q1}" if Q1 else "s_nop 0")
        a(f"v_lshlrev_b32 v6, 3, v0")
        a("s_waitcnt lgkmcnt(0)")
        a("v_add_f32 v20, v20, v21"); a("v_add_f32 v22, v22, v23"); a("v_add_f32 v24, v24, v25"); a("v_add_f32 v26, v26, v27")
        a("v_add_f32 v20, v20, v22"); a("v_add_f32 v24, v24, v26")
        a("v_add_f32 v20, v20, v24")
        a(f"v_mov_b32 v21, {s(S_T)}")
        a(f"buffer_store_dwordx2 v[20:21], v6, {s(SRD_WS,4)}, {s(ST)} offen sc0 sc1")
        a.label(LZ)

    def p2_gather(self, isA, after_issue, nafter):
        a = self.a
        t = ST
        if isA:
            a(f"s_lshr_b32 {s(t)}, {s(S_J)}, 3")
            a(f"s_lshl_b32 {s(t)}, {s(t)}, 1")
            a(f"s_lshr_b32 {s(t+1)}, {s(S_W)}, 2")
            a(f"s_add_u32 {s(t)}, {s(t)}, {s(t+1)}")
            a(f"s_bfe_u32 {s(t+2)}, {s(S_J)}, 0x10002")
        else:
            a(f"s_add_u32 {s(t)}, {s(S_H)}, 32")
            a(f"s_lshr_b32 {s(t+2)}, {s(S_W)}, 2")
        a(f"s_lshl_b32 {s(t)}, {s(t)}, 2")
        a(f"s_and_b32 {s(t+1)}, {s(S_W)}, 3")
        a(f"s_add_u32 {s(t)}, {s(t)}, {s(t+1)}")
        a(f"s_lshl_b32 {s(t)}, {s(t)}, 11")
        a(f"s_lshl_b32 {s(t+2)}, {s(t+2)}, 10")
        a(f"s_add_u32 {s(t)}, {s(t)}, {s(t+2)}")
        if Q1: a(f"s_add_u32 {s(t)}, {s(t)}, {Q1}")
        a(f"s_add_u32 {s(t+1)}, {s(t)}, {127*8}")
        self.spin_scalar(lambda: a(f"s_load_dwordx2 {s(S_PB,2)}, {s(P_WS,2)}, {s(t+1)} glc"),
                         lambda: a(f"s_cmp_eq_u32 {s(S_PB+1)}, {s(S_T)}"))
        G = 8
        a(f"v_lshlrev_b32 v5, 4, {v(V_L)}")
        ld = lambda: a(f"buffer_load_dwordx4 {v(G,4)}, v5, {s(SRD_WS,4)}, {s(t)} offen sc0 sc1")
        ld()
        a(f"s_mov_b32 {s(t+4)}, {s(t)}")
        after_issue()
        ld2 = lambda: (a(f"v_lshlrev_b32 v5, 4, {v(V_L)}"), a(f"buffer_load_dwordx4 {v(G,4)}, v5, {s(SRD_WS,4)}, {s(t+4)} offen sc0 sc1"))
        def chk():
            a(f"v_cmp_eq_u32 vcc, {s(S_T)}, {v(G+1)}")
            a(f"v_cmp_eq_u32 {s(S_PB,2)}, {s(S_T)}, {v(G+3)}")
            a(f"s_and_b64 vcc, vcc, {s(S_PB,2)}")
        self.retry_vec(ld2, chk, f"s_waitcnt vmcnt({nafter})")
        a(f"s_lshl_b32 {s(t)}, {s(S_W)}, 9")
        a(f"s_add_u32 {s(t)}, {s(t)}, {R2}")
        a(f"v_lshlrev_b32 v5, 3, {v(V_L)}")
        a(f"v_add_u32 v5, {s(t)}, v5")
        a(f"ds_write2_b32 v5, {v(G)}, {v(G+2)} offset0:0 offset1:1")
        self.barrier()
        LQ = a.newlabel('LQ')
        a(f"s_cmp_ge_u32 {s(S_W)}, 2")
        a(f"s_cbranch_scc1 {LQ}")
        a(f"s_lshl_b32 {s(t)}, {s(S_W)}, 11")
        a(f"s_add_u32 {s(t)}, {s(t)}, {R2}")
        a(f"v_lshlrev_b32 v5, 3, {v(V_L)}")
        a(f"v_add_u32 v5, {s(t)}, v5")
        for r in range(4):
            a(f"ds_read_b64 {v(8+2*r,2)}, v5 offset:{r*512}")
        a(f"s_lshl_b32 {s(t)}, {s(S_W)}, 8")
        a(f"s_add_u32 {s(t)}, {s(t)}, {QL}")
        a(f"v_lshlrev_b32 v5, 2, {v(V_L)}")
        a(f"v_add_u32 v5, {s(t)}, v5")
        a("s_waitcnt lgkmcnt(0)")
        a("v_add_f32 v8, v8, v10"); a("v_add_f32 v9, v9, v11"); a("v_add_f32 v12, v12, v14"); a("v_add_f32 v13, v13, v15")
        a("v_add_f32 v8, v8, v12"); a("v_add_f32 v9, v9, v13")
        a("v_cvt_pk_bf16_f32 v8, v8, v9")
        a("ds_write_b32 v5, v8")
        a.label(LQ)
        self.barrier()

    def read_q_frags(self, QF):
        a = self.a
        a(f"v_lshlrev_b32 v5, 8, {v(V_RS)}")
        a(f"v_lshl_add_u32 v5, {v(V_G4)}, 4, v5")
        a(f"v_add_u32 v5, {QL}, v5")
        for i in range(4):
            a(f"ds_read_b128 {v(QF+4*i,4)}, v5 offset:{i*64}")

    def wo_loads(self, L, Lx):
        a = self.a; t = ST
        a(f"v_lshrrev_b32 v5, 3, {v(V_N16)}")
        a(f"v_lshlrev_b32 v5, 2, v5")
        a(f"v_add_u32 v5, v5, {v(V_G4)}")
        a(f"v_mul_u32_u24 v5, {4*1152}, v5")
        a(f"v_and_b32 v6, 7, {v(V_N16)}")
        a(f"v_lshl_add_u32 v5, v6, 4, v5")
        a(f"s_mul_i32 {s(t)}, {s(S_J)}, {32*1152}")
        LX = a.newlabel('WX')
        a(f"s_cmp_lg_u32 {s(S_W)}, 0")
        a(f"s_cbranch_scc1 {LX}")
        a(f"s_add_u32 {s(t+1)}, {s(t)}, {8*128}")
        for jr in range(4):
            a(f"buffer_load_dwordx4 {v(Lx+4*jr,4)}, v5, {s(SRD_WO,4)}, {s(t+1)} offen offset:{jr*1152}{self.ntw()}")
        a.label(LX)
        a(f"s_lshl_b32 {s(t+1)}, {s(S_W)}, 7")
        a(f"s_add_u32 {s(t+1)}, {s(t+1)}, {s(t)}")
        for jr in range(4):
            a(f"buffer_load_dwordx4 {v(L+4*jr,4)}, v5, {s(SRD_WO,4)}, {s(t+1)} offen offset:{jr*1152}{self.ntw()}")

    def a_roles(self):
        a = self.a
        a(f"s_lshr_b32 {s(S_G)}, {s(S_J)}, 3")
        a(f"s_bfe_u32 {s(S_B)}, {s(S_J)}, 0x10002")
        a(f"s_and_b32 {s(S_S)}, {s(S_J)}, 3")
        t = ST + 8
        a(f"s_lshl_b32 {s(t)}, {s(S_B)}, 4")
        a(f"s_add_u32 {s(t)}, {s(t)}, {s(S_G)}")
        a(f"s_lshl_b32 {s(t)}, {s(t)}, 13")
        a(f"s_lshl_b32 {s(t+1)}, {s(S_S)}, 9")
        a(f"s_add_u32 {s(t)}, {s(t)}, {s(t+1)}")
        a(f"s_add_u32 {s(t)}, {s(t)}, 6144")
        a(f"s_lshl_b32 {s(t)}, {s(t)}, 8")
        a(f"s_lshl_b32 {s(t+1)}, {s(S_W)}, 14")
        a(f"s_add_u32 {s(15)}, {s(t)}, {s(t+1)}")
    def a_kdma(self):
        a = self.a; t = ST
        a(f"v_xor_b32 v7, {v(V_N16)}, {v(V_G4)}")
        a(f"v_lshlrev_b32 v7, 4, v7")
        a(f"v_lshl_add_u32 v7, {v(V_G4)}, 8, v7")
        for k in range(1, 4):
            a(f"v_xor_b32 {v(7+k)}, {k<<6}, v7")
        a(f"s_lshl_b32 {s(t)}, {s(S_W)}, 14")
        for kk in range(4):
            a(f"s_add_u32 m0, {s(t)}, {IMG + kk*4096}")
            a(f"s_add_u32 {s(t+1)}, s15, {kk*4096}")
            for k in range(4):
                a(f"buffer_load_dwordx4 {v(7+k)}, {s(SRD_ST,4)}, {s(t+1)} offen offset:{k*1024}{self.nts()} lds")

    def a_main(self):
        a = self.a; t = ST
        QF, KF, S, VL, WL, WLX, F, ACC = 16, 32, 64, 96, 160, 176, 192, 224
        def after():
            self.wo_extra_pending = None
            a(f"v_lshlrev_b32 v6, 10, {v(V_G4)}")
            a(f"v_lshl_add_u32 v6, {v(V_N16)}, 4, v6")
            for u in range(2):
                for j in range(8):
                    if j % 4 == 0:
                        a(f"s_add_u32 {s(t)}, s15, {(32*u + 16*(j>>2))*256}")
                    a(f"buffer_load_dwordx4 {v(VL + 32*u + 4*j,4)}, v6, {s(SRD_V,4)}, {s(t)} offen offset:{(j&3)*256}{self.nts()}")
            self.wo_loads(WL, WLX)
        self.p2_gather(True, after, 16 + 4)
        self.stamp(3)
        self.read_q_frags(QF)
        a(f"v_xor_b32 v5, {v(V_N16)}, {v(V_G4)}")
        a(f"v_lshlrev_b32 v5, 4, v5")
        a(f"v_lshl_add_u32 v5, {v(V_N16)}, 8, v5")
        a(f"s_lshl_b32 {s(t)}, {s(S_W)}, 14")
        a(f"v_add_u32 v5, {s(t)}, v5")
        for i in range(1, 4):
            a(f"v_xor_b32 {v(5+i)}, {i<<6}, v5")
        def kread(tt, dst):
            for i in range(4):
                a(f"ds_read_b128 {v(dst+4*i,4)}, {v(5+i)} offset:{IMG + tt*4096}")
        kread(0, KF); kread(1, KF+16)
        for tt in range(4):
            cur = KF + 16*(tt & 1)
            a(f"s_waitcnt lgkmcnt({4 if tt < 3 else 0})")
            for i in range(4):
                cin = '0' if i == 0 else v(S+4*tt,4)
                a(f"v_mfma_f32_16x16x32_bf16 {v(S+4*tt,4)}, {v(cur+4*i,4)}, {v(QF+4*i,4)}, {cin}")
            if tt + 2 < 4:
                kread(tt+2, cur)
        M, Lsum, T1 = 10, 11, 12
        a(f"v_max3_f32 {v(M)}, {v(S)}, {v(S+1)}, {v(S+2)}")
        for r in range(3, 15, 2):
            a(f"v_max3_f32 {v(M)}, {v(M)}, {v(S+r)}, {v(S+r+1)}")
        a(f"v_max_f32 {v(M)}, {v(M)}, {v(S+15)}")
        self.xrow('v_max_f32', M, T1)
        a(f"v_mul_f32 {v(M)}, {s(S_SC)}, {v(M)}")
        for r in range(16):
            a(f"v_fma_f32 {v(S+r)}, {v(S+r)}, {s(S_SC)}, -{v(M)}")
        for r in range(16):
            a(f"v_exp_f32 {v(S+r)}, {v(S+r)}")
        a(f"v_add_f32 {v(Lsum)}, {v(S)}, {v(S+1)}")
        for r in range(2, 16):
            a(f"v_add_f32 {v(Lsum)}, {v(Lsum)}, {v(S+r)}")
        self.xrow('v_add_f32', Lsum, T1)
        PF = 32
        for u in range(2):
            for q in range(4):
                a(f"v_cvt_pk_bf16_f32 {v(PF+4*u+q)}, {v(S+8*u+2*q)}, {v(S+8*u+2*q+1)}")
        self.stamp(4)
        for u in range(2):
            a(f"s_waitcnt vmcnt({(8 if u == 0 else 0) + 4})")
            self.full_perm(VL+32*u, F)
            for c in range(8):
                cin = '0' if u == 0 else v(ACC+4*c,4)
                a(f"v_mfma_f32_16x16x32_bf16 {v(ACC+4*c,4)}, {v(PF+4*u,4)}, {v(F+4*c,4)}, {cin}")
        self.stamp(5)
        a(f"s_lshl_b32 {s(t)}, {s(S_W)}, 4")
        a(f"s_add_u32 {s(t)}, {s(t)}, {ML}")
        a(f"v_lshlrev_b32 v5, 3, {v(V_RS)}")
        a(f"v_add_u32 v5, {s(t)}, v5")
        a(f"ds_write_b64 v5, {v(M,2)}")
        self.write_acc_rows(ACC, OW)
        self.barrier()
        LZ = a.newlabel('AZ')
        a(f"s_cmp_ge_u32 {s(S_W)}, 4")
        a(f"s_cbranch_scc1 {LZ}")
        a(f"v_lshlrev_b32 v5, 2, v0")
        a(f"v_add_u32 v5, {OW}, v5")
        for w in range(8):
            a(f"ds_read_b32 {v(20+w)}, v5 offset:{w*1024}")
        a(f"s_lshr_b32 {s(t)}, {s(S_W)}, 1")
        a(f"s_lshl_b32 {s(t+1)}, {s(t)}, 3")
        a(f"s_add_u32 {s(t+1)}, {s(t+1)}, {ML}")
        a(f"v_mov_b32 v6, {s(t+1)}")
        for w in range(8):
            a(f"ds_read_b64 {v(32+2*w,2)}, v6 offset:{w*16}")
        a(f"s_lshl_b32 {s(t+2)}, {s(S_G)}, 1")
        a(f"s_add_u32 {s(t+2)}, {s(t+2)}, {s(t)}")
        a(f"s_lshl_b32 {s(t+3)}, {s(t+2)}, 2")
        a(f"s_add_u32 {s(t+3)}, {s(t+3)}, {s(S_S)}")
        a(f"s_lshl_b32 {s(t+3)}, {s(t+3)}, 1")
        a(f"s_add_u32 {s(t+3)}, {s(t+3)}, {s(S_B)}")
        a(f"s_lshl_b32 {s(t+3)}, {s(t+3)}, 10")
        a(f"s_add_u32 {s(t+3)}, {s(t+3)}, {OP}")
        a(f"s_lshl_b32 {s(t+2)}, {s(t+2)}, 1")
        a(f"s_add_u32 {s(t+2)}, {s(t+2)}, {s(S_B)}")
        a(f"s_lshl_b32 {s(t+2)}, {s(t+2)}, 2")
        a(f"s_add_u32 {s(t+2)}, {s(t+2)}, {s(S_S)}")
        a(f"s_lshl_b32 {s(t+2)}, {s(t+2)}, 4")
        a(f"s_add_u32 {s(t+2)}, {s(t+2)}, {OM}")
        a(f"v_and_b32 v6, 127, v0")
        a(f"v_lshlrev_b32 v6, 3, v6")
        a("s_waitcnt lgkmcnt(0)")
        a("v_max3_f32 v8, v32, v34, v36"); a("v_max3_f32 v8, v8, v38, v40"); a("v_max3_f32 v8, v8, v42, v44"); a("v_max_f32 v8, v8, v46")
        for w in range(8):
            a(f"v_sub_f32 {v(32+2*w)}, {v(32+2*w)}, v8")
        for w in range(8):
            a(f"v_exp_f32 {v(32+2*w)}, {v(32+2*w)}")
        a("v_mul_f32 v12, v20, v32"); a("v_mul_f32 v9, v33, v32")
        for w in range(1, 8):
            a(f"v_fmac_f32 v12, {v(20+w)}, {v(32+2*w)}")
            a(f"v_fmac_f32 v9, {v(33+2*w)}, {v(32+2*w)}")
        a(f"v_mov_b32 v13, {s(S_T)}")
        a(f"buffer_store_dwordx2 v[12:13], v6, {s(SRD_WS,4)}, {s(t+3)} offen sc0 sc1")
        a(f"v_mov_b32 v10, {s(S_T)}")
        a(f"v_mov_b32 v11, 0")
        a(f"v_mov_b32 v6, 0")
        a(f"s_bitcmp1_b32 {s(S_W)}, 0")
        a(f"s_cbranch_scc1 {LZ}")
        a("s_mov_b64 exec, 1")
        a(f"buffer_store_dwordx4 v[8:11], v6, {s(SRD_WS,4)}, {s(t+2)} offen sc0 sc1")
        a("s_mov_b64 exec, -1")
        a.label(LZ)
        self.stamp(6)
        self.tail(WL, WLX)

    WUK = 100
    def b_roles(self):
        a = self.a
        a(f"s_lshr_b32 {s(S_B)}, {s(S_J)}, 6")
        a(f"s_and_b32 {s(S_S)}, {s(S_J)}, 63")
        t = ST + 8
        a(f"s_lshl_b32 {s(t)}, {s(S_J)}, 17")
        a(f"s_lshl_b32 {s(t+1)}, {s(S_W)}, 14")
        a(f"s_add_u32 s15, {s(t)}, {s(t+1)}")
    def ckv_dma(self, k0, k1):
        a = self.a; t = ST
        a(f"v_lshlrev_b32 v248, 4, {v(V_L)}")
        a(f"s_lshl_b32 {s(t)}, {s(S_W)}, 14")
        for k in range(k0, k1):
            f = ((k & 3) << 2) | ((k >> 2) & 3)
            a(f"v_xor_b32 v249, {f<<4}, v248")
            a(f"s_add_u32 m0, {s(t)}, {IMG + k*1024}")
            a(f"s_add_u32 {s(t+1)}, s15, {k*1024}")
            a(f"buffer_load_dwordx4 v249, {s(SRD_ST,4)}, {s(t+1)} offen{self.nts()} lds")
    def b_pre(self):
        a = self.a; t = ST
        a(f"v_lshlrev_b32 v7, 13, {v(V_N16)}")
        a(f"v_lshl_add_u32 v7, {v(V_G4)}, 4, v7")
        a(f"s_lshl_b32 {s(t)}, {s(S_RQ)}, 7")
        a(f"s_lshl_b32 {s(t+1)}, {s(S_W)}, 4")
        a(f"s_add_u32 {s(t)}, {s(t)}, {s(t+1)}")
        a(f"s_lshl_b32 {s(t)}, {s(t)}, 13")
        a(f"s_lshl_b32 {s(t+1)}, {s(S_H)}, 8")
        a(f"s_add_u32 {s(t)}, {s(t)}, {s(t+1)}")
        for i in range(4):
            a(f"buffer_load_dwordx4 {v(self.WUK+4*i,4)}, v7, {s(SRD_U,4)}, {s(t)} offen offset:{i*64}{self.ntw()}")
        self.ckv_dma(0, self.c.n1_ckv)

    def b_main(self):
        a = self.a; t = ST; c = self.c
        QF = 16
        self.p2_gather(False, lambda: self.ckv_dma(c.n1_ckv, 16), 16 - c.n1_ckv)
        self.stamp(3)
        self.read_q_frags(QF)
        a("s_waitcnt lgkmcnt(0)")
        AQ = 32
        for i in range(4):
            cin = '0' if i == 0 else v(AQ,4)
            a(f"v_mfma_f32_16x16x32_bf16 {v(AQ,4)}, {v(QF+4*i,4)}, {v(self.WUK+4*i,4)}, {cin}")
        a(f"v_and_b32 v5, 1, {v(V_G4)}")
        a(f"v_lshlrev_b32 v5, 8, v5")
        a(f"v_lshl_add_u32 v5, {v(V_N16)}, 1, v5")
        a(f"s_lshl_b32 {s(t)}, {s(S_W)}, 5")
        a(f"s_add_u32 {s(t)}, {s(t)}, {QAL}")
        a(f"v_add_u32 v5, {s(t)}, v5")
        a(f"v_cvt_pk_bf16_f32 v6, {v(AQ)}, {v(AQ)}")
        a(f"ds_write_b16 v5, v6")
        self.barrier()
        LP = a.newlabel('BP')
        a(f"s_cmp_lg_u32 {s(S_W)}, 0")
        a(f"s_cbranch_scc1 {LP}")
        a(f"v_and_b32 v5, 1, {v(V_G4)}")
        a(f"v_lshlrev_b32 v6, 8, v5")
        a(f"v_lshl_add_u32 v6, {v(V_N16)}, 4, v6")
        a(f"v_add_u32 v6, {QAL}, v6")
        a(f"ds_read_b128 v[8:11], v6")
        a(f"v_lshlrev_b32 v6, 15, v5")
        a(f"v_lshl_add_u32 v6, {v(V_N16)}, 4, v6")
        a(f"s_lshl_b32 {s(t)}, {s(S_J)}, 8")
        a(f"s_add_u32 {s(t)}, {s(t)}, {QABS}")
        a(f"v_lshlrev_b32 v7, 10, v5")
        a(f"v_lshl_add_u32 v7, {v(V_N16)}, 11, v7")
        a(f"s_lshl_b32 {s(t+1)}, {s(S_J)}, 3")
        a(f"s_add_u32 {s(t+1)}, {s(t+1)}, {QM}")
        a("s_waitcnt lgkmcnt(0)")
        a("v_xor_b32 v12, v8, v9"); a("v_xor_b32 v13, v10, v11"); a("v_xor_b32 v12, v12, v13")
        self.inrow('v_xor_b32', 12)
        a(f"v_mov_b32 v13, {s(S_T)}")
        self.set_exec(0xffffffff)
        a(f"buffer_store_dwordx4 v[8:11], v6, {s(SRD_WS,4)}, {s(t)} offen sc0 sc1")
        self.set_exec(0x00ff00ff)
        a(f"buffer_store_dwordx2 v[12:13], v7, {s(SRD_WS,4)}, {s(t+1)} offen sc0 sc1")
        a("s_mov_b64 exec, -1")
        a.label(LP)
        self.barrier()
        self.stamp(4)
        WUVL, WL, WLX = 192, 208, 224
        GQ, GM = 32, 48
        a(f"s_lshl_b32 {s(t)}, {s(S_B)}, 10")
        a(f"s_lshl_b32 {s(t+1)}, {s(S_W)}, 7")
        a(f"s_add_u32 {s(t)}, {s(t)}, {s(t+1)}")
        a(f"s_and_b32 {s(t+1)}, {s(S_S)}, 7")
        a(f"s_lshl_b32 {s(t+1)}, {s(t+1)}, 11")
        a(f"s_add_u32 {s(t)}, {s(t)}, {s(t+1)}")
        a(f"s_add_u32 {s(t)}, {s(t)}, {QM}")
        for half in range(2):
            a(f"s_add_u32 {s(t+1)}, {s(t)}, {64*half}")
            def okf():
                a(f"s_xor_b32 {s(t+2)}, {s(S_PB+1)}, {s(S_T)}")
                for i in range(1, 8):
                    a(f"s_xor_b32 {s(t+3)}, {s(S_PB+2*i+1)}, {s(S_T)}")
                    a(f"s_or_b32 {s(t+2)}, {s(t+2)}, {s(t+3)}")
                a(f"s_cmp_eq_u32 {s(t+2)}, 0")
            self.spin_scalar(lambda: a(f"s_load_dwordx16 {s(S_PB,16)}, {s(P_WS,2)}, {s(t+1)} glc"), okf)
        a(f"s_mov_b32 {s(t+5)}, {s(t)}")
        a(f"s_lshl_b32 {s(t+4)}, {s(S_B)}, 15")
        a(f"s_lshl_b32 {s(t+1)}, {s(S_W)}, 12")
        a(f"s_add_u32 {s(t+4)}, {s(t+4)}, {s(t+1)}")
        a(f"s_add_u32 {s(t+4)}, {s(t+4)}, {QABS}")
        def ldq():
            a(f"v_lshlrev_b32 v5, 4, {v(V_L)}")
            for j in range(4):
                a(f"buffer_load_dwordx4 {v(GQ+4*j,4)}, v5, {s(SRD_WS,4)}, {s(t+4)} offen offset:{j*1024} sc0 sc1")
            a(f"v_and_b32 v6, 3, {v(V_N16)}")
            a(f"v_lshlrev_b32 v6, 5, v6")
            a(f"v_lshl_add_u32 v6, {v(V_G4)}, 3, v6")
            a(f"buffer_load_dwordx2 {v(GM,2)}, v6, {s(SRD_WS,4)}, {s(t+5)} offen sc0 sc1")
        ldq()
        a(f"v_lshlrev_b32 v7, 15, {v(V_G4)}")
        a(f"v_lshl_add_u32 v7, {v(V_N16)}, 4, v7")
        a(f"s_lshl_b32 {s(t)}, {s(S_RQ)}, 7")
        a(f"s_lshl_b32 {s(t+1)}, {s(S_W)}, 4")
        a(f"s_add_u32 {s(t)}, {s(t)}, {s(t+1)}")
        a(f"s_lshl_b32 {s(t)}, {s(t)}, 13")
        a(f"s_lshl_b32 {s(t+1)}, {s(S_H)}, 8")
        a(f"s_add_u32 {s(t)}, {s(t)}, {s(t+1)}")
        for jr in range(4):
            a(f"buffer_load_dwordx4 {v(WUVL+4*jr,4)}, v7, {s(SRD_V,4)}, {s(t)} offen{self.ntw()}")
            if jr < 3: a(f"s_add_u32 {s(t)}, {s(t)}, 8192")
        self.wo_loads(WL, WLX)
        def chkq():
            self.checksum4(GQ, 12, 8)
            a(f"v_cmp_eq_u32 vcc, v12, {v(GM)}")
            a(f"v_cmp_eq_u32 {s(S_PB,2)}, {s(S_T)}, {v(GM+1)}")
            a(f"s_and_b64 vcc, vcc, {s(S_PB,2)}")
        self.retry_vec(ldq, chkq, "s_waitcnt vmcnt(8)")
        for j in range(4):
            a(f"s_and_b32 {s(t)}, {s(S_W)}, 3")
            a(f"s_lshl_b32 {s(t)}, {s(t)}, 2")
            a(f"s_add_u32 {s(t)}, {s(t)}, {j}")
            a(f"s_lshl_b32 {s(t)}, {s(t)}, 4")
            a(f"v_lshlrev_b32 v5, 4, {v(V_L)}")
            a(f"v_xor_b32 v5, {s(t)}, v5")
            a(f"s_lshl_b32 {s(t+1)}, {s(S_W)}, 12")
            a(f"s_add_u32 {s(t+1)}, {s(t+1)}, {QIMG + j*1024}")
            a(f"v_add_u32 v5, {s(t+1)}, v5")
            a(f"ds_write_b128 v5, {v(GQ+4*j,4)}")
        self.barrier()
        self.stamp(5)
        AF, BF, SA = 128, 64, 16
        N32, HI = 8, 9
        a(f"v_and_b32 {v(N32)}, 31, {v(V_L)}")
        a(f"v_lshrrev_b32 {v(HI)}, 5, {v(V_L)}")
        a(f"s_and_b32 {s(t)}, {s(S_W)}, 3")
        a(f"s_lshr_b32 {s(t+1)}, {s(S_W)}, 2")
        a(f"v_and_b32 v5, 3, {v(N32)}")
        a(f"v_lshlrev_b32 v5, 2, v5")
        a(f"v_bfe_u32 v6, {v(N32)}, 2, 2")
        a(f"v_or_b32 v5, v5, v6")
        a(f"v_xor_b32 v5, v5, {v(HI)}")
        a(f"v_lshlrev_b32 v5, 4, v5")
        a(f"v_lshl_add_u32 v5, {v(N32)}, 10, v5")
        a(f"s_lshl_b32 {s(t+2)}, {s(t)}, 15")
        a(f"s_lshl_b32 {s(t+3)}, {s(t+1)}, 9")
        a(f"s_add_u32 {s(t+2)}, {s(t+2)}, {s(t+3)}")
        a(f"v_add_u32 v5, {s(t+2)}, v5")
        a(f"v_and_b32 v6, 15, {v(N32)}")
        a(f"v_xor_b32 v6, v6, {v(HI)}")
        a(f"v_lshlrev_b32 v6, 4, v6")
        a(f"v_lshl_add_u32 v6, {v(N32)}, 10, v6")
        a(f"s_add_u32 {s(t+3)}, {s(t+3)}, {QIMG}")
        a(f"v_add_u32 v6, {s(t+3)}, v6")
        for i in range(16):
            x = ((2*i) & 15) << 4
            if x == 0:
                ra, rb = 5, 6
            else:
                a(f"v_xor_b32 v10, {x}, v5"); a(f"v_xor_b32 v11, {x}, v6"); ra, rb = 10, 11
            off = 256 if i >= 8 else 0
            a(f"ds_read_b128 {v(AF+4*i,4)}, {v(ra)} offset:{off}")
            a(f"ds_read_b128 {v(BF+4*i,4)}, {v(rb)} offset:{off}")
        for i in range(16):
            rem = 30 - 2*i
            a(f"s_waitcnt lgkmcnt({min(rem,15)})")
            cin = '0' if i == 0 else v(SA,16)
            a(f"v_mfma_f32_32x32x16_bf16 {v(SA,16)}, {v(AF+4*i,4)}, {v(BF+4*i,4)}, {cin}")
        self.barrier()
        SK = 32
        a(f"s_lshl_b32 {s(t+2)}, {s(S_W)}, 11")
        a(f"s_add_u32 {s(t+2)}, {s(t+2)}, {SX}")
        a(f"v_lshlrev_b32 v5, 4, {v(V_L)}")
        a(f"v_add_u32 v5, {s(t+2)}, v5")
        a(f"s_xor_b32 {s(t+3)}, {s(S_W)}, 4")
        a(f"s_lshl_b32 {s(t+3)}, {s(t+3)}, 11")
        a(f"s_add_u32 {s(t+3)}, {s(t+3)}, {SX}")
        a(f"v_lshlrev_b32 v6, 4, {v(V_L)}")
        a(f"v_add_u32 v6, {s(t+3)}, v6")
        LC1 = a.newlabel('CH'); LC2 = a.newlabel('CH')
        a(f"s_cmp_eq_u32 {s(t+1)}, 0")
        a(f"s_cbranch_scc0 {LC1}")
        a(f"ds_write_b128 v5, {v(SA+8,4)}"); a(f"ds_write_b128 v5, {v(SA+12,4)} offset:1024")
        for r in range(8): a(f"v_mov_b32 {v(SK+r)}, {v(SA+r)}")
        a(f"s_branch {LC2}")
        a.label(LC1)
        a(f"ds_write_b128 v5, {v(SA,4)}"); a(f"ds_write_b128 v5, {v(SA+4,4)} offset:1024")
        for r in range(8): a(f"v_mov_b32 {v(SK+r)}, {v(SA+8+r)}")
        a.label(LC2)
        self.barrier()
        a(f"ds_read_b128 {v(40,4)}, v6"); a(f"ds_read_b128 {v(44,4)}, v6 offset:1024")
        a("s_waitcnt lgkmcnt(0)")
        for r in range(8): a(f"v_add_f32 {v(SK+r)}, {v(SK+r)}, {v(40+r)}")
        M, Lsum, T1 = 10, 11, 12
        a(f"v_max3_f32 {v(M)}, {v(SK)}, {v(SK+1)}, {v(SK+2)}")
        a(f"v_max3_f32 {v(M)}, {v(M)}, {v(SK+3)}, {v(SK+4)}")
        a(f"v_max3_f32 {v(M)}, {v(M)}, {v(SK+5)}, {v(SK+6)}")
        a(f"v_max_f32 {v(M)}, {v(M)}, {v(SK+7)}")
        self.xhalf('v_max_f32', M, T1)
        a(f"s_lshl_b32 {s(t+2)}, {s(S_W)}, 7")
        a(f"s_add_u32 {s(t+2)}, {s(t+2)}, {MX}")
        a(f"v_lshlrev_b32 v5, 2, {v(N32)}")
        a(f"v_add_u32 v6, {s(t+2)}, v5")
        a(f"ds_write_b32 v6, {v(M)}")
        self.barrier()
        a(f"v_add_u32 v6, {MX}, v5")
        for w in range(8):
            a(f"ds_read_b32 {v(40+w)}, v6 offset:{w*128}")
        a("s_waitcnt lgkmcnt(0)")
        a(f"v_max3_f32 {v(M)}, v40, v41, v42"); a(f"v_max3_f32 {v(M)}, {v(M)}, v43, v44"); a(f"v_max3_f32 {v(M)}, {v(M)}, v45, v46"); a(f"v_max_f32 {v(M)}, {v(M)}, v47")
        a(f"v_mul_f32 {v(M)}, {s(S_SC)}, {v(M)}")
        for r in range(8): a(f"v_fma_f32 {v(SK+r)}, {v(SK+r)}, {s(S_SC)}, -{v(M)}")
        for r in range(8): a(f"v_exp_f32 {v(SK+r)}, {v(SK+r)}")
        a(f"v_add_f32 {v(Lsum)}, {v(SK)}, {v(SK+1)}")
        for r in range(2, 8): a(f"v_add_f32 {v(Lsum)}, {v(Lsum)}, {v(SK+r)}")
        self.xhalf('v_add_f32', Lsum, T1)
        for q in range(4): a(f"v_cvt_pk_bf16_f32 {v(40+q)}, {v(SK+2*q)}, {v(SK+2*q+1)}")
        a(f"s_lshl_b32 {s(t+2)}, {s(t)}, 1")
        a(f"s_add_u32 {s(t+2)}, {s(t+2)}, {s(t+1)}")
        a(f"s_lshl_b32 {s(t+2)}, {s(t+2)}, 10")
        a(f"s_add_u32 {s(t+2)}, {s(t+2)}, {PB}")
        a(f"v_lshlrev_b32 v6, 4, {v(V_L)}")
        a(f"v_add_u32 v6, {s(t+2)}, v6")
        a(f"ds_write_b128 v6, {v(40,4)}")
        a(f"s_lshl_b32 {s(t+2)}, {s(S_W)}, 7")
        a(f"s_add_u32 {s(t+2)}, {s(t+2)}, {LS}")
        a(f"v_add_u32 v6, {s(t+2)}, v5")
        a(f"ds_write_b32 v6, {v(Lsum)}")
        self.barrier()
        self.stamp(6)
        ACC2, PF, TR = 64, 96, 128
        a(f"v_lshlrev_b32 v6, 4, {v(V_L)}")
        a(f"v_add_u32 v6, {PB}, v6")
        for ks in range(8):
            a(f"ds_read_b128 {v(PF+4*ks,4)}, v6 offset:{ks*1024}")
        a(f"v_add_u32 v6, {LS}, v5")
        for w in range(8):
            a(f"ds_read_b32 {v(40+w)}, v6 offset:{w*128}")
        a(f"v_lshrrev_b32 v5, 2, {v(V_N16)}")
        a(f"v_lshlrev_b32 v6, 2, v5")
        a(f"v_or_b32 v6, v6, {v(HI)}")
        a(f"v_and_b32 v7, 1, {v(V_G4)}")
        a(f"v_lshlrev_b32 v7, 1, v7")
        a(f"v_bfe_u32 v13, {v(V_N16)}, 1, 1")
        a(f"v_or_b32 v7, v7, v13")
        a(f"s_and_b32 {s(t+2)}, {s(S_W)}, 1")
        a(f"s_lshl_b32 {s(t+2)}, {s(t+2)}, 3")
        a(f"v_or_b32 v7, {s(t+2)}, v7")
        a(f"v_xor_b32 v6, v6, v7")
        a(f"v_lshlrev_b32 v6, 4, v6")
        a(f"v_and_b32 v7, 1, {v(V_N16)}")
        a(f"v_lshl_add_u32 v6, v7, 3, v6")
        a(f"v_lshl_add_u32 v5, {v(HI)}, 2, v5")
        a(f"v_lshl_add_u32 v6, v5, 10, v6")
        a(f"s_lshr_b32 {s(t+2)}, {s(S_W)}, 1")
        a(f"s_lshl_b32 {s(t+2)}, {s(t+2)}, 8")
        a(f"v_add_u32 v48, {s(t+2)}, v6")
        a(f"v_xor_b32 v49, 64, v48")
        a(f"v_xor_b32 v50, 32, v48")
        a(f"v_add_u32 v50, 8192, v50")
        a(f"v_xor_b32 v51, 64, v50")
        for r in range(4): a(f"v_add_u32 {v(52+r)}, 0x10000, {v(48+r)}")
        def trread(ks):
            base = 48 if ks < 4 else 52
            off = (ks & 3) * 16384
            d = TR + 8*ks
            for tt in range(2):
                a(f"ds_read_b64_tr_b16 {v(d+4*tt,2)}, {v(base+tt)} offset:{off}")
                a(f"ds_read_b64_tr_b16 {v(d+4*tt+2,2)}, {v(base+2+tt)} offset:{off}")
        for ks in range(3): trread(ks)
        for ks in range(8):
            if ks + 3 < 8:
                a("s_waitcnt lgkmcnt(8)")
            else:
                a(f"s_waitcnt lgkmcnt({4*(7-ks)})")
            for tt in range(2):
                cin = '0' if ks == 0 else v(ACC2+16*tt,16)
                a(f"v_mfma_f32_32x32x16_bf16 {v(ACC2+16*tt,16)}, {v(TR+8*ks+4*tt,4)}, {v(PF+4*ks,4)}, {cin}")
            if ks + 3 < 8: trread(ks+3)
        a("v_add_f32 v40, v40, v41"); a("v_add_f32 v42, v42, v43"); a("v_add_f32 v44, v44, v45"); a("v_add_f32 v46, v46, v47")
        a("v_add_f32 v40, v40, v42"); a("v_add_f32 v44, v44, v46")
        a(f"v_add_f32 {v(Lsum)}, v40, v44")
        a(f"v_rcp_f32 v13, {v(Lsum)}")
        self.barrier()
        self.stamp(7)
        for r in range(32): a(f"v_mul_f32 {v(ACC2+r)}, {v(ACC2+r)}, v13")
        for tt in range(2):
            for q in range(4):
                r0 = ACC2 + 16*tt + 4*q
                a(f"v_cvt_pk_bf16_f32 {v(r0)}, {v(r0)}, {v(r0+1)}")
                a(f"v_cvt_pk_bf16_f32 {v(r0+1)}, {v(r0+2)}, {v(r0+3)}")
        a(f"v_and_b32 v5, 15, {v(N32)}")
        a(f"s_and_b32 {s(t+2)}, {s(S_W)}, 1")
        a(f"s_lshl_b32 {s(t+2)}, {s(t+2)}, 3")
        a(f"v_xor_b32 v5, {s(t+2)}, v5")
        a(f"v_lshlrev_b32 v5, 4, v5")
        a(f"v_lshl_add_u32 v5, {v(HI)}, 3, v5")
        a(f"v_lshl_add_u32 v5, {v(N32)}, 10, v5")
        a(f"s_lshr_b32 {s(t+2)}, {s(S_W)}, 1")
        a(f"s_lshl_b32 {s(t+2)}, {s(t+2)}, 8")
        a(f"v_add_u32 v5, {s(t+2)}, v5")
        for tt in range(2):
            for q in range(4):
                x = (4*tt + q) << 4
                r0 = ACC2 + 16*tt + 4*q
                if x:
                    a(f"v_xor_b32 v6, {x}, v5"); ra = 6
                else: ra = 5
                a(f"ds_write_b64 {v(ra)}, {v(r0,2)}")
        a(f"v_lshlrev_b32 v6, 3, {v(N32)}")
        a(f"v_add_u32 v6, {MX}, v6")
        a(f"ds_write_b64 v6, {v(M,2)}")
        self.barrier()
        OR = 32
        for j in range(4):
            a(f"s_and_b32 {s(t+2)}, {s(S_W)}, 3")
            a(f"s_lshl_b32 {s(t+2)}, {s(t+2)}, 2")
            a(f"s_add_u32 {s(t+2)}, {s(t+2)}, {j}")
            a(f"s_lshl_b32 {s(t+2)}, {s(t+2)}, 4")
            a(f"v_lshlrev_b32 v5, 4, {v(V_L)}")
            a(f"v_xor_b32 v5, {s(t+2)}, v5")
            a(f"s_lshl_b32 {s(t+3)}, {s(S_W)}, 12")
            a(f"s_add_u32 {s(t+3)}, {s(t+3)}, {j*1024}")
            a(f"v_add_u32 v5, {s(t+3)}, v5")
            a(f"ds_read_b128 {v(OR+4*j,4)}, v5")
        a(f"v_and_b32 v6, 3, {v(V_N16)}")
        a(f"s_lshl_b32 {s(t+2)}, {s(S_W)}, 5")
        a(f"s_add_u32 {s(t+2)}, {s(t+2)}, {MX}")
        a(f"v_lshlrev_b32 v7, 3, v6")
        a(f"v_add_u32 v7, {s(t+2)}, v7")
        a(f"ds_read_b64 v[48:49], v7")
        a(f"s_lshl_b32 {s(t+2)}, {s(S_J)}, 15")
        a(f"s_lshl_b32 {s(t+3)}, {s(S_W)}, 12")
        a(f"s_add_u32 {s(t+2)}, {s(t+2)}, {s(t+3)}")
        a(f"s_add_u32 {s(t+2)}, {s(t+2)}, {BPART}")
        a(f"v_lshlrev_b32 v5, 4, {v(V_L)}")
        a("s_waitcnt lgkmcnt(0)")
        for j in range(4):
            a(f"buffer_store_dwordx4 {v(OR+4*j,4)}, v5, {s(SRD_WS,4)}, {s(t+2)} offen offset:{j*1024} sc0 sc1")
        self.checksum4(OR, 50, 8)
        a(f"v_mov_b32 v51, {s(S_T)}")
        a(f"v_lshlrev_b32 v6, 2, v6")
        a(f"v_add_u32 v6, v6, {v(V_G4)}")
        a(f"v_lshlrev_b32 v6, 11, v6")
        a(f"s_lshl_b32 {s(t+2)}, {s(S_W)}, 15")
        a(f"s_lshl_b32 {s(t+3)}, {s(S_J)}, 4")
        a(f"s_add_u32 {s(t+2)}, {s(t+2)}, {s(t+3)}")
        a(f"s_add_u32 {s(t+2)}, {s(t+2)}, {BM}")
        self.set_exec(0x000f000f000f000f)
        a(f"buffer_store_dwordx4 v[48:51], v6, {s(SRD_WS,4)}, {s(t+2)} offen sc0 sc1")
        a("s_mov_b64 exec, -1")
        self.stamp(8)
        WUVF = 240
        a("s_waitcnt vmcnt(5)")
        self.half_perm(WUVL, WUVF)
        DL, DM, DF, ACC = 16, 32, 36, 64
        a(f"s_lshl_b32 {s(t+4)}, {s(S_W)}, 4")
        a(f"s_lshl_b32 {s(t+4)}, {s(t+4)}, 15")
        a(f"s_lshl_b32 {s(t+2)}, {s(S_J)}, 8")
        a(f"s_add_u32 {s(t+4)}, {s(t+4)}, {s(t+2)}")
        a(f"s_add_u32 {s(t+4)}, {s(t+4)}, {BPART}")
        a(f"s_lshl_b32 {s(t+5)}, {s(S_J)}, 1")
        a(f"s_lshr_b32 {s(t+2)}, {s(S_W)}, 2")
        a(f"s_add_u32 {s(t+5)}, {s(t+5)}, {s(t+2)}")
        a(f"s_lshl_b32 {s(t+5)}, {s(t+5)}, 10")
        a(f"s_add_u32 {s(t+5)}, {s(t+5)}, {BM}")
        def ldp():
            a(f"v_lshlrev_b32 v5, 4, {v(V_L)}")
            a(f"buffer_load_dwordx4 {v(DM,4)}, v5, {s(SRD_WS,4)}, {s(t+5)} offen sc0 sc1")
            a(f"v_lshlrev_b32 v5, 17, {v(V_G4)}")
            a(f"v_lshl_add_u32 v5, {v(V_N16)}, 4, v5")
            for j in range(4):
                a(f"s_add_u32 {s(t+2)}, {s(t+4)}, {j*32768}")
                a(f"buffer_load_dwordx4 {v(DL+4*j,4)}, v5, {s(SRD_WS,4)}, {s(t+2)} offen sc0 sc1")
        def chkp():
            self.checksum4(DL, 12, 8)
            a(f"v_and_b32 v5, 3, {v(V_N16)}")
            a(f"v_lshl_add_u32 v5, {v(V_G4)}, 2, v5")
            a(f"s_and_b32 {s(t+2)}, {s(S_W)}, 3")
            a(f"s_lshl_b32 {s(t+2)}, {s(t+2)}, 4")
            a(f"v_add_u32 v5, {s(t+2)}, v5")
            a(f"v_lshlrev_b32 v5, 2, v5")
            a(f"ds_bpermute_b32 v6, v5, {v(DM+2)}")
            a("s_waitcnt lgkmcnt(0)")
            a(f"v_cmp_eq_u32 vcc, v12, v6")
            a(f"v_cmp_eq_u32 {s(S_PB,2)}, {s(S_T)}, {v(DM+3)}")
            a(f"s_and_b64 vcc, vcc, {s(S_PB,2)}")
        ldp()
        self.retry_vec(ldp, chkp, "s_waitcnt vmcnt(0)", sleep=1)
        self.stamp(9)
        self.half_perm(DL, DF)
        a(f"v_mov_b32 v8, {v(DM)}")
        self.inrow('v_max_f32', 8); self.xrow('v_max_f32', 8, 9)
        a(f"v_sub_f32 v8, {v(DM)}, v8")
        a(f"v_exp_f32 v8, v8")
        a(f"v_mul_f32 v8, v8, {v(DM+1)}")
        a(f"v_mov_b32 v10, v8")
        self.inrow('v_add_f32', 10); self.xrow('v_add_f32', 10, 9)
        a(f"v_rcp_f32 v10, v10")
        a(f"v_mul_f32 v8, v8, v10")
        a(f"s_and_b32 {s(t+2)}, {s(S_W)}, 3")
        a(f"s_lshl_b32 {s(t+2)}, {s(t+2)}, 6")
        a(f"v_lshlrev_b32 v5, 4, {v(V_G4)}")
        a(f"v_add_u32 v5, {s(t+2)}, v5")
        for j in range(4):
            if j: a(f"v_add_u32 v6, {4*j}, v5")
            a(f"ds_bpermute_b32 {v(12+j)}, {v(6 if j else 5)}, v8")
        a("s_waitcnt lgkmcnt(0)")
        self.hilo_frag(12, 52)
        self.half_mfma(ACC, 52, DF, True)
        for cc in range(8): a(f"v_add_f32 {v(ACC+4*cc)}, {v(ACC+4*cc)}, {v(ACC+4*cc+1)}")
        a(f"s_lshl_b32 {s(t+2)}, {s(S_W)}, 9")
        a(f"s_add_u32 {s(t+2)}, {s(t+2)}, {CW}")
        a(f"v_lshlrev_b32 v5, 5, {v(V_N16)}")
        a(f"v_add_u32 v5, {s(t+2)}, v5")
        self.set_exec(0xffff)
        for cc in range(0, 8, 2):
            a(f"ds_write2_b32 v5, {v(ACC+4*cc)}, {v(ACC+4*cc+4)} offset0:{cc} offset1:{cc+1}")
        a("s_mov_b64 exec, -1")
        self.barrier()
        a(f"v_lshlrev_b32 v5, 11, {v(V_RS)}")
        a(f"v_lshl_add_u32 v5, {v(V_G4)}, 4, v5")
        a(f"s_lshl_b32 {s(t+2)}, {s(S_W)}, 6")
        a(f"s_add_u32 {s(t+2)}, {s(t+2)}, {CW}")
        a(f"v_add_u32 v5, {s(t+2)}, v5")
        for q in range(4):
            a(f"ds_read_b128 {v(16+4*q,4)}, v5 offset:{q*512}")
        a("s_waitcnt lgkmcnt(0)")
        for j in range(4):
            a(f"v_add_f32 {v(16+j)}, {v(16+j)}, {v(20+j)}")
            a(f"v_add_f32 {v(24+j)}, {v(24+j)}, {v(28+j)}")
            a(f"v_add_f32 {v(12+j)}, {v(16+j)}, {v(24+j)}")
        self.hilo_frag(12, 52)
        self.half_mfma(ACC, 52, WUVF, True)
        for cc in range(8): a(f"v_add_f32 {v(ACC+4*cc)}, {v(ACC+4*cc)}, {v(ACC+4*cc+1)}")
        self.write_acc_rows(ACC, CT)
        self.barrier()
        LZ = a.newlabel('BZ')
        a(f"s_cmp_ge_u32 {s(S_W)}, 4")
        a(f"s_cbranch_scc1 {LZ}")
        a(f"v_lshlrev_b32 v5, 2, v0")
        a(f"v_add_u32 v5, {CT}, v5")
        for w in range(8):
            a(f"ds_read_b32 {v(20+w)}, v5 offset:{w*1024}")
        a(f"s_add_u32 {s(t+2)}, {s(S_J)}, 128")
        a(f"s_lshl_b32 {s(t+2)}, {s(t+2)}, 11")
        a(f"s_add_u32 {s(t+2)}, {s(t+2)}, {OP}")
        a(f"s_add_u32 {s(t+3)}, {s(S_H)}, 32")
        a(f"s_lshl_b32 {s(t+3)}, {s(t+3)}, 1")
        a(f"s_lshr_b32 {s(t+4)}, {s(S_W)}, 1")
        a(f"s_add_u32 {s(t+3)}, {s(t+3)}, {s(t+4)}")
        a(f"s_lshl_b32 {s(t+3)}, {s(t+3)}, 2")
        a(f"s_add_u32 {s(t+3)}, {s(t+3)}, {s(S_RQ)}")
        a(f"s_lshl_b32 {s(t+3)}, {s(t+3)}, 4")
        a(f"s_add_u32 {s(t+3)}, {s(t+3)}, {OM}")
        a(f"v_lshlrev_b32 v6, 3, v0")
        a("s_waitcnt lgkmcnt(0)")
        a("v_add_f32 v20, v20, v21"); a("v_add_f32 v22, v22, v23"); a("v_add_f32 v24, v24, v25"); a("v_add_f32 v26, v26, v27")
        a("v_add_f32 v20, v20, v22"); a("v_add_f32 v24, v24, v26")
        a("v_add_f32 v20, v20, v24")
        a(f"v_mov_b32 v21, {s(S_T)}")
        a(f"buffer_store_dwordx2 v[20:21], v6, {s(SRD_WS,4)}, {s(t+2)} offen sc0 sc1")
        a(f"v_mov_b32 v8, 0"); a(f"v_mov_b32 v9, 0.25"); a(f"v_mov_b32 v10, {s(S_T)}"); a("v_mov_b32 v11, 0")
        a(f"v_mov_b32 v6, 0")
        a(f"s_bitcmp1_b32 {s(S_W)}, 0")
        a(f"s_cbranch_scc1 {LZ}")
        a("s_mov_b64 exec, 1")
        a(f"buffer_store_dwordx4 v[8:11], v6, {s(SRD_WS,4)}, {s(t+3)} offen sc0 sc1")
        a("s_mov_b64 exec, -1")
        a.label(LZ)
        self.stamp(10)
        self.tail(WL, WLX)

    def hilo_frag(self, X, OUT):
        a = self.a
        a(f"v_cvt_pk_bf16_f32 {v(OUT)}, {v(X)}, {v(X+1)}")
        a(f"v_cvt_pk_bf16_f32 {v(OUT+1)}, {v(X+2)}, {v(X+3)}")
        a(f"v_lshlrev_b32 v8, 16, {v(OUT)}");   a(f"v_sub_f32 {v(X)}, {v(X)}, v8")
        a(f"v_and_b32 v8, 0xffff0000, {v(OUT)}"); a(f"v_sub_f32 {v(X+1)}, {v(X+1)}, v8")
        a(f"v_lshlrev_b32 v8, 16, {v(OUT+1)}"); a(f"v_sub_f32 {v(X+2)}, {v(X+2)}, v8")
        a(f"v_and_b32 v8, 0xffff0000, {v(OUT+1)}"); a(f"v_sub_f32 {v(X+3)}, {v(X+3)}, v8")
        a(f"v_cvt_pk_bf16_f32 v8, {v(X)}, {v(X+1)}")
        a(f"v_cvt_pk_bf16_f32 v9, {v(X+2)}, {v(X+3)}")
        a(f"v_and_b32 v10, 1, {v(V_N16)}")
        a(f"v_cmp_eq_u32 vcc, 1, v10")
        a(f"v_cndmask_b32 {v(OUT)}, {v(OUT)}, v8, vcc")
        a(f"v_cndmask_b32 {v(OUT+1)}, {v(OUT+1)}, v9, vcc")

    def tail(self, WL, WLX):
        a = self.a; t = ST
        WF, WFX, ACC, ACCX = 16, 32, 64, 96
        a("s_waitcnt vmcnt(0)")
        self.half_perm(WL, WF)
        LX = a.newlabel('TX')
        a(f"s_cmp_lg_u32 {s(S_W)}, 0")
        a(f"s_cbranch_scc1 {LX}")
        self.half_perm(WLX, WFX)
        a.label(LX)
        LG = a.newlabel('TG')
        a(f"s_cmp_ge_u32 {s(S_W)}, 2")
        a(f"s_cbranch_scc1 {LG}")
        a(f"s_lshl_b32 {s(t+4)}, {s(S_TYPE)}, 5")
        a(f"s_add_u32 {s(t+4)}, {s(t+4)}, {s(S_H)}")
        a(f"s_lshl_b32 {s(t+5)}, {s(t+4)}, 1")
        a(f"s_add_u32 {s(t+5)}, {s(t+5)}, {s(S_W)}")
        a(f"s_lshl_b32 {s(t+5)}, {s(t+5)}, 6")
        a(f"s_add_u32 {s(t+5)}, {s(t+5)}, {OM}")
        a(f"s_lshl_b32 {s(t+4)}, {s(t+4)}, 13")
        a(f"s_lshl_b32 {s(t+2)}, {s(S_W)}, 10")
        a(f"s_add_u32 {s(t+4)}, {s(t+4)}, {s(t+2)}")
        a(f"s_lshl_b32 {s(t+2)}, {s(S_RQ)}, 8")
        a(f"s_add_u32 {s(t+4)}, {s(t+4)}, {s(t+2)}")
        a(f"s_add_u32 {s(t+4)}, {s(t+4)}, {OP}")
        def ldt():
            a(f"v_lshlrev_b32 v5, 11, {v(V_G4)}")
            a(f"v_lshl_add_u32 v5, {v(V_N16)}, 4, v5")
            a(f"buffer_load_dwordx4 v[48:51], v5, {s(SRD_WS,4)}, {s(t+4)} offen sc0 sc1")
            a(f"v_lshlrev_b32 v5, 4, {v(V_G4)}")
            a(f"buffer_load_dwordx4 v[52:55], v5, {s(SRD_WS,4)}, {s(t+5)} offen sc0 sc1")
        def chkt():
            a(f"v_cmp_eq_u32 vcc, {s(S_T)}, v49")
            a(f"v_cmp_eq_u32 {s(S_PB,2)}, {s(S_T)}, v51")
            a(f"s_and_b64 vcc, vcc, {s(S_PB,2)}")
            a(f"v_cmp_eq_u32 {s(S_PB,2)}, {s(S_T)}, v54")
            a(f"s_and_b64 vcc, vcc, {s(S_PB,2)}")
        ldt()
        self.retry_vec(ldt, chkt, "s_waitcnt vmcnt(0)", sleep=1)
        a("v_mov_b32 v8, v52")
        self.xrow('v_max_f32', 8, 9)
        a("v_sub_f32 v8, v52, v8")
        a("v_exp_f32 v8, v8")
        a("v_mul_f32 v10, v8, v53")
        a("v_mul_f32 v12, v8, v48")
        a("v_mul_f32 v13, v8, v50")
        self.xrow('v_add_f32', 10, 9); self.xrow('v_add_f32', 12, 9); self.xrow('v_add_f32', 13, 9)
        a("v_rcp_f32 v10, v10")
        a("v_mul_f32 v12, v12, v10"); a("v_mul_f32 v13, v13, v10")
        a("v_cvt_pk_bf16_f32 v14, v12, v13")
        a("v_lshlrev_b32 v8, 16, v14"); a("v_sub_f32 v12, v12, v8")
        a("v_and_b32 v8, 0xffff0000, v14"); a("v_sub_f32 v13, v13, v8")
        a("v_cvt_pk_bf16_f32 v15, v12, v13")
        a(f"v_and_b32 v8, 1, {v(V_G4)}")
        a("v_cmp_eq_u32 vcc, 1, v8")
        a("v_cndmask_b32 v14, v14, v15, vcc")
        a(f"v_lshlrev_b32 v5, 6, v8")
        a(f"v_lshl_add_u32 v5, {v(V_N16)}, 2, v5")
        a(f"s_lshl_b32 {s(t+2)}, {s(S_W)}, 7")
        a(f"s_add_u32 {s(t+2)}, {s(t+2)}, {XL}")
        a(f"v_add_u32 v5, {s(t+2)}, v5")
        a("ds_write_b32 v5, v14")
        a.label(LG)
        self.barrier()
        self.stamp(11)
        a(f"v_lshlrev_b32 v5, 7, {v(V_RS)}")
        a(f"v_and_b32 v6, 1, {v(V_N16)}")
        a(f"v_lshl_add_u32 v5, v6, 6, v5")
        a(f"v_bfe_u32 v6, {v(V_N16)}, 1, 1")
        a(f"v_lshl_add_u32 v5, v6, 5, v5")
        a(f"v_lshl_add_u32 v5, {v(V_G4)}, 3, v5")
        a(f"v_add_u32 v5, {XL}, v5")
        a(f"ds_read_b64 v[48:49], v5")
        a("s_waitcnt lgkmcnt(0)")
        def outputs(ACCr, WFr, cg_const):
            self.half_mfma(ACCr, 48, WFr, True)
            a(f"v_cmp_gt_u32 vcc, 8, {v(V_N16)}")
            for cc in range(8):
                r = ACCr + 4*cc
                a(f"v_add_f32 {v(r)}, {v(r)}, {v(r+1)}")
                a(f"v_add_f32 {v(r+2)}, {v(r+2)}, {v(r+3)}")
            for cc in range(8):
                r = ACCr + 4*cc
                a(f"v_cndmask_b32 {v(r)}, {v(r+2)}, {v(r)}, vcc")
            for cc in range(8):
                r = ACCr + 4*cc
                a(f"v_add_f32_dpp {v(r)}, {v(r)}, {v(r)} row_ror:8 row_mask:0xf bank_mask:0xf")
            for cc in range(0, 8, 2):
                r = ACCr + 4*cc
                a(f"v_mov_b32 {v(r+2)}, {v(r+4)}")
                a(f"v_mov_b32 {v(r+1)}, {s(S_T)}")
                a(f"v_mov_b32 {v(r+3)}, {s(S_T)}")
            a(f"v_and_b32 v5, 1, {v(V_G4)}")
            a(f"v_mul_u32_u24 v5, {18*128*256}, v5")
            a(f"v_bfe_u32 v6, {v(V_N16)}, 2, 1")
            a(f"v_lshl_add_u32 v5, v6, 15, v5")
            a(f"v_and_b32 v6, 3, {v(V_N16)}")
            a(f"v_lshl_add_u32 v5, v6, 6, v5")
            a(f"s_mul_i32 {s(t+2)}, {s(S_TYPE)}, {2*18*128*256}")
            if cg_const is None:
                a(f"s_lshl_b32 {s(t+3)}, {s(S_W)}, 16")
                a(f"s_add_u32 {s(t+2)}, {s(t+2)}, {s(t+3)}")
            else:
                a(f"s_add_u32 {s(t+2)}, {s(t+2)}, {cg_const<<16}")
            a(f"s_lshl_b32 {s(t+3)}, {s(S_J)}, 8")
            a(f"s_add_u32 {s(t+2)}, {s(t+2)}, {s(t+3)}")
            a(f"s_add_u32 {s(t+2)}, {s(t+2)}, {OUTP}")
            self.set_exec(0x00ff00ff)
            for cc in range(0, 8, 2):
                a(f"buffer_store_dwordx4 {v(ACCr+4*cc,4)}, v5, {s(SRD_WS,4)}, {s(t+2)} offen offset:{cc*8} sc0 sc1")
            a("s_mov_b64 exec, -1")
        outputs(ACC, WF, None)
        LO = a.newlabel('TO')
        a(f"s_cmp_lg_u32 {s(S_W)}, 0")
        a(f"s_cbranch_scc1 {LO}")
        outputs(ACCX, WFX, 8)
        a.label(LO)
        self.stamp(12)
        a(f"s_cmp_ge_u32 {s(S_J)}, 36")
        a("s_cbranch_scc1 L_END")
        a(f"s_mul_i32 {s(t+4)}, {s(S_TYPE)}, 36")
        a(f"s_add_u32 {s(t+4)}, {s(t+4)}, {s(S_J)}")
        a(f"s_lshl_b32 {s(t+4)}, {s(t+4)}, 15")
        a(f"s_add_u32 {s(t+4)}, {s(t+4)}, {OUTP}")
        def ldf():
            a(f"v_lshlrev_b32 v5, 4, v0")
            for k in range(4):
                a(f"s_add_u32 {s(t+2)}, {s(t+4)}, {k*8192}")
                a(f"buffer_load_dwordx4 {v(16+4*k,4)}, v5, {s(SRD_WS,4)}, {s(t+2)} offen sc0 sc1")
        def chkf():
            a(f"v_cmp_eq_u32 vcc, {s(S_T)}, v17")
            for r in (19, 21, 23, 25, 27, 29, 31):
                a(f"v_cmp_eq_u32 {s(S_PB,2)}, {s(S_T)}, {v(r)}")
                a(f"s_and_b64 vcc, vcc, {s(S_PB,2)}")
        ldf()
        self.retry_vec(ldf, chkf, "s_waitcnt vmcnt(0)", sleep=1)
        a("v_add_f32 v16, v16, v20"); a("v_add_f32 v24, v24, v28"); a("v_add_f32 v16, v16, v24")
        a("v_add_f32 v17, v18, v22"); a("v_add_f32 v26, v26, v30"); a("v_add_f32 v17, v17, v26")
        self.xrow('v_add_f32', 16, 8); self.xrow('v_add_f32', 17, 8)
        a(f"s_lshl_b32 {s(t+2)}, {s(S_W)}, 7")
        a(f"s_add_u32 {s(t+2)}, {s(t+2)}, {RL}")
        a(f"v_lshlrev_b32 v5, 3, {v(V_N16)}")
        a(f"v_add_u32 v5, {s(t+2)}, v5")
        a(f"ds_write_b64 v5, v[16:17]")
        self.barrier()
        a(f"s_cmp_lg_u32 {s(S_W)}, 0")
        a("s_cbranch_scc1 L_END")
        LE = a.newlabel('EP')
        a(f"s_cmp_lg_u32 {s(S_J)}, 0")
        a(f"s_cbranch_scc1 {LE}")
        a(f"s_lshl_b32 {s(t+2)}, {s(S_TYPE)}, 8")
        a(f"s_add_u32 {s(t+2)}, {s(t+2)}, {EPOCH}")
        a(f"v_mov_b32 v5, 0")
        a(f"v_mov_b32 v6, {s(S_T)}")
        self.set_exec(1)
        a(f"buffer_store_dword v6, v5, {s(SRD_WS,4)}, {s(t+2)} offen sc0 sc1")
        self.set_exec(-1)
        a.label(LE)
        a(f"v_lshlrev_b32 v5, 3, {v(V_N16)}")
        a(f"v_add_u32 v5, {RL}, v5")
        for w in range(8):
            a(f"ds_read_b64 {v(16+2*w,2)}, v5 offset:{w*128}")
        a(f"s_cmp_ge_u32 {s(S_J)}, 18")
        a(f"s_cselect_b32 {s(t+2)}, 1, 0")
        a(f"s_mul_i32 {s(t+3)}, {s(t+2)}, 18")
        a(f"s_sub_u32 {s(t+3)}, {s(S_J)}, {s(t+3)}")
        a(f"s_mul_i32 {s(t+2)}, {s(t+2)}, 2304")
        a(f"s_lshl_b32 {s(t+3)}, {s(t+3)}, 6")
        a(f"s_add_u32 {s(t+2)}, {s(t+2)}, {s(t+3)}")
        a(f"s_mul_i32 {s(t+3)}, {s(S_TYPE)}, 1152")
        a(f"s_add_u32 {s(t+2)}, {s(t+2)}, {s(t+3)}")
        a(f"v_lshlrev_b32 v5, 2, {v(V_N16)}")
        a("s_waitcnt lgkmcnt(0)")
        for w in range(1, 8):
            a(f"v_add_f32 v16, v16, {v(16+2*w)}")
            a(f"v_add_f32 v17, v17, {v(17+2*w)}")
        a("v_cvt_pk_bf16_f32 v16, v16, v17")
        self.set_exec(0xffff)
        a(f"buffer_store_dword v16, v5, {s(SRD_OUT,4)}, {s(t+2)} offen")
        a("s_mov_b64 exec, -1")
        self.stamp(13)
        a("s_branch L_END")

    def build(self):
        a = self.a; c = self.c
        self.prologue()
        self.p1_loads()
        self.srds_rest()
        a(f"s_cmp_eq_u32 {s(S_TYPE)}, 0")
        a("s_cbranch_scc0 L_B0")
        self.a_roles()
        self.a_kdma()
        a("s_waitcnt vmcnt(16)")
        self.stamp(1)
        self.p1_compute()
        self.stamp(2)
        self.a_main()
        a.label("L_B0")
        self.b_roles()
        self.b_pre()
        a(f"s_waitcnt vmcnt({4 + c.n1_ckv})")
        self.stamp(1)
        self.p1_compute()
        self.stamp(2)
        self.b_main()
        a.label("L_END")
        self.stamp_dump()
        a.label("L_EXIT")
        a("s_endpgm")
        body = a.finalize()
        hdr = open(os.path.join(os.path.dirname(os.path.abspath(__file__)), 'header.txt')).read()
        out = hdr
        out += f"; @launch grid=(256,1,1) block=(512,1,1) lds={LDS_BYTES}\n"
        out += f""".amdgcn_target "amdgcn-amd-amdhsa--gfx950"
.text
.globl {NAME}_kernel
.p2align 8
.type {NAME}_kernel,@function
{NAME}_kernel:
"""
        out += body
        out += f""".section .rodata,"a"
.p2align 6
.amdhsa_kernel {NAME}_kernel
  .amdhsa_next_free_vgpr 256
  .amdhsa_next_free_sgpr 102
  .amdhsa_accum_offset 256
  .amdhsa_group_segment_fixed_size 0
  .amdhsa_kernarg_size 112
  .amdhsa_user_sgpr_count 2
  .amdhsa_user_sgpr_kernarg_segment_ptr 1
  .amdhsa_system_sgpr_workgroup_id_x 1
.end_amdhsa_kernel
"""
        return out

if __name__ == '__main__':
    cfg = Cfg()
    outp = f"cdna_kernels/{NAME}.s"
    for arg in sys.argv[1:]:
        if arg.startswith('-o='): outp = arg[3:]
        elif '=' in arg:
            k, val = arg.split('=')
            setattr(cfg, k, type(getattr(cfg, k))(int(val)) if isinstance(getattr(cfg, k), (bool, int)) else val)
    g = Gen(cfg)
    txt = g.build()
    open(outp, 'w').write(txt)
    print("wrote", outp, "lines", txt.count('\n'), "nops inserted", g.a.ninserted)
```

```python
import sys, os, struct
sys.path.insert(0, os.path.dirname(os.path.abspath(__file__)))
from asmlib import Asm, v, s

NAME = "concat_heads__sliding_block_cached__compressed_kv_cla__decode"

class Cfg:
    nt_stream = True
    nt_w = True
    n1_ckv = 4
    n1_k = 0
    n2_k = 0
    n3_k = 1
    spin_limit = 300000
    stamps = False

Q1   = 0x000000
QABS = 0x080000
QM   = 0x090000
EPOCH= 0x0A0000
DONE = 0x0A1000
OP   = 0x100000
OM   = 0x180000
BM   = 0x1C0000
BPART= 0x200000
OUTP = 0x600000
STMP = 0x900000
WS_SIZE = 268435456

IMG = 0
SCR = 131072
R1 = SCR; R2 = SCR + 8192; QL = SCR + 12288; QAL = SCR + 12800
QIMG = SCR
SX = SCR; MX = SCR + 16384; LS = SCR + 17408; PB = SCR + 18432
OW = SCR; ML = SCR + 8192
CW = SCR; CT = SCR + 4096
XL = SCR + 12288 + 1024; RL = SCR + 12288 + 2048
LDS_BYTES = 163840

S_W = 3; S_J = 4; S_TYPE = 5; S_H = 6; S_RQ = 7; S_T = 8
S_B = 9; S_S = 10; S_G = 11
S_PLO = 12; S_PHI = 13; S_SC = 14; S_BASE = 15
P_AX, P_AK, P_AV, P_AWQ, P_AWO, P_BX, P_CKV, P_BWQ = 16, 18, 20, 22, 24, 26, 28, 30
P_WUK, P_WUV, P_BWO, P_OUT = 32, 34, 36, 38
P_DBG, P_WS = 40, 42
SRD_X = 44; SRD_W = 48; SRD_ST = 52; SRD_V = 56; SRD_WO = 60; SRD_WS = 64; SRD_U = 68; SRD_OUT = 72
ST = 76
S_CNT = 99
S_PB = 16
V_L, V_G4, V_N16, V_RS = 1, 2, 3, 4
SC = "sc0 sc1"
SCALE_LOG2E = 0.08838834764831845 * 1.4426950408889634
TAGINC = 0x9e3779b9
def f32hex(x): return '0x%08x' % struct.unpack('<I', struct.pack('<f', x))[0]

class Gen:
    def __init__(self, cfg):
        self.c = cfg
        self.a = Asm()

    def srd(self, dst, ptr, size):
        a = self.a
        a(f"s_mov_b32 {s(dst)}, {s(ptr)}")
        a(f"s_and_b32 {s(dst+1)}, {s(ptr+1)}, 0xffff")
        a(f"s_mov_b32 {s(dst+2)}, {size}")
        a(f"s_mov_b32 {s(dst+3)}, 0x20000")
    def srd_sel(self, dst, ptrX, ptrY, sizeX, sizeY):
        a = self.a
        a(f"s_cmp_eq_u32 {s(S_TYPE)}, 0")
        a(f"s_cselect_b32 {s(dst)}, {s(ptrX)}, {s(ptrY)}")
        a(f"s_cselect_b32 {s(dst+1)}, {s(ptrX+1)}, {s(ptrY+1)}")
        if sizeX == sizeY:
            a(f"s_mov_b32 {s(dst+2)}, {sizeX}")
        else:
            a(f"s_mov_b32 {s(dst+2)}, {sizeY}")
            a(f"s_cselect_b32 {s(dst+2)}, {sizeX}, {s(dst+2)}")
        a(f"s_and_b32 {s(dst+1)}, {s(dst+1)}, 0xffff")
        a(f"s_mov_b32 {s(dst+3)}, 0x20000")
    def set_exec(self, mask):
        a = self.a
        if mask == -1:
            a("s_mov_b64 exec, -1"); return
        a(f"s_mov_b32 exec_lo, 0x{mask & 0xffffffff:08x}")
        a(f"s_mov_b32 exec_hi, 0x{mask >> 32:08x}")
    def ntw(self): return ' nt' if self.c.nt_w else ''
    def nts(self): return ' nt' if self.c.nt_stream else ''

    STSLOT = [86,87,88,89,90,91,92,93,94,95,32,33,34,35,36,37,38,39,40,41]
    def stamp(self, idx):
        if not self.c.stamps: return
        a = self.a
        a(f"s_memrealtime s[96:97]")
        a(f"s_waitcnt lgkmcnt(0)")
        a(f"s_mov_b32 s{self.STSLOT[idx]}, s96")
    def stamp_dump(self):
        if not self.c.stamps: return
        a = self.a
        a("v_mov_b32 v59, 0")
        for i, r in enumerate(self.STSLOT):
            a(f"v_writelane_b32 v59, s{r}, {i}")
        a(f"s_lshl_b32 s98, s2, 3")
        a(f"s_add_u32 s98, s98, {s(S_W)}")
        a(f"s_lshl_b32 s98, s98, 7")
        a(f"s_add_u32 s98, s98, {STMP}")
        a(f"v_lshlrev_b32 v58, 2, {v(V_L)}")
        self.set_exec(0xffffffff)
        a(f"buffer_store_dword v59, v58, {s(SRD_WS,4)}, s98 offen")
        self.set_exec(-1)

    def half_perm(self, L, F):
        a = self.a
        for i in range(4):
            for jj in range(2):
                lo = L + (2*jj)*4 + i; hi = L + (2*jj+1)*4 + i
                a(f"v_perm_b32 {v(F + (2*i)*2 + jj)}, {v(hi)}, {v(lo)}, {s(S_PLO)}")
                a(f"v_perm_b32 {v(F + (2*i+1)*2 + jj)}, {v(hi)}, {v(lo)}, {s(S_PHI)}")
    def full_perm(self, L, F):
        a = self.a
        for i in range(4):
            for jj in range(4):
                lo = L + (2*jj)*4 + i; hi = L + (2*jj+1)*4 + i
                a(f"v_perm_b32 {v(F + (2*i)*4 + jj)}, {v(hi)}, {v(lo)}, {s(S_PLO)}")
                a(f"v_perm_b32 {v(F + (2*i+1)*4 + jj)}, {v(hi)}, {v(lo)}, {s(S_PHI)}")
    def half_mfma(self, ACC, AF, F, first):
        a = self.a
        for c in range(8):
            cin = '0' if first else v(ACC + 4*c, 4)
            a(f"v_mfma_f32_16x16x16_bf16 {v(ACC+4*c,4)}, {v(AF,2)}, {v(F+2*c,2)}, {cin}")
    def xrow(self, op, x, t):
        a = self.a
        a(f"v_mov_b32 {v(t)}, {v(x)}")
        a(f"v_permlane16_swap_b32 {v(x)}, {v(t)}")
        a(f"{op} {v(x)}, {v(x)}, {v(t)}")
        a(f"v_mov_b32 {v(t)}, {v(x)}")
        a(f"v_permlane32_swap_b32 {v(x)}, {v(t)}")
        a(f"{op} {v(x)}, {v(x)}, {v(t)}")
    def xrow_multi(self, op, xs, ts):
        a = self.a
        for sw in ('v_permlane16_swap_b32', 'v_permlane32_swap_b32'):
            for x, t in zip(xs, ts): a(f"v_mov_b32 {v(t)}, {v(x)}")
            for x, t in zip(xs, ts): a(f"{sw} {v(x)}, {v(t)}")
            for x, t in zip(xs, ts): a(f"{op} {v(x)}, {v(x)}, {v(t)}")
    def xhalf(self, op, x, t):
        a = self.a
        a(f"v_mov_b32 {v(t)}, {v(x)}")
        a(f"v_permlane32_swap_b32 {v(x)}, {v(t)}")
        a(f"{op} {v(x)}, {v(x)}, {v(t)}")
    def inrow(self, op, x):
        a = self.a
        for r in (8, 4, 2, 1):
            a(f"{op}_dpp {v(x)}, {v(x)}, {v(x)} row_ror:{r} row_mask:0xf bank_mask:0xf")
    def barrier(self):
        self.a("s_waitcnt lgkmcnt(0)")
        self.a("s_barrier")

    def spin_scalar(self, load_fn, ok_fn):
        a = self.a
        L = a.newlabel('SP'); D = a.newlabel('SD')
        a(f"s_mov_b32 {s(S_CNT)}, 0")
        a.label(L)
        load_fn()
        a("s_waitcnt lgkmcnt(0)")
        ok_fn()
        a(f"s_cbranch_scc1 {D}")
        a(f"s_add_u32 {s(S_CNT)}, {s(S_CNT)}, 1")
        a(f"s_cmp_lt_u32 {s(S_CNT)}, {self.c.spin_limit}")
        a(f"s_cbranch_scc1 {L}")
        a.label(D)

    def retry_vec(self, load_fn, check_fn, first_wait, sleep=0):
        a = self.a
        C = a.newlabel('RC'); D = a.newlabel('RD')
        a(f"s_mov_b32 {s(S_CNT)}, 0")
        a(first_wait)
        a.label(C)
        check_fn()
        a("s_cmp_eq_u64 vcc, exec")
        a(f"s_cbranch_scc1 {D}")
        a(f"s_add_u32 {s(S_CNT)}, {s(S_CNT)}, 1")
        a(f"s_cmp_ge_u32 {s(S_CNT)}, {self.c.spin_limit}")
        a(f"s_cbranch_scc1 {D}")
        if sleep: a(f"s_sleep {sleep}")
        load_fn()
        a("s_waitcnt vmcnt(0)")
        a(f"s_branch {C}")
        a.label(D)

    def acc_rows_addr(self, dst, base):
        a = self.a
        a(f"v_and_b32 {v(dst)}, 1, {v(V_G4)}")
        a(f"v_lshlrev_b32 {v(dst)}, 9, {v(dst)}")
        a(f"v_lshl_add_u32 {v(dst)}, {v(V_N16)}, 5, {v(dst)}")
        a(f"s_lshl_b32 {s(ST)}, {s(S_W)}, 10")
        a(f"s_add_u32 {s(ST)}, {s(ST)}, {base}")
        a(f"v_add_u32 {v(dst)}, {s(ST)}, {v(dst)}")
    def write_acc_rows(self, ACC, addr):
        for c in range(0, 8, 2):
            self.a(f"ds_write2_b32 {v(addr)}, {v(ACC+4*c)}, {v(ACC+4*c+4)} offset0:{c} offset1:{c+1}")

    def checksum4(self, Q, X, t, SEL1, SEL2):
        a = self.a
        for j in range(4):
            q = Q + 4*j
            a(f"v_bitop3_b32 {v(t+j)}, {v(q)}, {v(q+1)}, {v(q+2)} bitop3:0x96")
        for j in range(4):
            a(f"v_xor_b32 {v(t+j)}, {v(t+j)}, {v(Q+4*j+3)}")
        for r in (8, 4, 2, 1):
            for j in range(4):
                a(f"v_xor_b32_dpp {v(t+j)}, {v(t+j)}, {v(t+j)} row_ror:{r} row_mask:0xf bank_mask:0xf")
        a(f"v_cndmask_b32 {v(t)}, {v(t)}, {v(t+1)}, {s(SEL1,2)}")
        a(f"v_cndmask_b32 {v(t+2)}, {v(t+2)}, {v(t+3)}, {s(SEL1,2)}")
        a(f"v_cndmask_b32 {v(X)}, {v(t)}, {v(t+2)}, {s(SEL2,2)}")

    def prologue(self):
        a = self.a
        a("s_cmp_ge_u32 s2, 256")
        a("s_cbranch_scc1 L_EXIT")
        a("s_load_dwordx16 s[16:31], s[0:1], 0")
        a("s_load_dwordx8 s[32:39], s[0:1], 64")
        a("s_load_dwordx4 s[40:43], s[0:1], 96")
        a("v_lshrrev_b32 v5, 6, v0")
        a(f"v_and_b32 {v(V_L)}, 63, v0")
        a(f"v_readfirstlane_b32 {s(S_W)}, v5")
        a(f"v_lshrrev_b32 {v(V_G4)}, 4, {v(V_L)}")
        a(f"v_and_b32 {v(V_N16)}, 15, {v(V_L)}")
        a(f"v_bfe_u32 {v(V_RS)}, {v(V_N16)}, 2, 1")
        a(f"s_and_b32 {s(ST+2)}, s2, 7")
        a(f"s_lshr_b32 {s(ST+3)}, s2, 3")
        a(f"s_and_b32 {s(S_TYPE)}, {s(ST+3)}, 1")
        a(f"s_lshr_b32 {s(ST+3)}, {s(ST+3)}, 1")
        a(f"s_lshl_b32 {s(S_J)}, {s(ST+2)}, 4")
        a(f"s_add_u32 {s(S_J)}, {s(S_J)}, {s(ST+3)}")
        a(f"s_lshr_b32 {s(S_H)}, {s(S_J)}, 2")
        a(f"s_and_b32 {s(S_RQ)}, {s(S_J)}, 3")
        a(f"s_mov_b32 {s(S_PLO)}, 0x05040100")
        a(f"s_mov_b32 {s(S_PHI)}, 0x07060302")
        a(f"s_mov_b32 {s(S_SC)}, {f32hex(SCALE_LOG2E)}")
        a(f"v_lshlrev_b32 v5, 15, {v(V_G4)}")
        a(f"v_lshl_add_u32 v5, {v(V_N16)}, 4, v5")
        a(f"v_mul_u32_u24 v6, 1152, {v(V_RS)}")
        a(f"v_lshl_add_u32 v6, {v(V_G4)}, 3, v6")
        a("s_waitcnt lgkmcnt(0)")
        a(f"s_load_dword {s(S_T)}, {s(P_WS,2)}, {EPOCH}")
        self.srd_sel(SRD_X, P_BX, P_AX, 2304, 2304)
        self.srd_sel(SRD_W, P_BWQ, P_AWQ, 4718592, 4718592)
        if self.c.stamps:
            for r in self.STSLOT[:10]: a(f"s_mov_b32 s{r}, 0")
        self.stamp(0)

    def srds_rest(self):
        self.srd(SRD_WS, P_WS, WS_SIZE)
        self.srd_sel(SRD_ST, P_AK, P_CKV, 67108864, 16777216)
        self.srd_sel(SRD_V, P_AV, P_WUV, 67108864, 4194304)
        self.srd(SRD_U, P_WUK, 4194304)
        self.srd_sel(SRD_WO, P_AWO, P_BWO, 4718592, 4718592)
        self.srd(SRD_OUT, P_OUT, 4608)
        if self.c.stamps:
            for r in self.STSLOT[10:]: self.a(f"s_mov_b32 s{r}, 0")

    XF, XF2, L1, L2, F1, ACC1 = 16, 18, 20, 36, 52, 68
    def p1_loads(self):
        a = self.a
        V_WQ, V_X = 5, 6
        def loads(u_const, XFr, Lr):
            t = ST
            a(f"s_mul_i32 {s(t)}, {s(S_RQ)}, 144")
            if u_const is not None:
                a(f"s_add_u32 {s(t)}, {s(t)}, {16*u_const}")
            else:
                a(f"s_lshl_b32 {s(t+1)}, {s(S_W)}, 4")
                a(f"s_add_u32 {s(t)}, {s(t)}, {s(t+1)}")
            a(f"s_lshl_b32 {s(t+1)}, {s(t)}, 1")
            a(f"buffer_load_dwordx2 {v(XFr,2)}, {v(V_X)}, {s(SRD_X,4)}, {s(t+1)} offen")
            a(f"s_lshl_b32 {s(t)}, {s(t)}, 13")
            a(f"s_lshl_b32 {s(t+1)}, {s(S_H)}, 8")
            a(f"s_add_u32 {s(t)}, {s(t)}, {s(t+1)}")
            for jr in range(4):
                a(f"buffer_load_dwordx4 {v(Lr+4*jr,4)}, {v(V_WQ)}, {s(SRD_W,4)}, {s(t)} offen{self.ntw()}")
                if jr < 3: a(f"s_add_u32 {s(t)}, {s(t)}, 8192")
        LX = a.newlabel('LX')
        a(f"s_cmp_lg_u32 {s(S_W)}, 0")
        a(f"s_cbranch_scc1 {LX}")
        loads(8, self.XF2, self.L2)
        a.label(LX)
        loads(None, self.XF, self.L1)

    def p1_compute(self, branch, nyoung):
        a = self.a
        self.acc_rows_addr(7, R1)
        a(f"v_lshlrev_b32 v5, 2, v0")
        a(f"v_add_u32 v5, {R1}, v5")
        a(f"v_lshlrev_b32 v6, 3, v0")
        a(f"s_add_u32 {s(ST+1)}, {s(S_J)}, {branch*128}")
        a(f"s_lshl_b32 {s(ST+1)}, {s(ST+1)}, 11")
        if Q1: a(f"s_add_u32 {s(ST+1)}, {s(ST+1)}, {Q1}")
        a(f"s_waitcnt vmcnt({nyoung})")
        self.stamp(1)
        self.half_perm(self.L1, self.F1)
        self.half_mfma(self.ACC1, self.XF, self.F1, True)
        LY = a.newlabel('LY')
        a(f"s_cmp_lg_u32 {s(S_W)}, 0")
        a(f"s_cbranch_scc1 {LY}")
        self.half_perm(self.L2, self.L1)
        self.half_mfma(self.ACC1, self.XF2, self.L1, False)
        a.label(LY)
        self.write_acc_rows(self.ACC1, 7)
        self.barrier()
        a(f"s_add_u32 {s(S_T)}, {s(S_T)}, 0x{TAGINC:08x}")
        LZ = a.newlabel('LZ')
        a(f"s_cmp_ge_u32 {s(S_W)}, 4")
        a(f"s_cbranch_scc1 {LZ}")
        for w in range(8):
            a(f"ds_read_b32 {v(20+w)}, v5 offset:{w*1024}")
        a(f"v_mov_b32 v29, {s(S_T)}")
        a("s_waitcnt lgkmcnt(0)")
        a("v_add_f32 v20, v20, v21"); a("v_add_f32 v22, v22, v23"); a("v_add_f32 v24, v24, v25"); a("v_add_f32 v26, v26, v27")
        a("v_add_f32 v20, v20, v22"); a("v_add_f32 v24, v24, v26")
        a("v_add_f32 v28, v20, v24")
        a(f"buffer_store_dwordx2 v[28:29], v6, {s(SRD_WS,4)}, {s(ST+1)} offen {SC}")
        a.label(LZ)
        self.stamp(2)

    def q_addr(self, own_head_both_batches, dst):
        a = self.a; t = dst
        if own_head_both_batches:
            a(f"s_add_u32 {s(t)}, {s(S_H)}, 32")
            a(f"s_lshr_b32 {s(t+1)}, {s(S_W)}, 2")
        else:
            a(f"s_lshr_b32 {s(t)}, {s(S_J)}, 3")
            a(f"s_lshl_b32 {s(t)}, {s(t)}, 1")
            a(f"s_lshr_b32 {s(t+1)}, {s(S_W)}, 2")
            a(f"s_add_u32 {s(t)}, {s(t)}, {s(t+1)}")
            a(f"s_bfe_u32 {s(t+1)}, {s(S_J)}, 0x10002")
        a(f"s_lshl_b32 {s(t)}, {s(t)}, 3")
        a(f"s_add_u32 {s(t)}, {s(t)}, {s(t+1)}")
        a(f"s_and_b32 {s(t+1)}, {s(S_W)}, 3")
        a(f"s_lshl_b32 {s(t+1)}, {s(t+1)}, 1")
        a(f"s_add_u32 {s(t)}, {s(t)}, {s(t+1)}")
        a(f"s_lshl_b32 {s(t)}, {s(t)}, 10")
        if Q1: a(f"s_add_u32 {s(t)}, {s(t)}, {Q1}")

    def q_gather(self, t, G, after_issue, nafter, st_poll=None, st_data=None):
        a = self.a
        a(f"s_add_u32 {s(t+1)}, {s(t)}, {127*8}")
        self.spin_scalar(lambda: a(f"s_load_dwordx2 {s(S_PB,2)}, {s(P_WS,2)}, {s(t+1)} glc"),
                         lambda: a(f"s_cmp_eq_u32 {s(S_PB+1)}, {s(S_T)}"))
        if st_poll is not None: self.stamp(st_poll)
        def ld():
            a(f"v_lshlrev_b32 v5, 4, {v(V_L)}")
            a(f"buffer_load_dwordx4 {v(G,4)}, v5, {s(SRD_WS,4)}, {s(t)} offen {SC}")
        ld()
        after_issue()
        a(f"s_lshl_b32 {s(ST)}, {s(S_W)}, 9")
        a(f"s_add_u32 {s(ST)}, {s(ST)}, {R2}")
        a(f"v_lshlrev_b32 v6, 3, {v(V_L)}")
        a(f"v_add_u32 v6, {s(ST)}, v6")
        def chk():
            a(f"v_cmp_eq_u32 vcc, {s(S_T)}, {v(G+1)}")
            a(f"v_cmp_eq_u32 {s(S_PB,2)}, {s(S_T)}, {v(G+3)}")
            a(f"s_and_b64 vcc, vcc, {s(S_PB,2)}")
        self.retry_vec(ld, chk, f"s_waitcnt vmcnt({nafter})")
        if st_data is not None: self.stamp(st_data)
        a(f"ds_write2_b32 v6, {v(G)}, {v(G+2)} offset0:0 offset1:1")
        LQ = a.newlabel('LQ')
        a(f"s_lshl_b32 {s(ST)}, {s(S_W)}, 11")
        a(f"s_add_u32 {s(ST)}, {s(ST)}, {R2}")
        a(f"v_lshlrev_b32 v5, 3, {v(V_L)}")
        a(f"v_add_u32 v5, {s(ST)}, v5")
        a(f"s_lshl_b32 {s(ST)}, {s(S_W)}, 8")
        a(f"s_add_u32 {s(ST)}, {s(ST)}, {QL}")
        a(f"v_lshlrev_b32 v6, 2, {v(V_L)}")
        a(f"v_add_u32 v6, {s(ST)}, v6")
        self.barrier()
        a(f"s_cmp_ge_u32 {s(S_W)}, 2")
        a(f"s_cbranch_scc1 {LQ}")
        for r in range(4):
            a(f"ds_read_b64 {v(8+2*r,2)}, v5 offset:{r*512}")
        a("s_waitcnt lgkmcnt(0)")
        a("v_add_f32 v8, v8, v10"); a("v_add_f32 v9, v9, v11"); a("v_add_f32 v12, v12, v14"); a("v_add_f32 v13, v13, v15")
        a("v_add_f32 v8, v8, v12"); a("v_add_f32 v9, v9, v13")
        a("v_cvt_pk_bf16_f32 v8, v8, v9")
        a("ds_write_b32 v6, v8")
        a.label(LQ)
        a(f"v_lshlrev_b32 v5, 8, {v(V_RS)}")
        a(f"v_lshl_add_u32 v5, {v(V_G4)}, 4, v5")
        a(f"v_add_u32 v5, {QL}, v5")
        self.barrier()

    def read_q_frags(self, QF):
        for i in range(4):
            self.a(f"ds_read_b128 {v(QF+4*i,4)}, v5 offset:{i*64}")

    def wo_loads(self, SRD, L, Lx):
        a = self.a; t = ST
        a(f"v_lshrrev_b32 v5, 3, {v(V_N16)}")
        a(f"v_lshlrev_b32 v5, 2, v5")
        a(f"v_add_u32 v5, v5, {v(V_G4)}")
        a(f"v_mul_u32_u24 v5, {4*1152}, v5")
        a(f"v_and_b32 v6, 7, {v(V_N16)}")
        a(f"v_lshl_add_u32 v5, v6, 4, v5")
        a(f"s_mul_i32 {s(t)}, {s(S_J)}, {32*1152}")
        LX = a.newlabel('WX')
        a(f"s_cmp_lg_u32 {s(S_W)}, 0")
        a(f"s_cbranch_scc1 {LX}")
        a(f"s_add_u32 {s(t+1)}, {s(t)}, {8*128}")
        for jr in range(4):
            a(f"buffer_load_dwordx4 {v(Lx+4*jr,4)}, v5, {s(SRD,4)}, {s(t+1)} offen offset:{jr*1152}{self.ntw()}")
        a.label(LX)
        a(f"s_lshl_b32 {s(t+1)}, {s(S_W)}, 7")
        a(f"s_add_u32 {s(t+1)}, {s(t+1)}, {s(t)}")
        for jr in range(4):
            a(f"buffer_load_dwordx4 {v(L+4*jr,4)}, v5, {s(SRD,4)}, {s(t+1)} offen offset:{jr*1152}{self.ntw()}")
    def wo_perms(self, L, Lx, F, Fx):
        a = self.a
        self.half_perm(L, F)
        LX = a.newlabel('TX')
        a(f"s_cmp_lg_u32 {s(S_W)}, 0")
        a(f"s_cbranch_scc1 {LX}")
        self.half_perm(Lx, Fx)
        a.label(LX)

    WUK = 100
    def x_roles(self):
        a = self.a
        a(f"s_lshr_b32 {s(S_G)}, {s(S_J)}, 3")
        a(f"s_bfe_u32 {s(S_B)}, {s(S_J)}, 0x10002")
        a(f"s_and_b32 {s(S_S)}, {s(S_J)}, 3")
        t = ST + 8
        a(f"s_lshl_b32 {s(t)}, {s(S_B)}, 4")
        a(f"s_add_u32 {s(t)}, {s(t)}, {s(S_G)}")
        a(f"s_lshl_b32 {s(t)}, {s(t)}, 13")
        a(f"s_lshl_b32 {s(t+1)}, {s(S_S)}, 9")
        a(f"s_add_u32 {s(t)}, {s(t)}, {s(t+1)}")
        a(f"s_add_u32 {s(t)}, {s(t)}, 6144")
        a(f"s_lshl_b32 {s(t)}, {s(t)}, 8")
        a(f"s_lshl_b32 {s(t+1)}, {s(S_W)}, 14")
        a(f"s_add_u32 {s(S_BASE)}, {s(t)}, {s(t+1)}")
    def x_wuk_loads(self):
        a = self.a; t = ST
        a(f"v_lshlrev_b32 v7, 13, {v(V_N16)}")
        a(f"v_lshl_add_u32 v7, {v(V_G4)}, 4, v7")
        a(f"s_lshl_b32 {s(t)}, {s(S_RQ)}, 7")
        a(f"s_lshl_b32 {s(t+1)}, {s(S_W)}, 4")
        a(f"s_add_u32 {s(t)}, {s(t)}, {s(t+1)}")
        a(f"s_lshl_b32 {s(t)}, {s(t)}, 13")
        a(f"s_lshl_b32 {s(t+1)}, {s(S_H)}, 8")
        a(f"s_add_u32 {s(t)}, {s(t)}, {s(t+1)}")
        for i in range(4):
            a(f"buffer_load_dwordx4 {v(self.WUK+4*i,4)}, v7, {s(SRD_U,4)}, {s(t)} offen offset:{i*64}{self.ntw()}")
    def x_kdma(self, kk0, kk1):
        a = self.a; t = ST
        if kk0 >= kk1: return
        a(f"v_xor_b32 v248, {v(V_N16)}, {v(V_G4)}")
        a(f"v_lshlrev_b32 v248, 4, v248")
        a(f"v_lshl_add_u32 v248, {v(V_G4)}, 8, v248")
        for k in range(1, 4):
            a(f"v_xor_b32 {v(248+k)}, {k<<6}, v248")
        a(f"s_lshl_b32 {s(t)}, {s(S_W)}, 14")
        for kk in range(kk0, kk1):
            a(f"s_add_u32 m0, {s(t)}, {IMG + kk*4096}")
            a(f"s_add_u32 {s(t+1)}, {s(S_BASE)}, {kk*4096}")
            for k in range(4):
                a(f"buffer_load_dwordx4 {v(248+k)}, {s(SRD_ST,4)}, {s(t+1)} offen offset:{k*1024}{self.nts()} lds")

    def x_main(self):
        a = self.a; t = ST; c = self.c
        self.x_roles()
        self.x_wuk_loads()
        a("s_barrier")
        self.x_kdma(0, c.n1_k)
        self.q_addr(True, ST+4)
        self.p1_compute(1, 4 + 4*c.n1_k)
        self.x_kdma(c.n1_k, c.n1_k + c.n2_k)
        kdone = c.n1_k + c.n2_k
        self.q_gather(ST+4, 8, lambda: None, 0, 14, 15)
        self.stamp(3)
        QF = 16
        self.read_q_frags(QF)
        a(f"v_and_b32 v5, 1, {v(V_G4)}")
        a(f"v_lshlrev_b32 v6, 8, v5")
        a(f"v_lshl_add_u32 v7, {v(V_N16)}, 4, v6")
        a(f"v_add_u32 v7, {QAL}, v7")
        a(f"v_lshl_add_u32 v6, {v(V_N16)}, 1, v6")
        a(f"s_lshl_b32 {s(t)}, {s(S_W)}, 5")
        a(f"s_add_u32 {s(t)}, {s(t)}, {QAL}")
        a(f"v_add_u32 v6, {s(t)}, v6")
        a(f"v_lshlrev_b32 v14, 15, v5")
        a(f"v_lshl_add_u32 v14, {v(V_N16)}, 4, v14")
        a(f"v_lshlrev_b32 v15, 10, v5")
        a(f"v_lshl_add_u32 v15, {v(V_N16)}, 11, v15")
        a(f"s_lshl_b32 {s(t)}, {s(S_J)}, 8")
        a(f"s_add_u32 {s(t)}, {s(t)}, {QABS}")
        a(f"s_lshl_b32 {s(t+1)}, {s(S_J)}, 3")
        a(f"s_add_u32 {s(t+1)}, {s(t+1)}, {QM}")
        a("s_waitcnt lgkmcnt(0)")
        AQ = 32
        for i in range(4):
            cin = '0' if i == 0 else v(AQ,4)
            a(f"v_mfma_f32_16x16x32_bf16 {v(AQ,4)}, {v(QF+4*i,4)}, {v(self.WUK+4*i,4)}, {cin}")
        a(f"v_cvt_pk_bf16_f32 v8, {v(AQ)}, {v(AQ)}")
        a(f"ds_write_b16 v6, v8")
        self.barrier()
        LP = a.newlabel('BP')
        a(f"s_cmp_lg_u32 {s(S_W)}, 0")
        a(f"s_cbranch_scc1 {LP}")
        a(f"ds_read_b128 v[8:11], v7")
        a(f"v_mov_b32 v13, {s(S_T)}")
        a("s_waitcnt lgkmcnt(0)")
        self.set_exec(0xffffffff)
        a(f"buffer_store_dwordx4 v[8:11], v14, {s(SRD_WS,4)}, {s(t)} offen {SC}")
        self.set_exec(-1)
        a("v_bitop3_b32 v12, v8, v9, v10 bitop3:0x96"); a("v_xor_b32 v12, v12, v11")
        self.inrow('v_xor_b32', 12)
        self.set_exec(0x00ff00ff)
        a(f"buffer_store_dwordx2 v[12:13], v15, {s(SRD_WS,4)}, {s(t+1)} offen {SC}")
        self.set_exec(-1)
        a.label(LP)
        a("s_barrier")
        self.stamp(17)
        KF, S, VL, F, ACC = 32, 64, 96, 192, 224
        WL, WLX = 160, 176
        k3 = min(4, kdone + c.n3_k)
        self.x_kdma(kdone, k3)
        self.q_addr(False, ST+4)
        self.q_gather(ST+4, 8, lambda: None, 0, None, 18)
        self.stamp(9)
        self.read_q_frags(QF)
        self.x_kdma(k3, 4)
        a(f"v_lshlrev_b32 v6, 10, {v(V_G4)}")
        a(f"v_lshl_add_u32 v6, {v(V_N16)}, 4, v6")
        for u in range(2):
            for j in range(8):
                if j % 4 == 0:
                    a(f"s_add_u32 {s(t)}, {s(S_BASE)}, {(32*u + 16*(j>>2))*256}")
                a(f"buffer_load_dwordx4 {v(VL + 32*u + 4*j,4)}, v6, {s(SRD_V,4)}, {s(t)} offen offset:{(j&3)*256}{self.nts()}")
        self.wo_loads(SRD_WO, WL, WLX)
        a("s_waitcnt vmcnt(20)")
        a(f"v_xor_b32 v5, {v(V_N16)}, {v(V_G4)}")
        a(f"v_lshlrev_b32 v5, 4, v5")
        a(f"v_lshl_add_u32 v5, {v(V_N16)}, 8, v5")
        a(f"s_lshl_b32 {s(t)}, {s(S_W)}, 14")
        a(f"v_add_u32 v5, {s(t)}, v5")
        for i in range(1, 4):
            a(f"v_xor_b32 {v(5+i)}, {i<<6}, v5")
        def kread(tt, dst):
            for i in range(4):
                a(f"ds_read_b128 {v(dst+4*i,4)}, {v(5+i)} offset:{IMG + tt*4096}")
        kread(0, KF); kread(1, KF+16)
        for tt in range(4):
            cur = KF + 16*(tt & 1)
            a(f"s_waitcnt lgkmcnt({4 if tt < 3 else 0})")
            for i in range(4):
                cin = '0' if i == 0 else v(S+4*tt,4)
                a(f"v_mfma_f32_16x16x32_bf16 {v(S+4*tt,4)}, {v(cur+4*i,4)}, {v(QF+4*i,4)}, {cin}")
            if tt + 2 < 4:
                kread(tt+2, cur)
        M, Lsum, T1 = 10, 11, 12
        a(f"v_max3_f32 {v(M)}, {v(S)}, {v(S+1)}, {v(S+2)}")
        for r in range(3, 15, 2):
            a(f"v_max3_f32 {v(M)}, {v(M)}, {v(S+r)}, {v(S+r+1)}")
        a(f"v_max_f32 {v(M)}, {v(M)}, {v(S+15)}")
        self.xrow('v_max_f32', M, T1)
        a(f"v_mul_f32 {v(M)}, {s(S_SC)}, {v(M)}")
        for r in range(16):
            a(f"v_fma_f32 {v(S+r)}, {v(S+r)}, {s(S_SC)}, -{v(M)}")
        for r in range(16):
            a(f"v_exp_f32 {v(S+r)}, {v(S+r)}")
        PF = 32
        for u in range(2):
            for q in range(4):
                a(f"v_cvt_pk_bf16_f32 {v(PF+4*u+q)}, {v(S+8*u+2*q)}, {v(S+8*u+2*q+1)}")
        for r in range(0, 16, 2):
            a(f"v_add_f32 {v(S+r)}, {v(S+r)}, {v(S+r+1)}")
        for r in range(0, 16, 4):
            a(f"v_add_f32 {v(S+r)}, {v(S+r)}, {v(S+r+2)}")
        a(f"v_add_f32 {v(S)}, {v(S)}, {v(S+4)}"); a(f"v_add_f32 {v(S+8)}, {v(S+8)}, {v(S+12)}")
        a(f"v_add_f32 {v(Lsum)}, {v(S)}, {v(S+8)}")
        self.xrow('v_add_f32', Lsum, T1)
        a(f"s_lshl_b32 {s(t)}, {s(S_W)}, 4")
        a(f"s_add_u32 {s(t)}, {s(t)}, {ML}")
        a(f"v_lshlrev_b32 v5, 3, {v(V_RS)}")
        a(f"v_add_u32 v5, {s(t)}, v5")
        a(f"ds_write_b64 v5, {v(M,2)}")
        self.acc_rows_addr(7, OW)
        a(f"v_lshlrev_b32 v5, 2, v0")
        a(f"v_add_u32 v5, {OW}, v5")
        a(f"s_lshr_b32 {s(t)}, {s(S_W)}, 1")
        a(f"s_lshl_b32 {s(t+1)}, {s(t)}, 3")
        a(f"s_add_u32 {s(t+1)}, {s(t+1)}, {ML}")
        a(f"v_mov_b32 v6, {s(t+1)}")
        a(f"s_lshl_b32 {s(t+2)}, {s(S_G)}, 1")
        a(f"s_add_u32 {s(t+2)}, {s(t+2)}, {s(t)}")
        a(f"s_lshl_b32 {s(t+3)}, {s(t+2)}, 2")
        a(f"s_add_u32 {s(t+3)}, {s(t+3)}, {s(S_S)}")
        a(f"s_lshl_b32 {s(t+3)}, {s(t+3)}, 1")
        a(f"s_add_u32 {s(t+3)}, {s(t+3)}, {s(S_B)}")
        a(f"s_lshl_b32 {s(t+3)}, {s(t+3)}, 10")
        a(f"s_add_u32 {s(t+3)}, {s(t+3)}, {OP}")
        a(f"s_lshl_b32 {s(t+2)}, {s(t+2)}, 1")
        a(f"s_add_u32 {s(t+2)}, {s(t+2)}, {s(S_B)}")
        a(f"s_lshl_b32 {s(t+2)}, {s(t+2)}, 2")
        a(f"s_add_u32 {s(t+2)}, {s(t+2)}, {s(S_S)}")
        a(f"s_lshl_b32 {s(t+2)}, {s(t+2)}, 4")
        a(f"s_add_u32 {s(t+2)}, {s(t+2)}, {OM}")
        a(f"v_and_b32 v8, 127, v0")
        a(f"v_lshlrev_b32 v8, 3, v8")
        self.stamp(4)
        for u in range(2):
            a(f"s_waitcnt vmcnt({(8 if u == 0 else 0) + 4})")
            self.full_perm(VL+32*u, F)
            for cc in range(8):
                cin = '0' if u == 0 else v(ACC+4*cc,4)
                a(f"v_mfma_f32_16x16x32_bf16 {v(ACC+4*cc,4)}, {v(PF+4*u,4)}, {v(F+4*cc,4)}, {cin}")
        self.stamp(5)
        self.write_acc_rows(ACC, 7)
        a("s_waitcnt vmcnt(0)")
        self.barrier()
        LZ = a.newlabel('AZ')
        a(f"s_cmp_ge_u32 {s(S_W)}, 4")
        a(f"s_cbranch_scc1 {LZ}")
        for w in range(8):
            a(f"ds_read_b64 {v(32+2*w,2)}, v6 offset:{w*16}")
        for w in range(8):
            a(f"ds_read_b32 {v(20+w)}, v5 offset:{w*1024}")
        a(f"v_mov_b32 v15, {s(S_T)}")
        a(f"v_mov_b32 v18, {s(S_T)}")
        a(f"v_mov_b32 v19, 0")
        a(f"v_mov_b32 v6, 0")
        a("s_waitcnt lgkmcnt(8)")
        a("v_max3_f32 v16, v32, v34, v36"); a("v_max3_f32 v16, v16, v38, v40"); a("v_max3_f32 v16, v16, v42, v44"); a("v_max_f32 v16, v16, v46")
        for w in range(8):
            a(f"v_sub_f32 {v(32+2*w)}, {v(32+2*w)}, v16")
        for w in range(8):
            a(f"v_exp_f32 {v(32+2*w)}, {v(32+2*w)}")
        a("s_waitcnt lgkmcnt(0)")
        a("v_mul_f32 v14, v20, v32"); a("v_mul_f32 v17, v33, v32")
        for w in range(1, 8):
            a(f"v_fmac_f32 v14, {v(20+w)}, {v(32+2*w)}")
            a(f"v_fmac_f32 v17, {v(33+2*w)}, {v(32+2*w)}")
        a(f"buffer_store_dwordx2 v[14:15], v8, {s(SRD_WS,4)}, {s(t+3)} offen {SC}")
        a(f"s_bitcmp1_b32 {s(S_W)}, 0")
        a(f"s_cbranch_scc1 {LZ}")
        self.set_exec(1)
        a(f"buffer_store_dwordx4 v[16:19], v6, {s(SRD_WS,4)}, {s(t+2)} offen {SC}")
        self.set_exec(-1)
        a.label(LZ)
        self.stamp(6)
        self.wo_perms(WL, WLX, 132, 148)
        self.p5(0, 132, 148, 11, 12)
        self.final_reduce(0)

    def final_reduce(self, branch):
        a = self.a; t = ST
        a(f"s_cmp_ge_u32 {s(S_J)}, 36")
        a("s_cbranch_scc1 L_END")
        a(f"s_lshl_b32 {s(t+4)}, {s(S_J)}, 15")
        a(f"s_add_u32 {s(t+4)}, {s(t+4)}, {OUTP + branch*36*32768}")
        a(f"s_cmp_ge_u32 {s(S_J)}, 18")
        a(f"s_cselect_b32 {s(t+2)}, 1, 0")
        a(f"s_mul_i32 {s(t+3)}, {s(t+2)}, 18")
        a(f"s_sub_u32 {s(t+3)}, {s(S_J)}, {s(t+3)}")
        a(f"s_mul_i32 {s(t+2)}, {s(t+2)}, 2304")
        a(f"s_lshl_b32 {s(t+3)}, {s(t+3)}, 6")
        a(f"s_add_u32 {s(t+2)}, {s(t+2)}, {s(t+3)}")
        a(f"s_add_u32 {s(t+8)}, {s(t+2)}, {branch*1152}")
        a(f"s_lshl_b32 {s(t+2)}, {s(S_W)}, 7")
        a(f"s_add_u32 {s(t+2)}, {s(t+2)}, {RL}")
        a(f"v_lshlrev_b32 v6, 3, {v(V_N16)}")
        a(f"v_add_u32 v7, {s(t+2)}, v6")
        a(f"v_add_u32 v6, {RL}, v6")
        def ldf():
            a(f"v_lshlrev_b32 v5, 4, v0")
            for k in range(4):
                a(f"s_add_u32 {s(t+2)}, {s(t+4)}, {k*8192}")
                a(f"buffer_load_dwordx4 {v(16+4*k,4)}, v5, {s(SRD_WS,4)}, {s(t+2)} offen {SC}")
        def chkf():
            a(f"v_cmp_eq_u32 vcc, {s(S_T)}, v17")
            for r in (19, 21, 23, 25, 27, 29, 31):
                a(f"v_cmp_eq_u32 {s(S_PB,2)}, {s(S_T)}, {v(r)}")
                a(f"s_and_b64 vcc, vcc, {s(S_PB,2)}")
        ldf()
        self.retry_vec(ldf, chkf, "s_waitcnt vmcnt(0)", sleep=1)
        self.stamp(19)
        a("v_add_f32 v16, v16, v20"); a("v_add_f32 v24, v24, v28"); a("v_add_f32 v17, v18, v22"); a("v_add_f32 v26, v26, v30")
        a("v_add_f32 v16, v16, v24"); a("v_add_f32 v17, v17, v26")
        self.xrow_multi('v_add_f32', [16, 17], [8, 9])
        a(f"ds_write_b64 v7, v[16:17]")
        self.barrier()
        a(f"s_cmp_lg_u32 {s(S_W)}, 0")
        a("s_cbranch_scc1 L_END")
        for w in range(8):
            a(f"ds_read_b64 {v(16+2*w,2)}, v6 offset:{w*128}")
        a(f"v_and_b32 v5, 3, {v(V_N16)}")
        a(f"v_lshlrev_b32 v5, 4, v5")
        a(f"v_lshrrev_b32 v8, 2, {v(V_N16)}")
        a(f"v_lshl_add_u32 v5, v8, 2, v5")
        a("s_waitcnt lgkmcnt(0)")
        for k in range(2):
            a(f"v_add_f32 {v(16+k)}, {v(16+k)}, {v(18+k)}"); a(f"v_add_f32 {v(20+k)}, {v(20+k)}, {v(22+k)}")
            a(f"v_add_f32 {v(24+k)}, {v(24+k)}, {v(26+k)}"); a(f"v_add_f32 {v(28+k)}, {v(28+k)}, {v(30+k)}")
        for k in range(2):
            a(f"v_add_f32 {v(16+k)}, {v(16+k)}, {v(20+k)}"); a(f"v_add_f32 {v(24+k)}, {v(24+k)}, {v(28+k)}")
        for k in range(2):
            a(f"v_add_f32 {v(16+k)}, {v(16+k)}, {v(24+k)}")
        a("v_cvt_pk_bf16_f32 v16, v16, v17")
        self.set_exec(0xffff)
        a(f"buffer_store_dword v16, v5, {s(SRD_OUT,4)}, {s(t+8)} offen")
        if branch == 0:
            LE = a.newlabel('EP')
            a(f"s_cmp_lg_u32 {s(S_J)}, 0")
            a(f"s_cbranch_scc1 {LE}")
            a(f"v_mov_b32 v5, {EPOCH}")
            a(f"v_mov_b32 v6, {s(S_T)}")
            self.set_exec(1)
            a(f"buffer_store_dword v6, v5, {s(SRD_WS,4)}, 0 offen {SC}")
            a.label(LE)
        self.set_exec(-1)
        self.stamp(13)
        a("s_branch L_END")

    def y_roles(self):
        a = self.a
        a(f"s_lshr_b32 {s(S_B)}, {s(S_J)}, 6")
        a(f"s_and_b32 {s(S_S)}, {s(S_J)}, 63")
        t = ST + 8
        a(f"s_lshl_b32 {s(t)}, {s(S_J)}, 17")
        a(f"s_lshl_b32 {s(t+1)}, {s(S_W)}, 14")
        a(f"s_add_u32 {s(S_BASE)}, {s(t)}, {s(t+1)}")
    def ckv_dma(self, k0, k1):
        a = self.a; t = ST
        if k0 >= k1: return
        a(f"v_lshlrev_b32 v248, 4, {v(V_L)}")
        a(f"s_lshl_b32 {s(t)}, {s(S_W)}, 14")
        for k in range(k0, k1):
            f = ((k & 3) << 2) | ((k >> 2) & 3)
            a(f"v_xor_b32 v249, {f<<4}, v248")
            a(f"s_add_u32 m0, {s(t)}, {IMG + k*1024}")
            a(f"s_add_u32 {s(t+1)}, {s(S_BASE)}, {k*1024}")
            a(f"buffer_load_dwordx4 v249, {s(SRD_ST,4)}, {s(t+1)} offen{self.nts()} lds")

    def y_main(self):
        a = self.a; t = ST; c = self.c
        self.y_roles()
        a("s_barrier")
        self.ckv_dma(0, c.n1_ckv)
        self.p1_compute(0, c.n1_ckv)
        self.ckv_dma(c.n1_ckv, 16)
        SEL1, SEL2 = 0, 100
        a(f"v_and_b32 v5, 1, {v(V_N16)}"); a(f"v_cmp_eq_u32 {s(SEL1,2)}, 1, v5")
        a(f"v_and_b32 v5, 2, {v(V_N16)}"); a(f"v_cmp_eq_u32 {s(SEL2,2)}, 2, v5")
        GQ, GM = 16, 32
        a(f"s_lshl_b32 {s(t)}, {s(S_B)}, 10")
        a(f"s_lshl_b32 {s(t+1)}, {s(S_W)}, 7")
        a(f"s_add_u32 {s(t)}, {s(t)}, {s(t+1)}")
        a(f"s_and_b32 {s(t+1)}, {s(S_S)}, 7")
        a(f"s_lshl_b32 {s(t+1)}, {s(t+1)}, 11")
        a(f"s_add_u32 {s(t)}, {s(t)}, {s(t+1)}")
        a(f"s_add_u32 {s(t+5)}, {s(t)}, {QM}")
        a(f"s_lshl_b32 {s(t+4)}, {s(S_B)}, 15")
        a(f"s_lshl_b32 {s(t+1)}, {s(S_W)}, 12")
        a(f"s_add_u32 {s(t+4)}, {s(t+4)}, {s(t+1)}")
        a(f"s_add_u32 {s(t+4)}, {s(t+4)}, {QABS}")
        for half in range(2):
            a(f"s_add_u32 {s(t+1)}, {s(t+5)}, {64*half}")
            def okf():
                a(f"s_xor_b32 {s(t+2)}, {s(S_PB+1)}, {s(S_T)}")
                for i in range(1, 8):
                    a(f"s_xor_b32 {s(t+3)}, {s(S_PB+2*i+1)}, {s(S_T)}")
                    a(f"s_or_b32 {s(t+2)}, {s(t+2)}, {s(t+3)}")
                a(f"s_cmp_eq_u32 {s(t+2)}, 0")
            self.spin_scalar(lambda: a(f"s_load_dwordx16 {s(S_PB,16)}, {s(P_WS,2)}, {s(t+1)} glc"), okf)
        self.stamp(17)
        def ldq():
            a(f"v_lshlrev_b32 v5, 4, {v(V_L)}")
            for j in range(4):
                a(f"buffer_load_dwordx4 {v(GQ+4*j,4)}, v5, {s(SRD_WS,4)}, {s(t+4)} offen offset:{j*1024} {SC}")
            a(f"v_and_b32 v6, 3, {v(V_N16)}")
            a(f"v_lshlrev_b32 v6, 5, v6")
            a(f"v_lshl_add_u32 v6, {v(V_G4)}, 3, v6")
            a(f"buffer_load_dwordx2 {v(GM,2)}, v6, {s(SRD_WS,4)}, {s(t+5)} offen {SC}")
        ldq()
        AFS, AFP, BFR = 64, 128, 224
        N32, HI = 8, 9
        a(f"v_and_b32 {v(N32)}, 31, {v(V_L)}")
        a(f"v_lshrrev_b32 {v(HI)}, 5, {v(V_L)}")
        KT, CH = t+6, t+7
        a(f"s_and_b32 {s(KT)}, {s(S_W)}, 3")
        a(f"s_lshr_b32 {s(CH)}, {s(S_W)}, 2")
        a(f"v_and_b32 v5, 3, {v(N32)}")
        a(f"v_lshlrev_b32 v5, 2, v5")
        a(f"v_bfe_u32 v6, {v(N32)}, 2, 2")
        a(f"v_or_b32 v5, v5, v6")
        a(f"v_xor_b32 v5, v5, {v(HI)}")
        a(f"v_lshlrev_b32 v5, 4, v5")
        a(f"v_lshl_add_u32 v5, {v(N32)}, 10, v5")
        a(f"s_lshl_b32 {s(t+2)}, {s(KT)}, 15")
        a(f"s_lshl_b32 {s(t+3)}, {s(CH)}, 9")
        a(f"s_add_u32 {s(t+2)}, {s(t+2)}, {s(t+3)}")
        a(f"v_add_u32 v56, {s(t+2)}, v5")
        for i in range(1, 8): a(f"v_xor_b32 {v(56+i)}, {i*32}, v56")
        a(f"v_lshrrev_b32 v5, 2, {v(V_N16)}")
        a(f"v_lshlrev_b32 v6, 2, v5")
        a(f"v_or_b32 v6, v6, {v(HI)}")
        a(f"v_and_b32 v7, 1, {v(V_G4)}")
        a(f"v_lshlrev_b32 v7, 1, v7")
        a(f"v_bfe_u32 v13, {v(V_N16)}, 1, 1")
        a(f"v_or_b32 v7, v7, v13")
        a(f"s_and_b32 {s(t+2)}, {s(S_W)}, 1")
        a(f"s_lshl_b32 {s(t+2)}, {s(t+2)}, 3")
        a(f"v_or_b32 v7, {s(t+2)}, v7")
        a(f"v_xor_b32 v6, v6, v7")
        a(f"v_lshlrev_b32 v6, 4, v6")
        a(f"v_and_b32 v7, 1, {v(V_N16)}")
        a(f"v_lshl_add_u32 v6, v7, 3, v6")
        a(f"v_lshl_add_u32 v5, {v(HI)}, 2, v5")
        a(f"v_lshl_add_u32 v6, v5, 10, v6")
        a(f"s_lshr_b32 {s(t+2)}, {s(S_W)}, 1")
        a(f"s_lshl_b32 {s(t+2)}, {s(t+2)}, 8")
        a(f"v_add_u32 v48, {s(t+2)}, v6")
        a(f"v_xor_b32 v49, 64, v48")
        a(f"v_xor_b32 v50, 32, v48")
        a(f"v_add_u32 v50, 8192, v50")
        a(f"v_xor_b32 v51, 64, v50")
        for r in range(4): a(f"v_add_u32 {v(52+r)}, 0x10000, {v(48+r)}")
        a("s_waitcnt vmcnt(5)")
        a("s_barrier")
        self.stamp(3)
        for i in range(16):
            a(f"ds_read_b128 {v(AFS+4*i,4)}, {v(56+(i&7))} offset:{256 if i >= 8 else 0}")
        for ks in range(8):
            base = 48 if ks < 4 else 52
            off = (ks & 3) * 16384
            d = AFP + 8*ks
            for tt in range(2):
                a(f"ds_read_b64_tr_b16 {v(d+4*tt,2)}, {v(base+tt)} offset:{off}")
                a(f"ds_read_b64_tr_b16 {v(d+4*tt+2,2)}, {v(base+2+tt)} offset:{off}")
        a(f"v_and_b32 v6, 15, {v(N32)}")
        a(f"v_xor_b32 v6, v6, {v(HI)}")
        a(f"v_lshlrev_b32 v6, 4, v6")
        a(f"v_lshl_add_u32 v6, {v(N32)}, 10, v6")
        a(f"s_add_u32 {s(t+3)}, {s(t+3)}, {QIMG}")
        a(f"v_add_u32 v56, {s(t+3)}, v6")
        for i in range(1, 8): a(f"v_xor_b32 {v(56+i)}, {i*32}, v56")
        for j in range(4):
            a(f"s_and_b32 {s(t)}, {s(S_W)}, 3")
            a(f"s_lshl_b32 {s(t)}, {s(t)}, 2")
            a(f"s_add_u32 {s(t)}, {s(t)}, {j}")
            a(f"s_lshl_b32 {s(t)}, {s(t)}, 4")
            a(f"v_lshlrev_b32 v5, 4, {v(V_L)}")
            a(f"v_xor_b32 v5, {s(t)}, v5")
            a(f"s_lshl_b32 {s(t+1)}, {s(S_W)}, 12")
            a(f"s_add_u32 {s(t+1)}, {s(t+1)}, {QIMG + j*1024}")
            a(f"v_add_u32 {v(48+j)}, {s(t+1)}, v5")
        def chkq():
            self.checksum4(GQ, 14, 10, SEL1, SEL2)
            a(f"v_cmp_eq_u32 vcc, v14, {v(GM)}")
            a(f"v_cmp_eq_u32 {s(S_PB,2)}, {s(S_T)}, {v(GM+1)}")
            a(f"s_and_b64 vcc, vcc, {s(S_PB,2)}")
        self.retry_vec(ldq, chkq, "s_waitcnt vmcnt(0)")
        self.stamp(18)
        for j in range(4):
            a(f"ds_write_b128 {v(48+j)}, {v(GQ+4*j,4)}")
        self.barrier()
        self.stamp(5)
        SA = 32
        def bread(i): a(f"ds_read_b128 {v(BFR+4*(i&7),4)}, {v(56+(i&7))} offset:{256 if i >= 8 else 0}")
        for i in range(8): bread(i)
        WUVL, WUVF = 16, 192
        for i in range(16):
            left = min(7, 15 - i)
            a(f"s_waitcnt lgkmcnt({left})")
            cin = '0' if i == 0 else v(SA,16)
            a(f"v_mfma_f32_32x32x16_bf16 {v(SA,16)}, {v(AFS+4*i,4)}, {v(BFR+4*(i&7),4)}, {cin}")
            if i + 8 < 16: bread(i+8)
        a(f"s_lshl_b32 {s(t+2)}, {s(S_W)}, 11")
        a(f"s_add_u32 {s(t+2)}, {s(t+2)}, {SX}")
        a(f"v_lshlrev_b32 v7, 4, {v(V_L)}")
        a(f"v_add_u32 v5, {s(t+2)}, v7")
        a(f"s_xor_b32 {s(t+3)}, {s(S_W)}, 4")
        a(f"s_lshl_b32 {s(t+3)}, {s(t+3)}, 11")
        a(f"s_add_u32 {s(t+3)}, {s(t+3)}, {SX}")
        a(f"v_add_u32 v6, {s(t+3)}, v7")
        a(f"s_lshl_b32 {s(t+2)}, {s(S_W)}, 7")
        a(f"v_lshlrev_b32 v13, 2, {v(N32)}")
        a(f"v_add_u32 v14, {MX}, v13")
        a(f"v_add_u32 v15, {s(t+2)}, v14")
        a(f"s_lshl_b32 {s(t+3)}, {s(KT)}, 1")
        a(f"s_add_u32 {s(t+3)}, {s(t+3)}, {s(CH)}")
        a(f"s_lshl_b32 {s(t+3)}, {s(t+3)}, 10")
        a(f"s_add_u32 {s(t+3)}, {s(t+3)}, {PB}")
        a(f"v_add_u32 v56, {s(t+3)}, v7")
        a(f"v_add_u32 v57, {PB}, v7")
        a(f"v_add_u32 v58, {LS-MX}, v15")
        a(f"v_add_u32 v59, {LS-MX}, v14")
        a("s_barrier")
        SK = 48
        LC1 = a.newlabel('CH'); LC2 = a.newlabel('CH')
        a(f"s_cmp_eq_u32 {s(CH)}, 0")
        a(f"s_cbranch_scc0 {LC1}")
        a(f"ds_write_b128 v5, {v(SA+8,4)}"); a(f"ds_write_b128 v5, {v(SA+12,4)} offset:1024")
        a(f"s_branch {LC2}")
        a.label(LC1)
        a(f"ds_write_b128 v5, {v(SA,4)}"); a(f"ds_write_b128 v5, {v(SA+4,4)} offset:1024")
        for r in range(8): a(f"v_mov_b32 {v(SA+r)}, {v(SA+8+r)}")
        a.label(LC2)
        WOL, WOLX = 208, 224
        self.barrier()
        a(f"ds_read_b128 {v(SK,4)}, v6"); a(f"ds_read_b128 {v(SK+4,4)}, v6 offset:1024")
        a("s_waitcnt lgkmcnt(0)")
        for r in range(8): a(f"v_add_f32 {v(SK+r)}, {v(SK+r)}, {v(SA+r)}")
        M, Lsum, T1 = 10, 11, 12
        a(f"v_max3_f32 {v(M)}, {v(SK)}, {v(SK+1)}, {v(SK+2)}")
        a(f"v_max3_f32 {v(M)}, {v(M)}, {v(SK+3)}, {v(SK+4)}")
        a(f"v_max3_f32 {v(M)}, {v(M)}, {v(SK+5)}, {v(SK+6)}")
        a(f"v_max_f32 {v(M)}, {v(M)}, {v(SK+7)}")
        self.xhalf('v_max_f32', M, T1)
        a(f"ds_write_b32 v15, {v(M)}")
        self.barrier()
        for w in range(8):
            a(f"ds_read_b32 {v(32+w)}, v14 offset:{w*128}")
        a("s_waitcnt lgkmcnt(0)")
        a(f"v_max3_f32 {v(M)}, v32, v33, v34"); a(f"v_max3_f32 {v(M)}, {v(M)}, v35, v36"); a(f"v_max3_f32 {v(M)}, {v(M)}, v37, v38"); a(f"v_max_f32 {v(M)}, {v(M)}, v39")
        a(f"v_mul_f32 {v(M)}, {s(S_SC)}, {v(M)}")
        for r in range(8): a(f"v_fma_f32 {v(SK+r)}, {v(SK+r)}, {s(S_SC)}, -{v(M)}")
        for r in range(8): a(f"v_exp_f32 {v(SK+r)}, {v(SK+r)}")
        for q in range(4): a(f"v_cvt_pk_bf16_f32 {v(40+q)}, {v(SK+2*q)}, {v(SK+2*q+1)}")
        a(f"ds_write_b128 v56, {v(40,4)}")
        for q in range(4): a(f"v_add_f32 {v(SK+2*q)}, {v(SK+2*q)}, {v(SK+2*q+1)}")
        a(f"v_add_f32 {v(SK)}, {v(SK)}, {v(SK+2)}"); a(f"v_add_f32 {v(SK+4)}, {v(SK+4)}, {v(SK+6)}")
        a(f"v_add_f32 {v(Lsum)}, {v(SK)}, {v(SK+4)}")
        self.xhalf('v_add_f32', Lsum, T1)
        a(f"ds_write_b32 v58, {v(Lsum)}")
        self.barrier()
        self.stamp(6)
        PF, ACC2 = 64, 96
        for ks in range(8):
            a(f"ds_read_b128 {v(PF+4*ks,4)}, v57 offset:{ks*1024}")
        for w in range(8):
            a(f"ds_read_b32 {v(32+w)}, v59 offset:{w*128}")
        for ks in range(8):
            a(f"s_waitcnt lgkmcnt({min(15, 15-ks)})")
            for tt in range(2):
                cin = '0' if ks == 0 else v(ACC2+16*tt,16)
                a(f"v_mfma_f32_32x32x16_bf16 {v(ACC2+16*tt,16)}, {v(AFP+8*ks+4*tt,4)}, {v(PF+4*ks,4)}, {cin}")
        a(f"v_and_b32 v5, 15, {v(N32)}")
        a(f"s_and_b32 {s(t+2)}, {s(S_W)}, 1")
        a(f"s_lshl_b32 {s(t+2)}, {s(t+2)}, 3")
        a(f"v_xor_b32 v5, {s(t+2)}, v5")
        a(f"v_lshlrev_b32 v5, 4, v5")
        a(f"v_lshl_add_u32 v5, {v(HI)}, 3, v5")
        a(f"v_lshl_add_u32 v5, {v(N32)}, 10, v5")
        a(f"s_lshr_b32 {s(t+2)}, {s(S_W)}, 1")
        a(f"s_lshl_b32 {s(t+2)}, {s(t+2)}, 8")
        a(f"v_add_u32 v48, {s(t+2)}, v5")
        for x in range(1, 8): a(f"v_xor_b32 {v(48+x)}, {x<<4}, v48")
        for j in range(4):
            a(f"s_and_b32 {s(t+2)}, {s(S_W)}, 3")
            a(f"s_lshl_b32 {s(t+2)}, {s(t+2)}, 2")
            a(f"s_add_u32 {s(t+2)}, {s(t+2)}, {j}")
            a(f"s_lshl_b32 {s(t+2)}, {s(t+2)}, 4")
            a(f"v_lshlrev_b32 v5, 4, {v(V_L)}")
            a(f"v_xor_b32 v5, {s(t+2)}, v5")
            a(f"s_lshl_b32 {s(t+3)}, {s(S_W)}, 12")
            a(f"s_add_u32 {s(t+3)}, {s(t+3)}, {j*1024}")
            a(f"v_add_u32 {v(56+j)}, {s(t+3)}, v5")
        a("s_waitcnt lgkmcnt(0)")
        a("v_add_f32 v32, v32, v33"); a("v_add_f32 v34, v34, v35"); a("v_add_f32 v36, v36, v37"); a("v_add_f32 v38, v38, v39")
        a("v_add_f32 v32, v32, v34"); a("v_add_f32 v36, v36, v38")
        a(f"v_add_f32 {v(Lsum)}, v32, v36")
        a(f"v_lshlrev_b32 v6, 3, {v(N32)}")
        a(f"v_add_u32 v6, {MX}, v6")
        a(f"ds_write_b64 v6, {v(M,2)}")
        a(f"v_and_b32 v6, 3, {v(V_N16)}")
        a(f"s_lshl_b32 {s(t+2)}, {s(S_W)}, 5")
        a(f"s_add_u32 {s(t+2)}, {s(t+2)}, {MX}")
        a(f"v_lshlrev_b32 v7, 3, v6")
        a(f"v_add_u32 v7, {s(t+2)}, v7")
        a(f"v_lshlrev_b32 v6, 2, v6")
        a(f"v_add_u32 v6, v6, {v(V_G4)}")
        a(f"v_lshlrev_b32 v6, 11, v6")
        a(f"s_lshl_b32 {s(t+2)}, {s(S_W)}, 15")
        a(f"s_lshl_b32 {s(t+3)}, {s(S_J)}, 4")
        a(f"s_add_u32 {s(t+2)}, {s(t+2)}, {s(t+3)}")
        a(f"s_add_u32 {s(t+2)}, {s(t+2)}, {BM}")
        a(f"s_lshl_b32 {s(t+3)}, {s(S_J)}, 15")
        a(f"s_lshl_b32 {s(t+4)}, {s(S_W)}, 12")
        a(f"s_add_u32 {s(t+3)}, {s(t+3)}, {s(t+4)}")
        a(f"s_add_u32 {s(t+3)}, {s(t+3)}, {BPART}")
        a(f"v_lshlrev_b32 v5, 4, {v(V_L)}")
        self.stamp(7)
        for tt in range(2):
            for q in range(4):
                r0 = ACC2 + 16*tt + 4*q
                a(f"v_cvt_pk_bf16_f32 {v(r0)}, {v(r0)}, {v(r0+1)}")
                a(f"v_cvt_pk_bf16_f32 {v(r0+1)}, {v(r0+2)}, {v(r0+3)}")
                a(f"ds_write_b64 {v(48+4*tt+q)}, {v(r0,2)}")
        self.barrier()
        OR = 32
        for j in range(4):
            a(f"ds_read_b128 {v(OR+4*j,4)}, {v(56+j)}")
        a(f"ds_read_b64 v[48:49], v7")
        a(f"v_mov_b32 v51, {s(S_T)}")
        a("s_waitcnt lgkmcnt(0)")
        for j in range(4):
            a(f"buffer_store_dwordx4 {v(OR+4*j,4)}, v5, {s(SRD_WS,4)}, {s(t+3)} offen offset:{j*1024} {SC}")
        self.checksum4(OR, 50, 10, SEL1, SEL2)
        self.set_exec(0x000f000f000f000f)
        a(f"buffer_store_dwordx4 v[48:51], v6, {s(SRD_WS,4)}, {s(t+2)} offen {SC}")
        self.set_exec(-1)
        self.stamp(8)
        WOF, WOFX = 132, 148
        a(f"v_lshlrev_b32 v7, 15, {v(V_G4)}")
        a(f"v_lshl_add_u32 v7, {v(V_N16)}, 4, v7")
        a(f"s_lshl_b32 {s(t)}, {s(S_RQ)}, 7")
        a(f"s_lshl_b32 {s(t+1)}, {s(S_W)}, 4")
        a(f"s_add_u32 {s(t)}, {s(t)}, {s(t+1)}")
        a(f"s_lshl_b32 {s(t)}, {s(t)}, 13")
        a(f"s_lshl_b32 {s(t+1)}, {s(S_H)}, 8")
        a(f"s_add_u32 {s(t)}, {s(t)}, {s(t+1)}")
        for jr in range(4):
            a(f"buffer_load_dwordx4 {v(WUVL+4*jr,4)}, v7, {s(SRD_V,4)}, {s(t)} offen{self.ntw()}")
            if jr < 3: a(f"s_add_u32 {s(t)}, {s(t)}, 8192")
        self.wo_loads(SRD_WO, WOL, WOLX)
        DL, DM, DF, ACC = 64, 80, 84, 100
        a(f"s_lshl_b32 {s(t+4)}, {s(S_W)}, 19")
        a(f"s_lshl_b32 {s(t+2)}, {s(S_J)}, 8")
        a(f"s_add_u32 {s(t+4)}, {s(t+4)}, {s(t+2)}")
        a(f"s_add_u32 {s(t+4)}, {s(t+4)}, {BPART}")
        a(f"s_lshl_b32 {s(t+5)}, {s(S_J)}, 1")
        a(f"s_lshr_b32 {s(t+2)}, {s(S_W)}, 2")
        a(f"s_add_u32 {s(t+5)}, {s(t+5)}, {s(t+2)}")
        a(f"s_lshl_b32 {s(t+5)}, {s(t+5)}, 10")
        a(f"s_add_u32 {s(t+5)}, {s(t+5)}, {BM}")
        def ldm():
            a(f"v_lshlrev_b32 v5, 4, {v(V_L)}")
            a(f"buffer_load_dwordx4 {v(DM,4)}, v5, {s(SRD_WS,4)}, {s(t+5)} offen {SC}")
        def chkm():
            a(f"v_cmp_eq_u32 vcc, {s(S_T)}, {v(DM+3)}")
        a(f"v_and_b32 v6, 3, {v(V_N16)}")
        a(f"v_lshl_add_u32 v6, {v(V_G4)}, 2, v6")
        a(f"s_and_b32 {s(t+2)}, {s(S_W)}, 3")
        a(f"s_lshl_b32 {s(t+2)}, {s(t+2)}, 4")
        a(f"v_add_u32 v6, {s(t+2)}, v6")
        a(f"v_lshlrev_b32 v14, 2, v6")
        a(f"s_lshl_b32 {s(t+2)}, {s(t+2)}, 2")
        a(f"v_lshlrev_b32 v15, 4, {v(V_G4)}")
        a(f"v_add_u32 v15, {s(t+2)}, v15")
        a(f"v_add_u32 v13, 8, v15")
        a(f"v_lshlrev_b32 v7, 17, {v(V_G4)}")
        a(f"v_lshl_add_u32 v7, {v(V_N16)}, 4, v7")
        ldm()
        self.retry_vec(ldm, chkm, "s_waitcnt vmcnt(0)", sleep=1)
        self.stamp(14)
        def ldp():
            for j in range(4):
                a(f"s_add_u32 {s(t+2)}, {s(t+4)}, {j*32768}")
                a(f"buffer_load_dwordx4 {v(DL+4*j,4)}, v7, {s(SRD_WS,4)}, {s(t+2)} offen {SC}")
        ldp()
        a(f"ds_bpermute_b32 v12, v14, {v(DM+2)}")
        self.half_perm(WUVL, WUVF)
        self.wo_perms(WOL, WOLX, WOF, WOFX)
        a(f"v_mov_b32 v8, {v(DM)}")
        self.inrow('v_max_f32', 8); self.xrow('v_max_f32', 8, 9)
        a(f"v_sub_f32 v8, {v(DM)}, v8")
        a(f"v_exp_f32 v8, v8")
        a(f"v_mul_f32 v10, v8, {v(DM+1)}")
        self.inrow('v_add_f32', 10); self.xrow('v_add_f32', 10, 9)
        a(f"v_rcp_f32 v10, v10")
        a(f"v_mul_f32 v8, v8, v10")
        a(f"v_mov_b32_dpp v9, v8 row_shl:1 row_mask:0xf bank_mask:0xf")
        a(f"v_cvt_pk_bf16_f32 v8, v8, v9")
        a(f"ds_bpermute_b32 v52, v15, v8")
        a(f"ds_bpermute_b32 v53, v13, v8")
        a(f"s_lshl_b32 {s(t+2)}, {s(S_W)}, 9")
        a(f"s_add_u32 {s(t+2)}, {s(t+2)}, {CW}")
        a(f"v_lshlrev_b32 v5, 5, {v(V_N16)}")
        a(f"v_add_u32 v5, {s(t+2)}, v5")
        a(f"v_lshlrev_b32 v6, 11, {v(V_RS)}")
        a(f"v_lshl_add_u32 v6, {v(V_G4)}, 4, v6")
        a(f"s_lshl_b32 {s(t+2)}, {s(S_W)}, 6")
        a(f"s_add_u32 {s(t+2)}, {s(t+2)}, {CW}")
        a(f"v_add_u32 v6, {s(t+2)}, v6")
        a("s_waitcnt lgkmcnt(0)")
        def chkp():
            self.checksum4(DL, 11, 32, SEL1, SEL2)
            a(f"v_cmp_eq_u32 vcc, v11, v12")
        self.retry_vec(ldp, chkp, "s_waitcnt vmcnt(0)", sleep=1)
        self.stamp(9)
        self.half_perm(DL, DF)
        self.half_mfma(ACC, 52, DF, True)
        self.acc_rows_addr(7, CT)
        self.set_exec(0xffff)
        self.write_acc_rows(ACC, 5)
        self.set_exec(-1)
        a(f"s_add_u32 {s(t+2)}, {s(S_J)}, 128")
        a(f"s_lshl_b32 {s(t+2)}, {s(t+2)}, 11")
        a(f"s_add_u32 {s(t+2)}, {s(t+2)}, {OP}")
        a(f"s_add_u32 {s(t+3)}, {s(S_H)}, 32")
        a(f"s_lshl_b32 {s(t+3)}, {s(t+3)}, 1")
        a(f"s_lshr_b32 {s(t+4)}, {s(S_W)}, 1")
        a(f"s_add_u32 {s(t+3)}, {s(t+3)}, {s(t+4)}")
        a(f"s_lshl_b32 {s(t+3)}, {s(t+3)}, 2")
        a(f"s_add_u32 {s(t+3)}, {s(t+3)}, {s(S_RQ)}")
        a(f"s_lshl_b32 {s(t+3)}, {s(t+3)}, 4")
        a(f"s_add_u32 {s(t+3)}, {s(t+3)}, {OM}")
        self.barrier()
        for q in range(4):
            a(f"ds_read_b128 {v(16+4*q,4)}, v6 offset:{q*512}")
        a(f"v_lshlrev_b32 v5, 2, v0")
        a(f"v_add_u32 v5, {CT}, v5")
        a(f"v_lshlrev_b32 v6, 3, v0")
        a("s_waitcnt lgkmcnt(0)")
        for j in range(4):
            a(f"v_add_f32 {v(16+j)}, {v(16+j)}, {v(20+j)}")
            a(f"v_add_f32 {v(24+j)}, {v(24+j)}, {v(28+j)}")
        for j in range(4):
            a(f"v_add_f32 {v(16+j)}, {v(16+j)}, {v(24+j)}")
        a("v_cvt_pk_bf16_f32 v52, v16, v17"); a("v_cvt_pk_bf16_f32 v53, v18, v19")
        self.half_mfma(ACC, 52, WUVF, True)
        self.write_acc_rows(ACC, 7)
        self.barrier()
        LZ = a.newlabel('BZ')
        a(f"s_cmp_ge_u32 {s(S_W)}, 4")
        a(f"s_cbranch_scc1 {LZ}")
        for w in range(8):
            a(f"ds_read_b32 {v(20+w)}, v5 offset:{w*1024}")
        a(f"v_mov_b32 v29, {s(S_T)}")
        a(f"v_mov_b32 v8, 0"); a(f"v_mov_b32 v9, 0.25"); a(f"v_mov_b32 v10, {s(S_T)}"); a("v_mov_b32 v11, 0")
        a("s_waitcnt lgkmcnt(0)")
        a("v_add_f32 v20, v20, v21"); a("v_add_f32 v22, v22, v23"); a("v_add_f32 v24, v24, v25"); a("v_add_f32 v26, v26, v27")
        a("v_add_f32 v20, v20, v22"); a("v_add_f32 v24, v24, v26")
        a("v_add_f32 v28, v20, v24")
        a(f"buffer_store_dwordx2 v[28:29], v6, {s(SRD_WS,4)}, {s(t+2)} offen {SC}")
        a(f"v_mov_b32 v6, 0")
        a(f"s_bitcmp1_b32 {s(S_W)}, 0")
        a(f"s_cbranch_scc1 {LZ}")
        self.set_exec(1)
        a(f"buffer_store_dwordx4 v[8:11], v6, {s(SRD_WS,4)}, {s(t+3)} offen {SC}")
        self.set_exec(-1)
        a.label(LZ)
        self.stamp(10)
        self.p5(1, WOF, WOFX, 11, 12)
        self.final_reduce(1)

    def p5(self, branch, WF, WFX, st_x, st_pub):
        a = self.a; t = ST
        ACC, ACCX = 100, 64
        a(f"s_add_u32 {s(t+4)}, {s(S_H)}, {branch*32}")
        a(f"s_lshl_b32 {s(t+5)}, {s(t+4)}, 1")
        a(f"s_add_u32 {s(t+5)}, {s(t+5)}, {s(S_W)}")
        a(f"s_lshl_b32 {s(t+5)}, {s(t+5)}, 6")
        a(f"s_add_u32 {s(t+5)}, {s(t+5)}, {OM}")
        a(f"s_lshl_b32 {s(t+4)}, {s(t+4)}, 13")
        a(f"s_lshl_b32 {s(t+2)}, {s(S_W)}, 10")
        a(f"s_add_u32 {s(t+4)}, {s(t+4)}, {s(t+2)}")
        a(f"s_lshl_b32 {s(t+2)}, {s(S_RQ)}, 8")
        a(f"s_add_u32 {s(t+4)}, {s(t+4)}, {s(t+2)}")
        a(f"s_add_u32 {s(t+4)}, {s(t+4)}, {OP}")
        a(f"s_lshl_b32 {s(t+2)}, {s(S_W)}, 6")
        a(f"s_add_u32 {s(t+2)}, {s(t+2)}, {XL}")
        a(f"v_lshlrev_b32 v14, 2, {v(V_N16)}")
        a(f"v_add_u32 v14, {s(t+2)}, v14")
        a(f"v_lshlrev_b32 v15, 6, {v(V_RS)}")
        a(f"v_and_b32 v6, 1, {v(V_N16)}")
        a(f"v_lshl_add_u32 v15, v6, 5, v15")
        a(f"v_lshl_add_u32 v15, {v(V_G4)}, 3, v15")
        a(f"v_add_u32 v15, {XL}, v15")
        a(f"v_and_b32 v7, 1, {v(V_G4)}")
        a(f"v_mul_u32_u24 v7, {18*128*256}, v7")
        a(f"v_lshl_add_u32 v7, {v(V_RS)}, 15, v7")
        a(f"v_and_b32 v6, 3, {v(V_N16)}")
        a(f"v_lshl_add_u32 v7, v6, 4, v7")
        a(f"s_lshl_b32 {s(t+6)}, {s(S_J)}, 8")
        a(f"s_add_u32 {s(t+6)}, {s(t+6)}, {OUTP + branch*2*18*128*256}")
        LG = a.newlabel('TG')
        a(f"s_cmp_ge_u32 {s(S_W)}, 2")
        a(f"s_cbranch_scc1 {LG}")
        def ldt():
            a(f"v_lshlrev_b32 v5, 11, {v(V_G4)}")
            a(f"v_lshl_add_u32 v5, {v(V_N16)}, 4, v5")
            a(f"buffer_load_dwordx4 v[48:51], v5, {s(SRD_WS,4)}, {s(t+4)} offen {SC}")
            a(f"v_lshlrev_b32 v5, 4, {v(V_G4)}")
            a(f"buffer_load_dwordx4 v[52:55], v5, {s(SRD_WS,4)}, {s(t+5)} offen {SC}")
        def chkt():
            a(f"v_cmp_eq_u32 vcc, {s(S_T)}, v49")
            a(f"v_cmp_eq_u32 {s(S_PB,2)}, {s(S_T)}, v51")
            a(f"s_and_b64 vcc, vcc, {s(S_PB,2)}")
            a(f"v_cmp_eq_u32 {s(S_PB,2)}, {s(S_T)}, v54")
            a(f"s_and_b64 vcc, vcc, {s(S_PB,2)}")
        ldt()
        self.retry_vec(ldt, chkt, "s_waitcnt vmcnt(0)", sleep=1)
        a("v_mov_b32 v8, v52")
        self.xrow('v_max_f32', 8, 9)
        a("v_sub_f32 v8, v52, v8")
        a("v_exp_f32 v8, v8")
        a("v_mul_f32 v10, v8, v53")
        a("v_mul_f32 v12, v8, v48")
        a("v_mul_f32 v13, v8, v50")
        self.xrow_multi('v_add_f32', [10, 12, 13], [9, 11, 8])
        a("v_rcp_f32 v10, v10")
        a("v_mul_f32 v12, v12, v10"); a("v_mul_f32 v13, v13, v10")
        a("v_cvt_pk_bf16_f32 v12, v12, v13")
        a("ds_write_b32 v14, v12")
        a.label(LG)
        a(f"v_cmp_gt_u32 {s(S_PB,2)}, 8, {v(V_N16)}")
        self.barrier()
        self.stamp(st_x)
        a(f"ds_read_b64 v[48:49], v15")
        a("s_waitcnt lgkmcnt(0)")
        def outputs(ACCr, WFr, cg_const):
            self.half_mfma(ACCr, 48, WFr, True)
            if cg_const is None:
                a(f"s_lshl_b32 {s(t+3)}, {s(S_W)}, 16")
                a(f"s_add_u32 {s(t+2)}, {s(t+6)}, {s(t+3)}")
            else:
                a(f"s_add_u32 {s(t+2)}, {s(t+6)}, {cg_const<<16}")
            for cc in range(8):
                r = ACCr + 4*cc
                a(f"v_cndmask_b32 {v(r)}, {v(r+1)}, {v(r)}, {s(S_PB,2)}")
            for cc in range(8):
                r = ACCr + 4*cc
                a(f"v_add_f32_dpp {v(r)}, {v(r)}, {v(r)} row_ror:8 row_mask:0xf bank_mask:0xf")
            for cc in range(0, 8, 2):
                r = ACCr + 4*cc
                a(f"v_mov_b32 {v(r+2)}, {v(r+4)}")
                a(f"v_mov_b32 {v(r+1)}, {s(S_T)}")
                a(f"v_mov_b32 {v(r+3)}, {s(S_T)}")
            self.set_exec(0x00ff00ff)
            for cc in range(0, 8, 2):
                a(f"buffer_store_dwordx4 {v(ACCr+4*cc,4)}, v7, {s(SRD_WS,4)}, {s(t+2)} offen offset:{cc*32} {SC}")
            self.set_exec(-1)
        outputs(ACC, WF, None)
        LO = a.newlabel('TO')
        a(f"s_cmp_lg_u32 {s(S_W)}, 0")
        a(f"s_cbranch_scc1 {LO}")
        outputs(ACCX, WFX, 8)
        a.label(LO)
        self.stamp(st_pub)

    def build(self):
        a = self.a; c = self.c
        self.prologue()
        self.p1_loads()
        self.srds_rest()
        a(f"s_cmp_eq_u32 {s(S_TYPE)}, 0")
        a("s_cbranch_scc0 L_Y0")
        self.x_main()
        a.label("L_Y0")
        self.y_main()
        a.label("L_END")
        self.stamp_dump()
        a.label("L_EXIT")
        a("s_endpgm")
        body = a.finalize()
        hdr = open(os.path.join(os.path.dirname(os.path.abspath(__file__)), 'header.txt')).read()
        out = hdr
        out += f"; @launch grid=(256,1,1) block=(512,1,1) lds={LDS_BYTES}\n"
        out += f""".amdgcn_target "amdgcn-amd-amdhsa--gfx950"
.text
.globl {NAME}_kernel
.p2align 8
.type {NAME}_kernel,@function
{NAME}_kernel:
"""
        out += body
        out += f""".section .rodata,"a"
.p2align 6
.amdhsa_kernel {NAME}_kernel
  .amdhsa_next_free_vgpr 256
  .amdhsa_next_free_sgpr 102
  .amdhsa_accum_offset 256
  .amdhsa_group_segment_fixed_size 0
  .amdhsa_kernarg_size 112
  .amdhsa_user_sgpr_count 2
  .amdhsa_user_sgpr_kernarg_segment_ptr 1
  .amdhsa_system_sgpr_workgroup_id_x 1
.end_amdhsa_kernel
"""
        return out

if __name__ == '__main__':
    cfg = Cfg()
    outp = f"cdna_kernels/{NAME}.s"
    for arg in sys.argv[1:]:
        if arg.startswith('-o='): outp = arg[3:]
        elif '=' in arg:
            k, val = arg.split('=')
            setattr(cfg, k, type(getattr(cfg, k))(int(val)))
    g = Gen(cfg)
    txt = g.build()
    open(outp, 'w').write(txt)
    print("wrote", outp, "lines", txt.count('\n'), "nops inserted", g.a.ninserted)
```

```python
import sys, os, struct
sys.path.insert(0, os.path.dirname(os.path.abspath(__file__)))
from asmlib import Asm, v, s

NAME = "concat_heads__sliding_block_cached__compressed_kv_cla__decode"

class Cfg:
    nt_stream = True
    nt_w = True
    n1_ckv = 4
    n1_k = 0
    n2_k = 0
    n3_k = 0
    spin_limit = 300000
    sleep5 = 1
    touch = 0
    pipe5 = 1
    stag5 = 10
    pipep5 = 0
    stagp5 = 8
    ldsdbg = 0
    k_after = 4
    early_qa = 1
    n4_k = 0
    e3ack = 1
    e3sleep = 4
    hs = 4
    hsy = 4
    wuk_late = 0
    hs5 = 4
    ackdbg = 0
    xsplit = 0
    dbg = 0
    stamps = False

Q1   = 0x000000
QABS = 0x080000
QM   = 0x090000
EPOCH= 0x0A0000
DONE = 0x0A1000
OP   = 0x100000
OM   = 0x180000
BM   = 0x1C0000
BPART= 0x200000
OUTP = 0x600000
STMP = 0x900000
WS_SIZE = 268435456

IMG = 0
SCR = 131072
R1 = SCR; R2 = SCR + 8192; QL = SCR + 12288; QAL = SCR + 12800
QIMG = SCR
SX = SCR; MX = SCR + 16384; LS = SCR + 17408; PB = SCR + 18432
OW = SCR; ML = SCR + 8192
CW = SCR; XL2 = SCR + 4096
XL = SCR + 12288 + 1024
WUVIMG = IMG + 32768; WOIMG_Y = IMG + 65536
LDS_BYTES = 163840

S_W = 3; S_J = 4; S_TYPE = 5; S_H = 6; S_RQ = 7; S_T = 8
S_B = 9; S_S = 10; S_G = 11
S_PLO = 12; S_PHI = 13; S_SC = 14; S_BASE = 15
P_AX, P_AK, P_AV, P_AWQ, P_AWO, P_BX, P_CKV, P_BWQ = 16, 18, 20, 22, 24, 26, 28, 30
P_WUK, P_WUV, P_BWO, P_OUT = 32, 34, 36, 38
P_DBG, P_WS0 = 40, 42
SRD_X = 44; SRD_W = 48; SRD_ST = 52; SRD_V = 56; SRD_WO = 60; SRD_U = 64
SRD_WS = 80; SRD_OUT = 84; P_WS = 88; SEL1 = 0; SEL2 = 90
ST = 92
S_CNT = 5
S_PB = 16
V_L, V_G4, V_N16, V_RS = 1, 2, 3, 4
SC = "sc0 sc1"
SCALE_LOG2E = 0.08838834764831845 * 1.4426950408889634
TAGINC = 0x9e3779b9
def f32hex(x): return '0x%08x' % struct.unpack('<I', struct.pack('<f', x))[0]

class Gen:
    def __init__(self, cfg):
        self.c = cfg
        self.a = Asm()

    def srd(self, dst, ptr, size):
        a = self.a
        a(f"s_mov_b32 {s(dst)}, {s(ptr)}")
        a(f"s_and_b32 {s(dst+1)}, {s(ptr+1)}, 0xffff")
        a(f"s_mov_b32 {s(dst+2)}, {size}")
        a(f"s_mov_b32 {s(dst+3)}, 0x20000")
    def srd_sel(self, dst, ptrX, ptrY, sizeX, sizeY):
        a = self.a
        a(f"s_cmp_eq_u32 {s(S_TYPE)}, 0")
        a(f"s_cselect_b32 {s(dst)}, {s(ptrX)}, {s(ptrY)}")
        a(f"s_cselect_b32 {s(dst+1)}, {s(ptrX+1)}, {s(ptrY+1)}")
        if sizeX == sizeY:
            a(f"s_mov_b32 {s(dst+2)}, {sizeX}")
        else:
            a(f"s_mov_b32 {s(dst+2)}, {sizeY}")
            a(f"s_cselect_b32 {s(dst+2)}, {sizeX}, {s(dst+2)}")
        a(f"s_and_b32 {s(dst+1)}, {s(dst+1)}, 0xffff")
        a(f"s_mov_b32 {s(dst+3)}, 0x20000")
    def hshift(self, dst):
        self.a(f"s_add_u32 {s(dst)}, {s(S_H)}, s79")
        self.a(f"s_and_b32 {s(dst)}, {s(dst)}, 31")
    def hshift5(self, dst):
        self.a(f"s_add_u32 {s(dst)}, {s(S_H)}, {self.c.hs5}")
        self.a(f"s_and_b32 {s(dst)}, {s(dst)}, 31")
    def set_exec(self, mask):
        a = self.a
        if mask == -1:
            a("s_mov_b64 exec, -1"); return
        a(f"s_mov_b32 exec_lo, 0x{mask & 0xffffffff:08x}")
        a(f"s_mov_b32 exec_hi, 0x{mask >> 32:08x}")
    def ntw(self): return ' nt' if self.c.nt_w else ''
    def nts(self): return ' nt' if self.c.nt_stream else ''

    def stamp(self, idx):
        if not self.c.stamps: return
        a = self.a
        a(f"s_memrealtime vcc")
        a(f"s_waitcnt lgkmcnt(0)")
        a(f"v_writelane_b32 v0, vcc_lo, {idx}")
    def stamp_cnt(self, idx):
        if not self.c.stamps: return
        self.a(f"v_writelane_b32 v0, {s(S_CNT)}, {idx}")
    def stamp_dump(self):
        if not self.c.stamps: return
        a = self.a
        a(f"s_lshl_b32 s98, s2, 3")
        a(f"s_add_u32 s98, s98, {s(S_W)}")
        a(f"s_lshl_b32 s98, s98, 7")
        a(f"s_add_u32 s98, s98, {STMP}")
        a(f"v_lshlrev_b32 v58, 2, {v(V_L)}")
        self.set_exec(0xffffffff)
        a(f"buffer_store_dword v0, v58, {s(SRD_WS,4)}, s98 offen")
        self.set_exec(-1)
    def tid_shl(self, dst, sh, add=0, st=None):
        a = self.a
        st = ST + 9 if st is None else st
        a(f"s_lshl_b32 {s(st)}, {s(S_W)}, {6+sh}")
        if add: a(f"s_add_u32 {s(st)}, {s(st)}, {add}")
        a(f"v_lshl_add_u32 {v(dst)}, {v(V_L)}, {sh}, {s(st)}")

    def half_perm(self, L, F):
        a = self.a
        for i in range(4):
            for jj in range(2):
                lo = L + (2*jj)*4 + i; hi = L + (2*jj+1)*4 + i
                a(f"v_perm_b32 {v(F + (2*i)*2 + jj)}, {v(hi)}, {v(lo)}, {s(S_PLO)}")
                a(f"v_perm_b32 {v(F + (2*i+1)*2 + jj)}, {v(hi)}, {v(lo)}, {s(S_PHI)}")
    def full_perm(self, L, F):
        a = self.a
        for i in range(4):
            for jj in range(4):
                lo = L + (2*jj)*4 + i; hi = L + (2*jj+1)*4 + i
                a(f"v_perm_b32 {v(F + (2*i)*4 + jj)}, {v(hi)}, {v(lo)}, {s(S_PLO)}")
                a(f"v_perm_b32 {v(F + (2*i+1)*4 + jj)}, {v(hi)}, {v(lo)}, {s(S_PHI)}")
    def half_mfma(self, ACC, AF, F, first):
        a = self.a
        for c in range(8):
            cin = '0' if first else v(ACC + 4*c, 4)
            a(f"v_mfma_f32_16x16x16_bf16 {v(ACC+4*c,4)}, {v(AF,2)}, {v(F+2*c,2)}, {cin}")
    def xrow(self, op, x, t):
        a = self.a
        a(f"v_mov_b32 {v(t)}, {v(x)}")
        a(f"v_permlane16_swap_b32 {v(x)}, {v(t)}")
        a(f"{op} {v(x)}, {v(x)}, {v(t)}")
        a(f"v_mov_b32 {v(t)}, {v(x)}")
        a(f"v_permlane32_swap_b32 {v(x)}, {v(t)}")
        a(f"{op} {v(x)}, {v(x)}, {v(t)}")
    def xrow_multi(self, op, xs, ts):
        a = self.a
        for sw in ('v_permlane16_swap_b32', 'v_permlane32_swap_b32'):
            for x, t in zip(xs, ts): a(f"v_mov_b32 {v(t)}, {v(x)}")
            for x, t in zip(xs, ts): a(f"{sw} {v(x)}, {v(t)}")
            for x, t in zip(xs, ts): a(f"{op} {v(x)}, {v(x)}, {v(t)}")
    def xhalf(self, op, x, t):
        a = self.a
        a(f"v_mov_b32 {v(t)}, {v(x)}")
        a(f"v_permlane32_swap_b32 {v(x)}, {v(t)}")
        a(f"{op} {v(x)}, {v(x)}, {v(t)}")
    def inrow(self, op, x):
        a = self.a
        for r in (8, 4, 2, 1):
            a(f"{op}_dpp {v(x)}, {v(x)}, {v(x)} row_ror:{r} row_mask:0xf bank_mask:0xf")
    def barrier(self):
        self.a("s_waitcnt lgkmcnt(0)")
        self.a("s_barrier")

    def spin_scalar(self, load_fn, ok_fn, sleep=0):
        a = self.a
        L = a.newlabel('SP'); D = a.newlabel('SD')
        a(f"s_mov_b32 {s(S_CNT)}, 0")
        a.label(L)
        load_fn()
        a("s_waitcnt lgkmcnt(0)")
        ok_fn()
        a(f"s_cbranch_scc1 {D}")
        if sleep: a(f"s_sleep {sleep}")
        a(f"s_add_u32 {s(S_CNT)}, {s(S_CNT)}, 1")
        a(f"s_cmp_lt_u32 {s(S_CNT)}, {self.c.spin_limit}")
        a(f"s_cbranch_scc1 {L}")
        a.label(D)

    def s_alltags(self, regs, t0, t1):
        a = self.a
        a(f"s_xor_b32 {s(t0)}, {s(regs[0])}, {s(S_T)}")
        for r in regs[1:]:
            a(f"s_xor_b32 {s(t1)}, {s(r)}, {s(S_T)}")
            a(f"s_or_b32 {s(t0)}, {s(t0)}, {s(t1)}")
        a(f"s_cmp_eq_u32 {s(t0)}, 0")

    def retry_vec(self, load_fn, check_fn, first_wait, sleep=0, wait="s_waitcnt vmcnt(0)"):
        a = self.a
        C = a.newlabel('RC'); D = a.newlabel('RD')
        a(f"s_mov_b32 {s(S_CNT)}, 0")
        a(first_wait)
        a.label(C)
        check_fn()
        a("s_cmp_eq_u64 vcc, exec")
        a(f"s_cbranch_scc1 {D}")
        a(f"s_add_u32 {s(S_CNT)}, {s(S_CNT)}, 1")
        a(f"s_cmp_ge_u32 {s(S_CNT)}, {self.c.spin_limit}")
        a(f"s_cbranch_scc1 {D}")
        if sleep: a(f"s_sleep {sleep}")
        load_fn()
        a(wait)
        a(f"s_branch {C}")
        a.label(D)

    def poll_pipe(self, load_fn, check_fn, done_fn, nloads, stagger, first_issued=True):
        a = self.a
        L0 = a.newlabel('PP'); D0 = a.newlabel('PD'); D1 = a.newlabel('PD'); E = a.newlabel('PE')
        a(f"s_mov_b32 {s(S_CNT)}, 0")
        if stagger: a(f"s_sleep {stagger}")
        load_fn(1)
        a.label(L0)
        for k, D in ((0, D0), (1, D1)):
            a(f"s_waitcnt vmcnt({nloads})")
            check_fn(k)
            a("s_cmp_eq_u64 vcc, exec")
            a(f"s_cbranch_scc1 {D}")
            load_fn(k)
        a(f"s_add_u32 {s(S_CNT)}, {s(S_CNT)}, 1")
        a(f"s_cmp_lt_u32 {s(S_CNT)}, {self.c.spin_limit}")
        a(f"s_cbranch_scc1 {L0}")
        a("s_waitcnt vmcnt(0)")
        a.label(D0)
        done_fn(0)
        a(f"s_branch {E}")
        a.label(D1)
        done_fn(1)
        a.label(E)

    def acc_rows_addr(self, dst, base):
        a = self.a
        a(f"v_and_b32 {v(dst)}, 1, {v(V_G4)}")
        a(f"v_lshlrev_b32 {v(dst)}, 9, {v(dst)}")
        a(f"v_lshl_add_u32 {v(dst)}, {v(V_N16)}, 5, {v(dst)}")
        a(f"s_lshl_b32 {s(ST)}, {s(S_W)}, 10")
        a(f"s_add_u32 {s(ST)}, {s(ST)}, {base}")
        a(f"v_add_u32 {v(dst)}, {s(ST)}, {v(dst)}")
    def write_acc_rows(self, ACC, addr):
        for c in range(0, 8, 2):
            self.a(f"ds_write2_b32 {v(addr)}, {v(ACC+4*c)}, {v(ACC+4*c+4)} offset0:{c} offset1:{c+1}")

    def checksum4(self, Q, X, t, SEL1, SEL2):
        a = self.a
        for j in range(4):
            q = Q + 4*j
            a(f"v_bitop3_b32 {v(t+j)}, {v(q)}, {v(q+1)}, {v(q+2)} bitop3:0x96")
        for j in range(4):
            a(f"v_xor_b32 {v(t+j)}, {v(t+j)}, {v(Q+4*j+3)}")
        for r in (8, 4, 2, 1):
            for j in range(4):
                a(f"v_xor_b32_dpp {v(t+j)}, {v(t+j)}, {v(t+j)} row_ror:{r} row_mask:0xf bank_mask:0xf")
        a(f"v_cndmask_b32 {v(t)}, {v(t)}, {v(t+1)}, {s(SEL1,2)}")
        a(f"v_cndmask_b32 {v(t+2)}, {v(t+2)}, {v(t+3)}, {s(SEL1,2)}")
        a(f"v_cndmask_b32 {v(X)}, {v(t)}, {v(t+2)}, {s(SEL2,2)}")

    def prologue(self):
        a = self.a
        if self.c.stamps: a("s_memrealtime s[100:101]")
        a("s_cmp_ge_u32 s2, 256")
        a("s_cbranch_scc1 L_EXIT")
        a("s_load_dwordx16 s[16:31], s[0:1], 0")
        a("s_load_dwordx8 s[32:39], s[0:1], 64")
        a("s_load_dwordx4 s[40:43], s[0:1], 96")
        a("v_lshrrev_b32 v5, 6, v0")
        a(f"v_and_b32 {v(V_L)}, 63, v0")
        a(f"v_readfirstlane_b32 {s(S_W)}, v5")
        a(f"v_lshrrev_b32 {v(V_G4)}, 4, {v(V_L)}")
        a(f"v_and_b32 {v(V_N16)}, 15, {v(V_L)}")
        a(f"v_bfe_u32 {v(V_RS)}, {v(V_N16)}, 2, 1")
        a(f"s_and_b32 {s(ST+2)}, s2, 7")
        a(f"s_lshr_b32 {s(ST+3)}, s2, 3")
        if self.c.xsplit:
            a(f"s_lshr_b32 {s(S_TYPE)}, {s(ST+2)}, 2")
            a(f"s_and_b32 {s(ST+2)}, {s(ST+2)}, 3")
            a(f"s_lshl_b32 {s(S_J)}, {s(ST+2)}, 5")
            a(f"s_add_u32 {s(S_J)}, {s(S_J)}, {s(ST+3)}")
        else:
            a(f"s_and_b32 {s(S_TYPE)}, {s(ST+3)}, 1")
            a(f"s_lshr_b32 {s(ST+3)}, {s(ST+3)}, 1")
            a(f"s_lshl_b32 {s(S_J)}, {s(ST+2)}, 4")
            a(f"s_add_u32 {s(S_J)}, {s(S_J)}, {s(ST+3)}")
        a(f"s_lshr_b32 {s(S_H)}, {s(S_J)}, 2")
        a(f"s_and_b32 {s(S_RQ)}, {s(S_J)}, 3")
        a(f"s_cmp_eq_u32 {s(S_TYPE)}, 0")
        a(f"s_cselect_b32 s79, {self.c.hs}, {self.c.hsy}")
        a(f"s_mov_b32 {s(S_PLO)}, 0x05040100")
        a(f"s_mov_b32 {s(S_PHI)}, 0x07060302")
        a(f"s_mov_b32 {s(S_SC)}, {f32hex(SCALE_LOG2E)}")
        a(f"v_lshlrev_b32 v5, 15, {v(V_G4)}")
        a(f"v_lshl_add_u32 v5, {v(V_N16)}, 4, v5")
        a(f"v_mul_u32_u24 v6, 1152, {v(V_RS)}")
        a(f"v_lshl_add_u32 v6, {v(V_G4)}, 3, v6")
        a("s_waitcnt lgkmcnt(0)")
        a(f"s_load_dword {s(S_T)}, {s(P_WS0,2)}, {EPOCH}")
        a(f"s_mov_b64 {s(P_WS,2)}, {s(P_WS0,2)}")
        a(f"s_mov_b32 {s(SEL1)}, 0xaaaaaaaa"); a(f"s_mov_b32 {s(SEL1+1)}, 0xaaaaaaaa")
        a(f"s_mov_b32 {s(SEL2)}, 0xcccccccc"); a(f"s_mov_b32 {s(SEL2+1)}, 0xcccccccc")
        self.srd_sel(SRD_X, P_BX, P_AX, 2304, 2304)
        self.srd_sel(SRD_W, P_BWQ, P_AWQ, 4718592, 4718592)
        if self.c.stamps:
            a("v_mov_b32 v0, 0")
            a("v_writelane_b32 v0, s100, 31")
        self.stamp(0)

    def srds_rest(self):
        self.srd(SRD_WS, P_WS0, WS_SIZE)
        self.srd_sel(SRD_ST, P_AK, P_CKV, 67108864, 16777216)
        self.srd_sel(SRD_V, P_AV, P_WUV, 67108864, 4194304)
        self.srd(SRD_U, P_WUK, 4194304)
        self.srd_sel(SRD_WO, P_AWO, P_BWO, 4718592, 4718592)
        self.srd(SRD_OUT, P_OUT, 4608)

    XF, XF2, L1, L2, F1, ACC1 = 16, 18, 20, 36, 52, 68
    def p1_loads(self):
        a = self.a
        V_WQ, V_X = 5, 6
        def loads(u_const, XFr, Lr):
            t = ST
            a(f"s_mul_i32 {s(t)}, {s(S_RQ)}, 144")
            if u_const is not None:
                a(f"s_add_u32 {s(t)}, {s(t)}, {16*u_const}")
            else:
                a(f"s_lshl_b32 {s(t+1)}, {s(S_W)}, 4")
                a(f"s_add_u32 {s(t)}, {s(t)}, {s(t+1)}")
            a(f"s_lshl_b32 {s(t+1)}, {s(t)}, 1")
            a(f"buffer_load_dwordx2 {v(XFr,2)}, {v(V_X)}, {s(SRD_X,4)}, {s(t+1)} offen")
            a(f"s_lshl_b32 {s(t)}, {s(t)}, 13")
            self.hshift(t+1)
            a(f"s_lshl_b32 {s(t+1)}, {s(t+1)}, 8")
            a(f"s_add_u32 {s(t)}, {s(t)}, {s(t+1)}")
            for jr in range(4):
                a(f"buffer_load_dwordx4 {v(Lr+4*jr,4)}, {v(V_WQ)}, {s(SRD_W,4)}, {s(t)} offen{self.ntw()}")
                if jr < 3: a(f"s_add_u32 {s(t)}, {s(t)}, 8192")
        LX = a.newlabel('LX')
        a(f"s_cmp_lg_u32 {s(S_W)}, 0")
        a(f"s_cbranch_scc1 {LX}")
        loads(8, self.XF2, self.L2)
        a.label(LX)
        loads(None, self.XF, self.L1)

    def p1_compute(self, branch, nyoung, hook=None):
        a = self.a
        self.acc_rows_addr(7, R1)
        self.tid_shl(5, 2, R1)
        self.tid_shl(6, 3)
        a(f"s_lshl_b32 {s(ST+1)}, s79, 2")
        a(f"s_add_u32 {s(ST+1)}, {s(ST+1)}, {s(S_J)}")
        a(f"s_and_b32 {s(ST+1)}, {s(ST+1)}, 127")
        a(f"s_add_u32 {s(ST+1)}, {s(ST+1)}, {branch*128}")
        a(f"s_lshl_b32 {s(ST+1)}, {s(ST+1)}, 11")
        if Q1: a(f"s_add_u32 {s(ST+1)}, {s(ST+1)}, {Q1}")
        a(f"s_waitcnt vmcnt({nyoung})")
        self.stamp(1)
        if hook is not None:
            a("v_mov_b32 v250, v7"); a(f"s_mov_b32 s78, {s(ST+1)}")
            hook()
            a("v_mov_b32 v7, v250"); a(f"s_mov_b32 {s(ST+1)}, s78")
        self.half_perm(self.L1, self.F1)
        self.half_mfma(self.ACC1, self.XF, self.F1, True)
        LY = a.newlabel('LY')
        a(f"s_cmp_lg_u32 {s(S_W)}, 0")
        a(f"s_cbranch_scc1 {LY}")
        self.half_perm(self.L2, self.L1)
        self.half_mfma(self.ACC1, self.XF2, self.L1, False)
        a.label(LY)
        self.write_acc_rows(self.ACC1, 7)
        self.barrier()
        a(f"s_add_u32 {s(S_T)}, {s(S_T)}, 0x{TAGINC:08x}")
        LZ = a.newlabel('LZ')
        a(f"s_cmp_ge_u32 {s(S_W)}, 4")
        a(f"s_cbranch_scc1 {LZ}")
        for w in range(8):
            a(f"ds_read_b32 {v(20+w)}, v5 offset:{w*1024}")
        a(f"v_mov_b32 v29, {s(S_T)}")
        a("s_waitcnt lgkmcnt(0)")
        a("v_add_f32 v20, v20, v21"); a("v_add_f32 v22, v22, v23"); a("v_add_f32 v24, v24, v25"); a("v_add_f32 v26, v26, v27")
        a("v_add_f32 v20, v20, v22"); a("v_add_f32 v24, v24, v26")
        a("v_add_f32 v28, v20, v24")
        a(f"buffer_store_dwordx2 v[28:29], v6, {s(SRD_WS,4)}, {s(ST+1)} offen {SC}")
        a.label(LZ)
        self.stamp(2)

    def q_addr(self, own_head_both_batches, dst):
        a = self.a; t = dst
        if own_head_both_batches:
            a(f"s_add_u32 {s(t)}, {s(S_H)}, 32")
            a(f"s_lshr_b32 {s(t+1)}, {s(S_W)}, 2")
        else:
            a(f"s_lshr_b32 {s(t)}, {s(S_J)}, 3")
            a(f"s_lshl_b32 {s(t)}, {s(t)}, 1")
            a(f"s_lshr_b32 {s(t+1)}, {s(S_W)}, 2")
            a(f"s_add_u32 {s(t)}, {s(t)}, {s(t+1)}")
            a(f"s_bfe_u32 {s(t+1)}, {s(S_J)}, 0x10002")
        a(f"s_lshl_b32 {s(t)}, {s(t)}, 3")
        a(f"s_add_u32 {s(t)}, {s(t)}, {s(t+1)}")
        a(f"s_and_b32 {s(t+1)}, {s(S_W)}, 3")
        a(f"s_lshl_b32 {s(t+1)}, {s(t+1)}, 1")
        a(f"s_add_u32 {s(t)}, {s(t)}, {s(t+1)}")
        a(f"s_lshl_b32 {s(t)}, {s(t)}, 10")
        if Q1: a(f"s_add_u32 {s(t)}, {s(t)}, {Q1}")

    def q_poll(self, t):
        a = self.a
        a(f"s_add_u32 {s(t+1)}, {s(t)}, {127*8}")
        self.spin_scalar(lambda: a(f"s_load_dwordx2 {s(S_PB,2)}, {s(P_WS,2)}, {s(t+1)} glc"),
                         lambda: a(f"s_cmp_eq_u32 {s(S_PB+1)}, {s(S_T)}"))
    def q_load(self, t, G):
        a = self.a
        a(f"v_lshlrev_b32 v5, 4, {v(V_L)}")
        a(f"buffer_load_dwordx4 {v(G,4)}, v5, {s(SRD_WS,4)}, {s(t)} offen {SC}")
    def q_finish(self, t, G, nafter, st_data=None):
        a = self.a
        a(f"s_lshl_b32 {s(ST)}, {s(S_W)}, 9")
        a(f"s_add_u32 {s(ST)}, {s(ST)}, {R2}")
        a(f"v_lshlrev_b32 v6, 3, {v(V_L)}")
        a(f"v_add_u32 v6, {s(ST)}, v6")
        def chk():
            a(f"v_cmp_eq_u32 vcc, {s(S_T)}, {v(G+1)}")
            a(f"v_cmp_eq_u32 {s(S_PB,2)}, {s(S_T)}, {v(G+3)}")
            a(f"s_and_b64 vcc, vcc, {s(S_PB,2)}")
        self.retry_vec(lambda: self.q_load(t, G), chk, f"s_waitcnt vmcnt({nafter})")
        if st_data is not None: self.stamp(st_data)
        a(f"ds_write2_b32 v6, {v(G)}, {v(G+2)} offset0:0 offset1:1")
        LQ = a.newlabel('LQ')
        a(f"s_lshl_b32 {s(ST)}, {s(S_W)}, 11")
        a(f"s_add_u32 {s(ST)}, {s(ST)}, {R2}")
        a(f"v_lshlrev_b32 v5, 3, {v(V_L)}")
        a(f"v_add_u32 v5, {s(ST)}, v5")
        a(f"s_lshl_b32 {s(ST)}, {s(S_W)}, 8")
        a(f"s_add_u32 {s(ST)}, {s(ST)}, {QL}")
        a(f"v_lshlrev_b32 v6, 2, {v(V_L)}")
        a(f"v_add_u32 v6, {s(ST)}, v6")
        self.barrier()
        a(f"s_cmp_ge_u32 {s(S_W)}, 2")
        a(f"s_cbranch_scc1 {LQ}")
        for r in range(4):
            a(f"ds_read_b64 {v(8+2*r,2)}, v5 offset:{r*512}")
        a("s_waitcnt lgkmcnt(0)")
        a("v_add_f32 v8, v8, v10"); a("v_add_f32 v9, v9, v11"); a("v_add_f32 v12, v12, v14"); a("v_add_f32 v13, v13, v15")
        a("v_add_f32 v8, v8, v12"); a("v_add_f32 v9, v9, v13")
        a("v_cvt_pk_bf16_f32 v8, v8, v9")
        a("ds_write_b32 v6, v8")
        a.label(LQ)
        a(f"v_lshlrev_b32 v5, 8, {v(V_RS)}")
        a(f"v_lshl_add_u32 v5, {v(V_G4)}, 4, v5")
        a(f"v_add_u32 v5, {QL}, v5")
        self.barrier()
    def q_gather(self, t, G, after_issue, nafter, st_poll=None, st_data=None):
        self.q_poll(t)
        if st_poll is not None: self.stamp(st_poll)
        self.q_load(t, G)
        after_issue()
        self.q_finish(t, G, nafter, st_data)

    def read_q_frags(self, QF):
        for i in range(4):
            self.a(f"ds_read_b128 {v(QF+4*i,4)}, v5 offset:{i*64}")

    def wo_dma_addr(self, A):
        a = self.a
        for i in range(5):
            a(f"v_add_u32 {v(A+i)}, {64*i}, {v(V_L)}")
            a(f"v_mul_u32_u24 v5, 3641, {v(A+i)}")
            a(f"v_lshrrev_b32 v5, 16, v5")
            a(f"v_lshlrev_b32 {v(A+i)}, 4, {v(A+i)}")
            a(f"v_mul_u32_u24 v5, 864, v5")
            a(f"v_add_u32 {v(A+i)}, {v(A+i)}, v5")
    def wo_dma(self, SRD, A, base, RS):
        a = self.a; t = ST
        self.hshift5(t)
        a(f"s_lshl_b32 {s(t)}, {s(t)}, 7")
        a(f"s_lshl_b32 {s(t+1)}, {s(S_W)}, 4")
        a(f"s_add_u32 {s(t)}, {s(t)}, {s(t+1)}")
        a(f"s_mul_i32 {s(t)}, {s(t)}, 1152")
        a(f"s_mul_i32 {s(t+1)}, {s(S_RQ)}, 288")
        a(f"s_add_u32 {s(t)}, {s(t)}, {s(t+1)}")
        a(f"s_mul_i32 {s(t+1)}, {s(S_W)}, {RS}")
        for i in range(5):
            a(f"s_add_u32 m0, {s(t+1)}, {base + i*1024}")
            if i == 4: self.set_exec(0xffffffff)
            a(f"buffer_load_dwordx4 {v(A+i)}, {s(SRD,4)}, {s(t)} offen{self.ntw()} lds")
        self.set_exec(-1)
    def wo_frags(self, WF, WFX, base, RS):
        a = self.a; t = ST
        a(f"v_lshrrev_b32 v5, 1, {v(V_G4)}")
        a(f"v_mul_u32_u24 v5, {RS}, v5")
        a(f"v_and_b32 v6, 1, {v(V_G4)}")
        a(f"v_lshlrev_b32 v6, 3, v6")
        a(f"v_lshrrev_b32 v7, 2, {v(V_N16)}")
        a(f"v_add_u32 v6, v6, v7")
        a(f"v_mul_u32_u24 v6, 288, v6")
        a(f"v_add_u32 v5, v5, v6")
        a(f"v_and_b32 v6, 3, {v(V_N16)}")
        a(f"v_lshl_add_u32 v5, v6, 3, v5")
        a(f"s_lshl_b32 {s(t)}, {s(S_W)}, 5")
        a(f"s_add_u32 {s(t)}, {s(t)}, {base}")
        a(f"v_add_u32 v5, {s(t)}, v5")
        a(f"v_add_u32 v6, {4*RS}, v5")
        def reads(W, extra):
            for ks in range(4):
                for hf in range(2):
                    ad = 5 if ks < 2 else 6
                    a(f"ds_read_b64_tr_b16 {v(W+4*ks+2*hf,2)}, {v(ad)} offset:{(ks&1)*2*RS + hf*1152 + extra}")
        reads(WF, 0)
        LX = a.newlabel('WX')
        a(f"s_cmp_lg_u32 {s(S_W)}, 0")
        a(f"s_cbranch_scc1 {LX}")
        reads(WFX, 256)
        a.label(LX)
    def afrag_addr(self, dst, base):
        a = self.a
        a(f"v_and_b32 {v(dst)}, 1, {v(V_N16)}")
        a(f"v_lshlrev_b32 {v(dst)}, 8, {v(dst)}")
        a(f"v_lshl_add_u32 {v(dst)}, {v(V_G4)}, 4, {v(dst)}")
        a(f"v_add_u32 {v(dst)}, {base}, {v(dst)}")
    def afrag_reads(self, AF, addr):
        for ks in range(4):
            self.a(f"ds_read_b128 {v(AF+4*ks,4)}, {v(addr)} offset:{ks*64}")
    def chain4(self, D, AF, WF):
        for ks in range(4):
            cin = '0' if ks == 0 else v(D,4)
            self.a(f"v_mfma_f32_16x16x32_bf16 {v(D,4)}, {v(AF+4*ks,4)}, {v(WF+4*ks,4)}, {cin}")
    def pack_pair(self, D, x0, x1, t0, t1):
        a = self.a
        a(f"v_mov_b32_dpp {v(t0)}, {v(D)} quad_perm:[1,0,3,2] row_mask:0xf bank_mask:0xf")
        a(f"v_mov_b32_dpp {v(t1)}, {v(D+1)} quad_perm:[1,0,3,2] row_mask:0xf bank_mask:0xf")
        a(f"v_cndmask_b32 {v(x0)}, {v(D)}, {v(t1)}, {s(SEL1,2)}")
        a(f"v_cndmask_b32 {v(x1)}, {v(t0)}, {v(D+1)}, {s(SEL1,2)}")

    WUK = 100
    def x_roles(self):
        a = self.a
        a(f"s_lshr_b32 {s(S_G)}, {s(S_J)}, 3")
        a(f"s_bfe_u32 {s(S_B)}, {s(S_J)}, 0x10002")
        a(f"s_and_b32 {s(S_S)}, {s(S_J)}, 3")
        t = ST + 8
        a(f"s_lshl_b32 {s(t)}, {s(S_B)}, 4")
        a(f"s_add_u32 {s(t)}, {s(t)}, {s(S_G)}")
        a(f"s_lshl_b32 {s(t)}, {s(t)}, 13")
        a(f"s_lshl_b32 {s(t+1)}, {s(S_S)}, 9")
        a(f"s_add_u32 {s(t)}, {s(t)}, {s(t+1)}")
        a(f"s_add_u32 {s(t)}, {s(t)}, 6144")
        a(f"s_lshl_b32 {s(t)}, {s(t)}, 8")
        a(f"s_lshl_b32 {s(t+1)}, {s(S_W)}, 14")
        a(f"s_add_u32 {s(S_BASE)}, {s(t)}, {s(t+1)}")
    def x_wuk_loads(self):
        a = self.a; t = ST
        a(f"v_lshlrev_b32 v7, 13, {v(V_N16)}")
        a(f"v_lshl_add_u32 v7, {v(V_G4)}, 4, v7")
        a(f"s_lshl_b32 {s(t)}, {s(S_RQ)}, 7")
        a(f"s_lshl_b32 {s(t+1)}, {s(S_W)}, 4")
        a(f"s_add_u32 {s(t)}, {s(t)}, {s(t+1)}")
        a(f"s_lshl_b32 {s(t)}, {s(t)}, 13")
        a(f"s_lshl_b32 {s(t+1)}, {s(S_H)}, 8")
        a(f"s_add_u32 {s(t)}, {s(t)}, {s(t+1)}")
        for i in range(4):
            a(f"buffer_load_dwordx4 {v(self.WUK+4*i,4)}, v7, {s(SRD_U,4)}, {s(t)} offen offset:{i*64}{self.ntw()}")
    def x_kdma(self, kk0, kk1):
        a = self.a; t = ST
        if kk0 >= kk1: return
        a(f"v_xor_b32 v248, {v(V_N16)}, {v(V_G4)}")
        a(f"v_lshlrev_b32 v248, 4, v248")
        a(f"v_lshl_add_u32 v248, {v(V_G4)}, 8, v248")
        for k in range(1, 4):
            a(f"v_xor_b32 {v(248+k)}, {k<<6}, v248")
        a(f"s_lshl_b32 {s(t)}, {s(S_W)}, 14")
        for kk in range(kk0, kk1):
            a(f"s_add_u32 m0, {s(t)}, {IMG + kk*4096}")
            a(f"s_add_u32 {s(t+1)}, {s(S_BASE)}, {kk*4096}")
            for k in range(4):
                a(f"buffer_load_dwordx4 {v(248+k)}, {s(SRD_ST,4)}, {s(t+1)} offen offset:{k*1024}{self.nts()} lds")

    def x_main(self):
        a = self.a; t = ST; c = self.c
        self.x_roles()
        if c.touch:
            a(f"s_load_dword s68, {s(P_AK,2)}, {s(S_BASE)}")
            a(f"s_load_dword s69, {s(P_AV,2)}, {s(S_BASE)}")
            self.hshift5(ST)
            a(f"s_mul_i32 {s(ST)}, {s(ST)}, {128*1152}")
            a(f"s_load_dword s70, {s(P_AWO,2)}, {s(ST)}")
            a(f"s_mov_b32 {s(ST+1)}, {OUTP}")
            a(f"s_load_dword s71, {s(P_WS,2)}, {s(ST+1)}")
        a("s_barrier")
        if not c.wuk_late: self.x_wuk_loads()
        self.x_kdma(0, c.n1_k)
        self.q_addr(True, ST+4)
        if c.wuk_late:
            self.p1_compute(1, 4*c.n1_k, hook=self.x_wuk_loads)
        else:
            self.p1_compute(1, 4 + 4*c.n1_k)
        self.x_kdma(c.n1_k, c.n1_k + c.n2_k)
        kdone = c.n1_k + c.n2_k
        GA = 240
        if c.early_qa:
            self.q_addr(False, ST+6)
            def aft():
                self.q_load(ST+6, GA)
                self.x_kdma(kdone, kdone + c.n4_k)
            self.q_gather(ST+4, 8, aft, 1 + 4*c.n4_k, 14, 15)
            kb = kdone
            kdone += c.n4_k
        else:
            self.q_gather(ST+4, 8, lambda: None, 0, 14, 15)
        self.stamp(3)
        QF = 16
        self.read_q_frags(QF)
        a(f"v_and_b32 v5, 1, {v(V_G4)}")
        a(f"v_lshlrev_b32 v6, 8, v5")
        a(f"v_lshl_add_u32 v7, {v(V_N16)}, 4, v6")
        a(f"v_add_u32 v7, {QAL}, v7")
        a(f"v_lshl_add_u32 v6, {v(V_N16)}, 1, v6")
        a(f"s_lshl_b32 {s(t)}, {s(S_W)}, 5")
        a(f"s_add_u32 {s(t)}, {s(t)}, {QAL}")
        a(f"v_add_u32 v6, {s(t)}, v6")
        a(f"v_lshlrev_b32 v14, 15, v5")
        a(f"v_lshl_add_u32 v14, {v(V_N16)}, 4, v14")
        a(f"v_lshlrev_b32 v15, 10, v5")
        a(f"v_lshl_add_u32 v15, {v(V_N16)}, 11, v15")
        a(f"s_lshl_b32 {s(t)}, {s(S_J)}, 8")
        a(f"s_add_u32 {s(t)}, {s(t)}, {QABS}")
        a(f"s_lshl_b32 {s(t+1)}, {s(S_J)}, 3")
        a(f"s_add_u32 {s(t+1)}, {s(t+1)}, {QM}")
        a("s_waitcnt lgkmcnt(0)")
        AQ = 32
        for i in range(4):
            cin = '0' if i == 0 else v(AQ,4)
            a(f"v_mfma_f32_16x16x32_bf16 {v(AQ,4)}, {v(QF+4*i,4)}, {v(self.WUK+4*i,4)}, {cin}")
        a(f"v_cvt_pk_bf16_f32 v8, {v(AQ)}, {v(AQ)}")
        a(f"ds_write_b16 v6, v8")
        self.barrier()
        LP = a.newlabel('BP')
        a(f"s_cmp_lg_u32 {s(S_W)}, 0")
        a(f"s_cbranch_scc1 {LP}")
        a(f"ds_read_b128 v[8:11], v7")
        a(f"v_mov_b32 v13, {s(S_T)}")
        a("s_waitcnt lgkmcnt(0)")
        self.set_exec(0xffffffff)
        a(f"buffer_store_dwordx4 v[8:11], v14, {s(SRD_WS,4)}, {s(t)} offen {SC}")
        self.set_exec(-1)
        a("v_bitop3_b32 v12, v8, v9, v10 bitop3:0x96"); a("v_xor_b32 v12, v12, v11")
        self.inrow('v_xor_b32', 12)
        self.set_exec(0x00ff00ff)
        a(f"buffer_store_dwordx2 v[12:13], v15, {s(SRD_WS,4)}, {s(t+1)} offen {SC}")
        self.set_exec(-1)
        a.label(LP)
        a("s_barrier")
        self.stamp(17)
        KF, S, VL, F, ACC = 32, 64, 96, 192, 224
        WA = 160
        k3 = min(4, kdone + c.n3_k)
        if c.early_qa:
            self.x_kdma(kdone, 4)
            self.q_finish(ST+6, GA, 4*(4-kb), 18)
            self.stamp(9)
            self.read_q_frags(QF)
        else:
            self.x_kdma(kdone, k3)
            self.q_addr(False, ST+4)
            ka = min(4, k3 + c.k_after)
            self.q_gather(ST+4, 8, lambda: self.x_kdma(k3, ka), 4*(ka-k3), None, 18)
            self.stamp(9)
            self.read_q_frags(QF)
            self.x_kdma(ka, 4)
        a(f"v_lshlrev_b32 v6, 10, {v(V_G4)}")
        a(f"v_lshl_add_u32 v6, {v(V_N16)}, 4, v6")
        for u in range(2):
            for j in range(8):
                if j % 4 == 0:
                    a(f"s_add_u32 {s(t)}, {s(S_BASE)}, {(32*u + 16*(j>>2))*256}")
                a(f"buffer_load_dwordx4 {v(VL + 32*u + 4*j,4)}, v6, {s(SRD_V,4)}, {s(t)} offen offset:{(j&3)*256}{self.nts()}")
        self.wo_dma_addr(WA)
        a("s_waitcnt vmcnt(16)")
        a(f"v_xor_b32 v5, {v(V_N16)}, {v(V_G4)}")
        a(f"v_lshlrev_b32 v5, 4, v5")
        a(f"v_lshl_add_u32 v5, {v(V_N16)}, 8, v5")
        a(f"s_lshl_b32 {s(t)}, {s(S_W)}, 14")
        a(f"v_add_u32 v5, {s(t)}, v5")
        for i in range(1, 4):
            a(f"v_xor_b32 {v(5+i)}, {i<<6}, v5")
        def kread(tt, dst):
            for i in range(4):
                a(f"ds_read_b128 {v(dst+4*i,4)}, {v(5+i)} offset:{IMG + tt*4096}")
        kread(0, KF); kread(1, KF+16)
        for tt in range(4):
            cur = KF + 16*(tt & 1)
            a(f"s_waitcnt lgkmcnt({4 if tt < 3 else 0})")
            for i in range(4):
                cin = '0' if i == 0 else v(S+4*tt,4)
                a(f"v_mfma_f32_16x16x32_bf16 {v(S+4*tt,4)}, {v(cur+4*i,4)}, {v(QF+4*i,4)}, {cin}")
            if tt + 2 < 4:
                kread(tt+2, cur)
        self.wo_dma(SRD_WO, WA, IMG, 16384)
        M, Lsum, T1 = 10, 11, 12
        a(f"v_max3_f32 {v(M)}, {v(S)}, {v(S+1)}, {v(S+2)}")
        for r in range(3, 15, 2):
            a(f"v_max3_f32 {v(M)}, {v(M)}, {v(S+r)}, {v(S+r+1)}")
        a(f"v_max_f32 {v(M)}, {v(M)}, {v(S+15)}")
        self.xrow('v_max_f32', M, T1)
        a(f"v_mul_f32 {v(M)}, {s(S_SC)}, {v(M)}")
        for r in range(16):
            a(f"v_fma_f32 {v(S+r)}, {v(S+r)}, {s(S_SC)}, -{v(M)}")
        for r in range(16):
            a(f"v_exp_f32 {v(S+r)}, {v(S+r)}")
        PF = 32
        for u in range(2):
            for q in range(4):
                a(f"v_cvt_pk_bf16_f32 {v(PF+4*u+q)}, {v(S+8*u+2*q)}, {v(S+8*u+2*q+1)}")
        for r in range(0, 16, 2):
            a(f"v_add_f32 {v(S+r)}, {v(S+r)}, {v(S+r+1)}")
        for r in range(0, 16, 4):
            a(f"v_add_f32 {v(S+r)}, {v(S+r)}, {v(S+r+2)}")
        a(f"v_add_f32 {v(S)}, {v(S)}, {v(S+4)}"); a(f"v_add_f32 {v(S+8)}, {v(S+8)}, {v(S+12)}")
        a(f"v_add_f32 {v(Lsum)}, {v(S)}, {v(S+8)}")
        self.xrow('v_add_f32', Lsum, T1)
        a(f"s_lshl_b32 {s(t)}, {s(S_W)}, 4")
        a(f"s_add_u32 {s(t)}, {s(t)}, {ML}")
        a(f"v_lshlrev_b32 v5, 3, {v(V_RS)}")
        a(f"v_add_u32 v5, {s(t)}, v5")
        a(f"ds_write_b64 v5, {v(M,2)}")
        self.acc_rows_addr(7, OW)
        a(f"s_and_b32 {s(t)}, {s(S_W)}, 1")
        a(f"s_lshl_b32 {s(t+1)}, {s(t)}, 9")
        a(f"s_add_u32 {s(t+1)}, {s(t+1)}, {OW}")
        a(f"v_lshl_add_u32 v5, {v(V_L)}, 3, {s(t+1)}")
        a(f"s_lshl_b32 {s(t+1)}, {s(t)}, 3")
        a(f"s_add_u32 {s(t+1)}, {s(t+1)}, {ML}")
        a(f"v_mov_b32 v6, {s(t+1)}")
        a(f"s_lshl_b32 {s(t+2)}, {s(S_G)}, 1")
        a(f"s_add_u32 {s(t+2)}, {s(t+2)}, {s(t)}")
        a(f"s_lshl_b32 {s(t+3)}, {s(t+2)}, 2")
        a(f"s_add_u32 {s(t+3)}, {s(t+3)}, {s(S_S)}")
        a(f"s_lshl_b32 {s(t+3)}, {s(t+3)}, 1")
        a(f"s_add_u32 {s(t+3)}, {s(t+3)}, {s(S_B)}")
        a(f"s_lshl_b32 {s(t+3)}, {s(t+3)}, 10")
        a(f"s_add_u32 {s(t+3)}, {s(t+3)}, {OP}")
        a(f"v_lshlrev_b32 v8, 4, {v(V_L)}")
        self.stamp(4)
        for u in range(2):
            a(f"s_waitcnt vmcnt({(8 if u == 0 else 0) + 5})")
            self.full_perm(VL+32*u, F)
            for cc in range(8):
                cin = '0' if u == 0 else v(ACC+4*cc,4)
                a(f"v_mfma_f32_16x16x32_bf16 {v(ACC+4*cc,4)}, {v(PF+4*u,4)}, {v(F+4*cc,4)}, {cin}")
        self.stamp(5)
        self.write_acc_rows(ACC, 7)
        self.barrier()
        LZ = a.newlabel('AZ')
        a(f"s_cmp_ge_u32 {s(S_W)}, 2")
        a(f"s_cbranch_scc1 {LZ}")
        for w in range(8):
            a(f"ds_read_b64 {v(32+2*w,2)}, v6 offset:{w*16}")
        for w in range(8):
            a(f"ds_read_b64 {v(48+2*w,2)}, v5 offset:{w*1024}")
        a(f"v_mov_b32 v19, {s(S_T)}")
        a("s_waitcnt lgkmcnt(8)")
        a("v_max3_f32 v20, v32, v34, v36"); a("v_max3_f32 v20, v20, v38, v40"); a("v_max3_f32 v20, v20, v42, v44"); a("v_max_f32 v20, v20, v46")
        for w in range(8):
            a(f"v_sub_f32 {v(32+2*w)}, {v(32+2*w)}, v20")
        for w in range(8):
            a(f"v_exp_f32 {v(32+2*w)}, {v(32+2*w)}")
        a("v_mul_f32 v21, v33, v32")
        for w in range(1, 8):
            a(f"v_fmac_f32 v21, {v(33+2*w)}, {v(32+2*w)}")
        a(f"v_cndmask_b32 v18, v20, v21, {s(SEL1,2)}")
        a("s_waitcnt lgkmcnt(0)")
        a("v_mul_f32 v16, v48, v32"); a("v_mul_f32 v17, v49, v32")
        for w in range(1, 8):
            a(f"v_fmac_f32 v16, {v(48+2*w)}, {v(32+2*w)}")
            a(f"v_fmac_f32 v17, {v(49+2*w)}, {v(32+2*w)}")
        a(f"buffer_store_dwordx4 v[16:19], v8, {s(SRD_WS,4)}, {s(t+3)} offen {SC}")
        self.stamp(6)
        a("s_waitcnt vmcnt(1)")
        LZ2 = a.newlabel('AZ')
        a(f"s_branch {LZ2}")
        a.label(LZ)
        a("s_waitcnt vmcnt(0)")
        a.label(LZ2)
        a("s_barrier")
        self.p5(0, IMG, 16384, 11, 12)
        self.final_reduce(0)

    def final_reduce(self, branch):
        a = self.a; t = ST
        a(f"s_cmp_ge_u32 {s(S_J)}, 72")
        a("s_cbranch_scc1 L_END")
        a(f"s_cmp_lg_u32 {s(S_W)}, 0")
        a("s_cbranch_scc1 L_END")
        a(f"s_lshl_b32 {s(t+4)}, {s(S_J)}, 12")
        a(f"s_add_u32 {s(t+4)}, {s(t+4)}, {OUTP + branch*72*4096}")
        a(f"s_cmp_ge_u32 {s(S_J)}, 36")
        a(f"s_cselect_b32 {s(t+2)}, {2304 - 36*32}, 0")
        a(f"s_lshl_b32 {s(t+3)}, {s(S_J)}, 5")
        a(f"s_add_u32 {s(t+2)}, {s(t+2)}, {s(t+3)}")
        a(f"s_add_u32 {s(t+8)}, {s(t+2)}, {branch*1152}")
        a(f"v_lshlrev_b32 v5, 4, {v(V_L)}")
        a(f"v_lshlrev_b32 v6, 2, {v(V_L)}")
        def ldf(st=0):
            for k in range(4):
                a(f"buffer_load_dwordx4 {v(16+16*st+4*k,4)}, v5, {s(SRD_WS,4)}, {s(t+4)} offen offset:{k*1024} {SC}")
        def chkf(st=0):
            b = 16*st
            a(f"v_xor_b32 v8, {s(S_T)}, {v(17+b)}")
            for r in (19, 21, 23, 25, 27, 29, 31):
                a(f"v_bitop3_b32 v8, {v(r+b)}, {s(S_T)}, v8 bitop3:0xbe")
            a(f"v_cmp_eq_u32 vcc, 0, v8")
        def donef(st):
            b = 16*st
            a(f"v_add_f32 v10, {v(16+b)}, {v(20+b)}"); a(f"v_add_f32 v11, {v(24+b)}, {v(28+b)}"); a(f"v_add_f32 v12, {v(18+b)}, {v(22+b)}"); a(f"v_add_f32 v13, {v(26+b)}, {v(30+b)}")
            a("v_add_f32 v14, v10, v11"); a("v_add_f32 v15, v12, v13")
        ldf()
        if self.c.pipe5:
            self.poll_pipe(ldf, chkf, donef, 4, self.c.stag5)
        else:
            if self.c.stamps:
                a("s_waitcnt vmcnt(0)")
                self.stamp(16)
            self.retry_vec(ldf, chkf, "s_waitcnt vmcnt(0)", sleep=self.c.sleep5)
            a("v_add_f32 v16, v16, v20"); a("v_add_f32 v24, v24, v28"); a("v_add_f32 v17, v18, v22"); a("v_add_f32 v26, v26, v30")
            a("v_add_f32 v14, v16, v24"); a("v_add_f32 v15, v17, v26")
        self.stamp_cnt(20)
        self.stamp(19)
        a("v_add_f32_dpp v14, v14, v14 row_ror:8 row_mask:0xf bank_mask:0xf")
        a("v_add_f32_dpp v15, v15, v15 row_ror:8 row_mask:0xf bank_mask:0xf")
        self.xrow_multi('v_add_f32', [14, 15], [8, 9])
        a("v_cvt_pk_bf16_f32 v14, v14, v15")
        self.set_exec(0xff)
        a(f"buffer_store_dword v14, v6, {s(SRD_OUT,4)}, {s(t+8)} offen")
        if branch == 0:
            LE = a.newlabel('EP')
            a(f"s_cmp_lg_u32 {s(S_J)}, 0")
            a(f"s_cbranch_scc1 {LE}")
            a(f"v_mov_b32 v5, {EPOCH}")
            a(f"v_mov_b32 v6, {s(S_T)}")
            self.set_exec(1)
            a(f"buffer_store_dword v6, v5, {s(SRD_WS,4)}, 0 offen {SC}")
            a.label(LE)
        self.set_exec(-1)
        self.stamp(13)
        a("s_waitcnt vmcnt(0)")
        a("s_branch L_END")

    def y_roles(self):
        a = self.a
        a(f"s_lshr_b32 {s(S_B)}, {s(S_J)}, 6")
        a(f"s_and_b32 {s(S_S)}, {s(S_J)}, 63")
        t = ST + 8
        a(f"s_lshl_b32 {s(t)}, {s(S_J)}, 17")
        a(f"s_lshl_b32 {s(t+1)}, {s(S_W)}, 14")
        a(f"s_add_u32 {s(S_BASE)}, {s(t)}, {s(t+1)}")
    def ckv_dma(self, k0, k1):
        a = self.a; t = ST
        if k0 >= k1: return
        a(f"v_lshlrev_b32 v248, 4, {v(V_L)}")
        a(f"s_lshl_b32 {s(t)}, {s(S_W)}, 14")
        for k in range(k0, k1):
            f = ((k & 3) << 2) | ((k >> 2) & 3)
            a(f"v_xor_b32 v249, {f<<4}, v248")
            a(f"s_add_u32 m0, {s(t)}, {IMG + k*1024}")
            a(f"s_add_u32 {s(t+1)}, {s(S_BASE)}, {k*1024}")
            a(f"buffer_load_dwordx4 v249, {s(SRD_ST,4)}, {s(t+1)} offen{self.nts()} lds")

    def y_main(self):
        a = self.a; t = ST; c = self.c
        self.y_roles()
        if c.touch:
            a(f"s_lshl_b32 {s(ST)}, {s(S_RQ)}, 20")
            a(f"s_load_dword s68, {s(P_WUV,2)}, {s(ST)}")
            self.hshift5(ST)
            a(f"s_mul_i32 {s(ST)}, {s(ST)}, {128*1152}")
            a(f"s_load_dword s69, {s(P_BWO,2)}, {s(ST)}")
            for r, off in ((70, BPART), (71, BPART + 0x200000), (72, OUTP)):
                a(f"s_mov_b32 s73, {off}")
                a(f"s_load_dword s{r}, {s(P_WS,2)}, s73")
        a("s_barrier")
        self.ckv_dma(0, c.n1_ckv)
        self.p1_compute(0, c.n1_ckv)
        self.ckv_dma(c.n1_ckv, 16)
        GQ, GM = 16, 32
        a(f"s_lshl_b32 {s(t)}, {s(S_B)}, 10")
        a(f"s_lshl_b32 {s(t+1)}, {s(S_W)}, 7")
        a(f"s_add_u32 {s(t)}, {s(t)}, {s(t+1)}")
        a(f"s_and_b32 {s(t+1)}, {s(S_S)}, 7")
        a(f"s_lshl_b32 {s(t+1)}, {s(t+1)}, 11")
        a(f"s_add_u32 {s(t)}, {s(t)}, {s(t+1)}")
        a(f"s_add_u32 {s(t+5)}, {s(t)}, {QM}")
        a(f"s_lshl_b32 {s(t+4)}, {s(S_B)}, 15")
        a(f"s_lshl_b32 {s(t+1)}, {s(S_W)}, 12")
        a(f"s_add_u32 {s(t+4)}, {s(t+4)}, {s(t+1)}")
        a(f"s_add_u32 {s(t+4)}, {s(t+4)}, {QABS}")
        def e2ld():
            a(f"s_load_dwordx16 {s(S_PB,16)}, {s(P_WS,2)}, {s(t+5)} glc")
            a(f"s_load_dwordx16 {s(S_PB+16,16)}, {s(P_WS,2)}, {s(t+1)} glc")
        def okf():
            self.s_alltags([S_PB+2*i+1 for i in range(16)], t+2, t+3)
        a(f"s_add_u32 {s(t+1)}, {s(t+5)}, 64")
        self.spin_scalar(e2ld, okf)
        self.stamp(17)
        def ldq():
            a(f"v_lshlrev_b32 v5, 4, {v(V_L)}")
            for j in range(4):
                a(f"buffer_load_dwordx4 {v(GQ+4*j,4)}, v5, {s(SRD_WS,4)}, {s(t+4)} offen offset:{j*1024} {SC}")
            a(f"v_and_b32 v6, 3, {v(V_N16)}")
            a(f"v_lshlrev_b32 v6, 5, v6")
            a(f"v_lshl_add_u32 v6, {v(V_G4)}, 3, v6")
            a(f"buffer_load_dwordx2 {v(GM,2)}, v6, {s(SRD_WS,4)}, {s(t+5)} offen {SC}")
        ldq()
        AFS, AFP, BFR = 64, 128, 224
        N32, HI = 8, 9
        a(f"v_and_b32 {v(N32)}, 31, {v(V_L)}")
        a(f"v_lshrrev_b32 {v(HI)}, 5, {v(V_L)}")
        KT, CH = t+6, t+7
        a(f"s_and_b32 {s(KT)}, {s(S_W)}, 3")
        a(f"s_lshr_b32 {s(CH)}, {s(S_W)}, 2")
        a(f"v_and_b32 v5, 3, {v(N32)}")
        a(f"v_lshlrev_b32 v5, 2, v5")
        a(f"v_bfe_u32 v6, {v(N32)}, 2, 2")
        a(f"v_or_b32 v5, v5, v6")
        a(f"v_xor_b32 v5, v5, {v(HI)}")
        a(f"v_lshlrev_b32 v5, 4, v5")
        a(f"v_lshl_add_u32 v5, {v(N32)}, 10, v5")
        a(f"s_lshl_b32 {s(t+2)}, {s(KT)}, 15")
        a(f"s_lshl_b32 {s(t+3)}, {s(CH)}, 9")
        a(f"s_add_u32 {s(t+2)}, {s(t+2)}, {s(t+3)}")
        a(f"v_add_u32 v56, {s(t+2)}, v5")
        for i in range(1, 8): a(f"v_xor_b32 {v(56+i)}, {i*32}, v56")
        a(f"v_lshrrev_b32 v5, 2, {v(V_N16)}")
        a(f"v_lshlrev_b32 v6, 2, v5")
        a(f"v_or_b32 v6, v6, {v(HI)}")
        a(f"v_and_b32 v7, 1, {v(V_G4)}")
        a(f"v_lshlrev_b32 v7, 1, v7")
        a(f"v_bfe_u32 v13, {v(V_N16)}, 1, 1")
        a(f"v_or_b32 v7, v7, v13")
        a(f"s_and_b32 {s(t+2)}, {s(S_W)}, 1")
        a(f"s_lshl_b32 {s(t+2)}, {s(t+2)}, 3")
        a(f"v_or_b32 v7, {s(t+2)}, v7")
        a(f"v_xor_b32 v6, v6, v7")
        a(f"v_lshlrev_b32 v6, 4, v6")
        a(f"v_and_b32 v7, 1, {v(V_N16)}")
        a(f"v_lshl_add_u32 v6, v7, 3, v6")
        a(f"v_lshl_add_u32 v5, {v(HI)}, 2, v5")
        a(f"v_lshl_add_u32 v6, v5, 10, v6")
        a(f"s_lshr_b32 {s(t+2)}, {s(S_W)}, 1")
        a(f"s_lshl_b32 {s(t+2)}, {s(t+2)}, 8")
        a(f"v_add_u32 v48, {s(t+2)}, v6")
        a(f"v_xor_b32 v49, 64, v48")
        a(f"v_xor_b32 v50, 32, v48")
        a(f"v_add_u32 v50, 8192, v50")
        a(f"v_xor_b32 v51, 64, v50")
        for r in range(4): a(f"v_add_u32 {v(52+r)}, 0x10000, {v(48+r)}")
        a("s_waitcnt vmcnt(5)")
        a("s_barrier")
        self.stamp(3)
        for i in range(16):
            a(f"ds_read_b128 {v(AFS+4*i,4)}, {v(56+(i&7))} offset:{256 if i >= 8 else 0}")
        if self.c.ldsdbg: self.stamp(31)
        for ks in range(8):
            base = 48 if ks < 4 else 52
            off = (ks & 3) * 16384
            d = AFP + 8*ks
            for tt in range(2):
                a(f"ds_read_b64_tr_b16 {v(d+4*tt,2)}, {v(base+tt)} offset:{off}")
                a(f"ds_read_b64_tr_b16 {v(d+4*tt+2,2)}, {v(base+2+tt)} offset:{off}")
        if self.c.ldsdbg: self.stamp(4)
        a(f"v_and_b32 v6, 15, {v(N32)}")
        a(f"v_xor_b32 v6, v6, {v(HI)}")
        a(f"v_lshlrev_b32 v6, 4, v6")
        a(f"v_lshl_add_u32 v6, {v(N32)}, 10, v6")
        a(f"s_add_u32 {s(t+3)}, {s(t+3)}, {QIMG}")
        a(f"v_add_u32 v56, {s(t+3)}, v6")
        for i in range(1, 8): a(f"v_xor_b32 {v(56+i)}, {i*32}, v56")
        for j in range(4):
            a(f"s_and_b32 {s(t)}, {s(S_W)}, 3")
            a(f"s_lshl_b32 {s(t)}, {s(t)}, 2")
            a(f"s_add_u32 {s(t)}, {s(t)}, {j}")
            a(f"s_lshl_b32 {s(t)}, {s(t)}, 4")
            a(f"v_lshlrev_b32 v5, 4, {v(V_L)}")
            a(f"v_xor_b32 v5, {s(t)}, v5")
            a(f"s_lshl_b32 {s(t+1)}, {s(S_W)}, 12")
            a(f"s_add_u32 {s(t+1)}, {s(t+1)}, {QIMG + j*1024}")
            a(f"v_add_u32 {v(48+j)}, {s(t+1)}, v5")
        def chkq():
            self.checksum4(GQ, 14, 10, SEL1, SEL2)
            a(f"v_cmp_eq_u32 vcc, v14, {v(GM)}")
            a(f"v_cmp_eq_u32 {s(S_PB,2)}, {s(S_T)}, {v(GM+1)}")
            a(f"s_and_b64 vcc, vcc, {s(S_PB,2)}")
        self.retry_vec(ldq, chkq, "s_waitcnt vmcnt(0)")
        self.stamp(18)
        for j in range(4):
            a(f"ds_write_b128 {v(48+j)}, {v(GQ+4*j,4)}")
        self.barrier()
        self.stamp(5)
        SA = 32
        def bread(i): a(f"ds_read_b128 {v(BFR+4*(i&7),4)}, {v(56+(i&7))} offset:{256 if i >= 8 else 0}")
        for i in range(8): bread(i)
        a(f"v_lshrrev_b32 v5, 4, {v(V_L)}")
        a(f"v_lshlrev_b32 v6, 1, v5")
        a(f"v_xor_b32 v6, v6, {v(V_N16)}")
        a(f"v_lshlrev_b32 v6, 4, v6")
        a(f"v_lshl_add_u32 v5, v5, 13, v6")
        a(f"v_xor_b32 v6, {8<<4}, v5")
        a(f"s_lshl_b32 {s(t)}, {s(S_RQ)}, 7")
        a(f"s_lshl_b32 {s(t+1)}, {s(S_W)}, 4")
        a(f"s_add_u32 {s(t)}, {s(t)}, {s(t+1)}")
        a(f"s_lshl_b32 {s(t)}, {s(t)}, 13")
        a(f"s_lshl_b32 {s(t+1)}, {s(S_H)}, 8")
        a(f"s_add_u32 {s(t)}, {s(t)}, {s(t+1)}")
        a(f"s_lshl_b32 {s(t+1)}, {s(S_W)}, 12")
        for i in range(4):
            a(f"s_add_u32 m0, {s(t+1)}, {WUVIMG + i*1024}")
            a(f"buffer_load_dwordx4 {v(5+(i&1))}, {s(SRD_V,4)}, {s(t)} offen{self.ntw()} lds")
            if i < 3: a(f"s_add_u32 {s(t)}, {s(t)}, {4*8192}")
        for i in range(16):
            left = min(7, 15 - i)
            a(f"s_waitcnt lgkmcnt({left})")
            cin = '0' if i == 0 else v(SA,16)
            a(f"v_mfma_f32_32x32x16_bf16 {v(SA,16)}, {v(AFS+4*i,4)}, {v(BFR+4*(i&7),4)}, {cin}")
            if i + 8 < 16: bread(i+8)
        a(f"s_lshl_b32 {s(t+2)}, {s(S_W)}, 11")
        a(f"s_add_u32 {s(t+2)}, {s(t+2)}, {SX}")
        a(f"v_lshlrev_b32 v7, 4, {v(V_L)}")
        a(f"v_add_u32 v5, {s(t+2)}, v7")
        a(f"s_xor_b32 {s(t+3)}, {s(S_W)}, 4")
        a(f"s_lshl_b32 {s(t+3)}, {s(t+3)}, 11")
        a(f"s_add_u32 {s(t+3)}, {s(t+3)}, {SX}")
        a(f"v_add_u32 v6, {s(t+3)}, v7")
        a(f"s_lshl_b32 {s(t+2)}, {s(S_W)}, 7")
        a(f"v_lshlrev_b32 v13, 2, {v(N32)}")
        a(f"v_add_u32 v14, {MX}, v13")
        a(f"v_add_u32 v15, {s(t+2)}, v14")
        a(f"s_lshl_b32 {s(t+3)}, {s(KT)}, 1")
        a(f"s_add_u32 {s(t+3)}, {s(t+3)}, {s(CH)}")
        a(f"s_lshl_b32 {s(t+3)}, {s(t+3)}, 10")
        a(f"s_add_u32 {s(t+3)}, {s(t+3)}, {PB}")
        a(f"v_add_u32 v56, {s(t+3)}, v7")
        a(f"v_add_u32 v57, {PB}, v7")
        a(f"v_add_u32 v58, {LS-MX}, v15")
        a(f"v_add_u32 v59, {LS-MX}, v14")
        self.stamp(28)
        a("s_barrier")
        SK = 48
        LC1 = a.newlabel('CH'); LC2 = a.newlabel('CH')
        a(f"s_cmp_eq_u32 {s(CH)}, 0")
        a(f"s_cbranch_scc0 {LC1}")
        a(f"ds_write_b128 v5, {v(SA+8,4)}"); a(f"ds_write_b128 v5, {v(SA+12,4)} offset:1024")
        a(f"s_branch {LC2}")
        a.label(LC1)
        a(f"ds_write_b128 v5, {v(SA,4)}"); a(f"ds_write_b128 v5, {v(SA+4,4)} offset:1024")
        for r in range(8): a(f"v_mov_b32 {v(SA+r)}, {v(SA+8+r)}")
        a.label(LC2)
        self.barrier()
        self.stamp(29)
        a(f"ds_read_b128 {v(SK,4)}, v6"); a(f"ds_read_b128 {v(SK+4,4)}, v6 offset:1024")
        a("s_waitcnt lgkmcnt(0)")
        for r in range(8): a(f"v_add_f32 {v(SK+r)}, {v(SK+r)}, {v(SA+r)}")
        M, Lsum, T1 = 10, 11, 12
        a(f"v_max3_f32 {v(M)}, {v(SK)}, {v(SK+1)}, {v(SK+2)}")
        a(f"v_max3_f32 {v(M)}, {v(M)}, {v(SK+3)}, {v(SK+4)}")
        a(f"v_max3_f32 {v(M)}, {v(M)}, {v(SK+5)}, {v(SK+6)}")
        a(f"v_max_f32 {v(M)}, {v(M)}, {v(SK+7)}")
        self.xhalf('v_max_f32', M, T1)
        a(f"ds_write_b32 v15, {v(M)}")
        self.barrier()
        self.stamp(30)
        for w in range(8):
            a(f"ds_read_b32 {v(32+w)}, v14 offset:{w*128}")
        a("s_waitcnt lgkmcnt(0)")
        a(f"v_max3_f32 {v(M)}, v32, v33, v34"); a(f"v_max3_f32 {v(M)}, {v(M)}, v35, v36"); a(f"v_max3_f32 {v(M)}, {v(M)}, v37, v38"); a(f"v_max_f32 {v(M)}, {v(M)}, v39")
        a(f"v_mul_f32 {v(M)}, {s(S_SC)}, {v(M)}")
        for r in range(8): a(f"v_fma_f32 {v(SK+r)}, {v(SK+r)}, {s(S_SC)}, -{v(M)}")
        for r in range(8): a(f"v_exp_f32 {v(SK+r)}, {v(SK+r)}")
        for q in range(4): a(f"v_cvt_pk_bf16_f32 {v(40+q)}, {v(SK+2*q)}, {v(SK+2*q+1)}")
        a(f"ds_write_b128 v56, {v(40,4)}")
        for q in range(4): a(f"v_add_f32 {v(SK+2*q)}, {v(SK+2*q)}, {v(SK+2*q+1)}")
        a(f"v_add_f32 {v(SK)}, {v(SK)}, {v(SK+2)}"); a(f"v_add_f32 {v(SK+4)}, {v(SK+4)}, {v(SK+6)}")
        a(f"v_add_f32 {v(Lsum)}, {v(SK)}, {v(SK+4)}")
        self.xhalf('v_add_f32', Lsum, T1)
        a(f"ds_write_b32 v58, {v(Lsum)}")
        self.barrier()
        self.stamp(6)
        PF, ACC2 = 64, 96
        for ks in range(8):
            a(f"ds_read_b128 {v(PF+4*ks,4)}, v57 offset:{ks*1024}")
        for w in range(8):
            a(f"ds_read_b32 {v(32+w)}, v59 offset:{w*128}")
        for ks in range(8):
            a(f"s_waitcnt lgkmcnt({min(15, 15-ks)})")
            for tt in range(2):
                cin = '0' if ks == 0 else v(ACC2+16*tt,16)
                a(f"v_mfma_f32_32x32x16_bf16 {v(ACC2+16*tt,16)}, {v(AFP+8*ks+4*tt,4)}, {v(PF+4*ks,4)}, {cin}")
        a(f"v_and_b32 v5, 15, {v(N32)}")
        a(f"s_and_b32 {s(t+2)}, {s(S_W)}, 1")
        a(f"s_lshl_b32 {s(t+2)}, {s(t+2)}, 3")
        a(f"v_xor_b32 v5, {s(t+2)}, v5")
        a(f"v_lshlrev_b32 v5, 4, v5")
        a(f"v_lshl_add_u32 v5, {v(HI)}, 3, v5")
        a(f"v_lshl_add_u32 v5, {v(N32)}, 10, v5")
        a(f"s_lshr_b32 {s(t+2)}, {s(S_W)}, 1")
        a(f"s_lshl_b32 {s(t+2)}, {s(t+2)}, 8")
        a(f"v_add_u32 v48, {s(t+2)}, v5")
        for x in range(1, 8): a(f"v_xor_b32 {v(48+x)}, {x<<4}, v48")
        for j in range(4):
            a(f"s_and_b32 {s(t+2)}, {s(S_W)}, 3")
            a(f"s_lshl_b32 {s(t+2)}, {s(t+2)}, 2")
            a(f"s_add_u32 {s(t+2)}, {s(t+2)}, {j}")
            a(f"s_lshl_b32 {s(t+2)}, {s(t+2)}, 4")
            a(f"v_lshlrev_b32 v5, 4, {v(V_L)}")
            a(f"v_xor_b32 v5, {s(t+2)}, v5")
            a(f"s_lshl_b32 {s(t+3)}, {s(S_W)}, 12")
            a(f"s_add_u32 {s(t+3)}, {s(t+3)}, {j*1024}")
            a(f"v_add_u32 {v(56+j)}, {s(t+3)}, v5")
        a("s_waitcnt lgkmcnt(0)")
        a("v_add_f32 v32, v32, v33"); a("v_add_f32 v34, v34, v35"); a("v_add_f32 v36, v36, v37"); a("v_add_f32 v38, v38, v39")
        a("v_add_f32 v32, v32, v34"); a("v_add_f32 v36, v36, v38")
        a(f"v_add_f32 {v(Lsum)}, v32, v36")
        a(f"v_lshlrev_b32 v6, 3, {v(N32)}")
        a(f"v_add_u32 v6, {MX}, v6")
        a(f"ds_write_b64 v6, {v(M,2)}")
        a(f"v_and_b32 v6, 3, {v(V_N16)}")
        a(f"s_lshl_b32 {s(t+2)}, {s(S_W)}, 5")
        a(f"s_add_u32 {s(t+2)}, {s(t+2)}, {MX}")
        a(f"v_lshlrev_b32 v7, 3, v6")
        a(f"v_add_u32 v7, {s(t+2)}, v7")
        a(f"v_lshlrev_b32 v6, 6, v6")
        a(f"v_lshl_add_u32 v6, {v(V_G4)}, 4, v6")
        a(f"s_lshl_b32 {s(t+2)}, {s(S_W)}, 8")
        a(f"s_lshl_b32 {s(t+3)}, {s(S_J)}, 11")
        a(f"s_add_u32 {s(t+2)}, {s(t+2)}, {s(t+3)}")
        a(f"s_add_u32 {s(t+2)}, {s(t+2)}, {BM}")
        a(f"s_lshl_b32 {s(t+3)}, {s(S_J)}, 15")
        a(f"s_lshl_b32 {s(t+4)}, {s(S_W)}, 12")
        a(f"s_add_u32 {s(t+3)}, {s(t+3)}, {s(t+4)}")
        a(f"s_add_u32 {s(t+3)}, {s(t+3)}, {BPART}")
        a(f"v_lshlrev_b32 v5, 4, {v(V_L)}")
        self.stamp(7)
        for tt in range(2):
            for q in range(4):
                r0 = ACC2 + 16*tt + 4*q
                a(f"v_cvt_pk_bf16_f32 {v(r0)}, {v(r0)}, {v(r0+1)}")
                a(f"v_cvt_pk_bf16_f32 {v(r0+1)}, {v(r0+2)}, {v(r0+3)}")
                a(f"ds_write_b64 {v(48+4*tt+q)}, {v(r0,2)}")
        a("s_waitcnt vmcnt(0)")
        self.barrier()
        OR = 32
        for j in range(4):
            a(f"ds_read_b128 {v(OR+4*j,4)}, {v(56+j)}")
        a(f"ds_read_b64 v[48:49], v7")
        a(f"v_mov_b32 v51, {s(S_T)}")
        a("s_waitcnt lgkmcnt(0)")
        for j in range(4):
            a(f"buffer_store_dwordx4 {v(OR+4*j,4)}, v5, {s(SRD_WS,4)}, {s(t+3)} offen offset:{j*1024} {SC}")
        self.checksum4(OR, 50, 10, SEL1, SEL2)
        self.set_exec(0x000f000f000f000f)
        a(f"buffer_store_dwordx4 v[48:51], v6, {s(SRD_WS,4)}, {s(t+2)} offen {SC}")
        self.set_exec(-1)
        self.stamp(8)
        WUVF = 164
        self.wo_dma_addr(192)
        DL, DM, DF, ACC = 64, 80, 84, 100
        a(f"s_lshl_b32 {s(t+4)}, {s(S_W)}, 19")
        a(f"s_lshl_b32 {s(t+2)}, {s(S_J)}, 8")
        a(f"s_add_u32 {s(t+4)}, {s(t+4)}, {s(t+2)}")
        a(f"s_add_u32 {s(t+4)}, {s(t+4)}, {BPART}")
        a(f"s_lshl_b32 {s(t+5)}, {s(S_W)}, 15")
        a(f"s_lshl_b32 {s(t+2)}, {s(S_J)}, 4")
        a(f"s_add_u32 {s(t+5)}, {s(t+5)}, {s(t+2)}")
        a(f"s_add_u32 {s(t+5)}, {s(t+5)}, {BM}")
        MLX = SCR + 8192
        a(f"v_and_b32 v6, 3, {v(V_N16)}")
        a(f"v_lshl_add_u32 v6, {v(V_G4)}, 2, v6")
        a(f"v_lshlrev_b32 v14, 2, v6")
        a(f"s_and_b32 {s(t+2)}, {s(S_W)}, 3")
        a(f"s_lshl_b32 {s(t+2)}, {s(t+2)}, 4")
        a(f"s_lshl_b32 {s(t+2)}, {s(t+2)}, 2")
        a(f"v_lshlrev_b32 v15, 4, {v(V_G4)}")
        a(f"v_add_u32 v15, {s(t+2)}, v15")
        a(f"v_add_u32 v13, 8, v15")
        a(f"v_lshlrev_b32 v7, 17, {v(V_G4)}")
        a(f"v_lshl_add_u32 v7, {v(V_N16)}, 4, v7")
        def ldp():
            for j in range(4):
                a(f"s_add_u32 {s(t+2)}, {s(t+4)}, {j*32768}")
                a(f"buffer_load_dwordx4 {v(DL+4*j,4)}, v7, {s(SRD_WS,4)}, {s(t+2)} offen {SC}")
        a(f"v_lshrrev_b32 v5, 2, {v(V_N16)}")
        a(f"v_bfe_u32 v6, {v(V_N16)}, 1, 1")
        a(f"s_lshl_b32 {s(t+2)}, {s(S_W)}, 1")
        a(f"v_or_b32 v6, {s(t+2)}, v6")
        a(f"v_lshlrev_b32 v8, 1, v5")
        a(f"v_xor_b32 v6, v6, v8")
        a(f"v_lshlrev_b32 v6, 4, v6")
        a(f"v_lshl_add_u32 v5, {v(V_G4)}, 3, v5")
        a(f"v_lshl_add_u32 v6, v5, 8, v6")
        a(f"v_and_b32 v5, 1, {v(V_N16)}")
        a(f"v_lshl_add_u32 v5, v5, 3, v6")
        a(f"v_add_u32 v5, {WUVIMG}, v5")
        a(f"v_xor_b32 v6, {8<<4}, v5")
        for ks in range(4):
            a(f"ds_read_b64_tr_b16 {v(WUVF+4*ks,2)}, v5 offset:{ks*8192}")
            a(f"ds_read_b64_tr_b16 {v(WUVF+4*ks+2,2)}, v6 offset:{ks*8192 + 1024}")
        a(f"s_lshl_b32 {s(t+6)}, {s(S_W)}, 7")
        a(f"s_add_u32 {s(t+6)}, {s(t+6)}, {MLX}")
        a(f"v_lshl_add_u32 v10, {v(V_L)}, 3, {s(t+6)}")
        a(f"s_lshr_b32 {s(t+6)}, {s(S_W)}, 2")
        a(f"s_lshl_b32 {s(t+6)}, {s(t+6)}, 9")
        a(f"s_add_u32 {s(t+6)}, {s(t+6)}, {MLX}")
        a(f"v_lshl_add_u32 v11, {v(V_L)}, 3, {s(t+6)}")
        a(f"v_lshlrev_b32 v9, 11, {v(V_L)}")
        def ldm():
            a(f"buffer_load_dwordx4 {v(DM,4)}, v9, {s(SRD_WS,4)}, {s(t+5)} offen {SC}")
        def ldboth():
            ldm()
            self.set_exec(-1)
            ldp()
            self.set_exec(0xffff)
        if self.c.e3ack: a("s_waitcnt vmcnt(0)")
        self.stamp(26)
        self.set_exec(0xffff)
        ldboth()
        def chkm():
            a(f"v_cmp_eq_u32 vcc, {s(S_T)}, {v(DM+3)}")
        self.retry_vec(ldboth, chkm, "s_waitcnt vmcnt(4)", sleep=self.c.e3sleep, wait="s_waitcnt vmcnt(4)")
        a(f"ds_write_b64 v10, {v(DM,2)}")
        self.set_exec(-1)
        self.stamp_cnt(27)
        self.stamp(14)
        self.wo_dma(SRD_WO, 192, WOIMG_Y, 4608)
        self.barrier()
        a(f"ds_read_b64 {v(DM,2)}, v11")
        a(f"ds_bpermute_b32 v12, v14, {v(DM+2)}")
        a("s_waitcnt lgkmcnt(0)")
        self.stamp(25)
        a(f"v_mov_b32 v8, {v(DM)}")
        self.inrow('v_max_f32', 8); self.xrow('v_max_f32', 8, 9)
        a(f"v_sub_f32 v8, {v(DM)}, v8")
        a(f"v_exp_f32 v8, v8")
        a(f"v_mul_f32 v10, v8, {v(DM+1)}")
        self.inrow('v_add_f32', 10); self.xrow('v_add_f32', 10, 9)
        a(f"v_rcp_f32 v10, v10")
        a(f"v_mul_f32 v8, v8, v10")
        a(f"v_mov_b32_dpp v9, v8 row_shl:1 row_mask:0xf bank_mask:0xf")
        a(f"v_cvt_pk_bf16_f32 v8, v8, v9")
        a(f"ds_bpermute_b32 v52, v15, v8")
        a(f"ds_bpermute_b32 v53, v13, v8")
        a(f"s_lshl_b32 {s(t+2)}, {s(S_W)}, 9")
        a(f"s_add_u32 {s(t+2)}, {s(t+2)}, {CW}")
        a(f"v_lshlrev_b32 v5, 5, {v(V_N16)}")
        a(f"v_add_u32 v5, {s(t+2)}, v5")
        a(f"v_lshlrev_b32 v6, 11, {v(V_RS)}")
        a(f"v_lshl_add_u32 v6, {v(V_G4)}, 4, v6")
        a(f"s_lshl_b32 {s(t+2)}, {s(S_W)}, 6")
        a(f"s_add_u32 {s(t+2)}, {s(t+2)}, {CW}")
        a(f"v_add_u32 v6, {s(t+2)}, v6")
        a("s_waitcnt lgkmcnt(0)")
        def chkp():
            self.checksum4(DL, 11, 32, SEL1, SEL2)
            a(f"v_cmp_eq_u32 vcc, v11, v12")
        self.retry_vec(ldp, chkp, "s_waitcnt vmcnt(5)", sleep=1)
        self.stamp(9)
        self.half_perm(DL, DF)
        self.half_mfma(ACC, 52, DF, True)
        a(f"v_lshlrev_b32 v7, 8, {v(V_RS)}")
        a(f"v_lshl_add_u32 v7, {v(V_G4)}, 3, v7")
        a(f"s_lshl_b32 {s(t+2)}, {s(S_W)}, 5")
        a(f"s_add_u32 {s(t+2)}, {s(t+2)}, {XL2}")
        a(f"v_add_u32 v7, {s(t+2)}, v7")
        self.afrag_addr(14, XL2)
        a(f"v_and_b32 v15, 1, {v(V_N16)}")
        a(f"v_lshlrev_b32 v15, 10, v15")
        a(f"v_lshrrev_b32 v13, 1, {v(V_N16)}")
        a(f"v_lshl_add_u32 v15, v13, 4, v15")
        a(f"s_add_u32 {s(t+3)}, {s(S_J)}, 128")
        a(f"s_lshl_b32 {s(t+3)}, {s(t+3)}, 11")
        a(f"s_lshl_b32 {s(t+2)}, {s(S_W)}, 7")
        a(f"s_add_u32 {s(t+3)}, {s(t+3)}, {s(t+2)}")
        a(f"s_add_u32 {s(t+3)}, {s(t+3)}, {OP}")
        a(f"v_mov_b32 v10, 0"); a(f"v_mov_b32 v11, 0.25")
        a(f"v_cndmask_b32 v10, v10, v11, {s(SEL2,2)}")
        a(f"v_mov_b32 v11, {s(S_T)}")
        self.set_exec(0xffff)
        self.write_acc_rows(ACC, 5)
        self.set_exec(-1)
        self.barrier()
        for q in range(4):
            a(f"ds_read_b128 {v(16+4*q,4)}, v6 offset:{q*512}")
        a("s_waitcnt lgkmcnt(0)")
        for j in range(4):
            a(f"v_add_f32 {v(16+j)}, {v(16+j)}, {v(20+j)}")
            a(f"v_add_f32 {v(24+j)}, {v(24+j)}, {v(28+j)}")
        for j in range(4):
            a(f"v_add_f32 {v(16+j)}, {v(16+j)}, {v(24+j)}")
        a("v_cvt_pk_bf16_f32 v52, v16, v17"); a("v_cvt_pk_bf16_f32 v53, v18, v19")
        self.set_exec(0x0011001100110011)
        a("ds_write_b64 v7, v[52:53]")
        self.set_exec(-1)
        self.barrier()
        self.afrag_reads(16, 14)
        a("s_waitcnt lgkmcnt(0)")
        self.chain4(64, 16, WUVF)
        self.pack_pair(64, 8, 9, 12, 13)
        self.set_exec(0xffff)
        a(f"buffer_store_dwordx4 v[8:11], v15, {s(SRD_WS,4)}, {s(t+3)} offen {SC}")
        self.set_exec(-1)
        self.stamp(10)
        a("s_waitcnt vmcnt(1)")
        a("s_barrier")
        self.p5(1, WOIMG_Y, 4608, 11, 12)
        self.final_reduce(1)

    def p5(self, branch, wbase, RS, st_x, st_pub):
        a = self.a; t = ST
        WF, WFX, AF, G = 132, 148, 16, 48
        a(f"v_lshrrev_b32 v14, 2, {v(V_N16)}")
        a(f"v_lshlrev_b32 v14, 11, v14")
        a(f"v_and_b32 v15, 1, {v(V_N16)}")
        a(f"v_lshl_add_u32 v14, v15, 10, v14")
        a(f"v_lshl_add_u32 v14, {v(V_G4)}, 5, v14")
        a(f"v_and_b32 v13, 2, {v(V_N16)}")
        a(f"v_lshl_add_u32 v14, v13, 3, v14")
        self.hshift5(t+5)
        a(f"s_add_u32 {s(t+4)}, {s(t+5)}, {branch*32}")
        a(f"s_lshl_b32 {s(t+4)}, {s(t+4)}, 13")
        a(f"s_lshl_b32 {s(t+2)}, {s(S_W)}, 7")
        a(f"s_add_u32 {s(t+4)}, {s(t+4)}, {s(t+2)}")
        a(f"s_add_u32 {s(t+4)}, {s(t+4)}, {OP}")
        G2 = 52
        def ldt(st=0):
            a(f"buffer_load_dwordx4 {v(G2 if st else G,4)}, v14, {s(SRD_WS,4)}, {s(t+4)} offen {SC}")
        def chkt(st=0):
            a(f"v_cmp_eq_u32 vcc, {s(S_T)}, {v((G2 if st else G)+3)}")
        G3 = 56
        def donet(st):
            for r in range(3): a(f"v_mov_b32 {v(G3+r)}, {v((G2 if st else G)+r)}")
        ldt()
        self.wo_frags(WF, WFX, wbase, RS)
        a(f"v_lshlrev_b32 v7, 8, v15")
        a(f"v_lshl_add_u32 v7, {v(V_G4)}, 3, v7")
        a(f"v_lshl_add_u32 v7, v13, 1, v7")
        a(f"s_lshl_b32 {s(t+2)}, {s(S_W)}, 5")
        a(f"s_add_u32 {s(t+2)}, {s(t+2)}, {XL}")
        a(f"v_add_u32 v7, {s(t+2)}, v7")
        self.afrag_addr(6, XL)
        a(f"v_mul_u32_u24 v15, {36*4096}, v15")
        a(f"v_lshrrev_b32 v13, 1, {v(V_N16)}")
        a(f"v_lshl_add_u32 v15, v13, 4, v15")
        a(f"s_mul_i32 {s(t+6)}, {s(S_RQ)}, {9*4096}")
        a(f"s_lshl_b32 {s(t+2)}, {s(t+5)}, 7")
        a(f"s_add_u32 {s(t+6)}, {s(t+6)}, {s(t+2)}")
        a(f"s_add_u32 {s(t+6)}, {s(t+6)}, {OUTP + branch*72*4096}")
        a(f"s_add_u32 {s(t+7)}, {s(t+6)}, {8*4096}")
        a(f"s_lshl_b32 {s(t+2)}, {s(S_W)}, 12")
        a(f"s_add_u32 {s(t+6)}, {s(t+6)}, {s(t+2)}")
        a(f"v_mov_b32 v105, {s(S_T)}"); a(f"v_mov_b32 v107, {s(S_T)}")
        a(f"v_mov_b32 v109, {s(S_T)}"); a(f"v_mov_b32 v111, {s(S_T)}")
        if self.c.pipep5:
            self.poll_pipe(ldt, chkt, donet, 1, self.c.stagp5)
        else:
            self.retry_vec(ldt, chkt, "s_waitcnt vmcnt(0)", sleep=self.c.sleep5)
        if self.c.pipep5: G = G3
        self.stamp(24)
        self.stamp_cnt(21)
        if self.c.dbg:
            a("s_waitcnt lgkmcnt(0)")
            a(f"s_lshl_b32 {s(t+8)}, s2, 3")
            a(f"s_add_u32 {s(t+8)}, {s(t+8)}, {s(S_W)}")
            a(f"s_lshl_b32 {s(t+8)}, {s(t+8)}, 12")
            a(f"s_add_u32 {s(t+8)}, {s(t+8)}, 0x1000000")
            a(f"v_lshlrev_b32 v12, 6, {v(V_L)}")
            for q in range(4):
                a(f"buffer_store_dwordx4 {v(WF+4*q,4)}, v12, {s(SRD_WS,4)}, {s(t+8)} offen offset:{q*16}")
        a(f"v_mov_b32_dpp v9, {v(G+2)} quad_perm:[2,3,0,1] row_mask:0xf bank_mask:0xf")
        a(f"v_cndmask_b32 v8, {v(G+2)}, v9, {s(SEL2,2)}")
        a(f"v_cndmask_b32 v9, v9, {v(G+2)}, {s(SEL2,2)}")
        a(f"v_max_f32_dpp v10, v8, v8 row_ror:4 row_mask:0xf bank_mask:0xf")
        a(f"v_max_f32_dpp v10, v10, v10 row_ror:8 row_mask:0xf bank_mask:0xf")
        a(f"v_sub_f32 v8, v8, v10")
        a(f"v_exp_f32 v8, v8")
        a(f"v_mul_f32 v9, v8, v9")
        a(f"v_mul_f32 v10, v8, {v(G)}")
        a(f"v_mul_f32 v11, v8, {v(G+1)}")
        for r in (4, 8):
            for x in (9, 10, 11):
                a(f"v_add_f32_dpp {v(x)}, {v(x)}, {v(x)} row_ror:{r} row_mask:0xf bank_mask:0xf")
        a("v_rcp_f32 v9, v9")
        a("v_mul_f32 v10, v10, v9"); a("v_mul_f32 v11, v11, v9")
        a("v_cvt_pk_bf16_f32 v10, v10, v11")
        self.set_exec(0x000f000f000f000f)
        a("ds_write_b32 v7, v10")
        self.set_exec(-1)
        self.barrier()
        self.stamp(st_x)
        self.afrag_reads(AF, 6)
        a("s_waitcnt lgkmcnt(0)")
        self.chain4(64, AF, WF)
        LO = a.newlabel('TO')
        a(f"s_cmp_lg_u32 {s(S_W)}, 0")
        a(f"s_cbranch_scc1 {LO}")
        self.chain4(68, AF, WFX)
        self.pack_pair(68, 108, 110, 12, 13)
        self.set_exec(0xffff)
        a(f"buffer_store_dwordx4 v[108:111], v15, {s(SRD_WS,4)}, {s(t+7)} offen {SC}")
        self.set_exec(-1)
        a.label(LO)
        self.pack_pair(64, 104, 106, 12, 13)
        self.set_exec(0xffff)
        a(f"buffer_store_dwordx4 v[104:107], v15, {s(SRD_WS,4)}, {s(t+6)} offen {SC}")
        self.set_exec(-1)
        self.stamp(st_pub)

    def build(self):
        a = self.a; c = self.c
        self.prologue()
        self.p1_loads()
        self.srds_rest()
        a(f"s_cmp_eq_u32 {s(S_TYPE)}, 0")
        a("s_cbranch_scc0 L_Y0")
        self.x_main()
        a.label("L_Y0")
        self.y_main()
        a.label("L_END")
        self.stamp_dump()
        a.label("L_EXIT")
        a("s_endpgm")
        body = a.finalize()
        hdr = open(os.path.join(os.path.dirname(os.path.abspath(__file__)), 'header.txt')).read()
        out = hdr
        out += f"; @launch grid=(256,1,1) block=(512,1,1) lds={LDS_BYTES}\n"
        out += f""".amdgcn_target "amdgcn-amd-amdhsa--gfx950"
.text
.globl {NAME}_kernel
.p2align 8
.type {NAME}_kernel,@function
{NAME}_kernel:
"""
        out += body
        out += f""".section .rodata,"a"
.p2align 6
.amdhsa_kernel {NAME}_kernel
  .amdhsa_next_free_vgpr 256
  .amdhsa_next_free_sgpr 102
  .amdhsa_accum_offset 256
  .amdhsa_group_segment_fixed_size 0
  .amdhsa_kernarg_size 112
  .amdhsa_user_sgpr_count 2
  .amdhsa_user_sgpr_kernarg_segment_ptr 1
  .amdhsa_system_sgpr_workgroup_id_x 1
.end_amdhsa_kernel
"""
        return out

if __name__ == '__main__':
    cfg = Cfg()
    outp = f"cdna_kernels/{NAME}.s"
    for arg in sys.argv[1:]:
        if arg.startswith('-o='): outp = arg[3:]
        elif '=' in arg:
            k, val = arg.split('=')
            setattr(cfg, k, type(getattr(cfg, k))(int(val)))
    g = Gen(cfg)
    txt = g.build()
    open(outp, 'w').write(txt)
    print("wrote", outp, "lines", txt.count('\n'), "nops inserted", g.a.ninserted)
```

```python
import sys, os, struct
sys.path.insert(0, os.path.dirname(os.path.abspath(__file__)))
from asmlib import Asm, v, s

NAME = "concat_heads__sliding_block_cached__compressed_kv_cla__decode"

class Cfg:
    nt_stream = True
    nt_w = True
    n1_ckv = 4
    n1_k = 0
    n2_k = 0
    n3_k = 0
    spin_limit = 300000
    sleep5 = 1
    e3scal = 1
    xwin = 0
    xwinv = 1
    ntwo = 1
    ntuk = 1
    kx = 4
    qabs_first = ''
    touch = 0
    pipe5 = 1
    stag5 = 10
    pipep5 = 0
    stagp5 = 8
    ldsdbg = 0
    k_after = 4
    early_qa = 1
    n4_k = 0
    e3ack = 1
    e3sleep = 4
    hs = 6
    hsy = 4
    wuk_late = 0
    hs5 = 4
    ackdbg = 0
    xsplit = 0
    dbg = 0
    stamps = False

Q1   = 0x000000
QABS = 0x080000
QM   = 0x090000
EPOCH= 0x0A0000
DONE = 0x0A1000
OP   = 0x100000
OM   = 0x180000
BM   = 0x1C0000
BPART= 0x200000
OUTP = 0x600000
STMP = 0x900000
WS_SIZE = 268435456

IMG = 0
SCR = 131072
R1 = SCR; R2 = SCR + 8192; QL = SCR + 12288; QAL = SCR + 12800
QIMG = SCR
SX = SCR; MX = SCR + 16384; LS = SCR + 17408; PB = SCR + 18432
OW = SCR; ML = SCR + 8192
CW = SCR; XL2 = SCR + 4096
XL = SCR + 12288 + 1024
WUVIMG = IMG + 32768; WOIMG_Y = IMG + 65536
LDS_BYTES = 163840

S_W = 3; S_J = 4; S_TYPE = 5; S_H = 6; S_RQ = 7; S_T = 8
S_B = 9; S_S = 10; S_G = 11
S_PLO = 12; S_PHI = 13; S_SC = 14; S_BASE = 15
P_AX, P_AK, P_AV, P_AWQ, P_AWO, P_BX, P_CKV, P_BWQ = 16, 18, 20, 22, 24, 26, 28, 30
P_WUK, P_WUV, P_BWO, P_OUT = 32, 34, 36, 38
P_DBG, P_WS0 = 40, 42
SRD_X = 44; SRD_W = 48; SRD_ST = 52; SRD_V = 56; SRD_WO = 60; SRD_U = 64
SRD_WS = 80; SRD_OUT = 84; P_WS = 88; SEL1 = 0; SEL2 = 90
ST = 92
S_CNT = 5
S_PB = 16
V_L, V_G4, V_N16, V_RS = 1, 2, 3, 4
SC = "sc0 sc1"
SCALE_LOG2E = 0.08838834764831845 * 1.4426950408889634
TAGINC = 0x9e3779b9
def f32hex(x): return '0x%08x' % struct.unpack('<I', struct.pack('<f', x))[0]

class Gen:
    def __init__(self, cfg):
        self.c = cfg
        self.a = Asm()

    def srd(self, dst, ptr, size):
        a = self.a
        a(f"s_mov_b32 {s(dst)}, {s(ptr)}")
        a(f"s_and_b32 {s(dst+1)}, {s(ptr+1)}, 0xffff")
        a(f"s_mov_b32 {s(dst+2)}, {size}")
        a(f"s_mov_b32 {s(dst+3)}, 0x20000")
    def srd_sel(self, dst, ptrX, ptrY, sizeX, sizeY):
        a = self.a
        a(f"s_cmp_eq_u32 {s(S_TYPE)}, 0")
        a(f"s_cselect_b32 {s(dst)}, {s(ptrX)}, {s(ptrY)}")
        a(f"s_cselect_b32 {s(dst+1)}, {s(ptrX+1)}, {s(ptrY+1)}")
        if sizeX == sizeY:
            a(f"s_mov_b32 {s(dst+2)}, {sizeX}")
        else:
            a(f"s_mov_b32 {s(dst+2)}, {sizeY}")
            a(f"s_cselect_b32 {s(dst+2)}, {sizeX}, {s(dst+2)}")
        a(f"s_and_b32 {s(dst+1)}, {s(dst+1)}, 0xffff")
        a(f"s_mov_b32 {s(dst+3)}, 0x20000")
    def hshift(self, dst):
        self.a(f"s_add_u32 {s(dst)}, {s(S_H)}, s79")
        self.a(f"s_and_b32 {s(dst)}, {s(dst)}, 31")
    def hshift5(self, dst):
        self.a(f"s_add_u32 {s(dst)}, {s(S_H)}, {self.c.hs5}")
        self.a(f"s_and_b32 {s(dst)}, {s(dst)}, 31")
    def set_exec(self, mask):
        a = self.a
        if mask == -1:
            a("s_mov_b64 exec, -1"); return
        a(f"s_mov_b32 exec_lo, 0x{mask & 0xffffffff:08x}")
        a(f"s_mov_b32 exec_hi, 0x{mask >> 32:08x}")
    def ntw(self): return ' nt' if self.c.nt_w else ''
    def nts(self): return ' nt' if self.c.nt_stream else ''

    def stamp(self, idx):
        if not self.c.stamps: return
        a = self.a
        a(f"s_memrealtime vcc")
        a(f"s_waitcnt lgkmcnt(0)")
        a(f"v_writelane_b32 v0, vcc_lo, {idx}")
    def stamp_cnt(self, idx):
        if not self.c.stamps: return
        self.a(f"v_writelane_b32 v0, {s(S_CNT)}, {idx}")
    def stamp_dump(self):
        if not self.c.stamps: return
        a = self.a
        a(f"s_lshl_b32 s98, s2, 3")
        a(f"s_add_u32 s98, s98, {s(S_W)}")
        a(f"s_lshl_b32 s98, s98, 7")
        a(f"s_add_u32 s98, s98, {STMP}")
        a(f"v_lshlrev_b32 v58, 2, {v(V_L)}")
        self.set_exec(0xffffffff)
        a(f"buffer_store_dword v0, v58, {s(SRD_WS,4)}, s98 offen")
        self.set_exec(-1)
    def tid_shl(self, dst, sh, add=0, st=None):
        a = self.a
        st = ST + 9 if st is None else st
        a(f"s_lshl_b32 {s(st)}, {s(S_W)}, {6+sh}")
        if add: a(f"s_add_u32 {s(st)}, {s(st)}, {add}")
        a(f"v_lshl_add_u32 {v(dst)}, {v(V_L)}, {sh}, {s(st)}")

    def half_perm(self, L, F):
        a = self.a
        for i in range(4):
            for jj in range(2):
                lo = L + (2*jj)*4 + i; hi = L + (2*jj+1)*4 + i
                a(f"v_perm_b32 {v(F + (2*i)*2 + jj)}, {v(hi)}, {v(lo)}, {s(S_PLO)}")
                a(f"v_perm_b32 {v(F + (2*i+1)*2 + jj)}, {v(hi)}, {v(lo)}, {s(S_PHI)}")
    def full_perm(self, L, F):
        a = self.a
        for i in range(4):
            for jj in range(4):
                lo = L + (2*jj)*4 + i; hi = L + (2*jj+1)*4 + i
                a(f"v_perm_b32 {v(F + (2*i)*4 + jj)}, {v(hi)}, {v(lo)}, {s(S_PLO)}")
                a(f"v_perm_b32 {v(F + (2*i+1)*4 + jj)}, {v(hi)}, {v(lo)}, {s(S_PHI)}")
    def half_mfma(self, ACC, AF, F, first):
        a = self.a
        for c in range(8):
            cin = '0' if first else v(ACC + 4*c, 4)
            a(f"v_mfma_f32_16x16x16_bf16 {v(ACC+4*c,4)}, {v(AF,2)}, {v(F+2*c,2)}, {cin}")
    def xrow(self, op, x, t):
        a = self.a
        a(f"v_mov_b32 {v(t)}, {v(x)}")
        a(f"v_permlane16_swap_b32 {v(x)}, {v(t)}")
        a(f"{op} {v(x)}, {v(x)}, {v(t)}")
        a(f"v_mov_b32 {v(t)}, {v(x)}")
        a(f"v_permlane32_swap_b32 {v(x)}, {v(t)}")
        a(f"{op} {v(x)}, {v(x)}, {v(t)}")
    def xrow_multi(self, op, xs, ts):
        a = self.a
        for sw in ('v_permlane16_swap_b32', 'v_permlane32_swap_b32'):
            for x, t in zip(xs, ts): a(f"v_mov_b32 {v(t)}, {v(x)}")
            for x, t in zip(xs, ts): a(f"{sw} {v(x)}, {v(t)}")
            for x, t in zip(xs, ts): a(f"{op} {v(x)}, {v(x)}, {v(t)}")
    def xhalf(self, op, x, t):
        a = self.a
        a(f"v_mov_b32 {v(t)}, {v(x)}")
        a(f"v_permlane32_swap_b32 {v(x)}, {v(t)}")
        a(f"{op} {v(x)}, {v(x)}, {v(t)}")
    def inrow(self, op, x):
        a = self.a
        for r in (8, 4, 2, 1):
            a(f"{op}_dpp {v(x)}, {v(x)}, {v(x)} row_ror:{r} row_mask:0xf bank_mask:0xf")
    def barrier(self):
        self.a("s_waitcnt lgkmcnt(0)")
        self.a("s_barrier")

    def spin_scalar(self, load_fn, ok_fn, sleep=0):
        a = self.a
        L = a.newlabel('SP'); D = a.newlabel('SD')
        a(f"s_mov_b32 {s(S_CNT)}, 0")
        a.label(L)
        load_fn()
        a("s_waitcnt lgkmcnt(0)")
        ok_fn()
        a(f"s_cbranch_scc1 {D}")
        if sleep: a(f"s_sleep {sleep}")
        a(f"s_add_u32 {s(S_CNT)}, {s(S_CNT)}, 1")
        a(f"s_cmp_lt_u32 {s(S_CNT)}, {self.c.spin_limit}")
        a(f"s_cbranch_scc1 {L}")
        a.label(D)

    def s_alltags(self, regs, t0, t1):
        a = self.a
        a(f"s_xor_b32 {s(t0)}, {s(regs[0])}, {s(S_T)}")
        for r in regs[1:]:
            a(f"s_xor_b32 {s(t1)}, {s(r)}, {s(S_T)}")
            a(f"s_or_b32 {s(t0)}, {s(t0)}, {s(t1)}")
        a(f"s_cmp_eq_u32 {s(t0)}, 0")

    def retry_vec(self, load_fn, check_fn, first_wait, sleep=0, wait="s_waitcnt vmcnt(0)"):
        a = self.a
        C = a.newlabel('RC'); D = a.newlabel('RD')
        a(f"s_mov_b32 {s(S_CNT)}, 0")
        a(first_wait)
        a.label(C)
        check_fn()
        a("s_cmp_eq_u64 vcc, exec")
        a(f"s_cbranch_scc1 {D}")
        a(f"s_add_u32 {s(S_CNT)}, {s(S_CNT)}, 1")
        a(f"s_cmp_ge_u32 {s(S_CNT)}, {self.c.spin_limit}")
        a(f"s_cbranch_scc1 {D}")
        if sleep: a(f"s_sleep {sleep}")
        load_fn()
        a(wait)
        a(f"s_branch {C}")
        a.label(D)

    def poll_pipe(self, load_fn, check_fn, done_fn, nloads, stagger, first_issued=True):
        a = self.a
        L0 = a.newlabel('PP'); D0 = a.newlabel('PD'); D1 = a.newlabel('PD'); E = a.newlabel('PE')
        a(f"s_mov_b32 {s(S_CNT)}, 0")
        if stagger: a(f"s_sleep {stagger}")
        load_fn(1)
        a.label(L0)
        for k, D in ((0, D0), (1, D1)):
            a(f"s_waitcnt vmcnt({nloads})")
            check_fn(k)
            a("s_cmp_eq_u64 vcc, exec")
            a(f"s_cbranch_scc1 {D}")
            load_fn(k)
        a(f"s_add_u32 {s(S_CNT)}, {s(S_CNT)}, 1")
        a(f"s_cmp_lt_u32 {s(S_CNT)}, {self.c.spin_limit}")
        a(f"s_cbranch_scc1 {L0}")
        a("s_waitcnt vmcnt(0)")
        a.label(D0)
        done_fn(0)
        a(f"s_branch {E}")
        a.label(D1)
        done_fn(1)
        a.label(E)

    def acc_rows_addr(self, dst, base):
        a = self.a
        a(f"v_and_b32 {v(dst)}, 1, {v(V_G4)}")
        a(f"v_lshlrev_b32 {v(dst)}, 9, {v(dst)}")
        a(f"v_lshl_add_u32 {v(dst)}, {v(V_N16)}, 5, {v(dst)}")
        a(f"s_lshl_b32 {s(ST)}, {s(S_W)}, 10")
        a(f"s_add_u32 {s(ST)}, {s(ST)}, {base}")
        a(f"v_add_u32 {v(dst)}, {s(ST)}, {v(dst)}")
    def write_acc_rows(self, ACC, addr):
        for c in range(0, 8, 2):
            self.a(f"ds_write2_b32 {v(addr)}, {v(ACC+4*c)}, {v(ACC+4*c+4)} offset0:{c} offset1:{c+1}")

    def checksum4(self, Q, X, t, SEL1, SEL2):
        a = self.a
        for j in range(4):
            q = Q + 4*j
            a(f"v_bitop3_b32 {v(t+j)}, {v(q)}, {v(q+1)}, {v(q+2)} bitop3:0x96")
        for j in range(4):
            a(f"v_xor_b32 {v(t+j)}, {v(t+j)}, {v(Q+4*j+3)}")
        for r in (8, 4, 2, 1):
            for j in range(4):
                a(f"v_xor_b32_dpp {v(t+j)}, {v(t+j)}, {v(t+j)} row_ror:{r} row_mask:0xf bank_mask:0xf")
        a(f"v_cndmask_b32 {v(t)}, {v(t)}, {v(t+1)}, {s(SEL1,2)}")
        a(f"v_cndmask_b32 {v(t+2)}, {v(t+2)}, {v(t+3)}, {s(SEL1,2)}")
        a(f"v_cndmask_b32 {v(X)}, {v(t)}, {v(t+2)}, {s(SEL2,2)}")

    def prologue(self):
        a = self.a
        if self.c.stamps: a("s_memrealtime s[100:101]")
        a("s_cmp_ge_u32 s2, 256")
        a("s_cbranch_scc1 L_EXIT")
        a("s_load_dwordx16 s[16:31], s[0:1], 0")
        a("s_load_dwordx8 s[32:39], s[0:1], 64")
        a("s_load_dwordx4 s[40:43], s[0:1], 96")
        a("v_lshrrev_b32 v5, 6, v0")
        a(f"v_and_b32 {v(V_L)}, 63, v0")
        a(f"v_readfirstlane_b32 {s(S_W)}, v5")
        a(f"v_lshrrev_b32 {v(V_G4)}, 4, {v(V_L)}")
        a(f"v_and_b32 {v(V_N16)}, 15, {v(V_L)}")
        a(f"v_bfe_u32 {v(V_RS)}, {v(V_N16)}, 2, 1")
        a(f"s_and_b32 {s(ST+2)}, s2, 7")
        a(f"s_lshr_b32 {s(ST+3)}, s2, 3")
        if self.c.xsplit:
            a(f"s_lshr_b32 {s(S_TYPE)}, {s(ST+2)}, 2")
            a(f"s_and_b32 {s(ST+2)}, {s(ST+2)}, 3")
            a(f"s_lshl_b32 {s(S_J)}, {s(ST+2)}, 5")
            a(f"s_add_u32 {s(S_J)}, {s(S_J)}, {s(ST+3)}")
        else:
            a(f"s_and_b32 {s(S_TYPE)}, {s(ST+3)}, 1")
            a(f"s_lshr_b32 {s(ST+3)}, {s(ST+3)}, 1")
            a(f"s_lshl_b32 {s(S_J)}, {s(ST+2)}, 4")
            a(f"s_add_u32 {s(S_J)}, {s(S_J)}, {s(ST+3)}")
        a(f"s_lshr_b32 {s(S_H)}, {s(S_J)}, 2")
        a(f"s_and_b32 {s(S_RQ)}, {s(S_J)}, 3")
        a(f"s_cmp_eq_u32 {s(S_TYPE)}, 0")
        a(f"s_cselect_b32 s79, {self.c.hs}, {self.c.hsy}")
        a(f"s_mov_b32 {s(S_PLO)}, 0x05040100")
        a(f"s_mov_b32 {s(S_PHI)}, 0x07060302")
        a(f"s_mov_b32 {s(S_SC)}, {f32hex(SCALE_LOG2E)}")
        a(f"v_lshlrev_b32 v5, 15, {v(V_G4)}")
        a(f"v_lshl_add_u32 v5, {v(V_N16)}, 4, v5")
        a(f"v_mul_u32_u24 v6, 1152, {v(V_RS)}")
        a(f"v_lshl_add_u32 v6, {v(V_G4)}, 3, v6")
        a("s_waitcnt lgkmcnt(0)")
        a(f"s_load_dword {s(S_T)}, {s(P_WS0,2)}, {EPOCH}")
        a(f"s_mov_b64 {s(P_WS,2)}, {s(P_WS0,2)}")
        a(f"s_mov_b32 {s(SEL1)}, 0xaaaaaaaa"); a(f"s_mov_b32 {s(SEL1+1)}, 0xaaaaaaaa")
        a(f"s_mov_b32 {s(SEL2)}, 0xcccccccc"); a(f"s_mov_b32 {s(SEL2+1)}, 0xcccccccc")
        self.srd_sel(SRD_X, P_BX, P_AX, 2304, 2304)
        self.srd_sel(SRD_W, P_BWQ, P_AWQ, 4718592, 4718592)
        if self.c.stamps:
            a("v_mov_b32 v0, 0")
            a("v_writelane_b32 v0, s100, 31")
        self.stamp(0)

    def srds_rest(self):
        self.srd(SRD_WS, P_WS0, WS_SIZE)
        self.srd_sel(SRD_ST, P_AK, P_CKV, 67108864, 16777216)
        self.srd_sel(SRD_V, P_AV, P_WUV, 67108864, 4194304)
        self.srd(SRD_U, P_WUK, 4194304)
        self.srd_sel(SRD_WO, P_AWO, P_BWO, 4718592, 4718592)
        self.srd(SRD_OUT, P_OUT, 4608)

    XF, XF2, L1, L2, F1, ACC1 = 16, 18, 20, 36, 52, 68
    def p1_loads(self):
        a = self.a
        V_WQ, V_X = 5, 6
        def loads(u_const, XFr, Lr):
            t = ST
            a(f"s_mul_i32 {s(t)}, {s(S_RQ)}, 144")
            if u_const is not None:
                a(f"s_add_u32 {s(t)}, {s(t)}, {16*u_const}")
            else:
                a(f"s_lshl_b32 {s(t+1)}, {s(S_W)}, 4")
                a(f"s_add_u32 {s(t)}, {s(t)}, {s(t+1)}")
            a(f"s_lshl_b32 {s(t+1)}, {s(t)}, 1")
            a(f"buffer_load_dwordx2 {v(XFr,2)}, {v(V_X)}, {s(SRD_X,4)}, {s(t+1)} offen")
            a(f"s_lshl_b32 {s(t)}, {s(t)}, 13")
            self.hshift(t+1)
            a(f"s_lshl_b32 {s(t+1)}, {s(t+1)}, 8")
            a(f"s_add_u32 {s(t)}, {s(t)}, {s(t+1)}")
            for jr in range(4):
                a(f"buffer_load_dwordx4 {v(Lr+4*jr,4)}, {v(V_WQ)}, {s(SRD_W,4)}, {s(t)} offen{self.ntw()}")
                if jr < 3: a(f"s_add_u32 {s(t)}, {s(t)}, 8192")
        LX = a.newlabel('LX')
        a(f"s_cmp_lg_u32 {s(S_W)}, 0")
        a(f"s_cbranch_scc1 {LX}")
        loads(8, self.XF2, self.L2)
        a.label(LX)
        loads(None, self.XF, self.L1)

    def p1_compute(self, branch, nyoung, hook=None):
        a = self.a
        self.acc_rows_addr(7, R1)
        self.tid_shl(5, 2, R1)
        self.tid_shl(6, 3)
        a(f"s_lshl_b32 {s(ST+1)}, s79, 2")
        a(f"s_add_u32 {s(ST+1)}, {s(ST+1)}, {s(S_J)}")
        a(f"s_and_b32 {s(ST+1)}, {s(ST+1)}, 127")
        a(f"s_add_u32 {s(ST+1)}, {s(ST+1)}, {branch*128}")
        a(f"s_lshl_b32 {s(ST+1)}, {s(ST+1)}, 11")
        if Q1: a(f"s_add_u32 {s(ST+1)}, {s(ST+1)}, {Q1}")
        a(f"s_waitcnt vmcnt({nyoung})")
        self.stamp(1)
        if hook is not None:
            a("v_mov_b32 v250, v7"); a(f"s_mov_b32 s78, {s(ST+1)}")
            hook()
            a("v_mov_b32 v7, v250"); a(f"s_mov_b32 {s(ST+1)}, s78")
        self.half_perm(self.L1, self.F1)
        self.half_mfma(self.ACC1, self.XF, self.F1, True)
        LY = a.newlabel('LY')
        a(f"s_cmp_lg_u32 {s(S_W)}, 0")
        a(f"s_cbranch_scc1 {LY}")
        self.half_perm(self.L2, self.L1)
        self.half_mfma(self.ACC1, self.XF2, self.L1, False)
        a.label(LY)
        self.write_acc_rows(self.ACC1, 7)
        self.barrier()
        a(f"s_add_u32 {s(S_T)}, {s(S_T)}, 0x{TAGINC:08x}")
        LZ = a.newlabel('LZ')
        a(f"s_cmp_ge_u32 {s(S_W)}, 4")
        a(f"s_cbranch_scc1 {LZ}")
        for w in range(8):
            a(f"ds_read_b32 {v(20+w)}, v5 offset:{w*1024}")
        a(f"v_mov_b32 v29, {s(S_T)}")
        a("s_waitcnt lgkmcnt(0)")
        a("v_add_f32 v20, v20, v21"); a("v_add_f32 v22, v22, v23"); a("v_add_f32 v24, v24, v25"); a("v_add_f32 v26, v26, v27")
        a("v_add_f32 v20, v20, v22"); a("v_add_f32 v24, v24, v26")
        a("v_add_f32 v28, v20, v24")
        a(f"buffer_store_dwordx2 v[28:29], v6, {s(SRD_WS,4)}, {s(ST+1)} offen {SC}")
        a.label(LZ)
        self.stamp(2)

    def q_addr(self, own_head_both_batches, dst):
        a = self.a; t = dst
        if own_head_both_batches:
            a(f"s_add_u32 {s(t)}, {s(S_H)}, 32")
            a(f"s_lshr_b32 {s(t+1)}, {s(S_W)}, 2")
        else:
            a(f"s_lshr_b32 {s(t)}, {s(S_J)}, 3")
            a(f"s_lshl_b32 {s(t)}, {s(t)}, 1")
            a(f"s_lshr_b32 {s(t+1)}, {s(S_W)}, 2")
            a(f"s_add_u32 {s(t)}, {s(t)}, {s(t+1)}")
            a(f"s_bfe_u32 {s(t+1)}, {s(S_J)}, 0x10002")
        a(f"s_lshl_b32 {s(t)}, {s(t)}, 3")
        a(f"s_add_u32 {s(t)}, {s(t)}, {s(t+1)}")
        a(f"s_and_b32 {s(t+1)}, {s(S_W)}, 3")
        a(f"s_lshl_b32 {s(t+1)}, {s(t+1)}, 1")
        a(f"s_add_u32 {s(t)}, {s(t)}, {s(t+1)}")
        a(f"s_lshl_b32 {s(t)}, {s(t)}, 10")
        if Q1: a(f"s_add_u32 {s(t)}, {s(t)}, {Q1}")

    def q_poll(self, t):
        a = self.a
        a(f"s_add_u32 {s(t+1)}, {s(t)}, {127*8}")
        self.spin_scalar(lambda: a(f"s_load_dwordx2 {s(S_PB,2)}, {s(P_WS,2)}, {s(t+1)} glc"),
                         lambda: a(f"s_cmp_eq_u32 {s(S_PB+1)}, {s(S_T)}"))
    def q_load(self, t, G):
        a = self.a
        a(f"v_lshlrev_b32 v5, 4, {v(V_L)}")
        a(f"buffer_load_dwordx4 {v(G,4)}, v5, {s(SRD_WS,4)}, {s(t)} offen {SC}")
    def q_finish(self, t, G, nafter, st_data=None):
        a = self.a
        a(f"s_lshl_b32 {s(ST)}, {s(S_W)}, 9")
        a(f"s_add_u32 {s(ST)}, {s(ST)}, {R2}")
        a(f"v_lshlrev_b32 v6, 3, {v(V_L)}")
        a(f"v_add_u32 v6, {s(ST)}, v6")
        def chk():
            a(f"v_cmp_eq_u32 vcc, {s(S_T)}, {v(G+1)}")
            a(f"v_cmp_eq_u32 {s(S_PB,2)}, {s(S_T)}, {v(G+3)}")
            a(f"s_and_b64 vcc, vcc, {s(S_PB,2)}")
        self.retry_vec(lambda: self.q_load(t, G), chk, f"s_waitcnt vmcnt({nafter})")
        if st_data is not None: self.stamp(st_data)
        a(f"ds_write2_b32 v6, {v(G)}, {v(G+2)} offset0:0 offset1:1")
        LQ = a.newlabel('LQ')
        a(f"s_lshl_b32 {s(ST)}, {s(S_W)}, 11")
        a(f"s_add_u32 {s(ST)}, {s(ST)}, {R2}")
        a(f"v_lshlrev_b32 v5, 3, {v(V_L)}")
        a(f"v_add_u32 v5, {s(ST)}, v5")
        a(f"s_lshl_b32 {s(ST)}, {s(S_W)}, 8")
        a(f"s_add_u32 {s(ST)}, {s(ST)}, {QL}")
        a(f"v_lshlrev_b32 v6, 2, {v(V_L)}")
        a(f"v_add_u32 v6, {s(ST)}, v6")
        self.barrier()
        a(f"s_cmp_ge_u32 {s(S_W)}, 2")
        a(f"s_cbranch_scc1 {LQ}")
        for r in range(4):
            a(f"ds_read_b64 {v(8+2*r,2)}, v5 offset:{r*512}")
        a("s_waitcnt lgkmcnt(0)")
        a("v_add_f32 v8, v8, v10"); a("v_add_f32 v9, v9, v11"); a("v_add_f32 v12, v12, v14"); a("v_add_f32 v13, v13, v15")
        a("v_add_f32 v8, v8, v12"); a("v_add_f32 v9, v9, v13")
        a("v_cvt_pk_bf16_f32 v8, v8, v9")
        a("ds_write_b32 v6, v8")
        a.label(LQ)
        a(f"v_lshlrev_b32 v5, 8, {v(V_RS)}")
        a(f"v_lshl_add_u32 v5, {v(V_G4)}, 4, v5")
        a(f"v_add_u32 v5, {QL}, v5")
        self.barrier()
    def q_gather(self, t, G, after_issue, nafter, st_poll=None, st_data=None):
        self.q_poll(t)
        if st_poll is not None: self.stamp(st_poll)
        self.q_load(t, G)
        after_issue()
        self.q_finish(t, G, nafter, st_data)

    def read_q_frags(self, QF):
        for i in range(4):
            self.a(f"ds_read_b128 {v(QF+4*i,4)}, v5 offset:{i*64}")

    def wo_dma_addr(self, A):
        a = self.a
        for i in range(5):
            a(f"v_add_u32 {v(A+i)}, {64*i}, {v(V_L)}")
            a(f"v_mul_u32_u24 v5, 3641, {v(A+i)}")
            a(f"v_lshrrev_b32 v5, 16, v5")
            a(f"v_lshlrev_b32 {v(A+i)}, 4, {v(A+i)}")
            a(f"v_mul_u32_u24 v5, 864, v5")
            a(f"v_add_u32 {v(A+i)}, {v(A+i)}, v5")
    def wo_dma(self, SRD, A, base, RS):
        a = self.a; t = ST
        self.hshift5(t)
        a(f"s_lshl_b32 {s(t)}, {s(t)}, 7")
        a(f"s_lshl_b32 {s(t+1)}, {s(S_W)}, 4")
        a(f"s_add_u32 {s(t)}, {s(t)}, {s(t+1)}")
        a(f"s_mul_i32 {s(t)}, {s(t)}, 1152")
        a(f"s_mul_i32 {s(t+1)}, {s(S_RQ)}, 288")
        a(f"s_add_u32 {s(t)}, {s(t)}, {s(t+1)}")
        a(f"s_mul_i32 {s(t+1)}, {s(S_W)}, {RS}")
        for i in range(5):
            a(f"s_add_u32 m0, {s(t+1)}, {base + i*1024}")
            if i == 4: self.set_exec(0xffffffff)
            a(f"buffer_load_dwordx4 {v(A+i)}, {s(SRD,4)}, {s(t)} offen{' nt' if self.c.ntwo else ''} lds")
        self.set_exec(-1)
    def wo_frags(self, WF, WFX, base, RS):
        a = self.a; t = ST
        a(f"v_lshrrev_b32 v5, 1, {v(V_G4)}")
        a(f"v_mul_u32_u24 v5, {RS}, v5")
        a(f"v_and_b32 v6, 1, {v(V_G4)}")
        a(f"v_lshlrev_b32 v6, 3, v6")
        a(f"v_lshrrev_b32 v7, 2, {v(V_N16)}")
        a(f"v_add_u32 v6, v6, v7")
        a(f"v_mul_u32_u24 v6, 288, v6")
        a(f"v_add_u32 v5, v5, v6")
        a(f"v_and_b32 v6, 3, {v(V_N16)}")
        a(f"v_lshl_add_u32 v5, v6, 3, v5")
        a(f"s_lshl_b32 {s(t)}, {s(S_W)}, 5")
        a(f"s_add_u32 {s(t)}, {s(t)}, {base}")
        a(f"v_add_u32 v5, {s(t)}, v5")
        a(f"v_add_u32 v6, {4*RS}, v5")
        def reads(W, extra):
            for ks in range(4):
                for hf in range(2):
                    ad = 5 if ks < 2 else 6
                    a(f"ds_read_b64_tr_b16 {v(W+4*ks+2*hf,2)}, {v(ad)} offset:{(ks&1)*2*RS + hf*1152 + extra}")
        reads(WF, 0)
        LX = a.newlabel('WX')
        a(f"s_cmp_lg_u32 {s(S_W)}, 0")
        a(f"s_cbranch_scc1 {LX}")
        reads(WFX, 256)
        a.label(LX)
    def afrag_addr(self, dst, base):
        a = self.a
        a(f"v_and_b32 {v(dst)}, 1, {v(V_N16)}")
        a(f"v_lshlrev_b32 {v(dst)}, 8, {v(dst)}")
        a(f"v_lshl_add_u32 {v(dst)}, {v(V_G4)}, 4, {v(dst)}")
        a(f"v_add_u32 {v(dst)}, {base}, {v(dst)}")
    def afrag_reads(self, AF, addr):
        for ks in range(4):
            self.a(f"ds_read_b128 {v(AF+4*ks,4)}, {v(addr)} offset:{ks*64}")
    def chain4(self, D, AF, WF):
        for ks in range(4):
            cin = '0' if ks == 0 else v(D,4)
            self.a(f"v_mfma_f32_16x16x32_bf16 {v(D,4)}, {v(AF+4*ks,4)}, {v(WF+4*ks,4)}, {cin}")
    def pack_pair(self, D, x0, x1, t0, t1):
        a = self.a
        a(f"v_mov_b32_dpp {v(t0)}, {v(D)} quad_perm:[1,0,3,2] row_mask:0xf bank_mask:0xf")
        a(f"v_mov_b32_dpp {v(t1)}, {v(D+1)} quad_perm:[1,0,3,2] row_mask:0xf bank_mask:0xf")
        a(f"v_cndmask_b32 {v(x0)}, {v(D)}, {v(t1)}, {s(SEL1,2)}")
        a(f"v_cndmask_b32 {v(x1)}, {v(t0)}, {v(D+1)}, {s(SEL1,2)}")

    WUK = 100
    def x_roles(self):
        a = self.a
        a(f"s_lshr_b32 {s(S_G)}, {s(S_J)}, 3")
        a(f"s_bfe_u32 {s(S_B)}, {s(S_J)}, 0x10002")
        a(f"s_and_b32 {s(S_S)}, {s(S_J)}, 3")
        t = ST + 8
        a(f"s_lshl_b32 {s(t)}, {s(S_B)}, 4")
        a(f"s_add_u32 {s(t)}, {s(t)}, {s(S_G)}")
        a(f"s_lshl_b32 {s(t)}, {s(t)}, 13")
        a(f"s_lshl_b32 {s(t+1)}, {s(S_S)}, 9")
        a(f"s_add_u32 {s(t)}, {s(t)}, {s(t+1)}")
        a(f"s_add_u32 {s(t)}, {s(t)}, 6144")
        a(f"s_lshl_b32 {s(t)}, {s(t)}, 8")
        a(f"s_lshl_b32 {s(t+1)}, {s(S_W)}, 14")
        a(f"s_add_u32 {s(S_BASE)}, {s(t)}, {s(t+1)}")
    def x_wuk_loads(self):
        a = self.a; t = ST
        a(f"v_lshlrev_b32 v7, 13, {v(V_N16)}")
        a(f"v_lshl_add_u32 v7, {v(V_G4)}, 4, v7")
        a(f"s_lshl_b32 {s(t)}, {s(S_RQ)}, 7")
        a(f"s_lshl_b32 {s(t+1)}, {s(S_W)}, 4")
        a(f"s_add_u32 {s(t)}, {s(t)}, {s(t+1)}")
        a(f"s_lshl_b32 {s(t)}, {s(t)}, 13")
        a(f"s_lshl_b32 {s(t+1)}, {s(S_H)}, 8")
        a(f"s_add_u32 {s(t)}, {s(t)}, {s(t+1)}")
        for i in range(4):
            a(f"buffer_load_dwordx4 {v(self.WUK+4*i,4)}, v7, {s(SRD_U,4)}, {s(t)} offen offset:{i*64}{' nt' if self.c.ntuk else ''}")
    def x_kdma(self, kk0, kk1):
        a = self.a; t = ST
        if kk0 >= kk1: return
        a(f"v_xor_b32 v248, {v(V_N16)}, {v(V_G4)}")
        a(f"v_lshlrev_b32 v248, 4, v248")
        a(f"v_lshl_add_u32 v248, {v(V_G4)}, 8, v248")
        for k in range(1, 4):
            a(f"v_xor_b32 {v(248+k)}, {k<<6}, v248")
        a(f"s_lshl_b32 {s(t)}, {s(S_W)}, 14")
        for kk in range(kk0, kk1):
            a(f"s_add_u32 m0, {s(t)}, {IMG + kk*4096}")
            a(f"s_add_u32 {s(t+1)}, {s(S_BASE)}, {kk*4096}")
            for k in range(4):
                if self.c.xwin: a(f"s_waitcnt vmcnt({self.c.xwin-1})")
                a(f"buffer_load_dwordx4 {v(248+k)}, {s(SRD_ST,4)}, {s(t+1)} offen offset:{k*1024}{self.nts()} lds")

    def x_main(self):
        a = self.a; t = ST; c = self.c
        self.x_roles()
        if c.touch:
            a(f"s_load_dword s68, {s(P_AK,2)}, {s(S_BASE)}")
            a(f"s_load_dword s69, {s(P_AV,2)}, {s(S_BASE)}")
            self.hshift5(ST)
            a(f"s_mul_i32 {s(ST)}, {s(ST)}, {128*1152}")
            a(f"s_load_dword s70, {s(P_AWO,2)}, {s(ST)}")
            a(f"s_mov_b32 {s(ST+1)}, {OUTP}")
            a(f"s_load_dword s71, {s(P_WS,2)}, {s(ST+1)}")
        a("s_barrier")
        if not c.wuk_late: self.x_wuk_loads()
        self.x_kdma(0, c.n1_k)
        self.q_addr(True, ST+4)
        if c.wuk_late:
            self.p1_compute(1, 4*c.n1_k, hook=self.x_wuk_loads)
        else:
            self.p1_compute(1, 4 + 4*c.n1_k)
        self.x_kdma(c.n1_k, c.n1_k + c.n2_k)
        kdone = c.n1_k + c.n2_k
        GA = 240
        if c.early_qa:
            self.q_addr(False, ST+6)
            def aft():
                self.q_load(ST+6, GA)
                self.x_kdma(kdone, kdone + c.n4_k)
            self.q_gather(ST+4, 8, aft, 1 + 4*c.n4_k, 14, 15)
            kb = kdone
            kdone += c.n4_k
        else:
            self.q_gather(ST+4, 8, lambda: None, 0, 14, 15)
        self.stamp(3)
        QF = 16
        self.read_q_frags(QF)
        a(f"v_and_b32 v5, 1, {v(V_G4)}")
        a(f"v_lshlrev_b32 v6, 8, v5")
        a(f"v_lshl_add_u32 v7, {v(V_N16)}, 4, v6")
        a(f"v_add_u32 v7, {QAL}, v7")
        a(f"v_lshl_add_u32 v6, {v(V_N16)}, 1, v6")
        a(f"s_lshl_b32 {s(t)}, {s(S_W)}, 5")
        a(f"s_add_u32 {s(t)}, {s(t)}, {QAL}")
        a(f"v_add_u32 v6, {s(t)}, v6")
        a(f"v_lshlrev_b32 v14, 15, v5")
        a(f"v_lshl_add_u32 v14, {v(V_N16)}, 4, v14")
        a(f"v_lshlrev_b32 v15, 10, v5")
        a(f"v_lshl_add_u32 v15, {v(V_N16)}, 11, v15")
        a(f"s_lshl_b32 {s(t)}, {s(S_J)}, 8")
        a(f"s_add_u32 {s(t)}, {s(t)}, {QABS}")
        a(f"s_lshl_b32 {s(t+1)}, {s(S_J)}, 3")
        a(f"s_add_u32 {s(t+1)}, {s(t+1)}, {QM}")
        a("s_waitcnt lgkmcnt(0)")
        AQ = 32
        for i in range(4):
            cin = '0' if i == 0 else v(AQ,4)
            a(f"v_mfma_f32_16x16x32_bf16 {v(AQ,4)}, {v(QF+4*i,4)}, {v(self.WUK+4*i,4)}, {cin}")
        a(f"v_cvt_pk_bf16_f32 v8, {v(AQ)}, {v(AQ)}")
        a(f"ds_write_b16 v6, v8")
        self.barrier()
        LP = a.newlabel('BP')
        a(f"s_cmp_lg_u32 {s(S_W)}, 0")
        a(f"s_cbranch_scc1 {LP}")
        a(f"ds_read_b128 v[8:11], v7")
        a(f"v_mov_b32 v13, {s(S_T)}")
        a("s_waitcnt lgkmcnt(0)")
        self.set_exec(0xffffffff)
        a(f"buffer_store_dwordx4 v[8:11], v14, {s(SRD_WS,4)}, {s(t)} offen {SC}")
        self.set_exec(-1)
        a("v_bitop3_b32 v12, v8, v9, v10 bitop3:0x96"); a("v_xor_b32 v12, v12, v11")
        self.inrow('v_xor_b32', 12)
        self.set_exec(0x00ff00ff)
        a(f"buffer_store_dwordx2 v[12:13], v15, {s(SRD_WS,4)}, {s(t+1)} offen {SC}")
        self.set_exec(-1)
        a.label(LP)
        a("s_barrier")
        self.stamp(17)
        KF, S, VL, F, ACC = 32, 64, 96, 192, 224
        WA = 160
        k3 = min(4, kdone + c.n3_k)
        if c.early_qa:
            kx = max(kdone, c.kx)
            self.x_kdma(kdone, kx)
            self.q_finish(ST+6, GA, 4*(kx-kb), 18)
            self.stamp(9)
            self.read_q_frags(QF)
            self.x_kdma(kx, 4)
        else:
            self.x_kdma(kdone, k3)
            self.q_addr(False, ST+4)
            ka = min(4, k3 + c.k_after)
            self.q_gather(ST+4, 8, lambda: self.x_kdma(k3, ka), 4*(ka-k3), None, 18)
            self.stamp(9)
            self.read_q_frags(QF)
            self.x_kdma(ka, 4)
        a(f"v_lshlrev_b32 v6, 10, {v(V_G4)}")
        a(f"v_lshl_add_u32 v6, {v(V_N16)}, 4, v6")
        for u in range(2):
            for j in range(8):
                if j % 4 == 0:
                    a(f"s_add_u32 {s(t)}, {s(S_BASE)}, {(32*u + 16*(j>>2))*256}")
                if c.xwin and (c.xwinv or u == 0): a(f"s_waitcnt vmcnt({c.xwin-1})")
                a(f"buffer_load_dwordx4 {v(VL + 32*u + 4*j,4)}, v6, {s(SRD_V,4)}, {s(t)} offen offset:{(j&3)*256}{self.nts()}")
        self.wo_dma_addr(WA)
        a("s_waitcnt vmcnt(16)")
        a(f"v_xor_b32 v5, {v(V_N16)}, {v(V_G4)}")
        a(f"v_lshlrev_b32 v5, 4, v5")
        a(f"v_lshl_add_u32 v5, {v(V_N16)}, 8, v5")
        a(f"s_lshl_b32 {s(t)}, {s(S_W)}, 14")
        a(f"v_add_u32 v5, {s(t)}, v5")
        for i in range(1, 4):
            a(f"v_xor_b32 {v(5+i)}, {i<<6}, v5")
        def kread(tt, dst):
            for i in range(4):
                a(f"ds_read_b128 {v(dst+4*i,4)}, {v(5+i)} offset:{IMG + tt*4096}")
        kread(0, KF); kread(1, KF+16)
        for tt in range(4):
            cur = KF + 16*(tt & 1)
            a(f"s_waitcnt lgkmcnt({4 if tt < 3 else 0})")
            for i in range(4):
                cin = '0' if i == 0 else v(S+4*tt,4)
                a(f"v_mfma_f32_16x16x32_bf16 {v(S+4*tt,4)}, {v(cur+4*i,4)}, {v(QF+4*i,4)}, {cin}")
            if tt + 2 < 4:
                kread(tt+2, cur)
        self.wo_dma(SRD_WO, WA, IMG, 16384)
        M, Lsum, T1 = 10, 11, 12
        a(f"v_max3_f32 {v(M)}, {v(S)}, {v(S+1)}, {v(S+2)}")
        for r in range(3, 15, 2):
            a(f"v_max3_f32 {v(M)}, {v(M)}, {v(S+r)}, {v(S+r+1)}")
        a(f"v_max_f32 {v(M)}, {v(M)}, {v(S+15)}")
        self.xrow('v_max_f32', M, T1)
        a(f"v_mul_f32 {v(M)}, {s(S_SC)}, {v(M)}")
        for r in range(16):
            a(f"v_fma_f32 {v(S+r)}, {v(S+r)}, {s(S_SC)}, -{v(M)}")
        for r in range(16):
            a(f"v_exp_f32 {v(S+r)}, {v(S+r)}")
        PF = 32
        for u in range(2):
            for q in range(4):
                a(f"v_cvt_pk_bf16_f32 {v(PF+4*u+q)}, {v(S+8*u+2*q)}, {v(S+8*u+2*q+1)}")
        for r in range(0, 16, 2):
            a(f"v_add_f32 {v(S+r)}, {v(S+r)}, {v(S+r+1)}")
        for r in range(0, 16, 4):
            a(f"v_add_f32 {v(S+r)}, {v(S+r)}, {v(S+r+2)}")
        a(f"v_add_f32 {v(S)}, {v(S)}, {v(S+4)}"); a(f"v_add_f32 {v(S+8)}, {v(S+8)}, {v(S+12)}")
        a(f"v_add_f32 {v(Lsum)}, {v(S)}, {v(S+8)}")
        self.xrow('v_add_f32', Lsum, T1)
        a(f"s_lshl_b32 {s(t)}, {s(S_W)}, 4")
        a(f"s_add_u32 {s(t)}, {s(t)}, {ML}")
        a(f"v_lshlrev_b32 v5, 3, {v(V_RS)}")
        a(f"v_add_u32 v5, {s(t)}, v5")
        a(f"ds_write_b64 v5, {v(M,2)}")
        self.acc_rows_addr(7, OW)
        a(f"s_and_b32 {s(t)}, {s(S_W)}, 1")
        a(f"s_lshl_b32 {s(t+1)}, {s(t)}, 9")
        a(f"s_add_u32 {s(t+1)}, {s(t+1)}, {OW}")
        a(f"v_lshl_add_u32 v5, {v(V_L)}, 3, {s(t+1)}")
        a(f"s_lshl_b32 {s(t+1)}, {s(t)}, 3")
        a(f"s_add_u32 {s(t+1)}, {s(t+1)}, {ML}")
        a(f"v_mov_b32 v6, {s(t+1)}")
        a(f"s_lshl_b32 {s(t+2)}, {s(S_G)}, 1")
        a(f"s_add_u32 {s(t+2)}, {s(t+2)}, {s(t)}")
        a(f"s_lshl_b32 {s(t+3)}, {s(t+2)}, 2")
        a(f"s_add_u32 {s(t+3)}, {s(t+3)}, {s(S_S)}")
        a(f"s_lshl_b32 {s(t+3)}, {s(t+3)}, 1")
        a(f"s_add_u32 {s(t+3)}, {s(t+3)}, {s(S_B)}")
        a(f"s_lshl_b32 {s(t+3)}, {s(t+3)}, 10")
        a(f"s_add_u32 {s(t+3)}, {s(t+3)}, {OP}")
        a(f"v_lshlrev_b32 v8, 4, {v(V_L)}")
        self.stamp(4)
        for u in range(2):
            a(f"s_waitcnt vmcnt({(8 if u == 0 else 0) + 5})")
            self.full_perm(VL+32*u, F)
            for cc in range(8):
                cin = '0' if u == 0 else v(ACC+4*cc,4)
                a(f"v_mfma_f32_16x16x32_bf16 {v(ACC+4*cc,4)}, {v(PF+4*u,4)}, {v(F+4*cc,4)}, {cin}")
        self.stamp(5)
        self.write_acc_rows(ACC, 7)
        self.barrier()
        LZ = a.newlabel('AZ')
        a(f"s_cmp_ge_u32 {s(S_W)}, 2")
        a(f"s_cbranch_scc1 {LZ}")
        for w in range(8):
            a(f"ds_read_b64 {v(32+2*w,2)}, v6 offset:{w*16}")
        for w in range(8):
            a(f"ds_read_b64 {v(48+2*w,2)}, v5 offset:{w*1024}")
        a(f"v_mov_b32 v19, {s(S_T)}")
        a("s_waitcnt lgkmcnt(8)")
        a("v_max3_f32 v20, v32, v34, v36"); a("v_max3_f32 v20, v20, v38, v40"); a("v_max3_f32 v20, v20, v42, v44"); a("v_max_f32 v20, v20, v46")
        for w in range(8):
            a(f"v_sub_f32 {v(32+2*w)}, {v(32+2*w)}, v20")
        for w in range(8):
            a(f"v_exp_f32 {v(32+2*w)}, {v(32+2*w)}")
        a("v_mul_f32 v21, v33, v32")
        for w in range(1, 8):
            a(f"v_fmac_f32 v21, {v(33+2*w)}, {v(32+2*w)}")
        a(f"v_cndmask_b32 v18, v20, v21, {s(SEL1,2)}")
        a("s_waitcnt lgkmcnt(0)")
        a("v_mul_f32 v16, v48, v32"); a("v_mul_f32 v17, v49, v32")
        for w in range(1, 8):
            a(f"v_fmac_f32 v16, {v(48+2*w)}, {v(32+2*w)}")
            a(f"v_fmac_f32 v17, {v(49+2*w)}, {v(32+2*w)}")
        a(f"buffer_store_dwordx4 v[16:19], v8, {s(SRD_WS,4)}, {s(t+3)} offen {SC}")
        self.stamp(6)
        a("s_waitcnt vmcnt(1)")
        LZ2 = a.newlabel('AZ')
        a(f"s_branch {LZ2}")
        a.label(LZ)
        a("s_waitcnt vmcnt(0)")
        a.label(LZ2)
        a("s_barrier")
        self.p5(0, IMG, 16384, 11, 12)
        self.final_reduce(0)

    def final_reduce(self, branch):
        a = self.a; t = ST
        a(f"s_cmp_ge_u32 {s(S_J)}, 72")
        a("s_cbranch_scc1 L_END")
        a(f"s_cmp_lg_u32 {s(S_W)}, 0")
        a("s_cbranch_scc1 L_END")
        a(f"s_lshl_b32 {s(t+4)}, {s(S_J)}, 12")
        a(f"s_add_u32 {s(t+4)}, {s(t+4)}, {OUTP + branch*72*4096}")
        a(f"s_cmp_ge_u32 {s(S_J)}, 36")
        a(f"s_cselect_b32 {s(t+2)}, {2304 - 36*32}, 0")
        a(f"s_lshl_b32 {s(t+3)}, {s(S_J)}, 5")
        a(f"s_add_u32 {s(t+2)}, {s(t+2)}, {s(t+3)}")
        a(f"s_add_u32 {s(t+8)}, {s(t+2)}, {branch*1152}")
        a(f"v_lshlrev_b32 v5, 4, {v(V_L)}")
        a(f"v_lshlrev_b32 v6, 2, {v(V_L)}")
        def ldf(st=0):
            for k in range(4):
                a(f"buffer_load_dwordx4 {v(16+16*st+4*k,4)}, v5, {s(SRD_WS,4)}, {s(t+4)} offen offset:{k*1024} {SC}")
        def chkf(st=0):
            b = 16*st
            a(f"v_xor_b32 v8, {s(S_T)}, {v(17+b)}")
            for r in (19, 21, 23, 25, 27, 29, 31):
                a(f"v_bitop3_b32 v8, {v(r+b)}, {s(S_T)}, v8 bitop3:0xbe")
            a(f"v_cmp_eq_u32 vcc, 0, v8")
        def donef(st):
            b = 16*st
            a(f"v_add_f32 v10, {v(16+b)}, {v(20+b)}"); a(f"v_add_f32 v11, {v(24+b)}, {v(28+b)}"); a(f"v_add_f32 v12, {v(18+b)}, {v(22+b)}"); a(f"v_add_f32 v13, {v(26+b)}, {v(30+b)}")
            a("v_add_f32 v14, v10, v11"); a("v_add_f32 v15, v12, v13")
        ldf()
        if self.c.pipe5:
            self.poll_pipe(ldf, chkf, donef, 4, self.c.stag5)
        else:
            if self.c.stamps:
                a("s_waitcnt vmcnt(0)")
                self.stamp(16)
            self.retry_vec(ldf, chkf, "s_waitcnt vmcnt(0)", sleep=self.c.sleep5)
            a("v_add_f32 v16, v16, v20"); a("v_add_f32 v24, v24, v28"); a("v_add_f32 v17, v18, v22"); a("v_add_f32 v26, v26, v30")
            a("v_add_f32 v14, v16, v24"); a("v_add_f32 v15, v17, v26")
        self.stamp_cnt(20)
        self.stamp(19)
        a("v_add_f32_dpp v14, v14, v14 row_ror:8 row_mask:0xf bank_mask:0xf")
        a("v_add_f32_dpp v15, v15, v15 row_ror:8 row_mask:0xf bank_mask:0xf")
        self.xrow_multi('v_add_f32', [14, 15], [8, 9])
        a("v_cvt_pk_bf16_f32 v14, v14, v15")
        self.set_exec(0xff)
        a(f"buffer_store_dword v14, v6, {s(SRD_OUT,4)}, {s(t+8)} offen")
        if branch == 0:
            LE = a.newlabel('EP')
            a(f"s_cmp_lg_u32 {s(S_J)}, 0")
            a(f"s_cbranch_scc1 {LE}")
            a(f"v_mov_b32 v5, {EPOCH}")
            a(f"v_mov_b32 v6, {s(S_T)}")
            self.set_exec(1)
            a(f"buffer_store_dword v6, v5, {s(SRD_WS,4)}, 0 offen {SC}")
            a.label(LE)
        self.set_exec(-1)
        self.stamp(13)
        a("s_waitcnt vmcnt(0)")
        a("s_branch L_END")

    def y_roles(self):
        a = self.a
        a(f"s_lshr_b32 {s(S_B)}, {s(S_J)}, 6")
        a(f"s_and_b32 {s(S_S)}, {s(S_J)}, 63")
        t = ST + 8
        a(f"s_lshl_b32 {s(t)}, {s(S_J)}, 17")
        a(f"s_lshl_b32 {s(t+1)}, {s(S_W)}, 14")
        a(f"s_add_u32 {s(S_BASE)}, {s(t)}, {s(t+1)}")
    def ckv_dma(self, k0, k1):
        a = self.a; t = ST
        if k0 >= k1: return
        a(f"v_lshlrev_b32 v248, 4, {v(V_L)}")
        a(f"s_lshl_b32 {s(t)}, {s(S_W)}, 14")
        for k in range(k0, k1):
            f = ((k & 3) << 2) | ((k >> 2) & 3)
            a(f"v_xor_b32 v249, {f<<4}, v248")
            a(f"s_add_u32 m0, {s(t)}, {IMG + k*1024}")
            a(f"s_add_u32 {s(t+1)}, {s(S_BASE)}, {k*1024}")
            a(f"buffer_load_dwordx4 v249, {s(SRD_ST,4)}, {s(t+1)} offen{self.nts()} lds")

    def y_main(self):
        a = self.a; t = ST; c = self.c
        self.y_roles()
        if c.touch:
            a(f"s_lshl_b32 {s(ST)}, {s(S_RQ)}, 20")
            a(f"s_load_dword s68, {s(P_WUV,2)}, {s(ST)}")
            self.hshift5(ST)
            a(f"s_mul_i32 {s(ST)}, {s(ST)}, {128*1152}")
            a(f"s_load_dword s69, {s(P_BWO,2)}, {s(ST)}")
            for r, off in ((70, BPART), (71, BPART + 0x200000), (72, OUTP)):
                a(f"s_mov_b32 s73, {off}")
                a(f"s_load_dword s{r}, {s(P_WS,2)}, s73")
        a("s_barrier")
        self.ckv_dma(0, c.n1_ckv)
        self.p1_compute(0, c.n1_ckv)
        self.ckv_dma(c.n1_ckv, 16)
        GQ, GM = 16, 32
        a(f"s_lshl_b32 {s(t)}, {s(S_B)}, 10")
        a(f"s_lshl_b32 {s(t+1)}, {s(S_W)}, 7")
        a(f"s_add_u32 {s(t)}, {s(t)}, {s(t+1)}")
        a(f"s_and_b32 {s(t+1)}, {s(S_S)}, 7")
        a(f"s_lshl_b32 {s(t+1)}, {s(t+1)}, 11")
        a(f"s_add_u32 {s(t)}, {s(t)}, {s(t+1)}")
        a(f"s_add_u32 {s(t+5)}, {s(t)}, {QM}")
        a(f"s_lshl_b32 {s(t+4)}, {s(S_B)}, 15")
        a(f"s_lshl_b32 {s(t+1)}, {s(S_W)}, 12")
        a(f"s_add_u32 {s(t+4)}, {s(t+4)}, {s(t+1)}")
        a(f"s_add_u32 {s(t+4)}, {s(t+4)}, {QABS}")
        def e2ld():
            a(f"s_load_dwordx16 {s(S_PB,16)}, {s(P_WS,2)}, {s(t+5)} glc")
            a(f"s_load_dwordx16 {s(S_PB+16,16)}, {s(P_WS,2)}, {s(t+1)} glc")
        def okf():
            self.s_alltags([S_PB+2*i+1 for i in range(16)], t+2, t+3)
        a(f"s_add_u32 {s(t+1)}, {s(t+5)}, 64")
        self.spin_scalar(e2ld, okf)
        self.stamp(17)
        def ldq(first=False):
            fl = (self.c.qabs_first if first else SC)
            a(f"v_lshlrev_b32 v5, 4, {v(V_L)}")
            for j in range(4):
                a(f"buffer_load_dwordx4 {v(GQ+4*j,4)}, v5, {s(SRD_WS,4)}, {s(t+4)} offen offset:{j*1024} {fl}")
            a(f"v_and_b32 v6, 3, {v(V_N16)}")
            a(f"v_lshlrev_b32 v6, 5, v6")
            a(f"v_lshl_add_u32 v6, {v(V_G4)}, 3, v6")
            a(f"buffer_load_dwordx2 {v(GM,2)}, v6, {s(SRD_WS,4)}, {s(t+5)} offen {SC}")
        ldq(True)
        AFS, AFP, BFR = 64, 128, 224
        N32, HI = 8, 9
        a(f"v_and_b32 {v(N32)}, 31, {v(V_L)}")
        a(f"v_lshrrev_b32 {v(HI)}, 5, {v(V_L)}")
        KT, CH = t+6, t+7
        a(f"s_and_b32 {s(KT)}, {s(S_W)}, 3")
        a(f"s_lshr_b32 {s(CH)}, {s(S_W)}, 2")
        a(f"v_and_b32 v5, 3, {v(N32)}")
        a(f"v_lshlrev_b32 v5, 2, v5")
        a(f"v_bfe_u32 v6, {v(N32)}, 2, 2")
        a(f"v_or_b32 v5, v5, v6")
        a(f"v_xor_b32 v5, v5, {v(HI)}")
        a(f"v_lshlrev_b32 v5, 4, v5")
        a(f"v_lshl_add_u32 v5, {v(N32)}, 10, v5")
        a(f"s_lshl_b32 {s(t+2)}, {s(KT)}, 15")
        a(f"s_lshl_b32 {s(t+3)}, {s(CH)}, 9")
        a(f"s_add_u32 {s(t+2)}, {s(t+2)}, {s(t+3)}")
        a(f"v_add_u32 v56, {s(t+2)}, v5")
        for i in range(1, 8): a(f"v_xor_b32 {v(56+i)}, {i*32}, v56")
        a(f"v_lshrrev_b32 v5, 2, {v(V_N16)}")
        a(f"v_lshlrev_b32 v6, 2, v5")
        a(f"v_or_b32 v6, v6, {v(HI)}")
        a(f"v_and_b32 v7, 1, {v(V_G4)}")
        a(f"v_lshlrev_b32 v7, 1, v7")
        a(f"v_bfe_u32 v13, {v(V_N16)}, 1, 1")
        a(f"v_or_b32 v7, v7, v13")
        a(f"s_and_b32 {s(t+2)}, {s(S_W)}, 1")
        a(f"s_lshl_b32 {s(t+2)}, {s(t+2)}, 3")
        a(f"v_or_b32 v7, {s(t+2)}, v7")
        a(f"v_xor_b32 v6, v6, v7")
        a(f"v_lshlrev_b32 v6, 4, v6")
        a(f"v_and_b32 v7, 1, {v(V_N16)}")
        a(f"v_lshl_add_u32 v6, v7, 3, v6")
        a(f"v_lshl_add_u32 v5, {v(HI)}, 2, v5")
        a(f"v_lshl_add_u32 v6, v5, 10, v6")
        a(f"s_lshr_b32 {s(t+2)}, {s(S_W)}, 1")
        a(f"s_lshl_b32 {s(t+2)}, {s(t+2)}, 8")
        a(f"v_add_u32 v48, {s(t+2)}, v6")
        a(f"v_xor_b32 v49, 64, v48")
        a(f"v_xor_b32 v50, 32, v48")
        a(f"v_add_u32 v50, 8192, v50")
        a(f"v_xor_b32 v51, 64, v50")
        for r in range(4): a(f"v_add_u32 {v(52+r)}, 0x10000, {v(48+r)}")
        a("s_waitcnt vmcnt(5)")
        a("s_barrier")
        self.stamp(3)
        for i in range(16):
            a(f"ds_read_b128 {v(AFS+4*i,4)}, {v(56+(i&7))} offset:{256 if i >= 8 else 0}")
        if self.c.ldsdbg: self.stamp(31)
        for ks in range(8):
            base = 48 if ks < 4 else 52
            off = (ks & 3) * 16384
            d = AFP + 8*ks
            for tt in range(2):
                a(f"ds_read_b64_tr_b16 {v(d+4*tt,2)}, {v(base+tt)} offset:{off}")
                a(f"ds_read_b64_tr_b16 {v(d+4*tt+2,2)}, {v(base+2+tt)} offset:{off}")
        if self.c.ldsdbg: self.stamp(4)
        a(f"v_and_b32 v6, 15, {v(N32)}")
        a(f"v_xor_b32 v6, v6, {v(HI)}")
        a(f"v_lshlrev_b32 v6, 4, v6")
        a(f"v_lshl_add_u32 v6, {v(N32)}, 10, v6")
        a(f"s_add_u32 {s(t+3)}, {s(t+3)}, {QIMG}")
        a(f"v_add_u32 v56, {s(t+3)}, v6")
        for i in range(1, 8): a(f"v_xor_b32 {v(56+i)}, {i*32}, v56")
        for j in range(4):
            a(f"s_and_b32 {s(t)}, {s(S_W)}, 3")
            a(f"s_lshl_b32 {s(t)}, {s(t)}, 2")
            a(f"s_add_u32 {s(t)}, {s(t)}, {j}")
            a(f"s_lshl_b32 {s(t)}, {s(t)}, 4")
            a(f"v_lshlrev_b32 v5, 4, {v(V_L)}")
            a(f"v_xor_b32 v5, {s(t)}, v5")
            a(f"s_lshl_b32 {s(t+1)}, {s(S_W)}, 12")
            a(f"s_add_u32 {s(t+1)}, {s(t+1)}, {QIMG + j*1024}")
            a(f"v_add_u32 {v(48+j)}, {s(t+1)}, v5")
        def chkq():
            self.checksum4(GQ, 14, 10, SEL1, SEL2)
            a(f"v_cmp_eq_u32 vcc, v14, {v(GM)}")
            a(f"v_cmp_eq_u32 {s(S_PB,2)}, {s(S_T)}, {v(GM+1)}")
            a(f"s_and_b64 vcc, vcc, {s(S_PB,2)}")
        self.retry_vec(ldq, chkq, "s_waitcnt vmcnt(0)")
        self.stamp(18)
        for j in range(4):
            a(f"ds_write_b128 {v(48+j)}, {v(GQ+4*j,4)}")
        self.barrier()
        self.stamp(5)
        SA = 32
        def bread(i): a(f"ds_read_b128 {v(BFR+4*(i&7),4)}, {v(56+(i&7))} offset:{256 if i >= 8 else 0}")
        for i in range(8): bread(i)
        a(f"v_lshrrev_b32 v5, 4, {v(V_L)}")
        a(f"v_lshlrev_b32 v6, 1, v5")
        a(f"v_xor_b32 v6, v6, {v(V_N16)}")
        a(f"v_lshlrev_b32 v6, 4, v6")
        a(f"v_lshl_add_u32 v5, v5, 13, v6")
        a(f"v_xor_b32 v6, {8<<4}, v5")
        a(f"s_lshl_b32 {s(t)}, {s(S_RQ)}, 7")
        a(f"s_lshl_b32 {s(t+1)}, {s(S_W)}, 4")
        a(f"s_add_u32 {s(t)}, {s(t)}, {s(t+1)}")
        a(f"s_lshl_b32 {s(t)}, {s(t)}, 13")
        a(f"s_lshl_b32 {s(t+1)}, {s(S_H)}, 8")
        a(f"s_add_u32 {s(t)}, {s(t)}, {s(t+1)}")
        a(f"s_lshl_b32 {s(t+1)}, {s(S_W)}, 12")
        for i in range(4):
            a(f"s_add_u32 m0, {s(t+1)}, {WUVIMG + i*1024}")
            a(f"buffer_load_dwordx4 {v(5+(i&1))}, {s(SRD_V,4)}, {s(t)} offen{self.ntw()} lds")
            if i < 3: a(f"s_add_u32 {s(t)}, {s(t)}, {4*8192}")
        for i in range(16):
            left = min(7, 15 - i)
            a(f"s_waitcnt lgkmcnt({left})")
            cin = '0' if i == 0 else v(SA,16)
            a(f"v_mfma_f32_32x32x16_bf16 {v(SA,16)}, {v(AFS+4*i,4)}, {v(BFR+4*(i&7),4)}, {cin}")
            if i + 8 < 16: bread(i+8)
        a(f"s_lshl_b32 {s(t+2)}, {s(S_W)}, 11")
        a(f"s_add_u32 {s(t+2)}, {s(t+2)}, {SX}")
        a(f"v_lshlrev_b32 v7, 4, {v(V_L)}")
        a(f"v_add_u32 v5, {s(t+2)}, v7")
        a(f"s_xor_b32 {s(t+3)}, {s(S_W)}, 4")
        a(f"s_lshl_b32 {s(t+3)}, {s(t+3)}, 11")
        a(f"s_add_u32 {s(t+3)}, {s(t+3)}, {SX}")
        a(f"v_add_u32 v6, {s(t+3)}, v7")
        a(f"s_lshl_b32 {s(t+2)}, {s(S_W)}, 7")
        a(f"v_lshlrev_b32 v13, 2, {v(N32)}")
        a(f"v_add_u32 v14, {MX}, v13")
        a(f"v_add_u32 v15, {s(t+2)}, v14")
        a(f"s_lshl_b32 {s(t+3)}, {s(KT)}, 1")
        a(f"s_add_u32 {s(t+3)}, {s(t+3)}, {s(CH)}")
        a(f"s_lshl_b32 {s(t+3)}, {s(t+3)}, 10")
        a(f"s_add_u32 {s(t+3)}, {s(t+3)}, {PB}")
        a(f"v_add_u32 v56, {s(t+3)}, v7")
        a(f"v_add_u32 v57, {PB}, v7")
        a(f"v_add_u32 v58, {LS-MX}, v15")
        a(f"v_add_u32 v59, {LS-MX}, v14")
        self.stamp(28)
        a("s_barrier")
        SK = 48
        LC1 = a.newlabel('CH'); LC2 = a.newlabel('CH')
        a(f"s_cmp_eq_u32 {s(CH)}, 0")
        a(f"s_cbranch_scc0 {LC1}")
        a(f"ds_write_b128 v5, {v(SA+8,4)}"); a(f"ds_write_b128 v5, {v(SA+12,4)} offset:1024")
        a(f"s_branch {LC2}")
        a.label(LC1)
        a(f"ds_write_b128 v5, {v(SA,4)}"); a(f"ds_write_b128 v5, {v(SA+4,4)} offset:1024")
        for r in range(8): a(f"v_mov_b32 {v(SA+r)}, {v(SA+8+r)}")
        a.label(LC2)
        self.barrier()
        self.stamp(29)
        a(f"ds_read_b128 {v(SK,4)}, v6"); a(f"ds_read_b128 {v(SK+4,4)}, v6 offset:1024")
        a("s_waitcnt lgkmcnt(0)")
        for r in range(8): a(f"v_add_f32 {v(SK+r)}, {v(SK+r)}, {v(SA+r)}")
        M, Lsum, T1 = 10, 11, 12
        a(f"v_max3_f32 {v(M)}, {v(SK)}, {v(SK+1)}, {v(SK+2)}")
        a(f"v_max3_f32 {v(M)}, {v(M)}, {v(SK+3)}, {v(SK+4)}")
        a(f"v_max3_f32 {v(M)}, {v(M)}, {v(SK+5)}, {v(SK+6)}")
        a(f"v_max_f32 {v(M)}, {v(M)}, {v(SK+7)}")
        self.xhalf('v_max_f32', M, T1)
        a(f"ds_write_b32 v15, {v(M)}")
        self.barrier()
        self.stamp(30)
        for w in range(8):
            a(f"ds_read_b32 {v(32+w)}, v14 offset:{w*128}")
        a("s_waitcnt lgkmcnt(0)")
        a(f"v_max3_f32 {v(M)}, v32, v33, v34"); a(f"v_max3_f32 {v(M)}, {v(M)}, v35, v36"); a(f"v_max3_f32 {v(M)}, {v(M)}, v37, v38"); a(f"v_max_f32 {v(M)}, {v(M)}, v39")
        a(f"v_mul_f32 {v(M)}, {s(S_SC)}, {v(M)}")
        for r in range(8): a(f"v_fma_f32 {v(SK+r)}, {v(SK+r)}, {s(S_SC)}, -{v(M)}")
        for r in range(8): a(f"v_exp_f32 {v(SK+r)}, {v(SK+r)}")
        for q in range(4): a(f"v_cvt_pk_bf16_f32 {v(40+q)}, {v(SK+2*q)}, {v(SK+2*q+1)}")
        a(f"ds_write_b128 v56, {v(40,4)}")
        for q in range(4): a(f"v_add_f32 {v(SK+2*q)}, {v(SK+2*q)}, {v(SK+2*q+1)}")
        a(f"v_add_f32 {v(SK)}, {v(SK)}, {v(SK+2)}"); a(f"v_add_f32 {v(SK+4)}, {v(SK+4)}, {v(SK+6)}")
        a(f"v_add_f32 {v(Lsum)}, {v(SK)}, {v(SK+4)}")
        self.xhalf('v_add_f32', Lsum, T1)
        a(f"ds_write_b32 v58, {v(Lsum)}")
        self.barrier()
        self.stamp(6)
        PF, ACC2 = 64, 96
        for ks in range(8):
            a(f"ds_read_b128 {v(PF+4*ks,4)}, v57 offset:{ks*1024}")
        for w in range(8):
            a(f"ds_read_b32 {v(32+w)}, v59 offset:{w*128}")
        for ks in range(8):
            a(f"s_waitcnt lgkmcnt({min(15, 15-ks)})")
            for tt in range(2):
                cin = '0' if ks == 0 else v(ACC2+16*tt,16)
                a(f"v_mfma_f32_32x32x16_bf16 {v(ACC2+16*tt,16)}, {v(AFP+8*ks+4*tt,4)}, {v(PF+4*ks,4)}, {cin}")
        a(f"v_and_b32 v5, 15, {v(N32)}")
        a(f"s_and_b32 {s(t+2)}, {s(S_W)}, 1")
        a(f"s_lshl_b32 {s(t+2)}, {s(t+2)}, 3")
        a(f"v_xor_b32 v5, {s(t+2)}, v5")
        a(f"v_lshlrev_b32 v5, 4, v5")
        a(f"v_lshl_add_u32 v5, {v(HI)}, 3, v5")
        a(f"v_lshl_add_u32 v5, {v(N32)}, 10, v5")
        a(f"s_lshr_b32 {s(t+2)}, {s(S_W)}, 1")
        a(f"s_lshl_b32 {s(t+2)}, {s(t+2)}, 8")
        a(f"v_add_u32 v48, {s(t+2)}, v5")
        for x in range(1, 8): a(f"v_xor_b32 {v(48+x)}, {x<<4}, v48")
        for j in range(4):
            a(f"s_and_b32 {s(t+2)}, {s(S_W)}, 3")
            a(f"s_lshl_b32 {s(t+2)}, {s(t+2)}, 2")
            a(f"s_add_u32 {s(t+2)}, {s(t+2)}, {j}")
            a(f"s_lshl_b32 {s(t+2)}, {s(t+2)}, 4")
            a(f"v_lshlrev_b32 v5, 4, {v(V_L)}")
            a(f"v_xor_b32 v5, {s(t+2)}, v5")
            a(f"s_lshl_b32 {s(t+3)}, {s(S_W)}, 12")
            a(f"s_add_u32 {s(t+3)}, {s(t+3)}, {j*1024}")
            a(f"v_add_u32 {v(56+j)}, {s(t+3)}, v5")
        a("s_waitcnt lgkmcnt(0)")
        a("v_add_f32 v32, v32, v33"); a("v_add_f32 v34, v34, v35"); a("v_add_f32 v36, v36, v37"); a("v_add_f32 v38, v38, v39")
        a("v_add_f32 v32, v32, v34"); a("v_add_f32 v36, v36, v38")
        a(f"v_add_f32 {v(Lsum)}, v32, v36")
        a(f"v_lshlrev_b32 v6, 3, {v(N32)}")
        a(f"v_add_u32 v6, {MX}, v6")
        a(f"ds_write_b64 v6, {v(M,2)}")
        a(f"v_and_b32 v6, 3, {v(V_N16)}")
        a(f"s_lshl_b32 {s(t+2)}, {s(S_W)}, 5")
        a(f"s_add_u32 {s(t+2)}, {s(t+2)}, {MX}")
        a(f"v_lshlrev_b32 v7, 3, v6")
        a(f"v_add_u32 v7, {s(t+2)}, v7")
        a(f"v_lshlrev_b32 v6, 6, v6")
        a(f"v_lshl_add_u32 v6, {v(V_G4)}, 4, v6")
        a(f"s_lshl_b32 {s(t+2)}, {s(S_W)}, 8")
        a(f"s_lshl_b32 {s(t+3)}, {s(S_J)}, 11")
        a(f"s_add_u32 {s(t+2)}, {s(t+2)}, {s(t+3)}")
        a(f"s_add_u32 {s(t+2)}, {s(t+2)}, {BM}")
        a(f"s_lshl_b32 {s(t+3)}, {s(S_J)}, 15")
        a(f"s_lshl_b32 {s(t+4)}, {s(S_W)}, 12")
        a(f"s_add_u32 {s(t+3)}, {s(t+3)}, {s(t+4)}")
        a(f"s_add_u32 {s(t+3)}, {s(t+3)}, {BPART}")
        a(f"v_lshlrev_b32 v5, 4, {v(V_L)}")
        self.stamp(7)
        for tt in range(2):
            for q in range(4):
                r0 = ACC2 + 16*tt + 4*q
                a(f"v_cvt_pk_bf16_f32 {v(r0)}, {v(r0)}, {v(r0+1)}")
                a(f"v_cvt_pk_bf16_f32 {v(r0+1)}, {v(r0+2)}, {v(r0+3)}")
                a(f"ds_write_b64 {v(48+4*tt+q)}, {v(r0,2)}")
        a("s_waitcnt vmcnt(0)")
        self.barrier()
        OR = 32
        for j in range(4):
            a(f"ds_read_b128 {v(OR+4*j,4)}, {v(56+j)}")
        a(f"ds_read_b64 v[48:49], v7")
        a(f"v_mov_b32 v51, {s(S_T)}")
        a("s_waitcnt lgkmcnt(0)")
        for j in range(4):
            a(f"buffer_store_dwordx4 {v(OR+4*j,4)}, v5, {s(SRD_WS,4)}, {s(t+3)} offen offset:{j*1024} {SC}")
        self.checksum4(OR, 50, 10, SEL1, SEL2)
        self.set_exec(0x000f000f000f000f)
        a(f"buffer_store_dwordx4 v[48:51], v6, {s(SRD_WS,4)}, {s(t+2)} offen {SC}")
        self.set_exec(-1)
        self.stamp(8)
        WUVF = 164
        self.wo_dma_addr(192)
        DL, DM, DF, ACC = 64, 80, 84, 100
        a(f"s_lshl_b32 {s(t+4)}, {s(S_W)}, 19")
        a(f"s_lshl_b32 {s(t+2)}, {s(S_J)}, 8")
        a(f"s_add_u32 {s(t+4)}, {s(t+4)}, {s(t+2)}")
        a(f"s_add_u32 {s(t+4)}, {s(t+4)}, {BPART}")
        a(f"s_lshl_b32 {s(t+5)}, {s(S_W)}, 15")
        a(f"s_lshl_b32 {s(t+2)}, {s(S_J)}, 4")
        a(f"s_add_u32 {s(t+5)}, {s(t+5)}, {s(t+2)}")
        a(f"s_add_u32 {s(t+5)}, {s(t+5)}, {BM}")
        MLX = SCR + 8192
        a(f"v_and_b32 v6, 3, {v(V_N16)}")
        a(f"v_lshl_add_u32 v6, {v(V_G4)}, 2, v6")
        a(f"v_lshlrev_b32 v14, 2, v6")
        a(f"s_and_b32 {s(t+2)}, {s(S_W)}, 3")
        a(f"s_lshl_b32 {s(t+2)}, {s(t+2)}, 4")
        a(f"s_lshl_b32 {s(t+2)}, {s(t+2)}, 2")
        a(f"v_lshlrev_b32 v15, 4, {v(V_G4)}")
        a(f"v_add_u32 v15, {s(t+2)}, v15")
        a(f"v_add_u32 v13, 8, v15")
        a(f"v_lshlrev_b32 v7, 17, {v(V_G4)}")
        a(f"v_lshl_add_u32 v7, {v(V_N16)}, 4, v7")
        def ldp():
            for j in range(4):
                a(f"s_add_u32 {s(t+2)}, {s(t+4)}, {j*32768}")
                a(f"buffer_load_dwordx4 {v(DL+4*j,4)}, v7, {s(SRD_WS,4)}, {s(t+2)} offen {SC}")
        a(f"v_lshrrev_b32 v5, 2, {v(V_N16)}")
        a(f"v_bfe_u32 v6, {v(V_N16)}, 1, 1")
        a(f"s_lshl_b32 {s(t+2)}, {s(S_W)}, 1")
        a(f"v_or_b32 v6, {s(t+2)}, v6")
        a(f"v_lshlrev_b32 v8, 1, v5")
        a(f"v_xor_b32 v6, v6, v8")
        a(f"v_lshlrev_b32 v6, 4, v6")
        a(f"v_lshl_add_u32 v5, {v(V_G4)}, 3, v5")
        a(f"v_lshl_add_u32 v6, v5, 8, v6")
        a(f"v_and_b32 v5, 1, {v(V_N16)}")
        a(f"v_lshl_add_u32 v5, v5, 3, v6")
        a(f"v_add_u32 v5, {WUVIMG}, v5")
        a(f"v_xor_b32 v6, {8<<4}, v5")
        for ks in range(4):
            a(f"ds_read_b64_tr_b16 {v(WUVF+4*ks,2)}, v5 offset:{ks*8192}")
            a(f"ds_read_b64_tr_b16 {v(WUVF+4*ks+2,2)}, v6 offset:{ks*8192 + 1024}")
        a(f"s_lshl_b32 {s(t+6)}, {s(S_W)}, 7")
        a(f"s_add_u32 {s(t+6)}, {s(t+6)}, {MLX}")
        a(f"v_lshl_add_u32 v10, {v(V_L)}, 3, {s(t+6)}")
        a(f"s_lshr_b32 {s(t+6)}, {s(S_W)}, 2")
        a(f"s_lshl_b32 {s(t+6)}, {s(t+6)}, 9")
        a(f"s_add_u32 {s(t+6)}, {s(t+6)}, {MLX}")
        a(f"v_lshl_add_u32 v11, {v(V_L)}, 3, {s(t+6)}")
        a(f"v_lshlrev_b32 v9, 11, {v(V_L)}")
        def ldm():
            a(f"buffer_load_dwordx4 {v(DM,4)}, v9, {s(SRD_WS,4)}, {s(t+5)} offen {SC}")
        def ldboth():
            ldm()
            self.set_exec(-1)
            ldp()
            self.set_exec(0xffff)
        if self.c.e3ack: a("s_waitcnt vmcnt(0)")
        self.stamp(26)
        self.set_exec(0xffff)
        ldboth()
        def chkm():
            a(f"v_cmp_eq_u32 vcc, {s(S_T)}, {v(DM+3)}")
        if not self.c.e3scal:
            self.retry_vec(ldboth, chkm, "s_waitcnt vmcnt(4)", sleep=self.c.e3sleep, wait="s_waitcnt vmcnt(4)")
        else:
            LC = a.newlabel('EC'); LD = a.newlabel('ED'); LM = a.newlabel('EM'); LP = a.newlabel('EP'); LN = a.newlabel('EN')
            a(f"s_mov_b32 {s(S_CNT)}, 0")
            a.label(LC)
            a("s_waitcnt vmcnt(4)")
            chkm()
            a("s_cmp_eq_u64 vcc, exec")
            a(f"s_cbranch_scc1 {LD}")
            a(f"s_andn2_b32 s77, 0xffff, vcc_lo")
            a.label(LM)
            a(f"s_ff1_i32_b32 s76, s77")
            a(f"s_lshl_b32 s75, s76, 11")
            a(f"s_add_u32 s75, s75, {s(t+5)}")
            a.label(LP)
            a(f"s_add_u32 {s(S_CNT)}, {s(S_CNT)}, 1")
            a(f"s_cmp_ge_u32 {s(S_CNT)}, {self.c.spin_limit}")
            a(f"s_cbranch_scc1 {LD}")
            a(f"s_load_dwordx4 {s(S_PB,4)}, {s(P_WS,2)}, s75 glc")
            a("s_waitcnt lgkmcnt(0)")
            a(f"s_cmp_eq_u32 {s(S_PB+3)}, {s(S_T)}")
            a(f"s_cbranch_scc0 {LP}")
            a(f"s_bitset0_b32 s77, s76")
            a(f"s_cmp_lg_u32 s77, 0")
            a(f"s_cbranch_scc1 {LM}")
            ldboth()
            a(f"s_branch {LC}")
            a.label(LD)
        a(f"ds_write_b64 v10, {v(DM,2)}")
        self.set_exec(-1)
        self.stamp_cnt(27)
        self.stamp(14)
        self.wo_dma(SRD_WO, 192, WOIMG_Y, 4608)
        self.barrier()
        a(f"ds_read_b64 {v(DM,2)}, v11")
        a(f"ds_bpermute_b32 v12, v14, {v(DM+2)}")
        a("s_waitcnt lgkmcnt(0)")
        self.stamp(25)
        a(f"v_mov_b32 v8, {v(DM)}")
        self.inrow('v_max_f32', 8); self.xrow('v_max_f32', 8, 9)
        a(f"v_sub_f32 v8, {v(DM)}, v8")
        a(f"v_exp_f32 v8, v8")
        a(f"v_mul_f32 v10, v8, {v(DM+1)}")
        self.inrow('v_add_f32', 10); self.xrow('v_add_f32', 10, 9)
        a(f"v_rcp_f32 v10, v10")
        a(f"v_mul_f32 v8, v8, v10")
        a(f"v_mov_b32_dpp v9, v8 row_shl:1 row_mask:0xf bank_mask:0xf")
        a(f"v_cvt_pk_bf16_f32 v8, v8, v9")
        a(f"ds_bpermute_b32 v52, v15, v8")
        a(f"ds_bpermute_b32 v53, v13, v8")
        a(f"s_lshl_b32 {s(t+2)}, {s(S_W)}, 9")
        a(f"s_add_u32 {s(t+2)}, {s(t+2)}, {CW}")
        a(f"v_lshlrev_b32 v5, 5, {v(V_N16)}")
        a(f"v_add_u32 v5, {s(t+2)}, v5")
        a(f"v_lshlrev_b32 v6, 11, {v(V_RS)}")
        a(f"v_lshl_add_u32 v6, {v(V_G4)}, 4, v6")
        a(f"s_lshl_b32 {s(t+2)}, {s(S_W)}, 6")
        a(f"s_add_u32 {s(t+2)}, {s(t+2)}, {CW}")
        a(f"v_add_u32 v6, {s(t+2)}, v6")
        a("s_waitcnt lgkmcnt(0)")
        def chkp():
            self.checksum4(DL, 11, 32, SEL1, SEL2)
            a(f"v_cmp_eq_u32 vcc, v11, v12")
        self.retry_vec(ldp, chkp, "s_waitcnt vmcnt(5)", sleep=1)
        self.stamp(9)
        self.half_perm(DL, DF)
        self.half_mfma(ACC, 52, DF, True)
        a(f"v_lshlrev_b32 v7, 8, {v(V_RS)}")
        a(f"v_lshl_add_u32 v7, {v(V_G4)}, 3, v7")
        a(f"s_lshl_b32 {s(t+2)}, {s(S_W)}, 5")
        a(f"s_add_u32 {s(t+2)}, {s(t+2)}, {XL2}")
        a(f"v_add_u32 v7, {s(t+2)}, v7")
        self.afrag_addr(14, XL2)
        a(f"v_and_b32 v15, 1, {v(V_N16)}")
        a(f"v_lshlrev_b32 v15, 10, v15")
        a(f"v_lshrrev_b32 v13, 1, {v(V_N16)}")
        a(f"v_lshl_add_u32 v15, v13, 4, v15")
        a(f"s_add_u32 {s(t+3)}, {s(S_J)}, 128")
        a(f"s_lshl_b32 {s(t+3)}, {s(t+3)}, 11")
        a(f"s_lshl_b32 {s(t+2)}, {s(S_W)}, 7")
        a(f"s_add_u32 {s(t+3)}, {s(t+3)}, {s(t+2)}")
        a(f"s_add_u32 {s(t+3)}, {s(t+3)}, {OP}")
        a(f"v_mov_b32 v10, 0"); a(f"v_mov_b32 v11, 0.25")
        a(f"v_cndmask_b32 v10, v10, v11, {s(SEL2,2)}")
        a(f"v_mov_b32 v11, {s(S_T)}")
        self.set_exec(0xffff)
        self.write_acc_rows(ACC, 5)
        self.set_exec(-1)
        self.barrier()
        for q in range(4):
            a(f"ds_read_b128 {v(16+4*q,4)}, v6 offset:{q*512}")
        a("s_waitcnt lgkmcnt(0)")
        for j in range(4):
            a(f"v_add_f32 {v(16+j)}, {v(16+j)}, {v(20+j)}")
            a(f"v_add_f32 {v(24+j)}, {v(24+j)}, {v(28+j)}")
        for j in range(4):
            a(f"v_add_f32 {v(16+j)}, {v(16+j)}, {v(24+j)}")
        a("v_cvt_pk_bf16_f32 v52, v16, v17"); a("v_cvt_pk_bf16_f32 v53, v18, v19")
        self.set_exec(0x0011001100110011)
        a("ds_write_b64 v7, v[52:53]")
        self.set_exec(-1)
        self.barrier()
        self.afrag_reads(16, 14)
        a("s_waitcnt lgkmcnt(0)")
        self.chain4(64, 16, WUVF)
        self.pack_pair(64, 8, 9, 12, 13)
        self.set_exec(0xffff)
        a(f"buffer_store_dwordx4 v[8:11], v15, {s(SRD_WS,4)}, {s(t+3)} offen {SC}")
        self.set_exec(-1)
        self.stamp(10)
        a("s_waitcnt vmcnt(1)")
        a("s_barrier")
        self.p5(1, WOIMG_Y, 4608, 11, 12)
        self.final_reduce(1)

    def p5(self, branch, wbase, RS, st_x, st_pub):
        a = self.a; t = ST
        WF, WFX, AF, G = 132, 148, 16, 48
        a(f"v_lshrrev_b32 v14, 2, {v(V_N16)}")
        a(f"v_lshlrev_b32 v14, 11, v14")
        a(f"v_and_b32 v15, 1, {v(V_N16)}")
        a(f"v_lshl_add_u32 v14, v15, 10, v14")
        a(f"v_lshl_add_u32 v14, {v(V_G4)}, 5, v14")
        a(f"v_and_b32 v13, 2, {v(V_N16)}")
        a(f"v_lshl_add_u32 v14, v13, 3, v14")
        self.hshift5(t+5)
        a(f"s_add_u32 {s(t+4)}, {s(t+5)}, {branch*32}")
        a(f"s_lshl_b32 {s(t+4)}, {s(t+4)}, 13")
        a(f"s_lshl_b32 {s(t+2)}, {s(S_W)}, 7")
        a(f"s_add_u32 {s(t+4)}, {s(t+4)}, {s(t+2)}")
        a(f"s_add_u32 {s(t+4)}, {s(t+4)}, {OP}")
        G2 = 52
        def ldt(st=0):
            a(f"buffer_load_dwordx4 {v(G2 if st else G,4)}, v14, {s(SRD_WS,4)}, {s(t+4)} offen {SC}")
        def chkt(st=0):
            a(f"v_cmp_eq_u32 vcc, {s(S_T)}, {v((G2 if st else G)+3)}")
        G3 = 56
        def donet(st):
            for r in range(3): a(f"v_mov_b32 {v(G3+r)}, {v((G2 if st else G)+r)}")
        ldt()
        self.wo_frags(WF, WFX, wbase, RS)
        a(f"v_lshlrev_b32 v7, 8, v15")
        a(f"v_lshl_add_u32 v7, {v(V_G4)}, 3, v7")
        a(f"v_lshl_add_u32 v7, v13, 1, v7")
        a(f"s_lshl_b32 {s(t+2)}, {s(S_W)}, 5")
        a(f"s_add_u32 {s(t+2)}, {s(t+2)}, {XL}")
        a(f"v_add_u32 v7, {s(t+2)}, v7")
        self.afrag_addr(6, XL)
        a(f"v_mul_u32_u24 v15, {36*4096}, v15")
        a(f"v_lshrrev_b32 v13, 1, {v(V_N16)}")
        a(f"v_lshl_add_u32 v15, v13, 4, v15")
        a(f"s_mul_i32 {s(t+6)}, {s(S_RQ)}, {9*4096}")
        a(f"s_lshl_b32 {s(t+2)}, {s(t+5)}, 7")
        a(f"s_add_u32 {s(t+6)}, {s(t+6)}, {s(t+2)}")
        a(f"s_add_u32 {s(t+6)}, {s(t+6)}, {OUTP + branch*72*4096}")
        a(f"s_add_u32 {s(t+7)}, {s(t+6)}, {8*4096}")
        a(f"s_lshl_b32 {s(t+2)}, {s(S_W)}, 12")
        a(f"s_add_u32 {s(t+6)}, {s(t+6)}, {s(t+2)}")
        a(f"v_mov_b32 v105, {s(S_T)}"); a(f"v_mov_b32 v107, {s(S_T)}")
        a(f"v_mov_b32 v109, {s(S_T)}"); a(f"v_mov_b32 v111, {s(S_T)}")
        if self.c.pipep5:
            self.poll_pipe(ldt, chkt, donet, 1, self.c.stagp5)
        else:
            self.retry_vec(ldt, chkt, "s_waitcnt vmcnt(0)", sleep=self.c.sleep5)
        if self.c.pipep5: G = G3
        self.stamp(24)
        self.stamp_cnt(21)
        if self.c.dbg:
            a("s_waitcnt lgkmcnt(0)")
            a(f"s_lshl_b32 {s(t+8)}, s2, 3")
            a(f"s_add_u32 {s(t+8)}, {s(t+8)}, {s(S_W)}")
            a(f"s_lshl_b32 {s(t+8)}, {s(t+8)}, 12")
            a(f"s_add_u32 {s(t+8)}, {s(t+8)}, 0x1000000")
            a(f"v_lshlrev_b32 v12, 6, {v(V_L)}")
            for q in range(4):
                a(f"buffer_store_dwordx4 {v(WF+4*q,4)}, v12, {s(SRD_WS,4)}, {s(t+8)} offen offset:{q*16}")
        a(f"v_mov_b32_dpp v9, {v(G+2)} quad_perm:[2,3,0,1] row_mask:0xf bank_mask:0xf")
        a(f"v_cndmask_b32 v8, {v(G+2)}, v9, {s(SEL2,2)}")
        a(f"v_cndmask_b32 v9, v9, {v(G+2)}, {s(SEL2,2)}")
        a(f"v_max_f32_dpp v10, v8, v8 row_ror:4 row_mask:0xf bank_mask:0xf")
        a(f"v_max_f32_dpp v10, v10, v10 row_ror:8 row_mask:0xf bank_mask:0xf")
        a(f"v_sub_f32 v8, v8, v10")
        a(f"v_exp_f32 v8, v8")
        a(f"v_mul_f32 v9, v8, v9")
        a(f"v_mul_f32 v10, v8, {v(G)}")
        a(f"v_mul_f32 v11, v8, {v(G+1)}")
        for r in (4, 8):
            for x in (9, 10, 11):
                a(f"v_add_f32_dpp {v(x)}, {v(x)}, {v(x)} row_ror:{r} row_mask:0xf bank_mask:0xf")
        a("v_rcp_f32 v9, v9")
        a("v_mul_f32 v10, v10, v9"); a("v_mul_f32 v11, v11, v9")
        a("v_cvt_pk_bf16_f32 v10, v10, v11")
        self.set_exec(0x000f000f000f000f)
        a("ds_write_b32 v7, v10")
        self.set_exec(-1)
        self.barrier()
        self.stamp(st_x)
        self.afrag_reads(AF, 6)
        a("s_waitcnt lgkmcnt(0)")
        self.chain4(64, AF, WF)
        LO = a.newlabel('TO')
        a(f"s_cmp_lg_u32 {s(S_W)}, 0")
        a(f"s_cbranch_scc1 {LO}")
        self.chain4(68, AF, WFX)
        self.pack_pair(68, 108, 110, 12, 13)
        self.set_exec(0xffff)
        a(f"buffer_store_dwordx4 v[108:111], v15, {s(SRD_WS,4)}, {s(t+7)} offen {SC}")
        self.set_exec(-1)
        a.label(LO)
        self.pack_pair(64, 104, 106, 12, 13)
        self.set_exec(0xffff)
        a(f"buffer_store_dwordx4 v[104:107], v15, {s(SRD_WS,4)}, {s(t+6)} offen {SC}")
        self.set_exec(-1)
        self.stamp(st_pub)

    def build(self):
        a = self.a; c = self.c
        self.prologue()
        self.p1_loads()
        self.srds_rest()
        a(f"s_cmp_eq_u32 {s(S_TYPE)}, 0")
        a("s_cbranch_scc0 L_Y0")
        self.x_main()
        a.label("L_Y0")
        self.y_main()
        a.label("L_END")
        self.stamp_dump()
        a.label("L_EXIT")
        a("s_endpgm")
        body = a.finalize()
        hdr = open(os.path.join(os.path.dirname(os.path.abspath(__file__)), 'header.txt')).read()
        out = hdr
        out += f"; @launch grid=(256,1,1) block=(512,1,1) lds={LDS_BYTES}\n"
        out += f""".amdgcn_target "amdgcn-amd-amdhsa--gfx950"
.text
.globl {NAME}_kernel
.p2align 8
.type {NAME}_kernel,@function
{NAME}_kernel:
"""
        out += body
        out += f""".section .rodata,"a"
.p2align 6
.amdhsa_kernel {NAME}_kernel
  .amdhsa_next_free_vgpr 256
  .amdhsa_next_free_sgpr 102
  .amdhsa_accum_offset 256
  .amdhsa_group_segment_fixed_size 0
  .amdhsa_kernarg_size 112
  .amdhsa_user_sgpr_count 2
  .amdhsa_user_sgpr_kernarg_segment_ptr 1
  .amdhsa_system_sgpr_workgroup_id_x 1
.end_amdhsa_kernel
"""
        return out

if __name__ == '__main__':
    cfg = Cfg()
    outp = f"cdna_kernels/{NAME}.s"
    for arg in sys.argv[1:]:
        if arg.startswith('-o='): outp = arg[3:]
        elif '=' in arg:
            k, val = arg.split('=')
            setattr(cfg, k, val.replace('+', ' ') if isinstance(getattr(cfg, k), str) else type(getattr(cfg, k))(int(val)))
    g = Gen(cfg)
    txt = g.build()
    open(outp, 'w').write(txt)
    print("wrote", outp, "lines", txt.count('\n'), "nops inserted", g.a.ninserted)
```

```python
import sys, os, struct
sys.path.insert(0, os.path.dirname(os.path.abspath(__file__)))
from asmlib import Asm, v, s

NAME = "concat_heads__sliding_block_cached__compressed_kv_cla__decode"

class Cfg:
    nt_stream = True
    nt_w = True
    n1_ckv = 4
    n1_k = 0
    n2_k = 0
    n3_k = 0
    spin_limit = 300000
    sleep5 = 1
    e3scal = 0
    wuv_late = 0
    e3wo = 0
    e3early = 1
    e3il = 1
    warm = 0
    e3mask = 0
    wo_when = 0
    xwin = 0
    xwinv = 1
    ntwo = 1
    ntuk = 1
    kx = 4
    qabs_first = ''
    touch = 0
    pipe5 = 1
    stag5 = 10
    pipep5 = 0
    stagp5 = 8
    ldsdbg = 0
    k_after = 4
    early_qa = 1
    n4_k = 0
    e3ack = 1
    e3sleep = 4
    hs = 6
    hsy = 4
    wuk_late = 0
    hs5 = 4
    ackdbg = 0
    xsplit = 0
    dbg = 0
    stamps = False

Q1   = 0x000000
QABS = 0x080000
QM   = 0x090000
EPOCH= 0x0A0000
DONE = 0x0A1000
OP   = 0x100000
OM   = 0x180000
BM   = 0x1C0000
BPART= 0x200000
OUTP = 0x600000
STMP = 0x900000
WS_SIZE = 268435456

IMG = 0
SCR = 131072
R1 = SCR; R2 = SCR + 8192; QL = SCR + 12288; QAL = SCR + 12800
QIMG = SCR
SX = SCR; MX = SCR + 16384; LS = SCR + 17408; PB = SCR + 18432
OW = SCR; ML = SCR + 8192
CW = SCR; XL2 = SCR + 4096
XL = SCR + 12288 + 1024
WUVIMG = IMG + 32768; WOIMG_Y = IMG + 65536
LDS_BYTES = 163840

S_W = 3; S_J = 4; S_TYPE = 5; S_H = 6; S_RQ = 7; S_T = 8
S_B = 9; S_S = 10; S_G = 11
S_PLO = 12; S_PHI = 13; S_SC = 14; S_BASE = 15
P_AX, P_AK, P_AV, P_AWQ, P_AWO, P_BX, P_CKV, P_BWQ = 16, 18, 20, 22, 24, 26, 28, 30
P_WUK, P_WUV, P_BWO, P_OUT = 32, 34, 36, 38
P_DBG, P_WS0 = 40, 42
SRD_X = 44; SRD_W = 48; SRD_ST = 52; SRD_V = 56; SRD_WO = 60; SRD_U = 64
SRD_WS = 80; SRD_OUT = 84; P_WS = 88; SEL1 = 0; SEL2 = 90
ST = 92
S_CNT = 5
S_PB = 16
V_L, V_G4, V_N16, V_RS = 1, 2, 3, 4
SC = "sc0 sc1"
SCALE_LOG2E = 0.08838834764831845 * 1.4426950408889634
TAGINC = 0x9e3779b9
def f32hex(x): return '0x%08x' % struct.unpack('<I', struct.pack('<f', x))[0]

class Gen:
    def __init__(self, cfg):
        self.c = cfg
        self.a = Asm()

    def srd(self, dst, ptr, size):
        a = self.a
        a(f"s_mov_b32 {s(dst)}, {s(ptr)}")
        a(f"s_and_b32 {s(dst+1)}, {s(ptr+1)}, 0xffff")
        a(f"s_mov_b32 {s(dst+2)}, {size}")
        a(f"s_mov_b32 {s(dst+3)}, 0x20000")
    def srd_sel(self, dst, ptrX, ptrY, sizeX, sizeY):
        a = self.a
        a(f"s_cmp_eq_u32 {s(S_TYPE)}, 0")
        a(f"s_cselect_b32 {s(dst)}, {s(ptrX)}, {s(ptrY)}")
        a(f"s_cselect_b32 {s(dst+1)}, {s(ptrX+1)}, {s(ptrY+1)}")
        if sizeX == sizeY:
            a(f"s_mov_b32 {s(dst+2)}, {sizeX}")
        else:
            a(f"s_mov_b32 {s(dst+2)}, {sizeY}")
            a(f"s_cselect_b32 {s(dst+2)}, {sizeX}, {s(dst+2)}")
        a(f"s_and_b32 {s(dst+1)}, {s(dst+1)}, 0xffff")
        a(f"s_mov_b32 {s(dst+3)}, 0x20000")
    def hshift(self, dst):
        self.a(f"s_add_u32 {s(dst)}, {s(S_H)}, s79")
        self.a(f"s_and_b32 {s(dst)}, {s(dst)}, 31")
    def hshift5(self, dst):
        self.a(f"s_add_u32 {s(dst)}, {s(S_H)}, {self.c.hs5}")
        self.a(f"s_and_b32 {s(dst)}, {s(dst)}, 31")
    def set_exec(self, mask):
        a = self.a
        if mask == -1:
            a("s_mov_b64 exec, -1"); return
        a(f"s_mov_b32 exec_lo, 0x{mask & 0xffffffff:08x}")
        a(f"s_mov_b32 exec_hi, 0x{mask >> 32:08x}")
    def ntw(self): return ' nt' if self.c.nt_w else ''
    def nts(self): return ' nt' if self.c.nt_stream else ''

    def stamp(self, idx):
        if not self.c.stamps: return
        a = self.a
        a(f"s_memrealtime vcc")
        a(f"s_waitcnt lgkmcnt(0)")
        a(f"v_writelane_b32 v0, vcc_lo, {idx}")
    def stamp_cnt(self, idx):
        if not self.c.stamps: return
        self.a(f"v_writelane_b32 v0, {s(S_CNT)}, {idx}")
    def stamp_dump(self):
        if not self.c.stamps: return
        a = self.a
        a(f"s_lshl_b32 s98, s2, 3")
        a(f"s_add_u32 s98, s98, {s(S_W)}")
        a(f"s_lshl_b32 s98, s98, 7")
        a(f"s_add_u32 s98, s98, {STMP}")
        a(f"v_lshlrev_b32 v58, 2, {v(V_L)}")
        self.set_exec(0xffffffff)
        a(f"buffer_store_dword v0, v58, {s(SRD_WS,4)}, s98 offen")
        self.set_exec(-1)
    def tid_shl(self, dst, sh, add=0, st=None):
        a = self.a
        st = ST + 9 if st is None else st
        a(f"s_lshl_b32 {s(st)}, {s(S_W)}, {6+sh}")
        if add: a(f"s_add_u32 {s(st)}, {s(st)}, {add}")
        a(f"v_lshl_add_u32 {v(dst)}, {v(V_L)}, {sh}, {s(st)}")

    def half_perm(self, L, F):
        a = self.a
        for i in range(4):
            for jj in range(2):
                lo = L + (2*jj)*4 + i; hi = L + (2*jj+1)*4 + i
                a(f"v_perm_b32 {v(F + (2*i)*2 + jj)}, {v(hi)}, {v(lo)}, {s(S_PLO)}")
                a(f"v_perm_b32 {v(F + (2*i+1)*2 + jj)}, {v(hi)}, {v(lo)}, {s(S_PHI)}")
    def full_perm(self, L, F):
        a = self.a
        for i in range(4):
            for jj in range(4):
                lo = L + (2*jj)*4 + i; hi = L + (2*jj+1)*4 + i
                a(f"v_perm_b32 {v(F + (2*i)*4 + jj)}, {v(hi)}, {v(lo)}, {s(S_PLO)}")
                a(f"v_perm_b32 {v(F + (2*i+1)*4 + jj)}, {v(hi)}, {v(lo)}, {s(S_PHI)}")
    def half_mfma(self, ACC, AF, F, first):
        a = self.a
        for c in range(8):
            cin = '0' if first else v(ACC + 4*c, 4)
            a(f"v_mfma_f32_16x16x16_bf16 {v(ACC+4*c,4)}, {v(AF,2)}, {v(F+2*c,2)}, {cin}")
    def xrow(self, op, x, t):
        a = self.a
        a(f"v_mov_b32 {v(t)}, {v(x)}")
        a(f"v_permlane16_swap_b32 {v(x)}, {v(t)}")
        a(f"{op} {v(x)}, {v(x)}, {v(t)}")
        a(f"v_mov_b32 {v(t)}, {v(x)}")
        a(f"v_permlane32_swap_b32 {v(x)}, {v(t)}")
        a(f"{op} {v(x)}, {v(x)}, {v(t)}")
    def xrow_multi(self, op, xs, ts):
        a = self.a
        for sw in ('v_permlane16_swap_b32', 'v_permlane32_swap_b32'):
            for x, t in zip(xs, ts): a(f"v_mov_b32 {v(t)}, {v(x)}")
            for x, t in zip(xs, ts): a(f"{sw} {v(x)}, {v(t)}")
            for x, t in zip(xs, ts): a(f"{op} {v(x)}, {v(x)}, {v(t)}")
    def xhalf(self, op, x, t):
        a = self.a
        a(f"v_mov_b32 {v(t)}, {v(x)}")
        a(f"v_permlane32_swap_b32 {v(x)}, {v(t)}")
        a(f"{op} {v(x)}, {v(x)}, {v(t)}")
    def inrow(self, op, x):
        a = self.a
        for r in (8, 4, 2, 1):
            a(f"{op}_dpp {v(x)}, {v(x)}, {v(x)} row_ror:{r} row_mask:0xf bank_mask:0xf")
    def barrier(self):
        self.a("s_waitcnt lgkmcnt(0)")
        self.a("s_barrier")

    def spin_scalar(self, load_fn, ok_fn, sleep=0):
        a = self.a
        L = a.newlabel('SP'); D = a.newlabel('SD')
        a(f"s_mov_b32 {s(S_CNT)}, 0")
        a.label(L)
        load_fn()
        a("s_waitcnt lgkmcnt(0)")
        ok_fn()
        a(f"s_cbranch_scc1 {D}")
        if sleep: a(f"s_sleep {sleep}")
        a(f"s_add_u32 {s(S_CNT)}, {s(S_CNT)}, 1")
        a(f"s_cmp_lt_u32 {s(S_CNT)}, {self.c.spin_limit}")
        a(f"s_cbranch_scc1 {L}")
        a.label(D)

    def s_alltags(self, regs, t0, t1):
        a = self.a
        a(f"s_xor_b32 {s(t0)}, {s(regs[0])}, {s(S_T)}")
        for r in regs[1:]:
            a(f"s_xor_b32 {s(t1)}, {s(r)}, {s(S_T)}")
            a(f"s_or_b32 {s(t0)}, {s(t0)}, {s(t1)}")
        a(f"s_cmp_eq_u32 {s(t0)}, 0")

    def retry_vec(self, load_fn, check_fn, first_wait, sleep=0, wait="s_waitcnt vmcnt(0)"):
        a = self.a
        C = a.newlabel('RC'); D = a.newlabel('RD')
        a(f"s_mov_b32 {s(S_CNT)}, 0")
        a(first_wait)
        a.label(C)
        check_fn()
        a("s_cmp_eq_u64 vcc, exec")
        a(f"s_cbranch_scc1 {D}")
        a(f"s_add_u32 {s(S_CNT)}, {s(S_CNT)}, 1")
        a(f"s_cmp_ge_u32 {s(S_CNT)}, {self.c.spin_limit}")
        a(f"s_cbranch_scc1 {D}")
        if sleep: a(f"s_sleep {sleep}")
        load_fn()
        a(wait)
        a(f"s_branch {C}")
        a.label(D)

    def poll_pipe(self, load_fn, check_fn, done_fn, nloads, stagger, first_issued=True):
        a = self.a
        L0 = a.newlabel('PP'); D0 = a.newlabel('PD'); D1 = a.newlabel('PD'); E = a.newlabel('PE')
        a(f"s_mov_b32 {s(S_CNT)}, 0")
        if stagger: a(f"s_sleep {stagger}")
        load_fn(1)
        a.label(L0)
        for k, D in ((0, D0), (1, D1)):
            a(f"s_waitcnt vmcnt({nloads})")
            check_fn(k)
            a("s_cmp_eq_u64 vcc, exec")
            a(f"s_cbranch_scc1 {D}")
            load_fn(k)
        a(f"s_add_u32 {s(S_CNT)}, {s(S_CNT)}, 1")
        a(f"s_cmp_lt_u32 {s(S_CNT)}, {self.c.spin_limit}")
        a(f"s_cbranch_scc1 {L0}")
        a("s_waitcnt vmcnt(0)")
        a.label(D0)
        done_fn(0)
        a(f"s_branch {E}")
        a.label(D1)
        done_fn(1)
        a.label(E)

    def acc_rows_addr(self, dst, base):
        a = self.a
        a(f"v_and_b32 {v(dst)}, 1, {v(V_G4)}")
        a(f"v_lshlrev_b32 {v(dst)}, 9, {v(dst)}")
        a(f"v_lshl_add_u32 {v(dst)}, {v(V_N16)}, 5, {v(dst)}")
        a(f"s_lshl_b32 {s(ST)}, {s(S_W)}, 10")
        a(f"s_add_u32 {s(ST)}, {s(ST)}, {base}")
        a(f"v_add_u32 {v(dst)}, {s(ST)}, {v(dst)}")
    def write_acc_rows(self, ACC, addr):
        for c in range(0, 8, 2):
            self.a(f"ds_write2_b32 {v(addr)}, {v(ACC+4*c)}, {v(ACC+4*c+4)} offset0:{c} offset1:{c+1}")

    def checksum4(self, Q, X, t, SEL1, SEL2):
        a = self.a
        for j in range(4):
            q = Q + 4*j
            a(f"v_bitop3_b32 {v(t+j)}, {v(q)}, {v(q+1)}, {v(q+2)} bitop3:0x96")
        for j in range(4):
            a(f"v_xor_b32 {v(t+j)}, {v(t+j)}, {v(Q+4*j+3)}")
        for r in (8, 4, 2, 1):
            for j in range(4):
                a(f"v_xor_b32_dpp {v(t+j)}, {v(t+j)}, {v(t+j)} row_ror:{r} row_mask:0xf bank_mask:0xf")
        a(f"v_cndmask_b32 {v(t)}, {v(t)}, {v(t+1)}, {s(SEL1,2)}")
        a(f"v_cndmask_b32 {v(t+2)}, {v(t+2)}, {v(t+3)}, {s(SEL1,2)}")
        a(f"v_cndmask_b32 {v(X)}, {v(t)}, {v(t+2)}, {s(SEL2,2)}")

    def prologue(self):
        a = self.a
        if self.c.stamps: a("s_memrealtime s[100:101]")
        a("s_cmp_ge_u32 s2, 256")
        a("s_cbranch_scc1 L_EXIT")
        a("s_load_dwordx16 s[16:31], s[0:1], 0")
        a("s_load_dwordx8 s[32:39], s[0:1], 64")
        a("s_load_dwordx4 s[40:43], s[0:1], 96")
        a("v_lshrrev_b32 v5, 6, v0")
        a(f"v_and_b32 {v(V_L)}, 63, v0")
        a(f"v_readfirstlane_b32 {s(S_W)}, v5")
        a(f"v_lshrrev_b32 {v(V_G4)}, 4, {v(V_L)}")
        a(f"v_and_b32 {v(V_N16)}, 15, {v(V_L)}")
        a(f"v_bfe_u32 {v(V_RS)}, {v(V_N16)}, 2, 1")
        a(f"s_and_b32 {s(ST+2)}, s2, 7")
        a(f"s_lshr_b32 {s(ST+3)}, s2, 3")
        if self.c.xsplit:
            a(f"s_lshr_b32 {s(S_TYPE)}, {s(ST+2)}, 2")
            a(f"s_and_b32 {s(ST+2)}, {s(ST+2)}, 3")
            a(f"s_lshl_b32 {s(S_J)}, {s(ST+2)}, 5")
            a(f"s_add_u32 {s(S_J)}, {s(S_J)}, {s(ST+3)}")
        else:
            a(f"s_and_b32 {s(S_TYPE)}, {s(ST+3)}, 1")
            a(f"s_lshr_b32 {s(ST+3)}, {s(ST+3)}, 1")
            a(f"s_lshl_b32 {s(S_J)}, {s(ST+2)}, 4")
            a(f"s_add_u32 {s(S_J)}, {s(S_J)}, {s(ST+3)}")
        a(f"s_lshr_b32 {s(S_H)}, {s(S_J)}, 2")
        a(f"s_and_b32 {s(S_RQ)}, {s(S_J)}, 3")
        a(f"s_cmp_eq_u32 {s(S_TYPE)}, 0")
        a(f"s_cselect_b32 s79, {self.c.hs}, {self.c.hsy}")
        a(f"s_mov_b32 {s(S_PLO)}, 0x05040100")
        a(f"s_mov_b32 {s(S_PHI)}, 0x07060302")
        a(f"s_mov_b32 {s(S_SC)}, {f32hex(SCALE_LOG2E)}")
        a(f"v_lshlrev_b32 v5, 15, {v(V_G4)}")
        a(f"v_lshl_add_u32 v5, {v(V_N16)}, 4, v5")
        a(f"v_mul_u32_u24 v6, 1152, {v(V_RS)}")
        a(f"v_lshl_add_u32 v6, {v(V_G4)}, 3, v6")
        a("s_waitcnt lgkmcnt(0)")
        a(f"s_load_dword {s(S_T)}, {s(P_WS0,2)}, {EPOCH}")
        a(f"s_mov_b64 {s(P_WS,2)}, {s(P_WS0,2)}")
        a(f"s_mov_b32 {s(SEL1)}, 0xaaaaaaaa"); a(f"s_mov_b32 {s(SEL1+1)}, 0xaaaaaaaa")
        a(f"s_mov_b32 {s(SEL2)}, 0xcccccccc"); a(f"s_mov_b32 {s(SEL2+1)}, 0xcccccccc")
        self.srd_sel(SRD_X, P_BX, P_AX, 2304, 2304)
        self.srd_sel(SRD_W, P_BWQ, P_AWQ, 4718592, 4718592)
        if self.c.stamps:
            a("v_mov_b32 v0, 0")
            a("v_writelane_b32 v0, s100, 31")
        self.stamp(0)

    def srds_rest(self):
        self.srd(SRD_WS, P_WS0, WS_SIZE)
        self.srd_sel(SRD_ST, P_AK, P_CKV, 67108864, 16777216)
        self.srd_sel(SRD_V, P_AV, P_WUV, 67108864, 4194304)
        self.srd(SRD_U, P_WUK, 4194304)
        self.srd_sel(SRD_WO, P_AWO, P_BWO, 4718592, 4718592)
        self.srd(SRD_OUT, P_OUT, 4608)

    XF, XF2, L1, L2, F1, ACC1 = 16, 18, 20, 36, 52, 68
    def p1_loads(self):
        a = self.a
        V_WQ, V_X = 5, 6
        def loads(u_const, XFr, Lr):
            t = ST
            a(f"s_mul_i32 {s(t)}, {s(S_RQ)}, 144")
            if u_const is not None:
                a(f"s_add_u32 {s(t)}, {s(t)}, {16*u_const}")
            else:
                a(f"s_lshl_b32 {s(t+1)}, {s(S_W)}, 4")
                a(f"s_add_u32 {s(t)}, {s(t)}, {s(t+1)}")
            a(f"s_lshl_b32 {s(t+1)}, {s(t)}, 1")
            a(f"buffer_load_dwordx2 {v(XFr,2)}, {v(V_X)}, {s(SRD_X,4)}, {s(t+1)} offen")
            a(f"s_lshl_b32 {s(t)}, {s(t)}, 13")
            self.hshift(t+1)
            a(f"s_lshl_b32 {s(t+1)}, {s(t+1)}, 8")
            a(f"s_add_u32 {s(t)}, {s(t)}, {s(t+1)}")
            for jr in range(4):
                a(f"buffer_load_dwordx4 {v(Lr+4*jr,4)}, {v(V_WQ)}, {s(SRD_W,4)}, {s(t)} offen{self.ntw()}")
                if jr < 3: a(f"s_add_u32 {s(t)}, {s(t)}, 8192")
        LX = a.newlabel('LX')
        a(f"s_cmp_lg_u32 {s(S_W)}, 0")
        a(f"s_cbranch_scc1 {LX}")
        loads(8, self.XF2, self.L2)
        a.label(LX)
        loads(None, self.XF, self.L1)

    def p1_compute(self, branch, nyoung, hook=None):
        a = self.a
        self.acc_rows_addr(7, R1)
        self.tid_shl(5, 2, R1)
        self.tid_shl(6, 3)
        a(f"s_lshl_b32 {s(ST+1)}, s79, 2")
        a(f"s_add_u32 {s(ST+1)}, {s(ST+1)}, {s(S_J)}")
        a(f"s_and_b32 {s(ST+1)}, {s(ST+1)}, 127")
        a(f"s_add_u32 {s(ST+1)}, {s(ST+1)}, {branch*128}")
        a(f"s_lshl_b32 {s(ST+1)}, {s(ST+1)}, 11")
        if Q1: a(f"s_add_u32 {s(ST+1)}, {s(ST+1)}, {Q1}")
        a(f"s_waitcnt vmcnt({nyoung})")
        self.stamp(1)
        if hook is not None:
            a("v_mov_b32 v250, v7"); a(f"s_mov_b32 s78, {s(ST+1)}")
            hook()
            a("v_mov_b32 v7, v250"); a(f"s_mov_b32 {s(ST+1)}, s78")
        self.half_perm(self.L1, self.F1)
        self.half_mfma(self.ACC1, self.XF, self.F1, True)
        LY = a.newlabel('LY')
        a(f"s_cmp_lg_u32 {s(S_W)}, 0")
        a(f"s_cbranch_scc1 {LY}")
        self.half_perm(self.L2, self.L1)
        self.half_mfma(self.ACC1, self.XF2, self.L1, False)
        a.label(LY)
        self.write_acc_rows(self.ACC1, 7)
        self.barrier()
        a(f"s_add_u32 {s(S_T)}, {s(S_T)}, 0x{TAGINC:08x}")
        LZ = a.newlabel('LZ')
        a(f"s_cmp_ge_u32 {s(S_W)}, 4")
        a(f"s_cbranch_scc1 {LZ}")
        for w in range(8):
            a(f"ds_read_b32 {v(20+w)}, v5 offset:{w*1024}")
        a(f"v_mov_b32 v29, {s(S_T)}")
        a("s_waitcnt lgkmcnt(0)")
        a("v_add_f32 v20, v20, v21"); a("v_add_f32 v22, v22, v23"); a("v_add_f32 v24, v24, v25"); a("v_add_f32 v26, v26, v27")
        a("v_add_f32 v20, v20, v22"); a("v_add_f32 v24, v24, v26")
        a("v_add_f32 v28, v20, v24")
        a(f"buffer_store_dwordx2 v[28:29], v6, {s(SRD_WS,4)}, {s(ST+1)} offen {SC}")
        a.label(LZ)
        self.stamp(2)

    def q_addr(self, own_head_both_batches, dst):
        a = self.a; t = dst
        if own_head_both_batches:
            a(f"s_add_u32 {s(t)}, {s(S_H)}, 32")
            a(f"s_lshr_b32 {s(t+1)}, {s(S_W)}, 2")
        else:
            a(f"s_lshr_b32 {s(t)}, {s(S_J)}, 3")
            a(f"s_lshl_b32 {s(t)}, {s(t)}, 1")
            a(f"s_lshr_b32 {s(t+1)}, {s(S_W)}, 2")
            a(f"s_add_u32 {s(t)}, {s(t)}, {s(t+1)}")
            a(f"s_bfe_u32 {s(t+1)}, {s(S_J)}, 0x10002")
        a(f"s_lshl_b32 {s(t)}, {s(t)}, 3")
        a(f"s_add_u32 {s(t)}, {s(t)}, {s(t+1)}")
        a(f"s_and_b32 {s(t+1)}, {s(S_W)}, 3")
        a(f"s_lshl_b32 {s(t+1)}, {s(t+1)}, 1")
        a(f"s_add_u32 {s(t)}, {s(t)}, {s(t+1)}")
        a(f"s_lshl_b32 {s(t)}, {s(t)}, 10")
        if Q1: a(f"s_add_u32 {s(t)}, {s(t)}, {Q1}")

    def q_poll(self, t):
        a = self.a
        a(f"s_add_u32 {s(t+1)}, {s(t)}, {127*8}")
        self.spin_scalar(lambda: a(f"s_load_dwordx2 {s(S_PB,2)}, {s(P_WS,2)}, {s(t+1)} glc"),
                         lambda: a(f"s_cmp_eq_u32 {s(S_PB+1)}, {s(S_T)}"))
    def q_load(self, t, G):
        a = self.a
        a(f"v_lshlrev_b32 v5, 4, {v(V_L)}")
        a(f"buffer_load_dwordx4 {v(G,4)}, v5, {s(SRD_WS,4)}, {s(t)} offen {SC}")
    def q_finish(self, t, G, nafter, st_data=None):
        a = self.a
        a(f"s_lshl_b32 {s(ST)}, {s(S_W)}, 9")
        a(f"s_add_u32 {s(ST)}, {s(ST)}, {R2}")
        a(f"v_lshlrev_b32 v6, 3, {v(V_L)}")
        a(f"v_add_u32 v6, {s(ST)}, v6")
        def chk():
            a(f"v_cmp_eq_u32 vcc, {s(S_T)}, {v(G+1)}")
            a(f"v_cmp_eq_u32 {s(S_PB,2)}, {s(S_T)}, {v(G+3)}")
            a(f"s_and_b64 vcc, vcc, {s(S_PB,2)}")
        self.retry_vec(lambda: self.q_load(t, G), chk, f"s_waitcnt vmcnt({nafter})")
        if st_data is not None: self.stamp(st_data)
        a(f"ds_write2_b32 v6, {v(G)}, {v(G+2)} offset0:0 offset1:1")
        LQ = a.newlabel('LQ')
        a(f"s_lshl_b32 {s(ST)}, {s(S_W)}, 11")
        a(f"s_add_u32 {s(ST)}, {s(ST)}, {R2}")
        a(f"v_lshlrev_b32 v5, 3, {v(V_L)}")
        a(f"v_add_u32 v5, {s(ST)}, v5")
        a(f"s_lshl_b32 {s(ST)}, {s(S_W)}, 8")
        a(f"s_add_u32 {s(ST)}, {s(ST)}, {QL}")
        a(f"v_lshlrev_b32 v6, 2, {v(V_L)}")
        a(f"v_add_u32 v6, {s(ST)}, v6")
        self.barrier()
        a(f"s_cmp_ge_u32 {s(S_W)}, 2")
        a(f"s_cbranch_scc1 {LQ}")
        for r in range(4):
            a(f"ds_read_b64 {v(8+2*r,2)}, v5 offset:{r*512}")
        a("s_waitcnt lgkmcnt(0)")
        a("v_add_f32 v8, v8, v10"); a("v_add_f32 v9, v9, v11"); a("v_add_f32 v12, v12, v14"); a("v_add_f32 v13, v13, v15")
        a("v_add_f32 v8, v8, v12"); a("v_add_f32 v9, v9, v13")
        a("v_cvt_pk_bf16_f32 v8, v8, v9")
        a("ds_write_b32 v6, v8")
        a.label(LQ)
        a(f"v_lshlrev_b32 v5, 8, {v(V_RS)}")
        a(f"v_lshl_add_u32 v5, {v(V_G4)}, 4, v5")
        a(f"v_add_u32 v5, {QL}, v5")
        self.barrier()
    def q_gather(self, t, G, after_issue, nafter, st_poll=None, st_data=None):
        self.q_poll(t)
        if st_poll is not None: self.stamp(st_poll)
        self.q_load(t, G)
        after_issue()
        self.q_finish(t, G, nafter, st_data)

    def read_q_frags(self, QF):
        for i in range(4):
            self.a(f"ds_read_b128 {v(QF+4*i,4)}, v5 offset:{i*64}")

    def wo_dma_addr(self, A):
        a = self.a
        for i in range(5):
            a(f"v_add_u32 {v(A+i)}, {64*i}, {v(V_L)}")
            a(f"v_mul_u32_u24 v5, 3641, {v(A+i)}")
            a(f"v_lshrrev_b32 v5, 16, v5")
            a(f"v_lshlrev_b32 {v(A+i)}, 4, {v(A+i)}")
            a(f"v_mul_u32_u24 v5, 864, v5")
            a(f"v_add_u32 {v(A+i)}, {v(A+i)}, v5")
    def wo_dma(self, SRD, A, base, RS):
        a = self.a; t = ST
        self.hshift5(t)
        a(f"s_lshl_b32 {s(t)}, {s(t)}, 7")
        a(f"s_lshl_b32 {s(t+1)}, {s(S_W)}, 4")
        a(f"s_add_u32 {s(t)}, {s(t)}, {s(t+1)}")
        a(f"s_mul_i32 {s(t)}, {s(t)}, 1152")
        a(f"s_mul_i32 {s(t+1)}, {s(S_RQ)}, 288")
        a(f"s_add_u32 {s(t)}, {s(t)}, {s(t+1)}")
        a(f"s_mul_i32 {s(t+1)}, {s(S_W)}, {RS}")
        for i in range(5):
            a(f"s_add_u32 m0, {s(t+1)}, {base + i*1024}")
            if i == 4: self.set_exec(0xffffffff)
            a(f"buffer_load_dwordx4 {v(A+i)}, {s(SRD,4)}, {s(t)} offen{' nt' if self.c.ntwo else ''} lds")
        self.set_exec(-1)
    def wo_frags(self, WF, WFX, base, RS):
        a = self.a; t = ST
        a(f"v_lshrrev_b32 v5, 1, {v(V_G4)}")
        a(f"v_mul_u32_u24 v5, {RS}, v5")
        a(f"v_and_b32 v6, 1, {v(V_G4)}")
        a(f"v_lshlrev_b32 v6, 3, v6")
        a(f"v_lshrrev_b32 v7, 2, {v(V_N16)}")
        a(f"v_add_u32 v6, v6, v7")
        a(f"v_mul_u32_u24 v6, 288, v6")
        a(f"v_add_u32 v5, v5, v6")
        a(f"v_and_b32 v6, 3, {v(V_N16)}")
        a(f"v_lshl_add_u32 v5, v6, 3, v5")
        a(f"s_lshl_b32 {s(t)}, {s(S_W)}, 5")
        a(f"s_add_u32 {s(t)}, {s(t)}, {base}")
        a(f"v_add_u32 v5, {s(t)}, v5")
        a(f"v_add_u32 v6, {4*RS}, v5")
        def reads(W, extra):
            for ks in range(4):
                for hf in range(2):
                    ad = 5 if ks < 2 else 6
                    a(f"ds_read_b64_tr_b16 {v(W+4*ks+2*hf,2)}, {v(ad)} offset:{(ks&1)*2*RS + hf*1152 + extra}")
        reads(WF, 0)
        LX = a.newlabel('WX')
        a(f"s_cmp_lg_u32 {s(S_W)}, 0")
        a(f"s_cbranch_scc1 {LX}")
        reads(WFX, 256)
        a.label(LX)
    def afrag_addr(self, dst, base):
        a = self.a
        a(f"v_and_b32 {v(dst)}, 1, {v(V_N16)}")
        a(f"v_lshlrev_b32 {v(dst)}, 8, {v(dst)}")
        a(f"v_lshl_add_u32 {v(dst)}, {v(V_G4)}, 4, {v(dst)}")
        a(f"v_add_u32 {v(dst)}, {base}, {v(dst)}")
    def afrag_reads(self, AF, addr):
        for ks in range(4):
            self.a(f"ds_read_b128 {v(AF+4*ks,4)}, {v(addr)} offset:{ks*64}")
    def chain4(self, D, AF, WF):
        for ks in range(4):
            cin = '0' if ks == 0 else v(D,4)
            self.a(f"v_mfma_f32_16x16x32_bf16 {v(D,4)}, {v(AF+4*ks,4)}, {v(WF+4*ks,4)}, {cin}")
    def pack_pair(self, D, x0, x1, t0, t1):
        a = self.a
        a(f"v_mov_b32_dpp {v(t0)}, {v(D)} quad_perm:[1,0,3,2] row_mask:0xf bank_mask:0xf")
        a(f"v_mov_b32_dpp {v(t1)}, {v(D+1)} quad_perm:[1,0,3,2] row_mask:0xf bank_mask:0xf")
        a(f"v_cndmask_b32 {v(x0)}, {v(D)}, {v(t1)}, {s(SEL1,2)}")
        a(f"v_cndmask_b32 {v(x1)}, {v(t0)}, {v(D+1)}, {s(SEL1,2)}")

    WUK = 100
    def x_roles(self):
        a = self.a
        a(f"s_lshr_b32 {s(S_G)}, {s(S_J)}, 3")
        a(f"s_bfe_u32 {s(S_B)}, {s(S_J)}, 0x10002")
        a(f"s_and_b32 {s(S_S)}, {s(S_J)}, 3")
        t = ST + 8
        a(f"s_lshl_b32 {s(t)}, {s(S_B)}, 4")
        a(f"s_add_u32 {s(t)}, {s(t)}, {s(S_G)}")
        a(f"s_lshl_b32 {s(t)}, {s(t)}, 13")
        a(f"s_lshl_b32 {s(t+1)}, {s(S_S)}, 9")
        a(f"s_add_u32 {s(t)}, {s(t)}, {s(t+1)}")
        a(f"s_add_u32 {s(t)}, {s(t)}, 6144")
        a(f"s_lshl_b32 {s(t)}, {s(t)}, 8")
        a(f"s_lshl_b32 {s(t+1)}, {s(S_W)}, 14")
        a(f"s_add_u32 {s(S_BASE)}, {s(t)}, {s(t+1)}")
    def x_wuk_loads(self):
        a = self.a; t = ST
        a(f"v_lshlrev_b32 v7, 13, {v(V_N16)}")
        a(f"v_lshl_add_u32 v7, {v(V_G4)}, 4, v7")
        a(f"s_lshl_b32 {s(t)}, {s(S_RQ)}, 7")
        a(f"s_lshl_b32 {s(t+1)}, {s(S_W)}, 4")
        a(f"s_add_u32 {s(t)}, {s(t)}, {s(t+1)}")
        a(f"s_lshl_b32 {s(t)}, {s(t)}, 13")
        a(f"s_lshl_b32 {s(t+1)}, {s(S_H)}, 8")
        a(f"s_add_u32 {s(t)}, {s(t)}, {s(t+1)}")
        for i in range(4):
            a(f"buffer_load_dwordx4 {v(self.WUK+4*i,4)}, v7, {s(SRD_U,4)}, {s(t)} offen offset:{i*64}{' nt' if self.c.ntuk else ''}")
    def x_kdma(self, kk0, kk1):
        a = self.a; t = ST
        if kk0 >= kk1: return
        a(f"v_xor_b32 v248, {v(V_N16)}, {v(V_G4)}")
        a(f"v_lshlrev_b32 v248, 4, v248")
        a(f"v_lshl_add_u32 v248, {v(V_G4)}, 8, v248")
        for k in range(1, 4):
            a(f"v_xor_b32 {v(248+k)}, {k<<6}, v248")
        a(f"s_lshl_b32 {s(t)}, {s(S_W)}, 14")
        for kk in range(kk0, kk1):
            a(f"s_add_u32 m0, {s(t)}, {IMG + kk*4096}")
            a(f"s_add_u32 {s(t+1)}, {s(S_BASE)}, {kk*4096}")
            for k in range(4):
                if self.c.xwin: a(f"s_waitcnt vmcnt({self.c.xwin-1})")
                a(f"buffer_load_dwordx4 {v(248+k)}, {s(SRD_ST,4)}, {s(t+1)} offen offset:{k*1024}{self.nts()} lds")

    def x_main(self):
        a = self.a; t = ST; c = self.c
        self.x_roles()
        if c.touch:
            a(f"s_load_dword s68, {s(P_AK,2)}, {s(S_BASE)}")
            a(f"s_load_dword s69, {s(P_AV,2)}, {s(S_BASE)}")
            self.hshift5(ST)
            a(f"s_mul_i32 {s(ST)}, {s(ST)}, {128*1152}")
            a(f"s_load_dword s70, {s(P_AWO,2)}, {s(ST)}")
            a(f"s_mov_b32 {s(ST+1)}, {OUTP}")
            a(f"s_load_dword s71, {s(P_WS,2)}, {s(ST+1)}")
        a("s_barrier")
        if not c.wuk_late: self.x_wuk_loads()
        self.x_kdma(0, c.n1_k)
        self.q_addr(True, ST+4)
        if c.wuk_late:
            self.p1_compute(1, 4*c.n1_k, hook=self.x_wuk_loads)
        else:
            self.p1_compute(1, 4 + 4*c.n1_k)
        self.x_kdma(c.n1_k, c.n1_k + c.n2_k)
        kdone = c.n1_k + c.n2_k
        GA = 240
        if c.early_qa:
            self.q_addr(False, ST+6)
            def aft():
                self.q_load(ST+6, GA)
                self.x_kdma(kdone, kdone + c.n4_k)
            self.q_gather(ST+4, 8, aft, 1 + 4*c.n4_k, 14, 15)
            kb = kdone
            kdone += c.n4_k
        else:
            self.q_gather(ST+4, 8, lambda: None, 0, 14, 15)
        self.stamp(3)
        QF = 16
        self.read_q_frags(QF)
        a(f"v_and_b32 v5, 1, {v(V_G4)}")
        a(f"v_lshlrev_b32 v6, 8, v5")
        a(f"v_lshl_add_u32 v7, {v(V_N16)}, 4, v6")
        a(f"v_add_u32 v7, {QAL}, v7")
        a(f"v_lshl_add_u32 v6, {v(V_N16)}, 1, v6")
        a(f"s_lshl_b32 {s(t)}, {s(S_W)}, 5")
        a(f"s_add_u32 {s(t)}, {s(t)}, {QAL}")
        a(f"v_add_u32 v6, {s(t)}, v6")
        a(f"v_lshlrev_b32 v14, 15, v5")
        a(f"v_lshl_add_u32 v14, {v(V_N16)}, 4, v14")
        a(f"v_lshlrev_b32 v15, 10, v5")
        a(f"v_lshl_add_u32 v15, {v(V_N16)}, 11, v15")
        a(f"s_lshl_b32 {s(t)}, {s(S_J)}, 8")
        a(f"s_add_u32 {s(t)}, {s(t)}, {QABS}")
        a(f"s_lshl_b32 {s(t+1)}, {s(S_J)}, 3")
        a(f"s_add_u32 {s(t+1)}, {s(t+1)}, {QM}")
        a("s_waitcnt lgkmcnt(0)")
        AQ = 32
        for i in range(4):
            cin = '0' if i == 0 else v(AQ,4)
            a(f"v_mfma_f32_16x16x32_bf16 {v(AQ,4)}, {v(QF+4*i,4)}, {v(self.WUK+4*i,4)}, {cin}")
        a(f"v_cvt_pk_bf16_f32 v8, {v(AQ)}, {v(AQ)}")
        a(f"ds_write_b16 v6, v8")
        self.barrier()
        LP = a.newlabel('BP')
        a(f"s_cmp_lg_u32 {s(S_W)}, 0")
        a(f"s_cbranch_scc1 {LP}")
        a(f"ds_read_b128 v[8:11], v7")
        a(f"v_mov_b32 v13, {s(S_T)}")
        a("s_waitcnt lgkmcnt(0)")
        self.set_exec(0xffffffff)
        a(f"buffer_store_dwordx4 v[8:11], v14, {s(SRD_WS,4)}, {s(t)} offen {SC}")
        self.set_exec(-1)
        a("v_bitop3_b32 v12, v8, v9, v10 bitop3:0x96"); a("v_xor_b32 v12, v12, v11")
        self.inrow('v_xor_b32', 12)
        self.set_exec(0x00ff00ff)
        a(f"buffer_store_dwordx2 v[12:13], v15, {s(SRD_WS,4)}, {s(t+1)} offen {SC}")
        self.set_exec(-1)
        a.label(LP)
        a("s_barrier")
        self.stamp(17)
        KF, S, VL, F, ACC = 32, 64, 96, 192, 224
        WA = 160
        k3 = min(4, kdone + c.n3_k)
        if c.early_qa:
            kx = max(kdone, c.kx)
            self.x_kdma(kdone, kx)
            self.q_finish(ST+6, GA, 4*(kx-kb), 18)
            self.stamp(9)
            self.read_q_frags(QF)
            self.x_kdma(kx, 4)
        else:
            self.x_kdma(kdone, k3)
            self.q_addr(False, ST+4)
            ka = min(4, k3 + c.k_after)
            self.q_gather(ST+4, 8, lambda: self.x_kdma(k3, ka), 4*(ka-k3), None, 18)
            self.stamp(9)
            self.read_q_frags(QF)
            self.x_kdma(ka, 4)
        a(f"v_lshlrev_b32 v6, 10, {v(V_G4)}")
        a(f"v_lshl_add_u32 v6, {v(V_N16)}, 4, v6")
        for u in range(2):
            for j in range(8):
                if j % 4 == 0:
                    a(f"s_add_u32 {s(t)}, {s(S_BASE)}, {(32*u + 16*(j>>2))*256}")
                if c.xwin and (c.xwinv or u == 0): a(f"s_waitcnt vmcnt({c.xwin-1})")
                a(f"buffer_load_dwordx4 {v(VL + 32*u + 4*j,4)}, v6, {s(SRD_V,4)}, {s(t)} offen offset:{(j&3)*256}{self.nts()}")
        self.wo_dma_addr(WA)
        a("s_waitcnt vmcnt(16)")
        a(f"v_xor_b32 v5, {v(V_N16)}, {v(V_G4)}")
        a(f"v_lshlrev_b32 v5, 4, v5")
        a(f"v_lshl_add_u32 v5, {v(V_N16)}, 8, v5")
        a(f"s_lshl_b32 {s(t)}, {s(S_W)}, 14")
        a(f"v_add_u32 v5, {s(t)}, v5")
        for i in range(1, 4):
            a(f"v_xor_b32 {v(5+i)}, {i<<6}, v5")
        def kread(tt, dst):
            for i in range(4):
                a(f"ds_read_b128 {v(dst+4*i,4)}, {v(5+i)} offset:{IMG + tt*4096}")
        kread(0, KF); kread(1, KF+16)
        for tt in range(4):
            cur = KF + 16*(tt & 1)
            a(f"s_waitcnt lgkmcnt({4 if tt < 3 else 0})")
            for i in range(4):
                cin = '0' if i == 0 else v(S+4*tt,4)
                a(f"v_mfma_f32_16x16x32_bf16 {v(S+4*tt,4)}, {v(cur+4*i,4)}, {v(QF+4*i,4)}, {cin}")
            if tt + 2 < 4:
                kread(tt+2, cur)
        self.wo_dma(SRD_WO, WA, IMG, 16384)
        M, Lsum, T1 = 10, 11, 12
        a(f"v_max3_f32 {v(M)}, {v(S)}, {v(S+1)}, {v(S+2)}")
        for r in range(3, 15, 2):
            a(f"v_max3_f32 {v(M)}, {v(M)}, {v(S+r)}, {v(S+r+1)}")
        a(f"v_max_f32 {v(M)}, {v(M)}, {v(S+15)}")
        self.xrow('v_max_f32', M, T1)
        a(f"v_mul_f32 {v(M)}, {s(S_SC)}, {v(M)}")
        for r in range(16):
            a(f"v_fma_f32 {v(S+r)}, {v(S+r)}, {s(S_SC)}, -{v(M)}")
        for r in range(16):
            a(f"v_exp_f32 {v(S+r)}, {v(S+r)}")
        PF = 32
        for u in range(2):
            for q in range(4):
                a(f"v_cvt_pk_bf16_f32 {v(PF+4*u+q)}, {v(S+8*u+2*q)}, {v(S+8*u+2*q+1)}")
        for r in range(0, 16, 2):
            a(f"v_add_f32 {v(S+r)}, {v(S+r)}, {v(S+r+1)}")
        for r in range(0, 16, 4):
            a(f"v_add_f32 {v(S+r)}, {v(S+r)}, {v(S+r+2)}")
        a(f"v_add_f32 {v(S)}, {v(S)}, {v(S+4)}"); a(f"v_add_f32 {v(S+8)}, {v(S+8)}, {v(S+12)}")
        a(f"v_add_f32 {v(Lsum)}, {v(S)}, {v(S+8)}")
        self.xrow('v_add_f32', Lsum, T1)
        a(f"s_lshl_b32 {s(t)}, {s(S_W)}, 4")
        a(f"s_add_u32 {s(t)}, {s(t)}, {ML}")
        a(f"v_lshlrev_b32 v5, 3, {v(V_RS)}")
        a(f"v_add_u32 v5, {s(t)}, v5")
        a(f"ds_write_b64 v5, {v(M,2)}")
        self.acc_rows_addr(7, OW)
        a(f"s_and_b32 {s(t)}, {s(S_W)}, 1")
        a(f"s_lshl_b32 {s(t+1)}, {s(t)}, 9")
        a(f"s_add_u32 {s(t+1)}, {s(t+1)}, {OW}")
        a(f"v_lshl_add_u32 v5, {v(V_L)}, 3, {s(t+1)}")
        a(f"s_lshl_b32 {s(t+1)}, {s(t)}, 3")
        a(f"s_add_u32 {s(t+1)}, {s(t+1)}, {ML}")
        a(f"v_mov_b32 v6, {s(t+1)}")
        a(f"s_lshl_b32 {s(t+2)}, {s(S_G)}, 1")
        a(f"s_add_u32 {s(t+2)}, {s(t+2)}, {s(t)}")
        a(f"s_lshl_b32 {s(t+3)}, {s(t+2)}, 2")
        a(f"s_add_u32 {s(t+3)}, {s(t+3)}, {s(S_S)}")
        a(f"s_lshl_b32 {s(t+3)}, {s(t+3)}, 1")
        a(f"s_add_u32 {s(t+3)}, {s(t+3)}, {s(S_B)}")
        a(f"s_lshl_b32 {s(t+3)}, {s(t+3)}, 10")
        a(f"s_add_u32 {s(t+3)}, {s(t+3)}, {OP}")
        a(f"v_lshlrev_b32 v8, 4, {v(V_L)}")
        self.stamp(4)
        for u in range(2):
            a(f"s_waitcnt vmcnt({(8 if u == 0 else 0) + 5})")
            self.full_perm(VL+32*u, F)
            for cc in range(8):
                cin = '0' if u == 0 else v(ACC+4*cc,4)
                a(f"v_mfma_f32_16x16x32_bf16 {v(ACC+4*cc,4)}, {v(PF+4*u,4)}, {v(F+4*cc,4)}, {cin}")
        self.stamp(5)
        self.write_acc_rows(ACC, 7)
        self.barrier()
        LZ = a.newlabel('AZ')
        a(f"s_cmp_ge_u32 {s(S_W)}, 2")
        a(f"s_cbranch_scc1 {LZ}")
        for w in range(8):
            a(f"ds_read_b64 {v(32+2*w,2)}, v6 offset:{w*16}")
        for w in range(8):
            a(f"ds_read_b64 {v(48+2*w,2)}, v5 offset:{w*1024}")
        a(f"v_mov_b32 v19, {s(S_T)}")
        a("s_waitcnt lgkmcnt(8)")
        a("v_max3_f32 v20, v32, v34, v36"); a("v_max3_f32 v20, v20, v38, v40"); a("v_max3_f32 v20, v20, v42, v44"); a("v_max_f32 v20, v20, v46")
        for w in range(8):
            a(f"v_sub_f32 {v(32+2*w)}, {v(32+2*w)}, v20")
        for w in range(8):
            a(f"v_exp_f32 {v(32+2*w)}, {v(32+2*w)}")
        a("v_mul_f32 v21, v33, v32")
        for w in range(1, 8):
            a(f"v_fmac_f32 v21, {v(33+2*w)}, {v(32+2*w)}")
        a(f"v_cndmask_b32 v18, v20, v21, {s(SEL1,2)}")
        a("s_waitcnt lgkmcnt(0)")
        a("v_mul_f32 v16, v48, v32"); a("v_mul_f32 v17, v49, v32")
        for w in range(1, 8):
            a(f"v_fmac_f32 v16, {v(48+2*w)}, {v(32+2*w)}")
            a(f"v_fmac_f32 v17, {v(49+2*w)}, {v(32+2*w)}")
        a(f"buffer_store_dwordx4 v[16:19], v8, {s(SRD_WS,4)}, {s(t+3)} offen {SC}")
        self.stamp(6)
        a("s_waitcnt vmcnt(1)")
        LZ2 = a.newlabel('AZ')
        a(f"s_branch {LZ2}")
        a.label(LZ)
        a("s_waitcnt vmcnt(0)")
        a.label(LZ2)
        a("s_barrier")
        self.p5(0, IMG, 16384, 11, 12)
        self.final_reduce(0)

    def final_reduce(self, branch):
        a = self.a; t = ST
        a(f"s_cmp_ge_u32 {s(S_J)}, 72")
        a("s_cbranch_scc1 L_END")
        a(f"s_cmp_lg_u32 {s(S_W)}, 0")
        a("s_cbranch_scc1 L_END")
        a(f"s_lshl_b32 {s(t+4)}, {s(S_J)}, 12")
        a(f"s_add_u32 {s(t+4)}, {s(t+4)}, {OUTP + branch*72*4096}")
        a(f"s_cmp_ge_u32 {s(S_J)}, 36")
        a(f"s_cselect_b32 {s(t+2)}, {2304 - 36*32}, 0")
        a(f"s_lshl_b32 {s(t+3)}, {s(S_J)}, 5")
        a(f"s_add_u32 {s(t+2)}, {s(t+2)}, {s(t+3)}")
        a(f"s_add_u32 {s(t+8)}, {s(t+2)}, {branch*1152}")
        a(f"v_lshlrev_b32 v5, 4, {v(V_L)}")
        a(f"v_lshlrev_b32 v6, 2, {v(V_L)}")
        def ldf(st=0):
            for k in range(4):
                a(f"buffer_load_dwordx4 {v(16+16*st+4*k,4)}, v5, {s(SRD_WS,4)}, {s(t+4)} offen offset:{k*1024} {SC}")
        def chkf(st=0):
            b = 16*st
            a(f"v_xor_b32 v8, {s(S_T)}, {v(17+b)}")
            for r in (19, 21, 23, 25, 27, 29, 31):
                a(f"v_bitop3_b32 v8, {v(r+b)}, {s(S_T)}, v8 bitop3:0xbe")
            a(f"v_cmp_eq_u32 vcc, 0, v8")
        def donef(st):
            b = 16*st
            a(f"v_add_f32 v10, {v(16+b)}, {v(20+b)}"); a(f"v_add_f32 v11, {v(24+b)}, {v(28+b)}"); a(f"v_add_f32 v12, {v(18+b)}, {v(22+b)}"); a(f"v_add_f32 v13, {v(26+b)}, {v(30+b)}")
            a("v_add_f32 v14, v10, v11"); a("v_add_f32 v15, v12, v13")
        ldf()
        if self.c.pipe5:
            self.poll_pipe(ldf, chkf, donef, 4, self.c.stag5)
        else:
            if self.c.stamps:
                a("s_waitcnt vmcnt(0)")
                self.stamp(16)
            self.retry_vec(ldf, chkf, "s_waitcnt vmcnt(0)", sleep=self.c.sleep5)
            a("v_add_f32 v16, v16, v20"); a("v_add_f32 v24, v24, v28"); a("v_add_f32 v17, v18, v22"); a("v_add_f32 v26, v26, v30")
            a("v_add_f32 v14, v16, v24"); a("v_add_f32 v15, v17, v26")
        self.stamp_cnt(20)
        self.stamp(19)
        a("v_add_f32_dpp v14, v14, v14 row_ror:8 row_mask:0xf bank_mask:0xf")
        a("v_add_f32_dpp v15, v15, v15 row_ror:8 row_mask:0xf bank_mask:0xf")
        self.xrow_multi('v_add_f32', [14, 15], [8, 9])
        a("v_cvt_pk_bf16_f32 v14, v14, v15")
        self.set_exec(0xff)
        a(f"buffer_store_dword v14, v6, {s(SRD_OUT,4)}, {s(t+8)} offen")
        if branch == 0:
            LE = a.newlabel('EP')
            a(f"s_cmp_lg_u32 {s(S_J)}, 0")
            a(f"s_cbranch_scc1 {LE}")
            a(f"v_mov_b32 v5, {EPOCH}")
            a(f"v_mov_b32 v6, {s(S_T)}")
            self.set_exec(1)
            a(f"buffer_store_dword v6, v5, {s(SRD_WS,4)}, 0 offen {SC}")
            a.label(LE)
        self.set_exec(-1)
        self.stamp(13)
        a("s_waitcnt vmcnt(0)")
        a("s_branch L_END")

    def y_roles(self):
        a = self.a
        a(f"s_lshr_b32 {s(S_B)}, {s(S_J)}, 6")
        a(f"s_and_b32 {s(S_S)}, {s(S_J)}, 63")
        t = ST + 8
        a(f"s_lshl_b32 {s(t)}, {s(S_J)}, 17")
        a(f"s_lshl_b32 {s(t+1)}, {s(S_W)}, 14")
        a(f"s_add_u32 {s(S_BASE)}, {s(t)}, {s(t+1)}")
    def ckv_dma(self, k0, k1):
        a = self.a; t = ST
        if k0 >= k1: return
        a(f"v_lshlrev_b32 v248, 4, {v(V_L)}")
        a(f"s_lshl_b32 {s(t)}, {s(S_W)}, 14")
        for k in range(k0, k1):
            f = ((k & 3) << 2) | ((k >> 2) & 3)
            a(f"v_xor_b32 v249, {f<<4}, v248")
            a(f"s_add_u32 m0, {s(t)}, {IMG + k*1024}")
            a(f"s_add_u32 {s(t+1)}, {s(S_BASE)}, {k*1024}")
            a(f"buffer_load_dwordx4 v249, {s(SRD_ST,4)}, {s(t+1)} offen{self.nts()} lds")

    def y_main(self):
        a = self.a; t = ST; c = self.c
        self.y_roles()
        if c.touch:
            a(f"s_lshl_b32 {s(ST)}, {s(S_RQ)}, 20")
            a(f"s_load_dword s68, {s(P_WUV,2)}, {s(ST)}")
            self.hshift5(ST)
            a(f"s_mul_i32 {s(ST)}, {s(ST)}, {128*1152}")
            a(f"s_load_dword s69, {s(P_BWO,2)}, {s(ST)}")
            for r, off in ((70, BPART), (71, BPART + 0x200000), (72, OUTP)):
                a(f"s_mov_b32 s73, {off}")
                a(f"s_load_dword s{r}, {s(P_WS,2)}, s73")
        a("s_barrier")
        self.ckv_dma(0, c.n1_ckv)
        self.p1_compute(0, c.n1_ckv)
        self.ckv_dma(c.n1_ckv, 16)
        GQ, GM = 16, 32
        a(f"s_lshl_b32 {s(t)}, {s(S_B)}, 10")
        a(f"s_lshl_b32 {s(t+1)}, {s(S_W)}, 7")
        a(f"s_add_u32 {s(t)}, {s(t)}, {s(t+1)}")
        a(f"s_and_b32 {s(t+1)}, {s(S_S)}, 7")
        a(f"s_lshl_b32 {s(t+1)}, {s(t+1)}, 11")
        a(f"s_add_u32 {s(t)}, {s(t)}, {s(t+1)}")
        a(f"s_add_u32 {s(t+5)}, {s(t)}, {QM}")
        a(f"s_lshl_b32 {s(t+4)}, {s(S_B)}, 15")
        a(f"s_lshl_b32 {s(t+1)}, {s(S_W)}, 12")
        a(f"s_add_u32 {s(t+4)}, {s(t+4)}, {s(t+1)}")
        a(f"s_add_u32 {s(t+4)}, {s(t+4)}, {QABS}")
        def e2ld():
            a(f"s_load_dwordx16 {s(S_PB,16)}, {s(P_WS,2)}, {s(t+5)} glc")
            a(f"s_load_dwordx16 {s(S_PB+16,16)}, {s(P_WS,2)}, {s(t+1)} glc")
        def okf():
            self.s_alltags([S_PB+2*i+1 for i in range(16)], t+2, t+3)
        a(f"s_add_u32 {s(t+1)}, {s(t+5)}, 64")
        self.spin_scalar(e2ld, okf)
        self.stamp(17)
        def ldq(first=False):
            fl = (self.c.qabs_first if first else SC)
            a(f"v_lshlrev_b32 v5, 4, {v(V_L)}")
            for j in range(4):
                a(f"buffer_load_dwordx4 {v(GQ+4*j,4)}, v5, {s(SRD_WS,4)}, {s(t+4)} offen offset:{j*1024} {fl}")
            a(f"v_and_b32 v6, 3, {v(V_N16)}")
            a(f"v_lshlrev_b32 v6, 5, v6")
            a(f"v_lshl_add_u32 v6, {v(V_G4)}, 3, v6")
            a(f"buffer_load_dwordx2 {v(GM,2)}, v6, {s(SRD_WS,4)}, {s(t+5)} offen {SC}")
        ldq(True)
        AFS, AFP, BFR = 64, 128, 224
        N32, HI = 8, 9
        a(f"v_and_b32 {v(N32)}, 31, {v(V_L)}")
        a(f"v_lshrrev_b32 {v(HI)}, 5, {v(V_L)}")
        KT, CH = t+6, t+7
        a(f"s_and_b32 {s(KT)}, {s(S_W)}, 3")
        a(f"s_lshr_b32 {s(CH)}, {s(S_W)}, 2")
        a(f"v_and_b32 v5, 3, {v(N32)}")
        a(f"v_lshlrev_b32 v5, 2, v5")
        a(f"v_bfe_u32 v6, {v(N32)}, 2, 2")
        a(f"v_or_b32 v5, v5, v6")
        a(f"v_xor_b32 v5, v5, {v(HI)}")
        a(f"v_lshlrev_b32 v5, 4, v5")
        a(f"v_lshl_add_u32 v5, {v(N32)}, 10, v5")
        a(f"s_lshl_b32 {s(t+2)}, {s(KT)}, 15")
        a(f"s_lshl_b32 {s(t+3)}, {s(CH)}, 9")
        a(f"s_add_u32 {s(t+2)}, {s(t+2)}, {s(t+3)}")
        a(f"v_add_u32 v56, {s(t+2)}, v5")
        for i in range(1, 8): a(f"v_xor_b32 {v(56+i)}, {i*32}, v56")
        a(f"v_lshrrev_b32 v5, 2, {v(V_N16)}")
        a(f"v_lshlrev_b32 v6, 2, v5")
        a(f"v_or_b32 v6, v6, {v(HI)}")
        a(f"v_and_b32 v7, 1, {v(V_G4)}")
        a(f"v_lshlrev_b32 v7, 1, v7")
        a(f"v_bfe_u32 v13, {v(V_N16)}, 1, 1")
        a(f"v_or_b32 v7, v7, v13")
        a(f"s_and_b32 {s(t+2)}, {s(S_W)}, 1")
        a(f"s_lshl_b32 {s(t+2)}, {s(t+2)}, 3")
        a(f"v_or_b32 v7, {s(t+2)}, v7")
        a(f"v_xor_b32 v6, v6, v7")
        a(f"v_lshlrev_b32 v6, 4, v6")
        a(f"v_and_b32 v7, 1, {v(V_N16)}")
        a(f"v_lshl_add_u32 v6, v7, 3, v6")
        a(f"v_lshl_add_u32 v5, {v(HI)}, 2, v5")
        a(f"v_lshl_add_u32 v6, v5, 10, v6")
        a(f"s_lshr_b32 {s(t+2)}, {s(S_W)}, 1")
        a(f"s_lshl_b32 {s(t+2)}, {s(t+2)}, 8")
        a(f"v_add_u32 v48, {s(t+2)}, v6")
        a(f"v_xor_b32 v49, 64, v48")
        a(f"v_xor_b32 v50, 32, v48")
        a(f"v_add_u32 v50, 8192, v50")
        a(f"v_xor_b32 v51, 64, v50")
        for r in range(4): a(f"v_add_u32 {v(52+r)}, 0x10000, {v(48+r)}")
        a("s_waitcnt vmcnt(5)")
        a("s_barrier")
        self.stamp(3)
        for i in range(16):
            a(f"ds_read_b128 {v(AFS+4*i,4)}, {v(56+(i&7))} offset:{256 if i >= 8 else 0}")
        if self.c.ldsdbg: self.stamp(31)
        for ks in range(8):
            base = 48 if ks < 4 else 52
            off = (ks & 3) * 16384
            d = AFP + 8*ks
            for tt in range(2):
                a(f"ds_read_b64_tr_b16 {v(d+4*tt,2)}, {v(base+tt)} offset:{off}")
                a(f"ds_read_b64_tr_b16 {v(d+4*tt+2,2)}, {v(base+2+tt)} offset:{off}")
        if self.c.ldsdbg: self.stamp(4)
        a(f"v_and_b32 v6, 15, {v(N32)}")
        a(f"v_xor_b32 v6, v6, {v(HI)}")
        a(f"v_lshlrev_b32 v6, 4, v6")
        a(f"v_lshl_add_u32 v6, {v(N32)}, 10, v6")
        a(f"s_add_u32 {s(t+3)}, {s(t+3)}, {QIMG}")
        a(f"v_add_u32 v56, {s(t+3)}, v6")
        for i in range(1, 8): a(f"v_xor_b32 {v(56+i)}, {i*32}, v56")
        for j in range(4):
            a(f"s_and_b32 {s(t)}, {s(S_W)}, 3")
            a(f"s_lshl_b32 {s(t)}, {s(t)}, 2")
            a(f"s_add_u32 {s(t)}, {s(t)}, {j}")
            a(f"s_lshl_b32 {s(t)}, {s(t)}, 4")
            a(f"v_lshlrev_b32 v5, 4, {v(V_L)}")
            a(f"v_xor_b32 v5, {s(t)}, v5")
            a(f"s_lshl_b32 {s(t+1)}, {s(S_W)}, 12")
            a(f"s_add_u32 {s(t+1)}, {s(t+1)}, {QIMG + j*1024}")
            a(f"v_add_u32 {v(48+j)}, {s(t+1)}, v5")
        def chkq():
            self.checksum4(GQ, 14, 10, SEL1, SEL2)
            a(f"v_cmp_eq_u32 vcc, v14, {v(GM)}")
            a(f"v_cmp_eq_u32 {s(S_PB,2)}, {s(S_T)}, {v(GM+1)}")
            a(f"s_and_b64 vcc, vcc, {s(S_PB,2)}")
        self.retry_vec(ldq, chkq, "s_waitcnt vmcnt(0)")
        self.stamp(18)
        for j in range(4):
            a(f"ds_write_b128 {v(48+j)}, {v(GQ+4*j,4)}")
        self.barrier()
        self.stamp(5)
        SA = 32
        def bread(i): a(f"ds_read_b128 {v(BFR+4*(i&7),4)}, {v(56+(i&7))} offset:{256 if i >= 8 else 0}")
        for i in range(8): bread(i)
        def wuv_addr(A0, A1):
            a(f"v_lshrrev_b32 {v(A0)}, 4, {v(V_L)}")
            a(f"v_lshlrev_b32 {v(A1)}, 1, {v(A0)}")
            a(f"v_xor_b32 {v(A1)}, {v(A1)}, {v(V_N16)}")
            a(f"v_lshlrev_b32 {v(A1)}, 4, {v(A1)}")
            a(f"v_lshl_add_u32 {v(A0)}, {v(A0)}, 13, {v(A1)}")
            a(f"v_xor_b32 {v(A1)}, {8<<4}, {v(A0)}")
        def wuv_issue(A0, A1):
            a(f"s_lshl_b32 {s(t)}, {s(S_RQ)}, 7")
            a(f"s_lshl_b32 {s(t+1)}, {s(S_W)}, 4")
            a(f"s_add_u32 {s(t)}, {s(t)}, {s(t+1)}")
            a(f"s_lshl_b32 {s(t)}, {s(t)}, 13")
            a(f"s_lshl_b32 {s(t+1)}, {s(S_H)}, 8")
            a(f"s_add_u32 {s(t)}, {s(t)}, {s(t+1)}")
            a(f"s_lshl_b32 {s(t+1)}, {s(S_W)}, 12")
            for i in range(4):
                a(f"s_add_u32 m0, {s(t+1)}, {WUVIMG + i*1024}")
                a(f"buffer_load_dwordx4 {v(A0 if (i&1) == 0 else A1)}, {s(SRD_V,4)}, {s(t)} offen{self.ntw()} lds")
                if i < 3: a(f"s_add_u32 {s(t)}, {s(t)}, {4*8192}")
        if not self.c.wuv_late:
            wuv_addr(5, 6); wuv_issue(5, 6)
        for i in range(16):
            left = min(7, 15 - i)
            a(f"s_waitcnt lgkmcnt({left})")
            cin = '0' if i == 0 else v(SA,16)
            a(f"v_mfma_f32_32x32x16_bf16 {v(SA,16)}, {v(AFS+4*i,4)}, {v(BFR+4*(i&7),4)}, {cin}")
            if i + 8 < 16: bread(i+8)
        a(f"s_lshl_b32 {s(t+2)}, {s(S_W)}, 11")
        a(f"s_add_u32 {s(t+2)}, {s(t+2)}, {SX}")
        a(f"v_lshlrev_b32 v7, 4, {v(V_L)}")
        a(f"v_add_u32 v5, {s(t+2)}, v7")
        a(f"s_xor_b32 {s(t+3)}, {s(S_W)}, 4")
        a(f"s_lshl_b32 {s(t+3)}, {s(t+3)}, 11")
        a(f"s_add_u32 {s(t+3)}, {s(t+3)}, {SX}")
        a(f"v_add_u32 v6, {s(t+3)}, v7")
        a(f"s_lshl_b32 {s(t+2)}, {s(S_W)}, 7")
        a(f"v_lshlrev_b32 v13, 2, {v(N32)}")
        a(f"v_add_u32 v14, {MX}, v13")
        a(f"v_add_u32 v15, {s(t+2)}, v14")
        a(f"s_lshl_b32 {s(t+3)}, {s(KT)}, 1")
        a(f"s_add_u32 {s(t+3)}, {s(t+3)}, {s(CH)}")
        a(f"s_lshl_b32 {s(t+3)}, {s(t+3)}, 10")
        a(f"s_add_u32 {s(t+3)}, {s(t+3)}, {PB}")
        a(f"v_add_u32 v56, {s(t+3)}, v7")
        a(f"v_add_u32 v57, {PB}, v7")
        a(f"v_add_u32 v58, {LS-MX}, v15")
        a(f"v_add_u32 v59, {LS-MX}, v14")
        self.stamp(28)
        a("s_barrier")
        SK = 48
        LC1 = a.newlabel('CH'); LC2 = a.newlabel('CH')
        a(f"s_cmp_eq_u32 {s(CH)}, 0")
        a(f"s_cbranch_scc0 {LC1}")
        a(f"ds_write_b128 v5, {v(SA+8,4)}"); a(f"ds_write_b128 v5, {v(SA+12,4)} offset:1024")
        a(f"s_branch {LC2}")
        a.label(LC1)
        a(f"ds_write_b128 v5, {v(SA,4)}"); a(f"ds_write_b128 v5, {v(SA+4,4)} offset:1024")
        for r in range(8): a(f"v_mov_b32 {v(SA+r)}, {v(SA+8+r)}")
        a.label(LC2)
        self.barrier()
        self.stamp(29)
        a(f"ds_read_b128 {v(SK,4)}, v6"); a(f"ds_read_b128 {v(SK+4,4)}, v6 offset:1024")
        a("s_waitcnt lgkmcnt(0)")
        for r in range(8): a(f"v_add_f32 {v(SK+r)}, {v(SK+r)}, {v(SA+r)}")
        M, Lsum, T1 = 10, 11, 12
        a(f"v_max3_f32 {v(M)}, {v(SK)}, {v(SK+1)}, {v(SK+2)}")
        a(f"v_max3_f32 {v(M)}, {v(M)}, {v(SK+3)}, {v(SK+4)}")
        a(f"v_max3_f32 {v(M)}, {v(M)}, {v(SK+5)}, {v(SK+6)}")
        a(f"v_max_f32 {v(M)}, {v(M)}, {v(SK+7)}")
        self.xhalf('v_max_f32', M, T1)
        a(f"ds_write_b32 v15, {v(M)}")
        self.barrier()
        self.stamp(30)
        for w in range(8):
            a(f"ds_read_b32 {v(32+w)}, v14 offset:{w*128}")
        a("s_waitcnt lgkmcnt(0)")
        a(f"v_max3_f32 {v(M)}, v32, v33, v34"); a(f"v_max3_f32 {v(M)}, {v(M)}, v35, v36"); a(f"v_max3_f32 {v(M)}, {v(M)}, v37, v38"); a(f"v_max_f32 {v(M)}, {v(M)}, v39")
        a(f"v_mul_f32 {v(M)}, {s(S_SC)}, {v(M)}")
        for r in range(8): a(f"v_fma_f32 {v(SK+r)}, {v(SK+r)}, {s(S_SC)}, -{v(M)}")
        for r in range(8): a(f"v_exp_f32 {v(SK+r)}, {v(SK+r)}")
        for q in range(4): a(f"v_cvt_pk_bf16_f32 {v(40+q)}, {v(SK+2*q)}, {v(SK+2*q+1)}")
        a(f"ds_write_b128 v56, {v(40,4)}")
        for q in range(4): a(f"v_add_f32 {v(SK+2*q)}, {v(SK+2*q)}, {v(SK+2*q+1)}")
        a(f"v_add_f32 {v(SK)}, {v(SK)}, {v(SK+2)}"); a(f"v_add_f32 {v(SK+4)}, {v(SK+4)}, {v(SK+6)}")
        a(f"v_add_f32 {v(Lsum)}, {v(SK)}, {v(SK+4)}")
        self.xhalf('v_add_f32', Lsum, T1)
        a(f"ds_write_b32 v58, {v(Lsum)}")
        self.barrier()
        self.stamp(6)
        PF, ACC2 = 64, 96
        for ks in range(8):
            a(f"ds_read_b128 {v(PF+4*ks,4)}, v57 offset:{ks*1024}")
        for w in range(8):
            a(f"ds_read_b32 {v(32+w)}, v59 offset:{w*128}")
        for ks in range(8):
            a(f"s_waitcnt lgkmcnt({min(15, 15-ks)})")
            for tt in range(2):
                cin = '0' if ks == 0 else v(ACC2+16*tt,16)
                a(f"v_mfma_f32_32x32x16_bf16 {v(ACC2+16*tt,16)}, {v(AFP+8*ks+4*tt,4)}, {v(PF+4*ks,4)}, {cin}")
        a(f"v_and_b32 v5, 15, {v(N32)}")
        a(f"s_and_b32 {s(t+2)}, {s(S_W)}, 1")
        a(f"s_lshl_b32 {s(t+2)}, {s(t+2)}, 3")
        a(f"v_xor_b32 v5, {s(t+2)}, v5")
        a(f"v_lshlrev_b32 v5, 4, v5")
        a(f"v_lshl_add_u32 v5, {v(HI)}, 3, v5")
        a(f"v_lshl_add_u32 v5, {v(N32)}, 10, v5")
        a(f"s_lshr_b32 {s(t+2)}, {s(S_W)}, 1")
        a(f"s_lshl_b32 {s(t+2)}, {s(t+2)}, 8")
        a(f"v_add_u32 v48, {s(t+2)}, v5")
        for x in range(1, 8): a(f"v_xor_b32 {v(48+x)}, {x<<4}, v48")
        for j in range(4):
            a(f"s_and_b32 {s(t+2)}, {s(S_W)}, 3")
            a(f"s_lshl_b32 {s(t+2)}, {s(t+2)}, 2")
            a(f"s_add_u32 {s(t+2)}, {s(t+2)}, {j}")
            a(f"s_lshl_b32 {s(t+2)}, {s(t+2)}, 4")
            a(f"v_lshlrev_b32 v5, 4, {v(V_L)}")
            a(f"v_xor_b32 v5, {s(t+2)}, v5")
            a(f"s_lshl_b32 {s(t+3)}, {s(S_W)}, 12")
            a(f"s_add_u32 {s(t+3)}, {s(t+3)}, {j*1024}")
            a(f"v_add_u32 {v(56+j)}, {s(t+3)}, v5")
        a("s_waitcnt lgkmcnt(0)")
        a("v_add_f32 v32, v32, v33"); a("v_add_f32 v34, v34, v35"); a("v_add_f32 v36, v36, v37"); a("v_add_f32 v38, v38, v39")
        a("v_add_f32 v32, v32, v34"); a("v_add_f32 v36, v36, v38")
        a(f"v_add_f32 {v(Lsum)}, v32, v36")
        a(f"v_lshlrev_b32 v6, 3, {v(N32)}")
        a(f"v_add_u32 v6, {MX}, v6")
        a(f"ds_write_b64 v6, {v(M,2)}")
        a(f"v_and_b32 v6, 3, {v(V_N16)}")
        a(f"s_lshl_b32 {s(t+2)}, {s(S_W)}, 5")
        a(f"s_add_u32 {s(t+2)}, {s(t+2)}, {MX}")
        a(f"v_lshlrev_b32 v7, 3, v6")
        a(f"v_add_u32 v7, {s(t+2)}, v7")
        a(f"v_lshlrev_b32 v6, 6, v6")
        a(f"v_lshl_add_u32 v6, {v(V_G4)}, 4, v6")
        a(f"s_lshl_b32 {s(t+2)}, {s(S_W)}, 8")
        a(f"s_lshl_b32 {s(t+3)}, {s(S_J)}, 11")
        a(f"s_add_u32 {s(t+2)}, {s(t+2)}, {s(t+3)}")
        a(f"s_add_u32 {s(t+2)}, {s(t+2)}, {BM}")
        a(f"s_lshl_b32 {s(t+3)}, {s(S_J)}, 15")
        a(f"s_lshl_b32 {s(t+4)}, {s(S_W)}, 12")
        a(f"s_add_u32 {s(t+3)}, {s(t+3)}, {s(t+4)}")
        a(f"s_add_u32 {s(t+3)}, {s(t+3)}, {BPART}")
        a(f"v_lshlrev_b32 v5, 4, {v(V_L)}")
        self.stamp(7)
        for tt in range(2):
            for q in range(4):
                r0 = ACC2 + 16*tt + 4*q
                a(f"v_cvt_pk_bf16_f32 {v(r0)}, {v(r0)}, {v(r0+1)}")
                a(f"v_cvt_pk_bf16_f32 {v(r0+1)}, {v(r0+2)}, {v(r0+3)}")
                a(f"ds_write_b64 {v(48+4*tt+q)}, {v(r0,2)}")
        a("s_waitcnt vmcnt(0)")
        self.barrier()
        OR = 32
        for j in range(4):
            a(f"ds_read_b128 {v(OR+4*j,4)}, {v(56+j)}")
        a(f"ds_read_b64 v[48:49], v7")
        a(f"v_mov_b32 v51, {s(S_T)}")
        a("s_waitcnt lgkmcnt(0)")
        for j in range(4):
            a(f"buffer_store_dwordx4 {v(OR+4*j,4)}, v5, {s(SRD_WS,4)}, {s(t+3)} offen offset:{j*1024} {SC}")
        self.checksum4(OR, 50, 10, SEL1, SEL2)
        self.set_exec(0x000f000f000f000f)
        a(f"buffer_store_dwordx4 v[48:51], v6, {s(SRD_WS,4)}, {s(t+2)} offen {SC}")
        self.set_exec(-1)
        self.stamp(8)
        WUVF = 164
        self.wo_dma_addr(192)
        DL, DM, DF, ACC = 64, 80, 84, 100
        a(f"s_lshl_b32 {s(t+4)}, {s(S_W)}, 19")
        a(f"s_lshl_b32 {s(t+2)}, {s(S_J)}, 8")
        a(f"s_add_u32 {s(t+4)}, {s(t+4)}, {s(t+2)}")
        a(f"s_add_u32 {s(t+4)}, {s(t+4)}, {BPART}")
        a(f"s_lshl_b32 {s(t+5)}, {s(S_W)}, 15")
        a(f"s_lshl_b32 {s(t+2)}, {s(S_J)}, 4")
        a(f"s_add_u32 {s(t+5)}, {s(t+5)}, {s(t+2)}")
        a(f"s_add_u32 {s(t+5)}, {s(t+5)}, {BM}")
        MLX = SCR + 8192
        a(f"v_and_b32 v6, 3, {v(V_N16)}")
        a(f"v_lshl_add_u32 v6, {v(V_G4)}, 2, v6")
        a(f"v_lshlrev_b32 v14, 2, v6")
        a(f"s_and_b32 {s(t+2)}, {s(S_W)}, 3")
        a(f"s_lshl_b32 {s(t+2)}, {s(t+2)}, 4")
        a(f"s_lshl_b32 {s(t+2)}, {s(t+2)}, 2")
        a(f"v_lshlrev_b32 v15, 4, {v(V_G4)}")
        a(f"v_add_u32 v15, {s(t+2)}, v15")
        a(f"v_add_u32 v13, 8, v15")
        a(f"v_lshlrev_b32 v7, 17, {v(V_G4)}")
        a(f"v_lshl_add_u32 v7, {v(V_N16)}, 4, v7")
        def ldp():
            for j in range(4):
                a(f"s_add_u32 {s(t+2)}, {s(t+4)}, {j*32768}")
                a(f"buffer_load_dwordx4 {v(DL+4*j,4)}, v7, {s(SRD_WS,4)}, {s(t+2)} offen {SC}")
        a(f"v_lshrrev_b32 v5, 2, {v(V_N16)}")
        a(f"v_bfe_u32 v6, {v(V_N16)}, 1, 1")
        a(f"s_lshl_b32 {s(t+2)}, {s(S_W)}, 1")
        a(f"v_or_b32 v6, {s(t+2)}, v6")
        a(f"v_lshlrev_b32 v8, 1, v5")
        a(f"v_xor_b32 v6, v6, v8")
        a(f"v_lshlrev_b32 v6, 4, v6")
        a(f"v_lshl_add_u32 v5, {v(V_G4)}, 3, v5")
        a(f"v_lshl_add_u32 v6, v5, 8, v6")
        a(f"v_and_b32 v5, 1, {v(V_N16)}")
        a(f"v_lshl_add_u32 v5, v5, 3, v6")
        a(f"v_add_u32 v5, {WUVIMG}, v5")
        a(f"v_xor_b32 v6, {8<<4}, v5")
        def wuv_frags(A0, A1):
            for ks in range(4):
                a(f"ds_read_b64_tr_b16 {v(WUVF+4*ks,2)}, {v(A0)} offset:{ks*8192}")
                a(f"ds_read_b64_tr_b16 {v(WUVF+4*ks+2,2)}, {v(A1)} offset:{ks*8192 + 1024}")
        if not self.c.wuv_late: wuv_frags(5, 6)
        else:
            a("v_mov_b32 v18, v5"); a("v_mov_b32 v19, v6")
            wuv_addr(20, 21)
        a(f"s_lshl_b32 {s(t+6)}, {s(S_W)}, 7")
        a(f"s_add_u32 {s(t+6)}, {s(t+6)}, {MLX}")
        a(f"v_lshl_add_u32 v10, {v(V_L)}, 3, {s(t+6)}")
        a(f"s_lshr_b32 {s(t+6)}, {s(S_W)}, 2")
        a(f"s_lshl_b32 {s(t+6)}, {s(t+6)}, 9")
        a(f"s_add_u32 {s(t+6)}, {s(t+6)}, {MLX}")
        a(f"v_lshl_add_u32 v11, {v(V_L)}, 3, {s(t+6)}")
        a(f"v_lshlrev_b32 v9, 11, {v(V_L)}")
        def ldm():
            a(f"buffer_load_dwordx4 {v(DM,4)}, v9, {s(SRD_WS,4)}, {s(t+5)} offen {SC}")
        def ldboth():
            ldm()
            self.set_exec(-1)
            ldp()
            self.set_exec(0xffff)
        nx = 0
        if self.c.wuv_late == 3:
            wuv_issue(20, 21)
            a("s_waitcnt vmcnt(4)")
        elif self.c.wo_when == 2:
            self.wo_dma(SRD_WO, 192, WOIMG_Y, 4608)
            a("s_waitcnt vmcnt(5)")
        elif self.c.e3ack: a("s_waitcnt vmcnt(0)")
        self.stamp(26)
        self.set_exec(0xffff)
        ldboth()
        if self.c.wuv_late == 1 or self.c.wo_when == 1:
            self.set_exec(-1)
            if self.c.wuv_late == 1: wuv_issue(20, 21); nx += 4
            if self.c.wo_when == 1: self.wo_dma(SRD_WO, 192, WOIMG_Y, 4608); nx += 5
            self.set_exec(0xffff)
        def chkm():
            a(f"v_cmp_eq_u32 vcc, {s(S_T)}, {v(DM+3)}")
        if self.c.e3il == 2:
            LC = a.newlabel('FC'); LD = a.newlabel('FD')
            a(f"s_mov_b32 {s(S_CNT)}, 0")
            a.label(LC)
            a("s_waitcnt vmcnt(4)" if self.c.e3early else "s_waitcnt vmcnt(0)")
            chkm()
            a("s_andn2_b32 s75, 0xffff, vcc_lo")
            self.set_exec(-1)
            a(f"ds_bpermute_b32 v12, v14, {v(DM+2)}")
            if self.c.e3early: a("s_waitcnt vmcnt(0)")
            self.checksum4(DL, 16, 32, SEL1, SEL2)
            a("s_waitcnt lgkmcnt(0)")
            a("v_cmp_ne_u32 vcc, v16, v12")
            a("s_and_b32 s76, vcc_lo, 0xf")
            a("s_or_b32 s75, s75, s76")
            a("s_lshr_b32 s76, vcc_lo, 12")
            a("s_and_b32 s76, s76, 0xf0")
            a("s_or_b32 s75, s75, s76")
            a("s_and_b32 s76, vcc_hi, 0xf")
            a("s_lshl_b32 s76, s76, 8")
            a("s_or_b32 s75, s75, s76")
            a("s_lshr_b32 s76, vcc_hi, 4")
            a("s_and_b32 s76, s76, 0xf000")
            a("s_or_b32 s77, s75, s76")
            a(f"s_cbranch_scc0 {LD}")
            a(f"s_add_u32 {s(S_CNT)}, {s(S_CNT)}, 1")
            a(f"s_cmp_ge_u32 {s(S_CNT)}, {self.c.spin_limit}")
            a(f"s_cbranch_scc1 {LD}")
            if self.c.e3sleep: a(f"s_sleep {self.c.e3sleep}")
            a(f"s_mov_b32 exec_lo, s77")
            a(f"s_mov_b32 exec_hi, 0")
            ldm()
            for j in range(4):
                LS_ = a.newlabel('MS')
                a(f"s_bfe_i32 s75, s77, {j | (1 << 16)}")
                a(f"s_bfe_i32 s76, s77, {(4+j) | (1 << 16)}")
                a(f"s_pack_ll_b32_b16 exec_lo, s75, s76")
                a(f"s_bfe_i32 s75, s77, {(8+j) | (1 << 16)}")
                a(f"s_bfe_i32 s76, s77, {(12+j) | (1 << 16)}")
                a(f"s_pack_ll_b32_b16 exec_hi, s75, s76")
                a(f"s_add_u32 {s(t+2)}, {s(t+4)}, {j*32768}")
                a(f"s_cbranch_execz {LS_}")
                a(f"buffer_load_dwordx4 {v(DL+4*j,4)}, v7, {s(SRD_WS,4)}, {s(t+2)} offen {SC}")
                a.label(LS_)
            a("s_waitcnt vmcnt(0)")
            self.set_exec(0xffff)
            a(f"s_branch {LC}")
            a.label(LD)
            self.set_exec(0xffff)
        elif self.c.e3mask:
            def ldmiss():
                a(f"s_andn2_b32 s77, 0xffff, vcc_lo")
                a(f"s_mov_b32 exec_lo, s77")
                ldm()
                for j in range(4):
                    LS_ = a.newlabel('MS')
                    a(f"s_bfe_i32 s75, s77, {j | (1 << 16)}")
                    a(f"s_bfe_i32 s76, s77, {(4+j) | (1 << 16)}")
                    a(f"s_pack_ll_b32_b16 exec_lo, s75, s76")
                    a(f"s_bfe_i32 s75, s77, {(8+j) | (1 << 16)}")
                    a(f"s_bfe_i32 s76, s77, {(12+j) | (1 << 16)}")
                    a(f"s_pack_ll_b32_b16 exec_hi, s75, s76")
                    a(f"s_add_u32 {s(t+2)}, {s(t+4)}, {j*32768}")
                    a(f"s_cbranch_execz {LS_}")
                    a(f"buffer_load_dwordx4 {v(DL+4*j,4)}, v7, {s(SRD_WS,4)}, {s(t+2)} offen {SC}")
                    a.label(LS_)
                self.set_exec(0xffff)
            self.retry_vec(ldmiss, chkm, f"s_waitcnt vmcnt({4+nx})", sleep=self.c.e3sleep, wait="s_waitcnt vmcnt(0)")
        elif not self.c.e3scal:
            self.retry_vec(ldboth, chkm, f"s_waitcnt vmcnt({4+nx})", sleep=self.c.e3sleep, wait="s_waitcnt vmcnt(4)")
            if self.c.wuv_late == 1:
                LW = a.newlabel('WL')
                a(f"s_cmp_lg_u32 {s(S_CNT)}, 0")
                a(f"s_cbranch_scc1 {LW}")
                a(f"s_waitcnt vmcnt({5 if self.c.wo_when == 1 else 0})")
                a.label(LW)
        else:
            LC = a.newlabel('EC'); LD = a.newlabel('ED'); LM = a.newlabel('EM'); LP = a.newlabel('EP'); LN = a.newlabel('EN')
            a(f"s_mov_b32 {s(S_CNT)}, 0")
            a.label(LC)
            a("s_waitcnt vmcnt(4)")
            chkm()
            a("s_cmp_eq_u64 vcc, exec")
            a(f"s_cbranch_scc1 {LD}")
            a(f"s_andn2_b32 s77, 0xffff, vcc_lo")
            a.label(LM)
            a(f"s_ff1_i32_b32 s76, s77")
            a(f"s_lshl_b32 s75, s76, 11")
            a(f"s_add_u32 s75, s75, {s(t+5)}")
            a.label(LP)
            a(f"s_add_u32 {s(S_CNT)}, {s(S_CNT)}, 1")
            a(f"s_cmp_ge_u32 {s(S_CNT)}, {self.c.spin_limit}")
            a(f"s_cbranch_scc1 {LD}")
            a(f"s_load_dwordx4 {s(S_PB,4)}, {s(P_WS,2)}, s75 glc")
            a("s_waitcnt lgkmcnt(0)")
            a(f"s_cmp_eq_u32 {s(S_PB+3)}, {s(S_T)}")
            a(f"s_cbranch_scc0 {LP}")
            a(f"s_bitset0_b32 s77, s76")
            a(f"s_cmp_lg_u32 s77, 0")
            a(f"s_cbranch_scc1 {LM}")
            ldboth()
            a(f"s_branch {LC}")
            a.label(LD)
        a(f"ds_write_b64 v10, {v(DM,2)}")
        self.set_exec(-1)
        self.stamp_cnt(27)
        self.stamp(14)
        il = self.c.e3il
        if self.c.wo_when == 0 and not il: self.wo_dma(SRD_WO, 192, WOIMG_Y, 4608)
        self.barrier()
        a(f"ds_read_b64 {v(DM,2)}, v11")
        if il != 2: a(f"ds_bpermute_b32 v12, v14, {v(DM+2)}")
        if self.c.wo_when == 0 and il and self.c.e3wo == 0: self.wo_dma(SRD_WO, 192, WOIMG_Y, 4608)
        a("s_waitcnt lgkmcnt(0)")
        if self.c.wuv_late: wuv_frags(18, 19)
        self.stamp(25)
        def capture(fn):
            rec = []; keep = self.a; self.a = rec.append
            try: fn(rec.append)
            finally: self.a = keep
            return rec
        def wpart1(a):
            a(f"v_mov_b32 v8, {v(DM)}")
            self.inrow('v_max_f32', 8); self.xrow('v_max_f32', 8, 9)
            a(f"v_sub_f32 v8, {v(DM)}, v8")
            a(f"v_exp_f32 v8, v8")
            a(f"v_mul_f32 v10, v8, {v(DM+1)}")
        def wpart2(a):
            self.inrow('v_add_f32', 10); self.xrow('v_add_f32', 10, 9)
            a(f"v_rcp_f32 v10, v10")
            a(f"v_mul_f32 v8, v8, v10")
            a(f"v_mov_b32_dpp v9, v8 row_shl:1 row_mask:0xf bank_mask:0xf")
            a(f"v_cvt_pk_bf16_f32 v8, v8, v9")
            a(f"ds_bpermute_b32 v52, v15, v8")
            a(f"ds_bpermute_b32 v53, v13, v8")
        if not il:
            wpart1(a); wpart2(a)
        elif il == 2:
            W = capture(wpart1) + capture(wpart2)
            P = capture(lambda a_: self.half_perm(DL, DF))
            while W or P:
                if W: a(W.pop(0))
                if W: a(W.pop(0))
                if P: a(P.pop(0))
        else:
            wpart1(a)
            a("s_waitcnt vmcnt(5)" if (self.c.wo_when == 0 and self.c.e3wo == 0) else "s_waitcnt vmcnt(0)")
            W = capture(wpart2)
            C = capture(lambda a_: self.checksum4(DL, 11, 32, SEL1, SEL2))
            P = capture(lambda a_: self.half_perm(DL, DF))
            while W or C:
                if W: a(W.pop(0))
                for _ in range(2):
                    if C: a(C.pop(0))
            for x in P: a(x)
        a(f"s_lshl_b32 {s(t+2)}, {s(S_W)}, 9")
        a(f"s_add_u32 {s(t+2)}, {s(t+2)}, {CW}")
        a(f"v_lshlrev_b32 v5, 5, {v(V_N16)}")
        a(f"v_add_u32 v5, {s(t+2)}, v5")
        a(f"v_lshlrev_b32 v6, 11, {v(V_RS)}")
        a(f"v_lshl_add_u32 v6, {v(V_G4)}, 4, v6")
        a(f"s_lshl_b32 {s(t+2)}, {s(S_W)}, 6")
        a(f"s_add_u32 {s(t+2)}, {s(t+2)}, {CW}")
        a(f"v_add_u32 v6, {s(t+2)}, v6")
        a("s_waitcnt lgkmcnt(0)")
        def chkp():
            self.checksum4(DL, 11, 32, SEL1, SEL2)
            a(f"v_cmp_eq_u32 vcc, v11, v12")
        if not il:
            self.retry_vec(ldp, chkp, "s_waitcnt vmcnt(5)" if self.c.wo_when == 0 else "s_waitcnt vmcnt(0)", sleep=1)
            self.stamp(9)
            self.half_perm(DL, DF)
        elif il == 2:
            self.stamp(9)
        else:
            LOK = a.newlabel('EK')
            a(f"v_cmp_eq_u32 vcc, v11, v12")
            a("s_cmp_eq_u64 vcc, exec")
            a(f"s_cbranch_scc1 {LOK}")
            ldp()
            self.retry_vec(ldp, chkp, "s_waitcnt vmcnt(0)", sleep=1)
            self.half_perm(DL, DF)
            a.label(LOK)
            self.stamp(9)
        self.half_mfma(ACC, 52, DF, True)
        if il and self.c.e3wo == 1: self.wo_dma(SRD_WO, 192, WOIMG_Y, 4608)
        a(f"v_lshlrev_b32 v7, 8, {v(V_RS)}")
        a(f"v_lshl_add_u32 v7, {v(V_G4)}, 3, v7")
        a(f"s_lshl_b32 {s(t+2)}, {s(S_W)}, 5")
        a(f"s_add_u32 {s(t+2)}, {s(t+2)}, {XL2}")
        a(f"v_add_u32 v7, {s(t+2)}, v7")
        self.afrag_addr(14, XL2)
        a(f"v_and_b32 v15, 1, {v(V_N16)}")
        a(f"v_lshlrev_b32 v15, 10, v15")
        a(f"v_lshrrev_b32 v13, 1, {v(V_N16)}")
        a(f"v_lshl_add_u32 v15, v13, 4, v15")
        a(f"s_add_u32 {s(t+3)}, {s(S_J)}, 128")
        a(f"s_lshl_b32 {s(t+3)}, {s(t+3)}, 11")
        a(f"s_lshl_b32 {s(t+2)}, {s(S_W)}, 7")
        a(f"s_add_u32 {s(t+3)}, {s(t+3)}, {s(t+2)}")
        a(f"s_add_u32 {s(t+3)}, {s(t+3)}, {OP}")
        a(f"v_mov_b32 v10, 0"); a(f"v_mov_b32 v11, 0.25")
        a(f"v_cndmask_b32 v10, v10, v11, {s(SEL2,2)}")
        a(f"v_mov_b32 v11, {s(S_T)}")
        self.set_exec(0xffff)
        self.write_acc_rows(ACC, 5)
        self.set_exec(-1)
        self.barrier()
        for q in range(4):
            a(f"ds_read_b128 {v(16+4*q,4)}, v6 offset:{q*512}")
        if il and self.c.e3wo == 2: self.wo_dma(SRD_WO, 192, WOIMG_Y, 4608)
        a("s_waitcnt lgkmcnt(0)")
        for j in range(4):
            a(f"v_add_f32 {v(16+j)}, {v(16+j)}, {v(20+j)}")
            a(f"v_add_f32 {v(24+j)}, {v(24+j)}, {v(28+j)}")
        for j in range(4):
            a(f"v_add_f32 {v(16+j)}, {v(16+j)}, {v(24+j)}")
        a("v_cvt_pk_bf16_f32 v52, v16, v17"); a("v_cvt_pk_bf16_f32 v53, v18, v19")
        self.set_exec(0x0011001100110011)
        a("ds_write_b64 v7, v[52:53]")
        self.set_exec(-1)
        self.barrier()
        self.afrag_reads(16, 14)
        a("s_waitcnt lgkmcnt(0)")
        self.chain4(64, 16, WUVF)
        self.pack_pair(64, 8, 9, 12, 13)
        self.set_exec(0xffff)
        a(f"buffer_store_dwordx4 v[8:11], v15, {s(SRD_WS,4)}, {s(t+3)} offen {SC}")
        self.set_exec(-1)
        self.stamp(10)
        a("s_waitcnt vmcnt(1)")
        a("s_barrier")
        self.p5(1, WOIMG_Y, 4608, 11, 12)
        self.final_reduce(1)

    def p5(self, branch, wbase, RS, st_x, st_pub):
        a = self.a; t = ST
        WF, WFX, AF, G = 132, 148, 16, 48
        a(f"v_lshrrev_b32 v14, 2, {v(V_N16)}")
        a(f"v_lshlrev_b32 v14, 11, v14")
        a(f"v_and_b32 v15, 1, {v(V_N16)}")
        a(f"v_lshl_add_u32 v14, v15, 10, v14")
        a(f"v_lshl_add_u32 v14, {v(V_G4)}, 5, v14")
        a(f"v_and_b32 v13, 2, {v(V_N16)}")
        a(f"v_lshl_add_u32 v14, v13, 3, v14")
        self.hshift5(t+5)
        a(f"s_add_u32 {s(t+4)}, {s(t+5)}, {branch*32}")
        a(f"s_lshl_b32 {s(t+4)}, {s(t+4)}, 13")
        a(f"s_lshl_b32 {s(t+2)}, {s(S_W)}, 7")
        a(f"s_add_u32 {s(t+4)}, {s(t+4)}, {s(t+2)}")
        a(f"s_add_u32 {s(t+4)}, {s(t+4)}, {OP}")
        G2 = 52
        def ldt(st=0):
            a(f"buffer_load_dwordx4 {v(G2 if st else G,4)}, v14, {s(SRD_WS,4)}, {s(t+4)} offen {SC}")
        def chkt(st=0):
            a(f"v_cmp_eq_u32 vcc, {s(S_T)}, {v((G2 if st else G)+3)}")
        G3 = 56
        def donet(st):
            for r in range(3): a(f"v_mov_b32 {v(G3+r)}, {v((G2 if st else G)+r)}")
        ldt()
        self.wo_frags(WF, WFX, wbase, RS)
        a(f"v_lshlrev_b32 v7, 8, v15")
        a(f"v_lshl_add_u32 v7, {v(V_G4)}, 3, v7")
        a(f"v_lshl_add_u32 v7, v13, 1, v7")
        a(f"s_lshl_b32 {s(t+2)}, {s(S_W)}, 5")
        a(f"s_add_u32 {s(t+2)}, {s(t+2)}, {XL}")
        a(f"v_add_u32 v7, {s(t+2)}, v7")
        self.afrag_addr(6, XL)
        a(f"v_mul_u32_u24 v15, {36*4096}, v15")
        a(f"v_lshrrev_b32 v13, 1, {v(V_N16)}")
        a(f"v_lshl_add_u32 v15, v13, 4, v15")
        a(f"s_mul_i32 {s(t+6)}, {s(S_RQ)}, {9*4096}")
        a(f"s_lshl_b32 {s(t+2)}, {s(t+5)}, 7")
        a(f"s_add_u32 {s(t+6)}, {s(t+6)}, {s(t+2)}")
        a(f"s_add_u32 {s(t+6)}, {s(t+6)}, {OUTP + branch*72*4096}")
        a(f"s_add_u32 {s(t+7)}, {s(t+6)}, {8*4096}")
        a(f"s_lshl_b32 {s(t+2)}, {s(S_W)}, 12")
        a(f"s_add_u32 {s(t+6)}, {s(t+6)}, {s(t+2)}")
        a(f"v_mov_b32 v105, {s(S_T)}"); a(f"v_mov_b32 v107, {s(S_T)}")
        a(f"v_mov_b32 v109, {s(S_T)}"); a(f"v_mov_b32 v111, {s(S_T)}")
        if self.c.pipep5:
            self.poll_pipe(ldt, chkt, donet, 1, self.c.stagp5)
        else:
            self.retry_vec(ldt, chkt, "s_waitcnt vmcnt(0)", sleep=self.c.sleep5)
        if self.c.pipep5: G = G3
        self.stamp(24)
        self.stamp_cnt(21)
        if self.c.dbg:
            a("s_waitcnt lgkmcnt(0)")
            a(f"s_lshl_b32 {s(t+8)}, s2, 3")
            a(f"s_add_u32 {s(t+8)}, {s(t+8)}, {s(S_W)}")
            a(f"s_lshl_b32 {s(t+8)}, {s(t+8)}, 12")
            a(f"s_add_u32 {s(t+8)}, {s(t+8)}, 0x1000000")
            a(f"v_lshlrev_b32 v12, 6, {v(V_L)}")
            for q in range(4):
                a(f"buffer_store_dwordx4 {v(WF+4*q,4)}, v12, {s(SRD_WS,4)}, {s(t+8)} offen offset:{q*16}")
        a(f"v_mov_b32_dpp v9, {v(G+2)} quad_perm:[2,3,0,1] row_mask:0xf bank_mask:0xf")
        a(f"v_cndmask_b32 v8, {v(G+2)}, v9, {s(SEL2,2)}")
        a(f"v_cndmask_b32 v9, v9, {v(G+2)}, {s(SEL2,2)}")
        a(f"v_max_f32_dpp v10, v8, v8 row_ror:4 row_mask:0xf bank_mask:0xf")
        a(f"v_max_f32_dpp v10, v10, v10 row_ror:8 row_mask:0xf bank_mask:0xf")
        a(f"v_sub_f32 v8, v8, v10")
        a(f"v_exp_f32 v8, v8")
        a(f"v_mul_f32 v9, v8, v9")
        a(f"v_mul_f32 v10, v8, {v(G)}")
        a(f"v_mul_f32 v11, v8, {v(G+1)}")
        for r in (4, 8):
            for x in (9, 10, 11):
                a(f"v_add_f32_dpp {v(x)}, {v(x)}, {v(x)} row_ror:{r} row_mask:0xf bank_mask:0xf")
        a("v_rcp_f32 v9, v9")
        a("v_mul_f32 v10, v10, v9"); a("v_mul_f32 v11, v11, v9")
        a("v_cvt_pk_bf16_f32 v10, v10, v11")
        self.set_exec(0x000f000f000f000f)
        a("ds_write_b32 v7, v10")
        self.set_exec(-1)
        self.barrier()
        self.stamp(st_x)
        self.afrag_reads(AF, 6)
        a("s_waitcnt lgkmcnt(0)")
        self.chain4(64, AF, WF)
        LO = a.newlabel('TO')
        a(f"s_cmp_lg_u32 {s(S_W)}, 0")
        a(f"s_cbranch_scc1 {LO}")
        self.chain4(68, AF, WFX)
        self.pack_pair(68, 108, 110, 12, 13)
        self.set_exec(0xffff)
        a(f"buffer_store_dwordx4 v[108:111], v15, {s(SRD_WS,4)}, {s(t+7)} offen {SC}")
        self.set_exec(-1)
        a.label(LO)
        self.pack_pair(64, 104, 106, 12, 13)
        self.set_exec(0xffff)
        a(f"buffer_store_dwordx4 v[104:107], v15, {s(SRD_WS,4)}, {s(t+6)} offen {SC}")
        self.set_exec(-1)
        self.stamp(st_pub)

    def build(self):
        a = self.a; c = self.c
        self.prologue()
        self.p1_loads()
        self.srds_rest()
        if c.warm:
            a("s_lshr_b32 s72, s2, 3")
            a("s_lshl_b32 s72, s72, 3")
            a(f"s_add_u32 s72, s72, {s(S_W)}")
            a("s_cmp_ge_u32 s72, WARM_NSEG")
            a("s_cbranch_scc1 L_WARM_RET")
            a("s_lshl_b32 s72, s72, 2")
            a("s_getpc_b64 s[74:75]")
            a.label("L_WARM_PC")
            a("s_add_u32 s74, s74, s72")
            a("s_addc_u32 s75, s75, 0")
            a("s_add_u32 s74, s74, L_WARM_TAB-L_WARM_PC")
            a("s_addc_u32 s75, s75, 0")
            a("s_mov_b64 exec, 0")
            a("s_setpc_b64 s[74:75]")
            a.label("L_WARM_RET")
            a("s_mov_b64 exec, -1")
        a(f"s_cmp_eq_u32 {s(S_TYPE)}, 0")
        a("s_cbranch_scc0 L_Y0")
        self.x_main()
        a.label("L_Y0")
        self.y_main()
        a.label("L_END")
        self.stamp_dump()
        a.label("L_EXIT")
        a("s_endpgm")
        body = a.finalize()
        hdr = open(os.path.join(os.path.dirname(os.path.abspath(__file__)), 'header.txt')).read()
        out = hdr
        out += f"; @launch grid=(256,1,1) block=(512,1,1) lds={LDS_BYTES}\n"
        out += f""".amdgcn_target "amdgcn-amd-amdhsa--gfx950"
.text
.globl {NAME}_kernel
.p2align 8
.type {NAME}_kernel,@function
{NAME}_kernel:
"""
        out += body
        out += f""".section .rodata,"a"
.p2align 6
.amdhsa_kernel {NAME}_kernel
  .amdhsa_next_free_vgpr 256
  .amdhsa_next_free_sgpr 102
  .amdhsa_accum_offset 256
  .amdhsa_group_segment_fixed_size 0
  .amdhsa_kernarg_size 112
  .amdhsa_user_sgpr_count 2
  .amdhsa_user_sgpr_kernarg_segment_ptr 1
  .amdhsa_system_sgpr_workgroup_id_x 1
.end_amdhsa_kernel
"""
        if c.warm: out = self.add_hops(out, c.warm)
        return out

    def add_hops(self, txt, gran):
        import subprocess, re
        def sizes(t):
            open('_w.s', 'w').write(t)
            subprocess.run(["clang", "-x", "assembler", "-target", "amdgcn-amd-amdhsa", "-mcpu=gfx950", "-c", "_w.s", "-o", "_w.o"], check=True)
            d = subprocess.run(["llvm-objdump", "-d", "--mcpu=gfx950", "_w.o"], capture_output=True, text=True).stdout
            return [int(m.group(1), 16) for m in re.finditer(r"// ([0-9A-F]{12}):", d)]
        lines = txt.split('\n')
        def isins(l):
            t = l.strip()
            return l.startswith('    ') and t and not t.startswith(';') and not t.startswith('.') and not t.endswith(':')
        k0 = next(i for i, l in enumerate(lines) if l.strip().startswith(NAME + '_kernel:'))
        kend = max(i for i, l in enumerate(lines) if l.strip() == 's_endpgm')
        probe = '\n'.join(lines[:kend + 1] + ['L_WARM_TAB:', '    s_endpgm'] + lines[kend + 1:]).replace('WARM_NSEG', '0x12345')
        ad = sizes(probe)
        idx = [i for i in range(k0, kend + 1) if isins(lines[i])]
        assert len(ad) == len(idx) + 1, (len(ad), len(idx))
        size = {i: ad[n + 1] - ad[n] for n, i in enumerate(idx)}
        ret = next(i for i, l in enumerate(lines) if l.strip() == 'L_WARM_RET:')
        out = []; addr = 0; hops = []; last = None
        for i, l in enumerate(lines[:kend + 1]):
            if i in size:
                if i > ret + 1:
                    if last is None: last = addr // gran
                    elif addr // gran != last and i != kend:
                        last = addr // gran
                        out.append(f'@@HOP{len(hops)}'); hops.append(addr); addr += 4
                addr += size[i]
            out.append(l)
        M = len(hops); K = (M + 255) // 256; nseg = (M + K - 1) // K
        res = []
        for l in out:
            if l.startswith('@@HOP'):
                h = int(l[5:])
                tgt = f'L_HOP{h+1}' if ((h + 1) % K and h + 1 < M) else 'L_WARM_RET'
                res.append(f'L_HOP{h}:'); res.append(f'    s_cbranch_execz {tgt}')
            else: res.append(l)
        res.append('L_WARM_TAB:')
        for g in range(nseg): res.append(f'    s_branch L_HOP{g*K}')
        res.append('    s_endpgm')
        print('hops', M, 'K', K, 'nseg', nseg, 'code bytes', addr)
        return '\n'.join(res + lines[kend + 1:]).replace('WARM_NSEG', str(nseg))

if __name__ == '__main__':
    cfg = Cfg()
    outp = f"cdna_kernels/{NAME}.s"
    for arg in sys.argv[1:]:
        if arg.startswith('-o='): outp = arg[3:]
        elif '=' in arg:
            k, val = arg.split('=')
            setattr(cfg, k, val.replace('+', ' ') if isinstance(getattr(cfg, k), str) else type(getattr(cfg, k))(int(val)))
    g = Gen(cfg)
    txt = g.build()
    open(outp, 'w').write(txt)
    print("wrote", outp, "lines", txt.count('\n'), "nops inserted", g.a.ninserted)
```

```python
import sys, os, struct
sys.path.insert(0, os.path.dirname(os.path.abspath(__file__)))
from asmlib import Asm, v, s

NAME = "concat_heads__sliding_block_cached__compressed_kv_cla__decode"

class Cfg:
    nt_stream = True
    nt_w = True
    n1_ckv = 4
    n1_k = 0
    n2_k = 0
    n3_k = 0
    spin_limit = 300000
    sleep5 = 1
    e3scal = 0
    xwin = 0
    xwinv = 1
    ntwo = 1
    ntuk = 1
    kx = 4
    qabs_first = ''
    touch = 0
    pipe5 = 1
    stag5 = 10
    pipep5 = 0
    stagp5 = 8
    ldsdbg = 0
    k_after = 4
    early_qa = 1
    n4_k = 0
    e3ack = 1
    e3sleep = 4
    hs = 6
    hsy = 4
    wuk_late = 0
    hs5 = 4
    ackdbg = 0
    xsplit = 0
    dbg = 0
    stamps = False

Q1   = 0x000000
QABS = 0x080000
QM   = 0x090000
EPOCH= 0x0A0000
DONE = 0x0A1000
OP   = 0x100000
OM   = 0x180000
BM   = 0x1C0000
BPART= 0x200000
OUTP = 0x600000
STMP = 0x900000
WS_SIZE = 268435456

IMG = 0
SCR = 131072
R1 = SCR; R2 = SCR + 8192; QL = SCR + 12288; QAL = SCR + 12800
QIMG = SCR
SX = SCR; MX = SCR + 16384; LS = SCR + 17408; PB = SCR + 18432
OW = SCR; ML = SCR + 8192
CW = SCR; XL2 = SCR + 4096
XL = SCR + 12288 + 1024
WUVIMG = IMG + 32768; WOIMG_Y = IMG + 65536
LDS_BYTES = 163840

S_W = 3; S_J = 4; S_TYPE = 5; S_H = 6; S_RQ = 7; S_T = 8
S_B = 9; S_S = 10; S_G = 11
S_PLO = 12; S_PHI = 13; S_SC = 14; S_BASE = 15
P_AX, P_AK, P_AV, P_AWQ, P_AWO, P_BX, P_CKV, P_BWQ = 16, 18, 20, 22, 24, 26, 28, 30
P_WUK, P_WUV, P_BWO, P_OUT = 32, 34, 36, 38
P_DBG, P_WS0 = 40, 42
SRD_X = 44; SRD_W = 48; SRD_ST = 52; SRD_V = 56; SRD_WO = 60; SRD_U = 64
SRD_WS = 80; SRD_OUT = 84; P_WS = 88; SEL1 = 0; SEL2 = 90
ST = 92
S_CNT = 5
S_PB = 16
V_L, V_G4, V_N16, V_RS = 1, 2, 3, 4
SC = "sc0 sc1"
SCALE_LOG2E = 0.08838834764831845 * 1.4426950408889634
TAGINC = 0x9e3779b9
def f32hex(x): return '0x%08x' % struct.unpack('<I', struct.pack('<f', x))[0]

class Gen:
    def __init__(self, cfg):
        self.c = cfg
        self.a = Asm()

    def srd(self, dst, ptr, size):
        a = self.a
        a(f"s_mov_b32 {s(dst)}, {s(ptr)}")
        a(f"s_and_b32 {s(dst+1)}, {s(ptr+1)}, 0xffff")
        a(f"s_mov_b32 {s(dst+2)}, {size}")
        a(f"s_mov_b32 {s(dst+3)}, 0x20000")
    def srd_sel(self, dst, ptrX, ptrY, sizeX, sizeY):
        a = self.a
        a(f"s_cmp_eq_u32 {s(S_TYPE)}, 0")
        a(f"s_cselect_b32 {s(dst)}, {s(ptrX)}, {s(ptrY)}")
        a(f"s_cselect_b32 {s(dst+1)}, {s(ptrX+1)}, {s(ptrY+1)}")
        if sizeX == sizeY:
            a(f"s_mov_b32 {s(dst+2)}, {sizeX}")
        else:
            a(f"s_mov_b32 {s(dst+2)}, {sizeY}")
            a(f"s_cselect_b32 {s(dst+2)}, {sizeX}, {s(dst+2)}")
        a(f"s_and_b32 {s(dst+1)}, {s(dst+1)}, 0xffff")
        a(f"s_mov_b32 {s(dst+3)}, 0x20000")
    def hshift(self, dst):
        self.a(f"s_add_u32 {s(dst)}, {s(S_H)}, s79")
        self.a(f"s_and_b32 {s(dst)}, {s(dst)}, 31")
    def hshift5(self, dst):
        self.a(f"s_add_u32 {s(dst)}, {s(S_H)}, {self.c.hs5}")
        self.a(f"s_and_b32 {s(dst)}, {s(dst)}, 31")
    def set_exec(self, mask):
        a = self.a
        if mask == -1:
            a("s_mov_b64 exec, -1"); return
        a(f"s_mov_b32 exec_lo, 0x{mask & 0xffffffff:08x}")
        a(f"s_mov_b32 exec_hi, 0x{mask >> 32:08x}")
    def ntw(self): return ' nt' if self.c.nt_w else ''
    def nts(self): return ' nt' if self.c.nt_stream else ''

    def stamp(self, idx):
        if not self.c.stamps: return
        a = self.a
        a(f"s_memrealtime vcc")
        a(f"s_waitcnt lgkmcnt(0)")
        a(f"v_writelane_b32 v0, vcc_lo, {idx}")
    def stamp_cnt(self, idx):
        if not self.c.stamps: return
        self.a(f"v_writelane_b32 v0, {s(S_CNT)}, {idx}")
    def stamp_dump(self):
        if not self.c.stamps: return
        a = self.a
        a(f"s_lshl_b32 s98, s2, 3")
        a(f"s_add_u32 s98, s98, {s(S_W)}")
        a(f"s_lshl_b32 s98, s98, 7")
        a(f"s_add_u32 s98, s98, {STMP}")
        a(f"v_lshlrev_b32 v58, 2, {v(V_L)}")
        self.set_exec(0xffffffff)
        a(f"buffer_store_dword v0, v58, {s(SRD_WS,4)}, s98 offen")
        self.set_exec(-1)
    def tid_shl(self, dst, sh, add=0, st=None):
        a = self.a
        st = ST + 9 if st is None else st
        a(f"s_lshl_b32 {s(st)}, {s(S_W)}, {6+sh}")
        if add: a(f"s_add_u32 {s(st)}, {s(st)}, {add}")
        a(f"v_lshl_add_u32 {v(dst)}, {v(V_L)}, {sh}, {s(st)}")

    def half_perm(self, L, F):
        a = self.a
        for i in range(4):
            for jj in range(2):
                lo = L + (2*jj)*4 + i; hi = L + (2*jj+1)*4 + i
                a(f"v_perm_b32 {v(F + (2*i)*2 + jj)}, {v(hi)}, {v(lo)}, {s(S_PLO)}")
                a(f"v_perm_b32 {v(F + (2*i+1)*2 + jj)}, {v(hi)}, {v(lo)}, {s(S_PHI)}")
    def full_perm(self, L, F):
        a = self.a
        for i in range(4):
            for jj in range(4):
                lo = L + (2*jj)*4 + i; hi = L + (2*jj+1)*4 + i
                a(f"v_perm_b32 {v(F + (2*i)*4 + jj)}, {v(hi)}, {v(lo)}, {s(S_PLO)}")
                a(f"v_perm_b32 {v(F + (2*i+1)*4 + jj)}, {v(hi)}, {v(lo)}, {s(S_PHI)}")
    def half_mfma(self, ACC, AF, F, first):
        a = self.a
        for c in range(8):
            cin = '0' if first else v(ACC + 4*c, 4)
            a(f"v_mfma_f32_16x16x16_bf16 {v(ACC+4*c,4)}, {v(AF,2)}, {v(F+2*c,2)}, {cin}")
    def xrow(self, op, x, t):
        a = self.a
        a(f"v_mov_b32 {v(t)}, {v(x)}")
        a(f"v_permlane16_swap_b32 {v(x)}, {v(t)}")
        a(f"{op} {v(x)}, {v(x)}, {v(t)}")
        a(f"v_mov_b32 {v(t)}, {v(x)}")
        a(f"v_permlane32_swap_b32 {v(x)}, {v(t)}")
        a(f"{op} {v(x)}, {v(x)}, {v(t)}")
    def xrow_multi(self, op, xs, ts):
        a = self.a
        for sw in ('v_permlane16_swap_b32', 'v_permlane32_swap_b32'):
            for x, t in zip(xs, ts): a(f"v_mov_b32 {v(t)}, {v(x)}")
            for x, t in zip(xs, ts): a(f"{sw} {v(x)}, {v(t)}")
            for x, t in zip(xs, ts): a(f"{op} {v(x)}, {v(x)}, {v(t)}")
    def xhalf(self, op, x, t):
        a = self.a
        a(f"v_mov_b32 {v(t)}, {v(x)}")
        a(f"v_permlane32_swap_b32 {v(x)}, {v(t)}")
        a(f"{op} {v(x)}, {v(x)}, {v(t)}")
    def inrow(self, op, x):
        a = self.a
        for r in (8, 4, 2, 1):
            a(f"{op}_dpp {v(x)}, {v(x)}, {v(x)} row_ror:{r} row_mask:0xf bank_mask:0xf")
    def barrier(self):
        self.a("s_waitcnt lgkmcnt(0)")
        self.a("s_barrier")

    def spin_scalar(self, load_fn, ok_fn, sleep=0):
        a = self.a
        L = a.newlabel('SP'); D = a.newlabel('SD')
        a(f"s_mov_b32 {s(S_CNT)}, 0")
        a.label(L)
        load_fn()
        a("s_waitcnt lgkmcnt(0)")
        ok_fn()
        a(f"s_cbranch_scc1 {D}")
        if sleep: a(f"s_sleep {sleep}")
        a(f"s_add_u32 {s(S_CNT)}, {s(S_CNT)}, 1")
        a(f"s_cmp_lt_u32 {s(S_CNT)}, {self.c.spin_limit}")
        a(f"s_cbranch_scc1 {L}")
        a.label(D)

    def s_alltags(self, regs, t0, t1):
        a = self.a
        a(f"s_xor_b32 {s(t0)}, {s(regs[0])}, {s(S_T)}")
        for r in regs[1:]:
            a(f"s_xor_b32 {s(t1)}, {s(r)}, {s(S_T)}")
            a(f"s_or_b32 {s(t0)}, {s(t0)}, {s(t1)}")
        a(f"s_cmp_eq_u32 {s(t0)}, 0")

    def retry_vec(self, load_fn, check_fn, first_wait, sleep=0, wait="s_waitcnt vmcnt(0)"):
        a = self.a
        C = a.newlabel('RC'); D = a.newlabel('RD')
        a(f"s_mov_b32 {s(S_CNT)}, 0")
        a(first_wait)
        a.label(C)
        check_fn()
        a("s_cmp_eq_u64 vcc, exec")
        a(f"s_cbranch_scc1 {D}")
        a(f"s_add_u32 {s(S_CNT)}, {s(S_CNT)}, 1")
        a(f"s_cmp_ge_u32 {s(S_CNT)}, {self.c.spin_limit}")
        a(f"s_cbranch_scc1 {D}")
        if sleep: a(f"s_sleep {sleep}")
        load_fn()
        a(wait)
        a(f"s_branch {C}")
        a.label(D)

    def poll_pipe(self, load_fn, check_fn, done_fn, nloads, stagger, first_issued=True):
        a = self.a
        L0 = a.newlabel('PP'); D0 = a.newlabel('PD'); D1 = a.newlabel('PD'); E = a.newlabel('PE')
        a(f"s_mov_b32 {s(S_CNT)}, 0")
        if stagger: a(f"s_sleep {stagger}")
        load_fn(1)
        a.label(L0)
        for k, D in ((0, D0), (1, D1)):
            a(f"s_waitcnt vmcnt({nloads})")
            check_fn(k)
            a("s_cmp_eq_u64 vcc, exec")
            a(f"s_cbranch_scc1 {D}")
            load_fn(k)
        a(f"s_add_u32 {s(S_CNT)}, {s(S_CNT)}, 1")
        a(f"s_cmp_lt_u32 {s(S_CNT)}, {self.c.spin_limit}")
        a(f"s_cbranch_scc1 {L0}")
        a("s_waitcnt vmcnt(0)")
        a.label(D0)
        done_fn(0)
        a(f"s_branch {E}")
        a.label(D1)
        done_fn(1)
        a.label(E)

    def acc_rows_addr(self, dst, base):
        a = self.a
        a(f"v_and_b32 {v(dst)}, 1, {v(V_G4)}")
        a(f"v_lshlrev_b32 {v(dst)}, 9, {v(dst)}")
        a(f"v_lshl_add_u32 {v(dst)}, {v(V_N16)}, 5, {v(dst)}")
        a(f"s_lshl_b32 {s(ST)}, {s(S_W)}, 10")
        a(f"s_add_u32 {s(ST)}, {s(ST)}, {base}")
        a(f"v_add_u32 {v(dst)}, {s(ST)}, {v(dst)}")
    def write_acc_rows(self, ACC, addr):
        for c in range(0, 8, 2):
            self.a(f"ds_write2_b32 {v(addr)}, {v(ACC+4*c)}, {v(ACC+4*c+4)} offset0:{c} offset1:{c+1}")

    def checksum4(self, Q, X, t, SEL1, SEL2):
        a = self.a
        for j in range(4):
            q = Q + 4*j
            a(f"v_bitop3_b32 {v(t+j)}, {v(q)}, {v(q+1)}, {v(q+2)} bitop3:0x96")
        for j in range(4):
            a(f"v_xor_b32 {v(t+j)}, {v(t+j)}, {v(Q+4*j+3)}")
        for r in (8, 4, 2, 1):
            for j in range(4):
                a(f"v_xor_b32_dpp {v(t+j)}, {v(t+j)}, {v(t+j)} row_ror:{r} row_mask:0xf bank_mask:0xf")
        a(f"v_cndmask_b32 {v(t)}, {v(t)}, {v(t+1)}, {s(SEL1,2)}")
        a(f"v_cndmask_b32 {v(t+2)}, {v(t+2)}, {v(t+3)}, {s(SEL1,2)}")
        a(f"v_cndmask_b32 {v(X)}, {v(t)}, {v(t+2)}, {s(SEL2,2)}")

    def prologue(self):
        a = self.a
        if self.c.stamps: a("s_memrealtime s[100:101]")
        a("s_cmp_ge_u32 s2, 256")
        a("s_cbranch_scc1 L_EXIT")
        a("s_load_dwordx16 s[16:31], s[0:1], 0")
        a("s_load_dwordx8 s[32:39], s[0:1], 64")
        a("s_load_dwordx4 s[40:43], s[0:1], 96")
        a("v_lshrrev_b32 v5, 6, v0")
        a(f"v_and_b32 {v(V_L)}, 63, v0")
        a(f"v_readfirstlane_b32 {s(S_W)}, v5")
        a(f"v_lshrrev_b32 {v(V_G4)}, 4, {v(V_L)}")
        a(f"v_and_b32 {v(V_N16)}, 15, {v(V_L)}")
        a(f"v_bfe_u32 {v(V_RS)}, {v(V_N16)}, 2, 1")
        a(f"s_and_b32 {s(ST+2)}, s2, 7")
        a(f"s_lshr_b32 {s(ST+3)}, s2, 3")
        if self.c.xsplit:
            a(f"s_lshr_b32 {s(S_TYPE)}, {s(ST+2)}, 2")
            a(f"s_and_b32 {s(ST+2)}, {s(ST+2)}, 3")
            a(f"s_lshl_b32 {s(S_J)}, {s(ST+2)}, 5")
            a(f"s_add_u32 {s(S_J)}, {s(S_J)}, {s(ST+3)}")
        else:
            a(f"s_and_b32 {s(S_TYPE)}, {s(ST+3)}, 1")
            a(f"s_lshr_b32 {s(ST+3)}, {s(ST+3)}, 1")
            a(f"s_lshl_b32 {s(S_J)}, {s(ST+2)}, 4")
            a(f"s_add_u32 {s(S_J)}, {s(S_J)}, {s(ST+3)}")
        a(f"s_lshr_b32 {s(S_H)}, {s(S_J)}, 2")
        a(f"s_and_b32 {s(S_RQ)}, {s(S_J)}, 3")
        a(f"s_cmp_eq_u32 {s(S_TYPE)}, 0")
        a(f"s_cselect_b32 s79, {self.c.hs}, {self.c.hsy}")
        a(f"s_mov_b32 {s(S_PLO)}, 0x05040100")
        a(f"s_mov_b32 {s(S_PHI)}, 0x07060302")
        a(f"s_mov_b32 {s(S_SC)}, {f32hex(SCALE_LOG2E)}")
        a(f"v_lshlrev_b32 v5, 15, {v(V_G4)}")
        a(f"v_lshl_add_u32 v5, {v(V_N16)}, 4, v5")
        a(f"v_mul_u32_u24 v6, 1152, {v(V_RS)}")
        a(f"v_lshl_add_u32 v6, {v(V_G4)}, 3, v6")
        a("s_waitcnt lgkmcnt(0)")
        a(f"s_load_dword {s(S_T)}, {s(P_WS0,2)}, {EPOCH}")
        a(f"s_mov_b64 {s(P_WS,2)}, {s(P_WS0,2)}")
        a(f"s_mov_b32 {s(SEL1)}, 0xaaaaaaaa"); a(f"s_mov_b32 {s(SEL1+1)}, 0xaaaaaaaa")
        a(f"s_mov_b32 {s(SEL2)}, 0xcccccccc"); a(f"s_mov_b32 {s(SEL2+1)}, 0xcccccccc")
        self.srd_sel(SRD_X, P_BX, P_AX, 2304, 2304)
        self.srd_sel(SRD_W, P_BWQ, P_AWQ, 4718592, 4718592)
        if self.c.stamps:
            a("v_mov_b32 v0, 0")
            a("v_writelane_b32 v0, s100, 31")
        self.stamp(0)

    def srds_rest(self):
        self.srd(SRD_WS, P_WS0, WS_SIZE)
        self.srd_sel(SRD_ST, P_AK, P_CKV, 67108864, 16777216)
        self.srd_sel(SRD_V, P_AV, P_WUV, 67108864, 4194304)
        self.srd(SRD_U, P_WUK, 4194304)
        self.srd_sel(SRD_WO, P_AWO, P_BWO, 4718592, 4718592)
        self.srd(SRD_OUT, P_OUT, 4608)

    XF, XF2, L1, L2, F1, ACC1 = 16, 18, 20, 36, 52, 68
    def p1_loads(self):
        a = self.a
        V_WQ, V_X = 5, 6
        def loads(u_const, XFr, Lr):
            t = ST
            a(f"s_mul_i32 {s(t)}, {s(S_RQ)}, 144")
            if u_const is not None:
                a(f"s_add_u32 {s(t)}, {s(t)}, {16*u_const}")
            else:
                a(f"s_lshl_b32 {s(t+1)}, {s(S_W)}, 4")
                a(f"s_add_u32 {s(t)}, {s(t)}, {s(t+1)}")
            a(f"s_lshl_b32 {s(t+1)}, {s(t)}, 1")
            a(f"buffer_load_dwordx2 {v(XFr,2)}, {v(V_X)}, {s(SRD_X,4)}, {s(t+1)} offen")
            a(f"s_lshl_b32 {s(t)}, {s(t)}, 13")
            self.hshift(t+1)
            a(f"s_lshl_b32 {s(t+1)}, {s(t+1)}, 8")
            a(f"s_add_u32 {s(t)}, {s(t)}, {s(t+1)}")
            for jr in range(4):
                a(f"buffer_load_dwordx4 {v(Lr+4*jr,4)}, {v(V_WQ)}, {s(SRD_W,4)}, {s(t)} offen{self.ntw()}")
                if jr < 3: a(f"s_add_u32 {s(t)}, {s(t)}, 8192")
        LX = a.newlabel('LX')
        a(f"s_cmp_lg_u32 {s(S_W)}, 0")
        a(f"s_cbranch_scc1 {LX}")
        loads(8, self.XF2, self.L2)
        a.label(LX)
        loads(None, self.XF, self.L1)

    def p1_compute(self, branch, nyoung, hook=None):
        a = self.a
        self.acc_rows_addr(7, R1)
        self.tid_shl(5, 2, R1)
        self.tid_shl(6, 3)
        a(f"s_lshl_b32 {s(ST+1)}, s79, 2")
        a(f"s_add_u32 {s(ST+1)}, {s(ST+1)}, {s(S_J)}")
        a(f"s_and_b32 {s(ST+1)}, {s(ST+1)}, 127")
        a(f"s_add_u32 {s(ST+1)}, {s(ST+1)}, {branch*128}")
        a(f"s_lshl_b32 {s(ST+1)}, {s(ST+1)}, 11")
        if Q1: a(f"s_add_u32 {s(ST+1)}, {s(ST+1)}, {Q1}")
        a(f"s_waitcnt vmcnt({nyoung})")
        self.stamp(1)
        if hook is not None:
            a("v_mov_b32 v250, v7"); a(f"s_mov_b32 s78, {s(ST+1)}")
            hook()
            a("v_mov_b32 v7, v250"); a(f"s_mov_b32 {s(ST+1)}, s78")
        self.half_perm(self.L1, self.F1)
        self.half_mfma(self.ACC1, self.XF, self.F1, True)
        LY = a.newlabel('LY')
        a(f"s_cmp_lg_u32 {s(S_W)}, 0")
        a(f"s_cbranch_scc1 {LY}")
        self.half_perm(self.L2, self.L1)
        self.half_mfma(self.ACC1, self.XF2, self.L1, False)
        a.label(LY)
        self.write_acc_rows(self.ACC1, 7)
        self.barrier()
        a(f"s_add_u32 {s(S_T)}, {s(S_T)}, 0x{TAGINC:08x}")
        LZ = a.newlabel('LZ')
        a(f"s_cmp_ge_u32 {s(S_W)}, 4")
        a(f"s_cbranch_scc1 {LZ}")
        for w in range(8):
            a(f"ds_read_b32 {v(20+w)}, v5 offset:{w*1024}")
        a(f"v_mov_b32 v29, {s(S_T)}")
        a("s_waitcnt lgkmcnt(0)")
        a("v_add_f32 v20, v20, v21"); a("v_add_f32 v22, v22, v23"); a("v_add_f32 v24, v24, v25"); a("v_add_f32 v26, v26, v27")
        a("v_add_f32 v20, v20, v22"); a("v_add_f32 v24, v24, v26")
        a("v_add_f32 v28, v20, v24")
        a(f"buffer_store_dwordx2 v[28:29], v6, {s(SRD_WS,4)}, {s(ST+1)} offen {SC}")
        a.label(LZ)
        self.stamp(2)

    def q_addr(self, own_head_both_batches, dst):
        a = self.a; t = dst
        if own_head_both_batches:
            a(f"s_add_u32 {s(t)}, {s(S_H)}, 32")
            a(f"s_lshr_b32 {s(t+1)}, {s(S_W)}, 2")
        else:
            a(f"s_lshr_b32 {s(t)}, {s(S_J)}, 3")
            a(f"s_lshl_b32 {s(t)}, {s(t)}, 1")
            a(f"s_lshr_b32 {s(t+1)}, {s(S_W)}, 2")
            a(f"s_add_u32 {s(t)}, {s(t)}, {s(t+1)}")
            a(f"s_bfe_u32 {s(t+1)}, {s(S_J)}, 0x10002")
        a(f"s_lshl_b32 {s(t)}, {s(t)}, 3")
        a(f"s_add_u32 {s(t)}, {s(t)}, {s(t+1)}")
        a(f"s_and_b32 {s(t+1)}, {s(S_W)}, 3")
        a(f"s_lshl_b32 {s(t+1)}, {s(t+1)}, 1")
        a(f"s_add_u32 {s(t)}, {s(t)}, {s(t+1)}")
        a(f"s_lshl_b32 {s(t)}, {s(t)}, 10")
        if Q1: a(f"s_add_u32 {s(t)}, {s(t)}, {Q1}")

    def q_poll(self, t):
        a = self.a
        a(f"s_add_u32 {s(t+1)}, {s(t)}, {127*8}")
        self.spin_scalar(lambda: a(f"s_load_dwordx2 {s(S_PB,2)}, {s(P_WS,2)}, {s(t+1)} glc"),
                         lambda: a(f"s_cmp_eq_u32 {s(S_PB+1)}, {s(S_T)}"))
    def q_load(self, t, G):
        a = self.a
        a(f"v_lshlrev_b32 v5, 4, {v(V_L)}")
        a(f"buffer_load_dwordx4 {v(G,4)}, v5, {s(SRD_WS,4)}, {s(t)} offen {SC}")
    def q_finish(self, t, G, nafter, st_data=None):
        a = self.a
        a(f"s_lshl_b32 {s(ST)}, {s(S_W)}, 9")
        a(f"s_add_u32 {s(ST)}, {s(ST)}, {R2}")
        a(f"v_lshlrev_b32 v6, 3, {v(V_L)}")
        a(f"v_add_u32 v6, {s(ST)}, v6")
        def chk():
            a(f"v_cmp_eq_u32 vcc, {s(S_T)}, {v(G+1)}")
            a(f"v_cmp_eq_u32 {s(S_PB,2)}, {s(S_T)}, {v(G+3)}")
            a(f"s_and_b64 vcc, vcc, {s(S_PB,2)}")
        self.retry_vec(lambda: self.q_load(t, G), chk, f"s_waitcnt vmcnt({nafter})")
        if st_data is not None: self.stamp(st_data)
        a(f"ds_write2_b32 v6, {v(G)}, {v(G+2)} offset0:0 offset1:1")
        LQ = a.newlabel('LQ')
        a(f"s_lshl_b32 {s(ST)}, {s(S_W)}, 11")
        a(f"s_add_u32 {s(ST)}, {s(ST)}, {R2}")
        a(f"v_lshlrev_b32 v5, 3, {v(V_L)}")
        a(f"v_add_u32 v5, {s(ST)}, v5")
        a(f"s_lshl_b32 {s(ST)}, {s(S_W)}, 8")
        a(f"s_add_u32 {s(ST)}, {s(ST)}, {QL}")
        a(f"v_lshlrev_b32 v6, 2, {v(V_L)}")
        a(f"v_add_u32 v6, {s(ST)}, v6")
        self.barrier()
        a(f"s_cmp_ge_u32 {s(S_W)}, 2")
        a(f"s_cbranch_scc1 {LQ}")
        for r in range(4):
            a(f"ds_read_b64 {v(8+2*r,2)}, v5 offset:{r*512}")
        a("s_waitcnt lgkmcnt(0)")
        a("v_add_f32 v8, v8, v10"); a("v_add_f32 v9, v9, v11"); a("v_add_f32 v12, v12, v14"); a("v_add_f32 v13, v13, v15")
        a("v_add_f32 v8, v8, v12"); a("v_add_f32 v9, v9, v13")
        a("v_cvt_pk_bf16_f32 v8, v8, v9")
        a("ds_write_b32 v6, v8")
        a.label(LQ)
        a(f"v_lshlrev_b32 v5, 8, {v(V_RS)}")
        a(f"v_lshl_add_u32 v5, {v(V_G4)}, 4, v5")
        a(f"v_add_u32 v5, {QL}, v5")
        self.barrier()
    def q_gather(self, t, G, after_issue, nafter, st_poll=None, st_data=None):
        self.q_poll(t)
        if st_poll is not None: self.stamp(st_poll)
        self.q_load(t, G)
        after_issue()
        self.q_finish(t, G, nafter, st_data)

    def read_q_frags(self, QF):
        for i in range(4):
            self.a(f"ds_read_b128 {v(QF+4*i,4)}, v5 offset:{i*64}")

    def wo_dma_addr(self, A):
        a = self.a
        for i in range(5):
            a(f"v_add_u32 {v(A+i)}, {64*i}, {v(V_L)}")
            a(f"v_mul_u32_u24 v5, 3641, {v(A+i)}")
            a(f"v_lshrrev_b32 v5, 16, v5")
            a(f"v_lshlrev_b32 {v(A+i)}, 4, {v(A+i)}")
            a(f"v_mul_u32_u24 v5, 864, v5")
            a(f"v_add_u32 {v(A+i)}, {v(A+i)}, v5")
    def wo_dma(self, SRD, A, base, RS):
        a = self.a; t = ST
        self.hshift5(t)
        a(f"s_lshl_b32 {s(t)}, {s(t)}, 7")
        a(f"s_lshl_b32 {s(t+1)}, {s(S_W)}, 4")
        a(f"s_add_u32 {s(t)}, {s(t)}, {s(t+1)}")
        a(f"s_mul_i32 {s(t)}, {s(t)}, 1152")
        a(f"s_mul_i32 {s(t+1)}, {s(S_RQ)}, 288")
        a(f"s_add_u32 {s(t)}, {s(t)}, {s(t+1)}")
        a(f"s_mul_i32 {s(t+1)}, {s(S_W)}, {RS}")
        for i in range(5):
            a(f"s_add_u32 m0, {s(t+1)}, {base + i*1024}")
            if i == 4: self.set_exec(0xffffffff)
            a(f"buffer_load_dwordx4 {v(A+i)}, {s(SRD,4)}, {s(t)} offen{' nt' if self.c.ntwo else ''} lds")
        self.set_exec(-1)
    def wo_frags(self, WF, WFX, base, RS):
        a = self.a; t = ST
        a(f"v_lshrrev_b32 v5, 1, {v(V_G4)}")
        a(f"v_mul_u32_u24 v5, {RS}, v5")
        a(f"v_and_b32 v6, 1, {v(V_G4)}")
        a(f"v_lshlrev_b32 v6, 3, v6")
        a(f"v_lshrrev_b32 v7, 2, {v(V_N16)}")
        a(f"v_add_u32 v6, v6, v7")
        a(f"v_mul_u32_u24 v6, 288, v6")
        a(f"v_add_u32 v5, v5, v6")
        a(f"v_and_b32 v6, 3, {v(V_N16)}")
        a(f"v_lshl_add_u32 v5, v6, 3, v5")
        a(f"s_lshl_b32 {s(t)}, {s(S_W)}, 5")
        a(f"s_add_u32 {s(t)}, {s(t)}, {base}")
        a(f"v_add_u32 v5, {s(t)}, v5")
        a(f"v_add_u32 v6, {4*RS}, v5")
        def reads(W, extra):
            for ks in range(4):
                for hf in range(2):
                    ad = 5 if ks < 2 else 6
                    a(f"ds_read_b64_tr_b16 {v(W+4*ks+2*hf,2)}, {v(ad)} offset:{(ks&1)*2*RS + hf*1152 + extra}")
        reads(WF, 0)
        LX = a.newlabel('WX')
        a(f"s_cmp_lg_u32 {s(S_W)}, 0")
        a(f"s_cbranch_scc1 {LX}")
        reads(WFX, 256)
        a.label(LX)
    def afrag_addr(self, dst, base):
        a = self.a
        a(f"v_and_b32 {v(dst)}, 1, {v(V_N16)}")
        a(f"v_lshlrev_b32 {v(dst)}, 8, {v(dst)}")
        a(f"v_lshl_add_u32 {v(dst)}, {v(V_G4)}, 4, {v(dst)}")
        a(f"v_add_u32 {v(dst)}, {base}, {v(dst)}")
    def afrag_reads(self, AF, addr):
        for ks in range(4):
            self.a(f"ds_read_b128 {v(AF+4*ks,4)}, {v(addr)} offset:{ks*64}")
    def chain4(self, D, AF, WF):
        for ks in range(4):
            cin = '0' if ks == 0 else v(D,4)
            self.a(f"v_mfma_f32_16x16x32_bf16 {v(D,4)}, {v(AF+4*ks,4)}, {v(WF+4*ks,4)}, {cin}")
    def pack_pair(self, D, x0, x1, t0, t1):
        a = self.a
        a(f"v_mov_b32_dpp {v(t0)}, {v(D)} quad_perm:[1,0,3,2] row_mask:0xf bank_mask:0xf")
        a(f"v_mov_b32_dpp {v(t1)}, {v(D+1)} quad_perm:[1,0,3,2] row_mask:0xf bank_mask:0xf")
        a(f"v_cndmask_b32 {v(x0)}, {v(D)}, {v(t1)}, {s(SEL1,2)}")
        a(f"v_cndmask_b32 {v(x1)}, {v(t0)}, {v(D+1)}, {s(SEL1,2)}")

    WUK = 100
    def x_roles(self):
        a = self.a
        a(f"s_lshr_b32 {s(S_G)}, {s(S_J)}, 3")
        a(f"s_bfe_u32 {s(S_B)}, {s(S_J)}, 0x10002")
        a(f"s_and_b32 {s(S_S)}, {s(S_J)}, 3")
        t = ST + 8
        a(f"s_lshl_b32 {s(t)}, {s(S_B)}, 4")
        a(f"s_add_u32 {s(t)}, {s(t)}, {s(S_G)}")
        a(f"s_lshl_b32 {s(t)}, {s(t)}, 13")
        a(f"s_lshl_b32 {s(t+1)}, {s(S_S)}, 9")
        a(f"s_add_u32 {s(t)}, {s(t)}, {s(t+1)}")
        a(f"s_add_u32 {s(t)}, {s(t)}, 6144")
        a(f"s_lshl_b32 {s(t)}, {s(t)}, 8")
        a(f"s_lshl_b32 {s(t+1)}, {s(S_W)}, 14")
        a(f"s_add_u32 {s(S_BASE)}, {s(t)}, {s(t+1)}")
    def x_wuk_loads(self):
        a = self.a; t = ST
        a(f"v_lshlrev_b32 v7, 13, {v(V_N16)}")
        a(f"v_lshl_add_u32 v7, {v(V_G4)}, 4, v7")
        a(f"s_lshl_b32 {s(t)}, {s(S_RQ)}, 7")
        a(f"s_lshl_b32 {s(t+1)}, {s(S_W)}, 4")
        a(f"s_add_u32 {s(t)}, {s(t)}, {s(t+1)}")
        a(f"s_lshl_b32 {s(t)}, {s(t)}, 13")
        a(f"s_lshl_b32 {s(t+1)}, {s(S_H)}, 8")
        a(f"s_add_u32 {s(t)}, {s(t)}, {s(t+1)}")
        for i in range(4):
            a(f"buffer_load_dwordx4 {v(self.WUK+4*i,4)}, v7, {s(SRD_U,4)}, {s(t)} offen offset:{i*64}{' nt' if self.c.ntuk else ''}")
    def x_kdma(self, kk0, kk1):
        a = self.a; t = ST
        if kk0 >= kk1: return
        a(f"v_xor_b32 v248, {v(V_N16)}, {v(V_G4)}")
        a(f"v_lshlrev_b32 v248, 4, v248")
        a(f"v_lshl_add_u32 v248, {v(V_G4)}, 8, v248")
        for k in range(1, 4):
            a(f"v_xor_b32 {v(248+k)}, {k<<6}, v248")
        a(f"s_lshl_b32 {s(t)}, {s(S_W)}, 14")
        for kk in range(kk0, kk1):
            a(f"s_add_u32 m0, {s(t)}, {IMG + kk*4096}")
            a(f"s_add_u32 {s(t+1)}, {s(S_BASE)}, {kk*4096}")
            for k in range(4):
                if self.c.xwin: a(f"s_waitcnt vmcnt({self.c.xwin-1})")
                a(f"buffer_load_dwordx4 {v(248+k)}, {s(SRD_ST,4)}, {s(t+1)} offen offset:{k*1024}{self.nts()} lds")

    def x_main(self):
        a = self.a; t = ST; c = self.c
        self.x_roles()
        if c.touch:
            a(f"s_load_dword s68, {s(P_AK,2)}, {s(S_BASE)}")
            a(f"s_load_dword s69, {s(P_AV,2)}, {s(S_BASE)}")
            self.hshift5(ST)
            a(f"s_mul_i32 {s(ST)}, {s(ST)}, {128*1152}")
            a(f"s_load_dword s70, {s(P_AWO,2)}, {s(ST)}")
            a(f"s_mov_b32 {s(ST+1)}, {OUTP}")
            a(f"s_load_dword s71, {s(P_WS,2)}, {s(ST+1)}")
        a("s_barrier")
        if not c.wuk_late: self.x_wuk_loads()
        self.x_kdma(0, c.n1_k)
        self.q_addr(True, ST+4)
        if c.wuk_late:
            self.p1_compute(1, 4*c.n1_k, hook=self.x_wuk_loads)
        else:
            self.p1_compute(1, 4 + 4*c.n1_k)
        self.x_kdma(c.n1_k, c.n1_k + c.n2_k)
        kdone = c.n1_k + c.n2_k
        GA = 240
        if c.early_qa:
            self.q_addr(False, ST+6)
            def aft():
                self.q_load(ST+6, GA)
                self.x_kdma(kdone, kdone + c.n4_k)
            self.q_gather(ST+4, 8, aft, 1 + 4*c.n4_k, 14, 15)
            kb = kdone
            kdone += c.n4_k
        else:
            self.q_gather(ST+4, 8, lambda: None, 0, 14, 15)
        self.stamp(3)
        QF = 16
        self.read_q_frags(QF)
        a(f"v_and_b32 v5, 1, {v(V_G4)}")
        a(f"v_lshlrev_b32 v6, 8, v5")
        a(f"v_lshl_add_u32 v7, {v(V_N16)}, 4, v6")
        a(f"v_add_u32 v7, {QAL}, v7")
        a(f"v_lshl_add_u32 v6, {v(V_N16)}, 1, v6")
        a(f"s_lshl_b32 {s(t)}, {s(S_W)}, 5")
        a(f"s_add_u32 {s(t)}, {s(t)}, {QAL}")
        a(f"v_add_u32 v6, {s(t)}, v6")
        a(f"v_lshlrev_b32 v14, 15, v5")
        a(f"v_lshl_add_u32 v14, {v(V_N16)}, 4, v14")
        a(f"v_lshlrev_b32 v15, 10, v5")
        a(f"v_lshl_add_u32 v15, {v(V_N16)}, 11, v15")
        a(f"s_lshl_b32 {s(t)}, {s(S_J)}, 8")
        a(f"s_add_u32 {s(t)}, {s(t)}, {QABS}")
        a(f"s_lshl_b32 {s(t+1)}, {s(S_J)}, 3")
        a(f"s_add_u32 {s(t+1)}, {s(t+1)}, {QM}")
        a("s_waitcnt lgkmcnt(0)")
        AQ = 32
        for i in range(4):
            cin = '0' if i == 0 else v(AQ,4)
            a(f"v_mfma_f32_16x16x32_bf16 {v(AQ,4)}, {v(QF+4*i,4)}, {v(self.WUK+4*i,4)}, {cin}")
        a(f"v_cvt_pk_bf16_f32 v8, {v(AQ)}, {v(AQ)}")
        a(f"ds_write_b16 v6, v8")
        self.barrier()
        LP = a.newlabel('BP')
        a(f"s_cmp_lg_u32 {s(S_W)}, 0")
        a(f"s_cbranch_scc1 {LP}")
        a(f"ds_read_b128 v[8:11], v7")
        a(f"v_mov_b32 v13, {s(S_T)}")
        a("s_waitcnt lgkmcnt(0)")
        self.set_exec(0xffffffff)
        a(f"buffer_store_dwordx4 v[8:11], v14, {s(SRD_WS,4)}, {s(t)} offen {SC}")
        self.set_exec(-1)
        a("v_bitop3_b32 v12, v8, v9, v10 bitop3:0x96"); a("v_xor_b32 v12, v12, v11")
        self.inrow('v_xor_b32', 12)
        self.set_exec(0x00ff00ff)
        a(f"buffer_store_dwordx2 v[12:13], v15, {s(SRD_WS,4)}, {s(t+1)} offen {SC}")
        self.set_exec(-1)
        a.label(LP)
        a("s_barrier")
        self.stamp(17)
        KF, S, VL, F, ACC = 32, 64, 96, 192, 224
        WA = 160
        k3 = min(4, kdone + c.n3_k)
        if c.early_qa:
            kx = max(kdone, c.kx)
            self.x_kdma(kdone, kx)
            self.q_finish(ST+6, GA, 4*(kx-kb), 18)
            self.stamp(9)
            self.read_q_frags(QF)
            self.x_kdma(kx, 4)
        else:
            self.x_kdma(kdone, k3)
            self.q_addr(False, ST+4)
            ka = min(4, k3 + c.k_after)
            self.q_gather(ST+4, 8, lambda: self.x_kdma(k3, ka), 4*(ka-k3), None, 18)
            self.stamp(9)
            self.read_q_frags(QF)
            self.x_kdma(ka, 4)
        a(f"v_lshlrev_b32 v6, 10, {v(V_G4)}")
        a(f"v_lshl_add_u32 v6, {v(V_N16)}, 4, v6")
        for u in range(2):
            for j in range(8):
                if j % 4 == 0:
                    a(f"s_add_u32 {s(t)}, {s(S_BASE)}, {(32*u + 16*(j>>2))*256}")
                if c.xwin and (c.xwinv or u == 0): a(f"s_waitcnt vmcnt({c.xwin-1})")
                a(f"buffer_load_dwordx4 {v(VL + 32*u + 4*j,4)}, v6, {s(SRD_V,4)}, {s(t)} offen offset:{(j&3)*256}{self.nts()}")
        self.wo_dma_addr(WA)
        a("s_waitcnt vmcnt(16)")
        a(f"v_xor_b32 v5, {v(V_N16)}, {v(V_G4)}")
        a(f"v_lshlrev_b32 v5, 4, v5")
        a(f"v_lshl_add_u32 v5, {v(V_N16)}, 8, v5")
        a(f"s_lshl_b32 {s(t)}, {s(S_W)}, 14")
        a(f"v_add_u32 v5, {s(t)}, v5")
        for i in range(1, 4):
            a(f"v_xor_b32 {v(5+i)}, {i<<6}, v5")
        def kread(tt, dst):
            for i in range(4):
                a(f"ds_read_b128 {v(dst+4*i,4)}, {v(5+i)} offset:{IMG + tt*4096}")
        kread(0, KF); kread(1, KF+16)
        for tt in range(4):
            cur = KF + 16*(tt & 1)
            a(f"s_waitcnt lgkmcnt({4 if tt < 3 else 0})")
            for i in range(4):
                cin = '0' if i == 0 else v(S+4*tt,4)
                a(f"v_mfma_f32_16x16x32_bf16 {v(S+4*tt,4)}, {v(cur+4*i,4)}, {v(QF+4*i,4)}, {cin}")
            if tt + 2 < 4:
                kread(tt+2, cur)
        self.wo_dma(SRD_WO, WA, IMG, 16384)
        M, Lsum, T1 = 10, 11, 12
        a(f"v_max3_f32 {v(M)}, {v(S)}, {v(S+1)}, {v(S+2)}")
        for r in range(3, 15, 2):
            a(f"v_max3_f32 {v(M)}, {v(M)}, {v(S+r)}, {v(S+r+1)}")
        a(f"v_max_f32 {v(M)}, {v(M)}, {v(S+15)}")
        self.xrow('v_max_f32', M, T1)
        a(f"v_mul_f32 {v(M)}, {s(S_SC)}, {v(M)}")
        for r in range(16):
            a(f"v_fma_f32 {v(S+r)}, {v(S+r)}, {s(S_SC)}, -{v(M)}")
        for r in range(16):
            a(f"v_exp_f32 {v(S+r)}, {v(S+r)}")
        PF = 32
        for u in range(2):
            for q in range(4):
                a(f"v_cvt_pk_bf16_f32 {v(PF+4*u+q)}, {v(S+8*u+2*q)}, {v(S+8*u+2*q+1)}")
        for r in range(0, 16, 2):
            a(f"v_add_f32 {v(S+r)}, {v(S+r)}, {v(S+r+1)}")
        for r in range(0, 16, 4):
            a(f"v_add_f32 {v(S+r)}, {v(S+r)}, {v(S+r+2)}")
        a(f"v_add_f32 {v(S)}, {v(S)}, {v(S+4)}"); a(f"v_add_f32 {v(S+8)}, {v(S+8)}, {v(S+12)}")
        a(f"v_add_f32 {v(Lsum)}, {v(S)}, {v(S+8)}")
        self.xrow('v_add_f32', Lsum, T1)
        a(f"s_lshl_b32 {s(t)}, {s(S_W)}, 4")
        a(f"s_add_u32 {s(t)}, {s(t)}, {ML}")
        a(f"v_lshlrev_b32 v5, 3, {v(V_RS)}")
        a(f"v_add_u32 v5, {s(t)}, v5")
        a(f"ds_write_b64 v5, {v(M,2)}")
        self.acc_rows_addr(7, OW)
        a(f"s_and_b32 {s(t)}, {s(S_W)}, 1")
        a(f"s_lshl_b32 {s(t+1)}, {s(t)}, 9")
        a(f"s_add_u32 {s(t+1)}, {s(t+1)}, {OW}")
        a(f"v_lshl_add_u32 v5, {v(V_L)}, 3, {s(t+1)}")
        a(f"s_lshl_b32 {s(t+1)}, {s(t)}, 3")
        a(f"s_add_u32 {s(t+1)}, {s(t+1)}, {ML}")
        a(f"v_mov_b32 v6, {s(t+1)}")
        a(f"s_lshl_b32 {s(t+2)}, {s(S_G)}, 1")
        a(f"s_add_u32 {s(t+2)}, {s(t+2)}, {s(t)}")
        a(f"s_lshl_b32 {s(t+3)}, {s(t+2)}, 2")
        a(f"s_add_u32 {s(t+3)}, {s(t+3)}, {s(S_S)}")
        a(f"s_lshl_b32 {s(t+3)}, {s(t+3)}, 1")
        a(f"s_add_u32 {s(t+3)}, {s(t+3)}, {s(S_B)}")
        a(f"s_lshl_b32 {s(t+3)}, {s(t+3)}, 10")
        a(f"s_add_u32 {s(t+3)}, {s(t+3)}, {OP}")
        a(f"v_lshlrev_b32 v8, 4, {v(V_L)}")
        self.stamp(4)
        for u in range(2):
            a(f"s_waitcnt vmcnt({(8 if u == 0 else 0) + 5})")
            self.full_perm(VL+32*u, F)
            for cc in range(8):
                cin = '0' if u == 0 else v(ACC+4*cc,4)
                a(f"v_mfma_f32_16x16x32_bf16 {v(ACC+4*cc,4)}, {v(PF+4*u,4)}, {v(F+4*cc,4)}, {cin}")
        self.stamp(5)
        self.write_acc_rows(ACC, 7)
        self.barrier()
        LZ = a.newlabel('AZ')
        a(f"s_cmp_ge_u32 {s(S_W)}, 2")
        a(f"s_cbranch_scc1 {LZ}")
        for w in range(8):
            a(f"ds_read_b64 {v(32+2*w,2)}, v6 offset:{w*16}")
        for w in range(8):
            a(f"ds_read_b64 {v(48+2*w,2)}, v5 offset:{w*1024}")
        a(f"v_mov_b32 v19, {s(S_T)}")
        a("s_waitcnt lgkmcnt(8)")
        a("v_max3_f32 v20, v32, v34, v36"); a("v_max3_f32 v20, v20, v38, v40"); a("v_max3_f32 v20, v20, v42, v44"); a("v_max_f32 v20, v20, v46")
        for w in range(8):
            a(f"v_sub_f32 {v(32+2*w)}, {v(32+2*w)}, v20")
        for w in range(8):
            a(f"v_exp_f32 {v(32+2*w)}, {v(32+2*w)}")
        a("v_mul_f32 v21, v33, v32")
        for w in range(1, 8):
            a(f"v_fmac_f32 v21, {v(33+2*w)}, {v(32+2*w)}")
        a(f"v_cndmask_b32 v18, v20, v21, {s(SEL1,2)}")
        a("s_waitcnt lgkmcnt(0)")
        a("v_mul_f32 v16, v48, v32"); a("v_mul_f32 v17, v49, v32")
        for w in range(1, 8):
            a(f"v_fmac_f32 v16, {v(48+2*w)}, {v(32+2*w)}")
            a(f"v_fmac_f32 v17, {v(49+2*w)}, {v(32+2*w)}")
        a(f"buffer_store_dwordx4 v[16:19], v8, {s(SRD_WS,4)}, {s(t+3)} offen {SC}")
        self.stamp(6)
        a("s_waitcnt vmcnt(1)")
        LZ2 = a.newlabel('AZ')
        a(f"s_branch {LZ2}")
        a.label(LZ)
        a("s_waitcnt vmcnt(0)")
        a.label(LZ2)
        a("s_barrier")
        self.p5(0, IMG, 16384, 11, 12)
        self.final_reduce(0)

    def final_reduce(self, branch):
        a = self.a; t = ST
        a(f"s_cmp_ge_u32 {s(S_J)}, 72")
        a("s_cbranch_scc1 L_END")
        a(f"s_cmp_lg_u32 {s(S_W)}, 0")
        a("s_cbranch_scc1 L_END")
        a(f"s_lshl_b32 {s(t+4)}, {s(S_J)}, 12")
        a(f"s_add_u32 {s(t+4)}, {s(t+4)}, {OUTP + branch*72*4096}")
        a(f"s_cmp_ge_u32 {s(S_J)}, 36")
        a(f"s_cselect_b32 {s(t+2)}, {2304 - 36*32}, 0")
        a(f"s_lshl_b32 {s(t+3)}, {s(S_J)}, 5")
        a(f"s_add_u32 {s(t+2)}, {s(t+2)}, {s(t+3)}")
        a(f"s_add_u32 {s(t+8)}, {s(t+2)}, {branch*1152}")
        a(f"v_lshlrev_b32 v5, 4, {v(V_L)}")
        a(f"v_lshlrev_b32 v6, 2, {v(V_L)}")
        def ldf(st=0):
            for k in range(4):
                a(f"buffer_load_dwordx4 {v(16+16*st+4*k,4)}, v5, {s(SRD_WS,4)}, {s(t+4)} offen offset:{k*1024} {SC}")
        def chkf(st=0):
            b = 16*st
            a(f"v_xor_b32 v8, {s(S_T)}, {v(17+b)}")
            for r in (19, 21, 23, 25, 27, 29, 31):
                a(f"v_bitop3_b32 v8, {v(r+b)}, {s(S_T)}, v8 bitop3:0xbe")
            a(f"v_cmp_eq_u32 vcc, 0, v8")
        def donef(st):
            b = 16*st
            a(f"v_add_f32 v10, {v(16+b)}, {v(20+b)}"); a(f"v_add_f32 v11, {v(24+b)}, {v(28+b)}"); a(f"v_add_f32 v12, {v(18+b)}, {v(22+b)}"); a(f"v_add_f32 v13, {v(26+b)}, {v(30+b)}")
            a("v_add_f32 v14, v10, v11"); a("v_add_f32 v15, v12, v13")
        ldf()
        if self.c.pipe5:
            self.poll_pipe(ldf, chkf, donef, 4, self.c.stag5)
        else:
            if self.c.stamps:
                a("s_waitcnt vmcnt(0)")
                self.stamp(16)
            self.retry_vec(ldf, chkf, "s_waitcnt vmcnt(0)", sleep=self.c.sleep5)
            a("v_add_f32 v16, v16, v20"); a("v_add_f32 v24, v24, v28"); a("v_add_f32 v17, v18, v22"); a("v_add_f32 v26, v26, v30")
            a("v_add_f32 v14, v16, v24"); a("v_add_f32 v15, v17, v26")
        self.stamp_cnt(20)
        self.stamp(19)
        a("v_add_f32_dpp v14, v14, v14 row_ror:8 row_mask:0xf bank_mask:0xf")
        a("v_add_f32_dpp v15, v15, v15 row_ror:8 row_mask:0xf bank_mask:0xf")
        self.xrow_multi('v_add_f32', [14, 15], [8, 9])
        a("v_cvt_pk_bf16_f32 v14, v14, v15")
        self.set_exec(0xff)
        a(f"buffer_store_dword v14, v6, {s(SRD_OUT,4)}, {s(t+8)} offen")
        if branch == 0:
            LE = a.newlabel('EP')
            a(f"s_cmp_lg_u32 {s(S_J)}, 0")
            a(f"s_cbranch_scc1 {LE}")
            a(f"v_mov_b32 v5, {EPOCH}")
            a(f"v_mov_b32 v6, {s(S_T)}")
            self.set_exec(1)
            a(f"buffer_store_dword v6, v5, {s(SRD_WS,4)}, 0 offen {SC}")
            a.label(LE)
        self.set_exec(-1)
        self.stamp(13)
        a("s_waitcnt vmcnt(0)")
        a("s_branch L_END")

    def y_roles(self):
        a = self.a
        a(f"s_lshr_b32 {s(S_B)}, {s(S_J)}, 6")
        a(f"s_and_b32 {s(S_S)}, {s(S_J)}, 63")
        t = ST + 8
        a(f"s_lshl_b32 {s(t)}, {s(S_J)}, 17")
        a(f"s_lshl_b32 {s(t+1)}, {s(S_W)}, 14")
        a(f"s_add_u32 {s(S_BASE)}, {s(t)}, {s(t+1)}")
    def ckv_dma(self, k0, k1):
        a = self.a; t = ST
        if k0 >= k1: return
        a(f"v_lshlrev_b32 v248, 4, {v(V_L)}")
        a(f"s_lshl_b32 {s(t)}, {s(S_W)}, 14")
        for k in range(k0, k1):
            f = ((k & 3) << 2) | ((k >> 2) & 3)
            a(f"v_xor_b32 v249, {f<<4}, v248")
            a(f"s_add_u32 m0, {s(t)}, {IMG + k*1024}")
            a(f"s_add_u32 {s(t+1)}, {s(S_BASE)}, {k*1024}")
            a(f"buffer_load_dwordx4 v249, {s(SRD_ST,4)}, {s(t+1)} offen{self.nts()} lds")

    def y_main(self):
        a = self.a; t = ST; c = self.c
        self.y_roles()
        if c.touch:
            a(f"s_lshl_b32 {s(ST)}, {s(S_RQ)}, 20")
            a(f"s_load_dword s68, {s(P_WUV,2)}, {s(ST)}")
            self.hshift5(ST)
            a(f"s_mul_i32 {s(ST)}, {s(ST)}, {128*1152}")
            a(f"s_load_dword s69, {s(P_BWO,2)}, {s(ST)}")
            for r, off in ((70, BPART), (71, BPART + 0x200000), (72, OUTP)):
                a(f"s_mov_b32 s73, {off}")
                a(f"s_load_dword s{r}, {s(P_WS,2)}, s73")
        a("s_barrier")
        self.ckv_dma(0, c.n1_ckv)
        self.p1_compute(0, c.n1_ckv)
        self.ckv_dma(c.n1_ckv, 16)
        GQ, GM = 16, 32
        a(f"s_lshl_b32 {s(t)}, {s(S_B)}, 10")
        a(f"s_lshl_b32 {s(t+1)}, {s(S_W)}, 7")
        a(f"s_add_u32 {s(t)}, {s(t)}, {s(t+1)}")
        a(f"s_and_b32 {s(t+1)}, {s(S_S)}, 7")
        a(f"s_lshl_b32 {s(t+1)}, {s(t+1)}, 11")
        a(f"s_add_u32 {s(t)}, {s(t)}, {s(t+1)}")
        a(f"s_add_u32 {s(t+5)}, {s(t)}, {QM}")
        a(f"s_lshl_b32 {s(t+4)}, {s(S_B)}, 15")
        a(f"s_lshl_b32 {s(t+1)}, {s(S_W)}, 12")
        a(f"s_add_u32 {s(t+4)}, {s(t+4)}, {s(t+1)}")
        a(f"s_add_u32 {s(t+4)}, {s(t+4)}, {QABS}")
        def e2ld():
            a(f"s_load_dwordx16 {s(S_PB,16)}, {s(P_WS,2)}, {s(t+5)} glc")
            a(f"s_load_dwordx16 {s(S_PB+16,16)}, {s(P_WS,2)}, {s(t+1)} glc")
        def okf():
            self.s_alltags([S_PB+2*i+1 for i in range(16)], t+2, t+3)
        a(f"s_add_u32 {s(t+1)}, {s(t+5)}, 64")
        self.spin_scalar(e2ld, okf)
        self.stamp(17)
        def ldq(first=False):
            fl = (self.c.qabs_first if first else SC)
            a(f"v_lshlrev_b32 v5, 4, {v(V_L)}")
            for j in range(4):
                a(f"buffer_load_dwordx4 {v(GQ+4*j,4)}, v5, {s(SRD_WS,4)}, {s(t+4)} offen offset:{j*1024} {fl}")
            a(f"v_and_b32 v6, 3, {v(V_N16)}")
            a(f"v_lshlrev_b32 v6, 5, v6")
            a(f"v_lshl_add_u32 v6, {v(V_G4)}, 3, v6")
            a(f"buffer_load_dwordx2 {v(GM,2)}, v6, {s(SRD_WS,4)}, {s(t+5)} offen {SC}")
        ldq(True)
        AFS, AFP, BFR = 64, 128, 224
        N32, HI = 8, 9
        a(f"v_and_b32 {v(N32)}, 31, {v(V_L)}")
        a(f"v_lshrrev_b32 {v(HI)}, 5, {v(V_L)}")
        KT, CH = t+6, t+7
        a(f"s_and_b32 {s(KT)}, {s(S_W)}, 3")
        a(f"s_lshr_b32 {s(CH)}, {s(S_W)}, 2")
        a(f"v_and_b32 v5, 3, {v(N32)}")
        a(f"v_lshlrev_b32 v5, 2, v5")
        a(f"v_bfe_u32 v6, {v(N32)}, 2, 2")
        a(f"v_or_b32 v5, v5, v6")
        a(f"v_xor_b32 v5, v5, {v(HI)}")
        a(f"v_lshlrev_b32 v5, 4, v5")
        a(f"v_lshl_add_u32 v5, {v(N32)}, 10, v5")
        a(f"s_lshl_b32 {s(t+2)}, {s(KT)}, 15")
        a(f"s_lshl_b32 {s(t+3)}, {s(CH)}, 9")
        a(f"s_add_u32 {s(t+2)}, {s(t+2)}, {s(t+3)}")
        a(f"v_add_u32 v56, {s(t+2)}, v5")
        for i in range(1, 8): a(f"v_xor_b32 {v(56+i)}, {i*32}, v56")
        a(f"v_lshrrev_b32 v5, 2, {v(V_N16)}")
        a(f"v_lshlrev_b32 v6, 2, v5")
        a(f"v_or_b32 v6, v6, {v(HI)}")
        a(f"v_and_b32 v7, 1, {v(V_G4)}")
        a(f"v_lshlrev_b32 v7, 1, v7")
        a(f"v_bfe_u32 v13, {v(V_N16)}, 1, 1")
        a(f"v_or_b32 v7, v7, v13")
        a(f"s_and_b32 {s(t+2)}, {s(S_W)}, 1")
        a(f"s_lshl_b32 {s(t+2)}, {s(t+2)}, 3")
        a(f"v_or_b32 v7, {s(t+2)}, v7")
        a(f"v_xor_b32 v6, v6, v7")
        a(f"v_lshlrev_b32 v6, 4, v6")
        a(f"v_and_b32 v7, 1, {v(V_N16)}")
        a(f"v_lshl_add_u32 v6, v7, 3, v6")
        a(f"v_lshl_add_u32 v5, {v(HI)}, 2, v5")
        a(f"v_lshl_add_u32 v6, v5, 10, v6")
        a(f"s_lshr_b32 {s(t+2)}, {s(S_W)}, 1")
        a(f"s_lshl_b32 {s(t+2)}, {s(t+2)}, 8")
        a(f"v_add_u32 v48, {s(t+2)}, v6")
        a(f"v_xor_b32 v49, 64, v48")
        a(f"v_xor_b32 v50, 32, v48")
        a(f"v_add_u32 v50, 8192, v50")
        a(f"v_xor_b32 v51, 64, v50")
        for r in range(4): a(f"v_add_u32 {v(52+r)}, 0x10000, {v(48+r)}")
        a("s_waitcnt vmcnt(5)")
        a("s_barrier")
        self.stamp(3)
        for i in range(16):
            a(f"ds_read_b128 {v(AFS+4*i,4)}, {v(56+(i&7))} offset:{256 if i >= 8 else 0}")
        if self.c.ldsdbg: self.stamp(31)
        for ks in range(8):
            base = 48 if ks < 4 else 52
            off = (ks & 3) * 16384
            d = AFP + 8*ks
            for tt in range(2):
                a(f"ds_read_b64_tr_b16 {v(d+4*tt,2)}, {v(base+tt)} offset:{off}")
                a(f"ds_read_b64_tr_b16 {v(d+4*tt+2,2)}, {v(base+2+tt)} offset:{off}")
        if self.c.ldsdbg: self.stamp(4)
        a(f"v_and_b32 v6, 15, {v(N32)}")
        a(f"v_xor_b32 v6, v6, {v(HI)}")
        a(f"v_lshlrev_b32 v6, 4, v6")
        a(f"v_lshl_add_u32 v6, {v(N32)}, 10, v6")
        a(f"s_add_u32 {s(t+3)}, {s(t+3)}, {QIMG}")
        a(f"v_add_u32 v56, {s(t+3)}, v6")
        for i in range(1, 8): a(f"v_xor_b32 {v(56+i)}, {i*32}, v56")
        for j in range(4):
            a(f"s_and_b32 {s(t)}, {s(S_W)}, 3")
            a(f"s_lshl_b32 {s(t)}, {s(t)}, 2")
            a(f"s_add_u32 {s(t)}, {s(t)}, {j}")
            a(f"s_lshl_b32 {s(t)}, {s(t)}, 4")
            a(f"v_lshlrev_b32 v5, 4, {v(V_L)}")
            a(f"v_xor_b32 v5, {s(t)}, v5")
            a(f"s_lshl_b32 {s(t+1)}, {s(S_W)}, 12")
            a(f"s_add_u32 {s(t+1)}, {s(t+1)}, {QIMG + j*1024}")
            a(f"v_add_u32 {v(48+j)}, {s(t+1)}, v5")
        def chkq():
            self.checksum4(GQ, 14, 10, SEL1, SEL2)
            a(f"v_cmp_eq_u32 vcc, v14, {v(GM)}")
            a(f"v_cmp_eq_u32 {s(S_PB,2)}, {s(S_T)}, {v(GM+1)}")
            a(f"s_and_b64 vcc, vcc, {s(S_PB,2)}")
        self.retry_vec(ldq, chkq, "s_waitcnt vmcnt(0)")
        self.stamp(18)
        for j in range(4):
            a(f"ds_write_b128 {v(48+j)}, {v(GQ+4*j,4)}")
        self.barrier()
        self.stamp(5)
        SA = 32
        def bread(i): a(f"ds_read_b128 {v(BFR+4*(i&7),4)}, {v(56+(i&7))} offset:{256 if i >= 8 else 0}")
        for i in range(8): bread(i)
        a(f"v_lshrrev_b32 v5, 4, {v(V_L)}")
        a(f"v_lshlrev_b32 v6, 1, v5")
        a(f"v_xor_b32 v6, v6, {v(V_N16)}")
        a(f"v_lshlrev_b32 v6, 4, v6")
        a(f"v_lshl_add_u32 v5, v5, 13, v6")
        a(f"v_xor_b32 v6, {8<<4}, v5")
        a(f"s_lshl_b32 {s(t)}, {s(S_RQ)}, 7")
        a(f"s_lshl_b32 {s(t+1)}, {s(S_W)}, 4")
        a(f"s_add_u32 {s(t)}, {s(t)}, {s(t+1)}")
        a(f"s_lshl_b32 {s(t)}, {s(t)}, 13")
        a(f"s_lshl_b32 {s(t+1)}, {s(S_H)}, 8")
        a(f"s_add_u32 {s(t)}, {s(t)}, {s(t+1)}")
        a(f"s_lshl_b32 {s(t+1)}, {s(S_W)}, 12")
        for i in range(4):
            a(f"s_add_u32 m0, {s(t+1)}, {WUVIMG + i*1024}")
            a(f"buffer_load_dwordx4 {v(5+(i&1))}, {s(SRD_V,4)}, {s(t)} offen{self.ntw()} lds")
            if i < 3: a(f"s_add_u32 {s(t)}, {s(t)}, {4*8192}")
        for i in range(16):
            left = min(7, 15 - i)
            a(f"s_waitcnt lgkmcnt({left})")
            cin = '0' if i == 0 else v(SA,16)
            a(f"v_mfma_f32_32x32x16_bf16 {v(SA,16)}, {v(AFS+4*i,4)}, {v(BFR+4*(i&7),4)}, {cin}")
            if i + 8 < 16: bread(i+8)
        a(f"s_lshl_b32 {s(t+2)}, {s(S_W)}, 11")
        a(f"s_add_u32 {s(t+2)}, {s(t+2)}, {SX}")
        a(f"v_lshlrev_b32 v7, 4, {v(V_L)}")
        a(f"v_add_u32 v5, {s(t+2)}, v7")
        a(f"s_xor_b32 {s(t+3)}, {s(S_W)}, 4")
        a(f"s_lshl_b32 {s(t+3)}, {s(t+3)}, 11")
        a(f"s_add_u32 {s(t+3)}, {s(t+3)}, {SX}")
        a(f"v_add_u32 v6, {s(t+3)}, v7")
        a(f"s_lshl_b32 {s(t+2)}, {s(S_W)}, 7")
        a(f"v_lshlrev_b32 v13, 2, {v(N32)}")
        a(f"v_add_u32 v14, {MX}, v13")
        a(f"v_add_u32 v15, {s(t+2)}, v14")
        a(f"s_lshl_b32 {s(t+3)}, {s(KT)}, 1")
        a(f"s_add_u32 {s(t+3)}, {s(t+3)}, {s(CH)}")
        a(f"s_lshl_b32 {s(t+3)}, {s(t+3)}, 10")
        a(f"s_add_u32 {s(t+3)}, {s(t+3)}, {PB}")
        a(f"v_add_u32 v56, {s(t+3)}, v7")
        a(f"v_add_u32 v57, {PB}, v7")
        a(f"v_add_u32 v58, {LS-MX}, v15")
        a(f"v_add_u32 v59, {LS-MX}, v14")
        self.stamp(28)
        a("s_barrier")
        SK = 48
        LC1 = a.newlabel('CH'); LC2 = a.newlabel('CH')
        a(f"s_cmp_eq_u32 {s(CH)}, 0")
        a(f"s_cbranch_scc0 {LC1}")
        a(f"ds_write_b128 v5, {v(SA+8,4)}"); a(f"ds_write_b128 v5, {v(SA+12,4)} offset:1024")
        a(f"s_branch {LC2}")
        a.label(LC1)
        a(f"ds_write_b128 v5, {v(SA,4)}"); a(f"ds_write_b128 v5, {v(SA+4,4)} offset:1024")
        for r in range(8): a(f"v_mov_b32 {v(SA+r)}, {v(SA+8+r)}")
        a.label(LC2)
        self.barrier()
        self.stamp(29)
        a(f"ds_read_b128 {v(SK,4)}, v6"); a(f"ds_read_b128 {v(SK+4,4)}, v6 offset:1024")
        a("s_waitcnt lgkmcnt(0)")
        for r in range(8): a(f"v_add_f32 {v(SK+r)}, {v(SK+r)}, {v(SA+r)}")
        M, Lsum, T1 = 10, 11, 12
        a(f"v_max3_f32 {v(M)}, {v(SK)}, {v(SK+1)}, {v(SK+2)}")
        a(f"v_max3_f32 {v(M)}, {v(M)}, {v(SK+3)}, {v(SK+4)}")
        a(f"v_max3_f32 {v(M)}, {v(M)}, {v(SK+5)}, {v(SK+6)}")
        a(f"v_max_f32 {v(M)}, {v(M)}, {v(SK+7)}")
        self.xhalf('v_max_f32', M, T1)
        a(f"ds_write_b32 v15, {v(M)}")
        self.barrier()
        self.stamp(30)
        for w in range(8):
            a(f"ds_read_b32 {v(32+w)}, v14 offset:{w*128}")
        a("s_waitcnt lgkmcnt(0)")
        a(f"v_max3_f32 {v(M)}, v32, v33, v34"); a(f"v_max3_f32 {v(M)}, {v(M)}, v35, v36"); a(f"v_max3_f32 {v(M)}, {v(M)}, v37, v38"); a(f"v_max_f32 {v(M)}, {v(M)}, v39")
        a(f"v_mul_f32 {v(M)}, {s(S_SC)}, {v(M)}")
        for r in range(8): a(f"v_fma_f32 {v(SK+r)}, {v(SK+r)}, {s(S_SC)}, -{v(M)}")
        for r in range(8): a(f"v_exp_f32 {v(SK+r)}, {v(SK+r)}")
        for q in range(4): a(f"v_cvt_pk_bf16_f32 {v(40+q)}, {v(SK+2*q)}, {v(SK+2*q+1)}")
        a(f"ds_write_b128 v56, {v(40,4)}")
        for q in range(4): a(f"v_add_f32 {v(SK+2*q)}, {v(SK+2*q)}, {v(SK+2*q+1)}")
        a(f"v_add_f32 {v(SK)}, {v(SK)}, {v(SK+2)}"); a(f"v_add_f32 {v(SK+4)}, {v(SK+4)}, {v(SK+6)}")
        a(f"v_add_f32 {v(Lsum)}, {v(SK)}, {v(SK+4)}")
        self.xhalf('v_add_f32', Lsum, T1)
        a(f"ds_write_b32 v58, {v(Lsum)}")
        self.barrier()
        self.stamp(6)
        PF, ACC2 = 64, 96
        for ks in range(8):
            a(f"ds_read_b128 {v(PF+4*ks,4)}, v57 offset:{ks*1024}")
        for w in range(8):
            a(f"ds_read_b32 {v(32+w)}, v59 offset:{w*128}")
        for ks in range(8):
            a(f"s_waitcnt lgkmcnt({min(15, 15-ks)})")
            for tt in range(2):
                cin = '0' if ks == 0 else v(ACC2+16*tt,16)
                a(f"v_mfma_f32_32x32x16_bf16 {v(ACC2+16*tt,16)}, {v(AFP+8*ks+4*tt,4)}, {v(PF+4*ks,4)}, {cin}")
        a(f"v_and_b32 v5, 15, {v(N32)}")
        a(f"s_and_b32 {s(t+2)}, {s(S_W)}, 1")
        a(f"s_lshl_b32 {s(t+2)}, {s(t+2)}, 3")
        a(f"v_xor_b32 v5, {s(t+2)}, v5")
        a(f"v_lshlrev_b32 v5, 4, v5")
        a(f"v_lshl_add_u32 v5, {v(HI)}, 3, v5")
        a(f"v_lshl_add_u32 v5, {v(N32)}, 10, v5")
        a(f"s_lshr_b32 {s(t+2)}, {s(S_W)}, 1")
        a(f"s_lshl_b32 {s(t+2)}, {s(t+2)}, 8")
        a(f"v_add_u32 v48, {s(t+2)}, v5")
        for x in range(1, 8): a(f"v_xor_b32 {v(48+x)}, {x<<4}, v48")
        for j in range(4):
            a(f"s_and_b32 {s(t+2)}, {s(S_W)}, 3")
            a(f"s_lshl_b32 {s(t+2)}, {s(t+2)}, 2")
            a(f"s_add_u32 {s(t+2)}, {s(t+2)}, {j}")
            a(f"s_lshl_b32 {s(t+2)}, {s(t+2)}, 4")
            a(f"v_lshlrev_b32 v5, 4, {v(V_L)}")
            a(f"v_xor_b32 v5, {s(t+2)}, v5")
            a(f"s_lshl_b32 {s(t+3)}, {s(S_W)}, 12")
            a(f"s_add_u32 {s(t+3)}, {s(t+3)}, {j*1024}")
            a(f"v_add_u32 {v(56+j)}, {s(t+3)}, v5")
        a("s_waitcnt lgkmcnt(0)")
        a("v_add_f32 v32, v32, v33"); a("v_add_f32 v34, v34, v35"); a("v_add_f32 v36, v36, v37"); a("v_add_f32 v38, v38, v39")
        a("v_add_f32 v32, v32, v34"); a("v_add_f32 v36, v36, v38")
        a(f"v_add_f32 {v(Lsum)}, v32, v36")
        a(f"v_lshlrev_b32 v6, 3, {v(N32)}")
        a(f"v_add_u32 v6, {MX}, v6")
        a(f"ds_write_b64 v6, {v(M,2)}")
        a(f"v_and_b32 v6, 3, {v(V_N16)}")
        a(f"s_lshl_b32 {s(t+2)}, {s(S_W)}, 5")
        a(f"s_add_u32 {s(t+2)}, {s(t+2)}, {MX}")
        a(f"v_lshlrev_b32 v7, 3, v6")
        a(f"v_add_u32 v7, {s(t+2)}, v7")
        a(f"v_lshlrev_b32 v6, 6, v6")
        a(f"v_lshl_add_u32 v6, {v(V_G4)}, 4, v6")
        a(f"s_lshl_b32 {s(t+2)}, {s(S_W)}, 8")
        a(f"s_lshl_b32 {s(t+3)}, {s(S_J)}, 11")
        a(f"s_add_u32 {s(t+2)}, {s(t+2)}, {s(t+3)}")
        a(f"s_add_u32 {s(t+2)}, {s(t+2)}, {BM}")
        a(f"s_lshl_b32 {s(t+3)}, {s(S_J)}, 15")
        a(f"s_lshl_b32 {s(t+4)}, {s(S_W)}, 12")
        a(f"s_add_u32 {s(t+3)}, {s(t+3)}, {s(t+4)}")
        a(f"s_add_u32 {s(t+3)}, {s(t+3)}, {BPART}")
        a(f"v_lshlrev_b32 v5, 4, {v(V_L)}")
        self.stamp(7)
        for tt in range(2):
            for q in range(4):
                r0 = ACC2 + 16*tt + 4*q
                a(f"v_cvt_pk_bf16_f32 {v(r0)}, {v(r0)}, {v(r0+1)}")
                a(f"v_cvt_pk_bf16_f32 {v(r0+1)}, {v(r0+2)}, {v(r0+3)}")
                a(f"ds_write_b64 {v(48+4*tt+q)}, {v(r0,2)}")
        a("s_waitcnt vmcnt(0)")
        self.barrier()
        OR = 32
        for j in range(4):
            a(f"ds_read_b128 {v(OR+4*j,4)}, {v(56+j)}")
        a(f"ds_read_b64 v[48:49], v7")
        a(f"v_mov_b32 v51, {s(S_T)}")
        a("s_waitcnt lgkmcnt(0)")
        for j in range(4):
            a(f"buffer_store_dwordx4 {v(OR+4*j,4)}, v5, {s(SRD_WS,4)}, {s(t+3)} offen offset:{j*1024} {SC}")
        self.checksum4(OR, 50, 10, SEL1, SEL2)
        self.set_exec(0x000f000f000f000f)
        a(f"buffer_store_dwordx4 v[48:51], v6, {s(SRD_WS,4)}, {s(t+2)} offen {SC}")
        self.set_exec(-1)
        self.stamp(8)
        WUVF = 164
        self.wo_dma_addr(192)
        DL, DM, DF, ACC = 64, 80, 84, 100
        a(f"s_lshl_b32 {s(t+4)}, {s(S_W)}, 19")
        a(f"s_lshl_b32 {s(t+2)}, {s(S_J)}, 8")
        a(f"s_add_u32 {s(t+4)}, {s(t+4)}, {s(t+2)}")
        a(f"s_add_u32 {s(t+4)}, {s(t+4)}, {BPART}")
        a(f"s_lshl_b32 {s(t+5)}, {s(S_W)}, 15")
        a(f"s_lshl_b32 {s(t+2)}, {s(S_J)}, 4")
        a(f"s_add_u32 {s(t+5)}, {s(t+5)}, {s(t+2)}")
        a(f"s_add_u32 {s(t+5)}, {s(t+5)}, {BM}")
        MLX = SCR + 8192
        a(f"v_and_b32 v6, 3, {v(V_N16)}")
        a(f"v_lshl_add_u32 v6, {v(V_G4)}, 2, v6")
        a(f"v_lshlrev_b32 v14, 2, v6")
        a(f"s_and_b32 {s(t+2)}, {s(S_W)}, 3")
        a(f"s_lshl_b32 {s(t+2)}, {s(t+2)}, 4")
        a(f"s_lshl_b32 {s(t+2)}, {s(t+2)}, 2")
        a(f"v_lshlrev_b32 v15, 4, {v(V_G4)}")
        a(f"v_add_u32 v15, {s(t+2)}, v15")
        a(f"v_add_u32 v13, 8, v15")
        a(f"v_lshlrev_b32 v7, 17, {v(V_G4)}")
        a(f"v_lshl_add_u32 v7, {v(V_N16)}, 4, v7")
        def ldp():
            for j in range(4):
                a(f"s_add_u32 {s(t+2)}, {s(t+4)}, {j*32768}")
                a(f"buffer_load_dwordx4 {v(DL+4*j,4)}, v7, {s(SRD_WS,4)}, {s(t+2)} offen {SC}")
        a(f"v_lshrrev_b32 v5, 2, {v(V_N16)}")
        a(f"v_bfe_u32 v6, {v(V_N16)}, 1, 1")
        a(f"s_lshl_b32 {s(t+2)}, {s(S_W)}, 1")
        a(f"v_or_b32 v6, {s(t+2)}, v6")
        a(f"v_lshlrev_b32 v8, 1, v5")
        a(f"v_xor_b32 v6, v6, v8")
        a(f"v_lshlrev_b32 v6, 4, v6")
        a(f"v_lshl_add_u32 v5, {v(V_G4)}, 3, v5")
        a(f"v_lshl_add_u32 v6, v5, 8, v6")
        a(f"v_and_b32 v5, 1, {v(V_N16)}")
        a(f"v_lshl_add_u32 v5, v5, 3, v6")
        a(f"v_add_u32 v5, {WUVIMG}, v5")
        a(f"v_xor_b32 v6, {8<<4}, v5")
        for ks in range(4):
            a(f"ds_read_b64_tr_b16 {v(WUVF+4*ks,2)}, v5 offset:{ks*8192}")
            a(f"ds_read_b64_tr_b16 {v(WUVF+4*ks+2,2)}, v6 offset:{ks*8192 + 1024}")
        a(f"s_lshl_b32 {s(t+6)}, {s(S_W)}, 7")
        a(f"s_add_u32 {s(t+6)}, {s(t+6)}, {MLX}")
        a(f"v_lshl_add_u32 v10, {v(V_L)}, 3, {s(t+6)}")
        a(f"s_lshr_b32 {s(t+6)}, {s(S_W)}, 2")
        a(f"s_lshl_b32 {s(t+6)}, {s(t+6)}, 9")
        a(f"s_add_u32 {s(t+6)}, {s(t+6)}, {MLX}")
        a(f"v_lshl_add_u32 v11, {v(V_L)}, 3, {s(t+6)}")
        a(f"v_lshlrev_b32 v9, 11, {v(V_L)}")
        def ldm():
            a(f"buffer_load_dwordx4 {v(DM,4)}, v9, {s(SRD_WS,4)}, {s(t+5)} offen {SC}")
        def ldboth():
            ldm()
            self.set_exec(-1)
            ldp()
            self.set_exec(0xffff)
        if self.c.e3ack: a("s_waitcnt vmcnt(0)")
        self.stamp(26)
        self.set_exec(0xffff)
        ldboth()
        def chkm():
            a(f"v_cmp_eq_u32 vcc, {s(S_T)}, {v(DM+3)}")
        if not self.c.e3scal:
            self.retry_vec(ldboth, chkm, "s_waitcnt vmcnt(4)", sleep=self.c.e3sleep, wait="s_waitcnt vmcnt(4)")
        else:
            LC = a.newlabel('EC'); LD = a.newlabel('ED'); LM = a.newlabel('EM'); LP = a.newlabel('EP'); LN = a.newlabel('EN')
            a(f"s_mov_b32 {s(S_CNT)}, 0")
            a.label(LC)
            a("s_waitcnt vmcnt(4)")
            chkm()
            a("s_cmp_eq_u64 vcc, exec")
            a(f"s_cbranch_scc1 {LD}")
            a(f"s_andn2_b32 s77, 0xffff, vcc_lo")
            a.label(LM)
            a(f"s_ff1_i32_b32 s76, s77")
            a(f"s_lshl_b32 s75, s76, 11")
            a(f"s_add_u32 s75, s75, {s(t+5)}")
            a.label(LP)
            a(f"s_add_u32 {s(S_CNT)}, {s(S_CNT)}, 1")
            a(f"s_cmp_ge_u32 {s(S_CNT)}, {self.c.spin_limit}")
            a(f"s_cbranch_scc1 {LD}")
            a(f"s_load_dwordx4 {s(S_PB,4)}, {s(P_WS,2)}, s75 glc")
            a("s_waitcnt lgkmcnt(0)")
            a(f"s_cmp_eq_u32 {s(S_PB+3)}, {s(S_T)}")
            a(f"s_cbranch_scc0 {LP}")
            a(f"s_bitset0_b32 s77, s76")
            a(f"s_cmp_lg_u32 s77, 0")
            a(f"s_cbranch_scc1 {LM}")
            ldboth()
            a(f"s_branch {LC}")
            a.label(LD)
        a(f"ds_write_b64 v10, {v(DM,2)}")
        self.set_exec(-1)
        self.stamp_cnt(27)
        self.stamp(14)
        self.wo_dma(SRD_WO, 192, WOIMG_Y, 4608)
        self.barrier()
        a(f"ds_read_b64 {v(DM,2)}, v11")
        a(f"ds_bpermute_b32 v12, v14, {v(DM+2)}")
        a("s_waitcnt lgkmcnt(0)")
        self.stamp(25)
        a(f"v_mov_b32 v8, {v(DM)}")
        self.inrow('v_max_f32', 8); self.xrow('v_max_f32', 8, 9)
        a(f"v_sub_f32 v8, {v(DM)}, v8")
        a(f"v_exp_f32 v8, v8")
        a(f"v_mul_f32 v10, v8, {v(DM+1)}")
        self.inrow('v_add_f32', 10); self.xrow('v_add_f32', 10, 9)
        a(f"v_rcp_f32 v10, v10")
        a(f"v_mul_f32 v8, v8, v10")
        a(f"v_mov_b32_dpp v9, v8 row_shl:1 row_mask:0xf bank_mask:0xf")
        a(f"v_cvt_pk_bf16_f32 v8, v8, v9")
        a(f"ds_bpermute_b32 v52, v15, v8")
        a(f"ds_bpermute_b32 v53, v13, v8")
        a(f"s_lshl_b32 {s(t+2)}, {s(S_W)}, 9")
        a(f"s_add_u32 {s(t+2)}, {s(t+2)}, {CW}")
        a(f"v_lshlrev_b32 v5, 5, {v(V_N16)}")
        a(f"v_add_u32 v5, {s(t+2)}, v5")
        a(f"v_lshlrev_b32 v6, 11, {v(V_RS)}")
        a(f"v_lshl_add_u32 v6, {v(V_G4)}, 4, v6")
        a(f"s_lshl_b32 {s(t+2)}, {s(S_W)}, 6")
        a(f"s_add_u32 {s(t+2)}, {s(t+2)}, {CW}")
        a(f"v_add_u32 v6, {s(t+2)}, v6")
        a("s_waitcnt lgkmcnt(0)")
        def chkp():
            self.checksum4(DL, 11, 32, SEL1, SEL2)
            a(f"v_cmp_eq_u32 vcc, v11, v12")
        self.retry_vec(ldp, chkp, "s_waitcnt vmcnt(5)", sleep=1)
        self.stamp(9)
        self.half_perm(DL, DF)
        self.half_mfma(ACC, 52, DF, True)
        a(f"v_lshlrev_b32 v7, 8, {v(V_RS)}")
        a(f"v_lshl_add_u32 v7, {v(V_G4)}, 3, v7")
        a(f"s_lshl_b32 {s(t+2)}, {s(S_W)}, 5")
        a(f"s_add_u32 {s(t+2)}, {s(t+2)}, {XL2}")
        a(f"v_add_u32 v7, {s(t+2)}, v7")
        self.afrag_addr(14, XL2)
        a(f"v_and_b32 v15, 1, {v(V_N16)}")
        a(f"v_lshlrev_b32 v15, 10, v15")
        a(f"v_lshrrev_b32 v13, 1, {v(V_N16)}")
        a(f"v_lshl_add_u32 v15, v13, 4, v15")
        a(f"s_add_u32 {s(t+3)}, {s(S_J)}, 128")
        a(f"s_lshl_b32 {s(t+3)}, {s(t+3)}, 11")
        a(f"s_lshl_b32 {s(t+2)}, {s(S_W)}, 7")
        a(f"s_add_u32 {s(t+3)}, {s(t+3)}, {s(t+2)}")
        a(f"s_add_u32 {s(t+3)}, {s(t+3)}, {OP}")
        a(f"v_mov_b32 v10, 0"); a(f"v_mov_b32 v11, 0.25")
        a(f"v_cndmask_b32 v10, v10, v11, {s(SEL2,2)}")
        a(f"v_mov_b32 v11, {s(S_T)}")
        self.set_exec(0xffff)
        self.write_acc_rows(ACC, 5)
        self.set_exec(-1)
        self.barrier()
        for q in range(4):
            a(f"ds_read_b128 {v(16+4*q,4)}, v6 offset:{q*512}")
        a("s_waitcnt lgkmcnt(0)")
        for j in range(4):
            a(f"v_add_f32 {v(16+j)}, {v(16+j)}, {v(20+j)}")
            a(f"v_add_f32 {v(24+j)}, {v(24+j)}, {v(28+j)}")
        for j in range(4):
            a(f"v_add_f32 {v(16+j)}, {v(16+j)}, {v(24+j)}")
        a("v_cvt_pk_bf16_f32 v52, v16, v17"); a("v_cvt_pk_bf16_f32 v53, v18, v19")
        self.set_exec(0x0011001100110011)
        a("ds_write_b64 v7, v[52:53]")
        self.set_exec(-1)
        self.barrier()
        self.afrag_reads(16, 14)
        a("s_waitcnt lgkmcnt(0)")
        self.chain4(64, 16, WUVF)
        self.pack_pair(64, 8, 9, 12, 13)
        self.set_exec(0xffff)
        a(f"buffer_store_dwordx4 v[8:11], v15, {s(SRD_WS,4)}, {s(t+3)} offen {SC}")
        self.set_exec(-1)
        self.stamp(10)
        a("s_waitcnt vmcnt(1)")
        a("s_barrier")
        self.p5(1, WOIMG_Y, 4608, 11, 12)
        self.final_reduce(1)

    def p5(self, branch, wbase, RS, st_x, st_pub):
        a = self.a; t = ST
        WF, WFX, AF, G = 132, 148, 16, 48
        a(f"v_lshrrev_b32 v14, 2, {v(V_N16)}")
        a(f"v_lshlrev_b32 v14, 11, v14")
        a(f"v_and_b32 v15, 1, {v(V_N16)}")
        a(f"v_lshl_add_u32 v14, v15, 10, v14")
        a(f"v_lshl_add_u32 v14, {v(V_G4)}, 5, v14")
        a(f"v_and_b32 v13, 2, {v(V_N16)}")
        a(f"v_lshl_add_u32 v14, v13, 3, v14")
        self.hshift5(t+5)
        a(f"s_add_u32 {s(t+4)}, {s(t+5)}, {branch*32}")
        a(f"s_lshl_b32 {s(t+4)}, {s(t+4)}, 13")
        a(f"s_lshl_b32 {s(t+2)}, {s(S_W)}, 7")
        a(f"s_add_u32 {s(t+4)}, {s(t+4)}, {s(t+2)}")
        a(f"s_add_u32 {s(t+4)}, {s(t+4)}, {OP}")
        G2 = 52
        def ldt(st=0):
            a(f"buffer_load_dwordx4 {v(G2 if st else G,4)}, v14, {s(SRD_WS,4)}, {s(t+4)} offen {SC}")
        def chkt(st=0):
            a(f"v_cmp_eq_u32 vcc, {s(S_T)}, {v((G2 if st else G)+3)}")
        G3 = 56
        def donet(st):
            for r in range(3): a(f"v_mov_b32 {v(G3+r)}, {v((G2 if st else G)+r)}")
        ldt()
        self.wo_frags(WF, WFX, wbase, RS)
        a(f"v_lshlrev_b32 v7, 8, v15")
        a(f"v_lshl_add_u32 v7, {v(V_G4)}, 3, v7")
        a(f"v_lshl_add_u32 v7, v13, 1, v7")
        a(f"s_lshl_b32 {s(t+2)}, {s(S_W)}, 5")
        a(f"s_add_u32 {s(t+2)}, {s(t+2)}, {XL}")
        a(f"v_add_u32 v7, {s(t+2)}, v7")
        self.afrag_addr(6, XL)
        a(f"v_mul_u32_u24 v15, {36*4096}, v15")
        a(f"v_lshrrev_b32 v13, 1, {v(V_N16)}")
        a(f"v_lshl_add_u32 v15, v13, 4, v15")
        a(f"s_mul_i32 {s(t+6)}, {s(S_RQ)}, {9*4096}")
        a(f"s_lshl_b32 {s(t+2)}, {s(t+5)}, 7")
        a(f"s_add_u32 {s(t+6)}, {s(t+6)}, {s(t+2)}")
        a(f"s_add_u32 {s(t+6)}, {s(t+6)}, {OUTP + branch*72*4096}")
        a(f"s_add_u32 {s(t+7)}, {s(t+6)}, {8*4096}")
        a(f"s_lshl_b32 {s(t+2)}, {s(S_W)}, 12")
        a(f"s_add_u32 {s(t+6)}, {s(t+6)}, {s(t+2)}")
        a(f"v_mov_b32 v105, {s(S_T)}"); a(f"v_mov_b32 v107, {s(S_T)}")
        a(f"v_mov_b32 v109, {s(S_T)}"); a(f"v_mov_b32 v111, {s(S_T)}")
        if self.c.pipep5:
            self.poll_pipe(ldt, chkt, donet, 1, self.c.stagp5)
        else:
            self.retry_vec(ldt, chkt, "s_waitcnt vmcnt(0)", sleep=self.c.sleep5)
        if self.c.pipep5: G = G3
        self.stamp(24)
        self.stamp_cnt(21)
        if self.c.dbg:
            a("s_waitcnt lgkmcnt(0)")
            a(f"s_lshl_b32 {s(t+8)}, s2, 3")
            a(f"s_add_u32 {s(t+8)}, {s(t+8)}, {s(S_W)}")
            a(f"s_lshl_b32 {s(t+8)}, {s(t+8)}, 12")
            a(f"s_add_u32 {s(t+8)}, {s(t+8)}, 0x1000000")
            a(f"v_lshlrev_b32 v12, 6, {v(V_L)}")
            for q in range(4):
                a(f"buffer_store_dwordx4 {v(WF+4*q,4)}, v12, {s(SRD_WS,4)}, {s(t+8)} offen offset:{q*16}")
        a(f"v_mov_b32_dpp v9, {v(G+2)} quad_perm:[2,3,0,1] row_mask:0xf bank_mask:0xf")
        a(f"v_cndmask_b32 v8, {v(G+2)}, v9, {s(SEL2,2)}")
        a(f"v_cndmask_b32 v9, v9, {v(G+2)}, {s(SEL2,2)}")
        a(f"v_max_f32_dpp v10, v8, v8 row_ror:4 row_mask:0xf bank_mask:0xf")
        a(f"v_max_f32_dpp v10, v10, v10 row_ror:8 row_mask:0xf bank_mask:0xf")
        a(f"v_sub_f32 v8, v8, v10")
        a(f"v_exp_f32 v8, v8")
        a(f"v_mul_f32 v9, v8, v9")
        a(f"v_mul_f32 v10, v8, {v(G)}")
        a(f"v_mul_f32 v11, v8, {v(G+1)}")
        for r in (4, 8):
            for x in (9, 10, 11):
                a(f"v_add_f32_dpp {v(x)}, {v(x)}, {v(x)} row_ror:{r} row_mask:0xf bank_mask:0xf")
        a("v_rcp_f32 v9, v9")
        a("v_mul_f32 v10, v10, v9"); a("v_mul_f32 v11, v11, v9")
        a("v_cvt_pk_bf16_f32 v10, v10, v11")
        self.set_exec(0x000f000f000f000f)
        a("ds_write_b32 v7, v10")
        self.set_exec(-1)
        self.barrier()
        self.stamp(st_x)
        self.afrag_reads(AF, 6)
        a("s_waitcnt lgkmcnt(0)")
        self.chain4(64, AF, WF)
        LO = a.newlabel('TO')
        a(f"s_cmp_lg_u32 {s(S_W)}, 0")
        a(f"s_cbranch_scc1 {LO}")
        self.chain4(68, AF, WFX)
        self.pack_pair(68, 108, 110, 12, 13)
        self.set_exec(0xffff)
        a(f"buffer_store_dwordx4 v[108:111], v15, {s(SRD_WS,4)}, {s(t+7)} offen {SC}")
        self.set_exec(-1)
        a.label(LO)
        self.pack_pair(64, 104, 106, 12, 13)
        self.set_exec(0xffff)
        a(f"buffer_store_dwordx4 v[104:107], v15, {s(SRD_WS,4)}, {s(t+6)} offen {SC}")
        self.set_exec(-1)
        self.stamp(st_pub)

    def build(self):
        a = self.a; c = self.c
        self.prologue()
        self.p1_loads()
        self.srds_rest()
        a(f"s_cmp_eq_u32 {s(S_TYPE)}, 0")
        a("s_cbranch_scc0 L_Y0")
        self.x_main()
        a.label("L_Y0")
        self.y_main()
        a.label("L_END")
        self.stamp_dump()
        a.label("L_EXIT")
        a("s_endpgm")
        body = a.finalize()
        hdr = open(os.path.join(os.path.dirname(os.path.abspath(__file__)), 'header.txt')).read()
        out = hdr
        out += f"; @launch grid=(256,1,1) block=(512,1,1) lds={LDS_BYTES}\n"
        out += f""".amdgcn_target "amdgcn-amd-amdhsa--gfx950"
.text
.globl {NAME}_kernel
.p2align 8
.type {NAME}_kernel,@function
{NAME}_kernel:
"""
        out += body
        out += f""".section .rodata,"a"
.p2align 6
.amdhsa_kernel {NAME}_kernel
  .amdhsa_next_free_vgpr 256
  .amdhsa_next_free_sgpr 102
  .amdhsa_accum_offset 256
  .amdhsa_group_segment_fixed_size 0
  .amdhsa_kernarg_size 112
  .amdhsa_user_sgpr_count 2
  .amdhsa_user_sgpr_kernarg_segment_ptr 1
  .amdhsa_system_sgpr_workgroup_id_x 1
.end_amdhsa_kernel
"""
        return out

if __name__ == '__main__':
    cfg = Cfg()
    outp = f"cdna_kernels/{NAME}.s"
    for arg in sys.argv[1:]:
        if arg.startswith('-o='): outp = arg[3:]
        elif '=' in arg:
            k, val = arg.split('=')
            setattr(cfg, k, val.replace('+', ' ') if isinstance(getattr(cfg, k), str) else type(getattr(cfg, k))(int(val)))
    g = Gen(cfg)
    txt = g.build()
    open(outp, 'w').write(txt)
    print("wrote", outp, "lines", txt.count('\n'), "nops inserted", g.a.ninserted)
```

```python
import sys, os, struct
sys.path.insert(0, os.path.dirname(os.path.abspath(__file__)))
from asmlib import Asm, v, s

NAME = "concat_heads__sliding_block_cached__compressed_kv_cla__decode"

class Cfg:
    nt_stream = True
    nt_w = True
    n1_ckv = 4
    n1_k = 0
    n2_k = 0
    n3_k = 0
    spin_limit = 300000
    sleep5 = 1
    e3scal = 0
    wuv_late = 0
    e3wo = 4
    e3early = 1
    e3il = 1
    warm = 0
    e3mask = 0
    wo_when = 0
    xwin = 0
    xwinv = 1
    ntwo = 1
    ntuk = 1
    kx = 4
    qabs_first = ''
    touch = 0
    pipe5 = 1
    stag5 = 10
    pipep5 = 0
    stagp5 = 8
    ldsdbg = 0
    k_after = 4
    early_qa = 1
    n4_k = 0
    e3ack = 1
    e3sleep = 4
    hs = 6
    hsy = 4
    wuk_late = 0
    hs5 = 4
    ackdbg = 0
    xsplit = 0
    dbg = 0
    stamps = False

Q1   = 0x000000
QABS = 0x080000
QM   = 0x090000
EPOCH= 0x0A0000
DONE = 0x0A1000
OP   = 0x100000
OM   = 0x180000
BM   = 0x1C0000
BPART= 0x200000
OUTP = 0x600000
STMP = 0x900000
WS_SIZE = 268435456

IMG = 0
SCR = 131072
R1 = SCR; R2 = SCR + 8192; QL = SCR + 12288; QAL = SCR + 12800
QIMG = SCR
SX = SCR; MX = SCR + 16384; LS = SCR + 17408; PB = SCR + 18432
OW = SCR; ML = SCR + 8192
CW = SCR; XL2 = SCR + 4096
XL = SCR + 12288 + 1024
WUVIMG = IMG + 32768; WOIMG_Y = IMG + 65536
LDS_BYTES = 163840

S_W = 3; S_J = 4; S_TYPE = 5; S_H = 6; S_RQ = 7; S_T = 8
S_B = 9; S_S = 10; S_G = 11
S_PLO = 12; S_PHI = 13; S_SC = 14; S_BASE = 15
P_AX, P_AK, P_AV, P_AWQ, P_AWO, P_BX, P_CKV, P_BWQ = 16, 18, 20, 22, 24, 26, 28, 30
P_WUK, P_WUV, P_BWO, P_OUT = 32, 34, 36, 38
P_DBG, P_WS0 = 40, 42
SRD_X = 44; SRD_W = 48; SRD_ST = 52; SRD_V = 56; SRD_WO = 60; SRD_U = 64
SRD_WS = 80; SRD_OUT = 84; P_WS = 88; SEL1 = 0; SEL2 = 90
ST = 92
S_CNT = 5
S_PB = 16
V_L, V_G4, V_N16, V_RS = 1, 2, 3, 4
SC = "sc0 sc1"
SCALE_LOG2E = 0.08838834764831845 * 1.4426950408889634
TAGINC = 0x9e3779b9
def f32hex(x): return '0x%08x' % struct.unpack('<I', struct.pack('<f', x))[0]

class Gen:
    def __init__(self, cfg):
        self.c = cfg
        self.a = Asm()

    def srd(self, dst, ptr, size):
        a = self.a
        a(f"s_mov_b32 {s(dst)}, {s(ptr)}")
        a(f"s_and_b32 {s(dst+1)}, {s(ptr+1)}, 0xffff")
        a(f"s_mov_b32 {s(dst+2)}, {size}")
        a(f"s_mov_b32 {s(dst+3)}, 0x20000")
    def srd_sel(self, dst, ptrX, ptrY, sizeX, sizeY):
        a = self.a
        a(f"s_cmp_eq_u32 {s(S_TYPE)}, 0")
        a(f"s_cselect_b32 {s(dst)}, {s(ptrX)}, {s(ptrY)}")
        a(f"s_cselect_b32 {s(dst+1)}, {s(ptrX+1)}, {s(ptrY+1)}")
        if sizeX == sizeY:
            a(f"s_mov_b32 {s(dst+2)}, {sizeX}")
        else:
            a(f"s_mov_b32 {s(dst+2)}, {sizeY}")
            a(f"s_cselect_b32 {s(dst+2)}, {sizeX}, {s(dst+2)}")
        a(f"s_and_b32 {s(dst+1)}, {s(dst+1)}, 0xffff")
        a(f"s_mov_b32 {s(dst+3)}, 0x20000")
    def hshift(self, dst):
        self.a(f"s_add_u32 {s(dst)}, {s(S_H)}, s79")
        self.a(f"s_and_b32 {s(dst)}, {s(dst)}, 31")
    def hshift5(self, dst):
        self.a(f"s_add_u32 {s(dst)}, {s(S_H)}, {self.c.hs5}")
        self.a(f"s_and_b32 {s(dst)}, {s(dst)}, 31")
    def set_exec(self, mask):
        a = self.a
        if mask == -1:
            a("s_mov_b64 exec, -1"); return
        a(f"s_mov_b32 exec_lo, 0x{mask & 0xffffffff:08x}")
        a(f"s_mov_b32 exec_hi, 0x{mask >> 32:08x}")
    def ntw(self): return ' nt' if self.c.nt_w else ''
    def nts(self): return ' nt' if self.c.nt_stream else ''

    def stamp(self, idx):
        if not self.c.stamps: return
        a = self.a
        a(f"s_memrealtime vcc")
        a(f"s_waitcnt lgkmcnt(0)")
        a(f"v_writelane_b32 v0, vcc_lo, {idx}")
    def stamp_cnt(self, idx):
        if not self.c.stamps: return
        self.a(f"v_writelane_b32 v0, {s(S_CNT)}, {idx}")
    def stamp_dump(self):
        if not self.c.stamps: return
        a = self.a
        a(f"s_lshl_b32 s98, s2, 3")
        a(f"s_add_u32 s98, s98, {s(S_W)}")
        a(f"s_lshl_b32 s98, s98, 7")
        a(f"s_add_u32 s98, s98, {STMP}")
        a(f"v_lshlrev_b32 v58, 2, {v(V_L)}")
        self.set_exec(0xffffffff)
        a(f"buffer_store_dword v0, v58, {s(SRD_WS,4)}, s98 offen")
        self.set_exec(-1)
    def tid_shl(self, dst, sh, add=0, st=None):
        a = self.a
        st = ST + 9 if st is None else st
        a(f"s_lshl_b32 {s(st)}, {s(S_W)}, {6+sh}")
        if add: a(f"s_add_u32 {s(st)}, {s(st)}, {add}")
        a(f"v_lshl_add_u32 {v(dst)}, {v(V_L)}, {sh}, {s(st)}")

    def half_perm(self, L, F):
        a = self.a
        for i in range(4):
            for jj in range(2):
                lo = L + (2*jj)*4 + i; hi = L + (2*jj+1)*4 + i
                a(f"v_perm_b32 {v(F + (2*i)*2 + jj)}, {v(hi)}, {v(lo)}, {s(S_PLO)}")
                a(f"v_perm_b32 {v(F + (2*i+1)*2 + jj)}, {v(hi)}, {v(lo)}, {s(S_PHI)}")
    def full_perm(self, L, F):
        a = self.a
        for i in range(4):
            for jj in range(4):
                lo = L + (2*jj)*4 + i; hi = L + (2*jj+1)*4 + i
                a(f"v_perm_b32 {v(F + (2*i)*4 + jj)}, {v(hi)}, {v(lo)}, {s(S_PLO)}")
                a(f"v_perm_b32 {v(F + (2*i+1)*4 + jj)}, {v(hi)}, {v(lo)}, {s(S_PHI)}")
    def half_mfma(self, ACC, AF, F, first):
        a = self.a
        for c in range(8):
            cin = '0' if first else v(ACC + 4*c, 4)
            a(f"v_mfma_f32_16x16x16_bf16 {v(ACC+4*c,4)}, {v(AF,2)}, {v(F+2*c,2)}, {cin}")
    def xrow(self, op, x, t):
        a = self.a
        a(f"v_mov_b32 {v(t)}, {v(x)}")
        a(f"v_permlane16_swap_b32 {v(x)}, {v(t)}")
        a(f"{op} {v(x)}, {v(x)}, {v(t)}")
        a(f"v_mov_b32 {v(t)}, {v(x)}")
        a(f"v_permlane32_swap_b32 {v(x)}, {v(t)}")
        a(f"{op} {v(x)}, {v(x)}, {v(t)}")
    def xrow_multi(self, op, xs, ts):
        a = self.a
        for sw in ('v_permlane16_swap_b32', 'v_permlane32_swap_b32'):
            for x, t in zip(xs, ts): a(f"v_mov_b32 {v(t)}, {v(x)}")
            for x, t in zip(xs, ts): a(f"{sw} {v(x)}, {v(t)}")
            for x, t in zip(xs, ts): a(f"{op} {v(x)}, {v(x)}, {v(t)}")
    def xhalf(self, op, x, t):
        a = self.a
        a(f"v_mov_b32 {v(t)}, {v(x)}")
        a(f"v_permlane32_swap_b32 {v(x)}, {v(t)}")
        a(f"{op} {v(x)}, {v(x)}, {v(t)}")
    def inrow(self, op, x):
        a = self.a
        for r in (8, 4, 2, 1):
            a(f"{op}_dpp {v(x)}, {v(x)}, {v(x)} row_ror:{r} row_mask:0xf bank_mask:0xf")
    def barrier(self):
        self.a("s_waitcnt lgkmcnt(0)")
        self.a("s_barrier")

    def spin_scalar(self, load_fn, ok_fn, sleep=0):
        a = self.a
        L = a.newlabel('SP'); D = a.newlabel('SD')
        a(f"s_mov_b32 {s(S_CNT)}, 0")
        a.label(L)
        load_fn()
        a("s_waitcnt lgkmcnt(0)")
        ok_fn()
        a(f"s_cbranch_scc1 {D}")
        if sleep: a(f"s_sleep {sleep}")
        a(f"s_add_u32 {s(S_CNT)}, {s(S_CNT)}, 1")
        a(f"s_cmp_lt_u32 {s(S_CNT)}, {self.c.spin_limit}")
        a(f"s_cbranch_scc1 {L}")
        a.label(D)

    def s_alltags(self, regs, t0, t1):
        a = self.a
        a(f"s_xor_b32 {s(t0)}, {s(regs[0])}, {s(S_T)}")
        for r in regs[1:]:
            a(f"s_xor_b32 {s(t1)}, {s(r)}, {s(S_T)}")
            a(f"s_or_b32 {s(t0)}, {s(t0)}, {s(t1)}")
        a(f"s_cmp_eq_u32 {s(t0)}, 0")

    def retry_vec(self, load_fn, check_fn, first_wait, sleep=0, wait="s_waitcnt vmcnt(0)"):
        a = self.a
        C = a.newlabel('RC'); D = a.newlabel('RD')
        a(f"s_mov_b32 {s(S_CNT)}, 0")
        a(first_wait)
        a.label(C)
        check_fn()
        a("s_cmp_eq_u64 vcc, exec")
        a(f"s_cbranch_scc1 {D}")
        a(f"s_add_u32 {s(S_CNT)}, {s(S_CNT)}, 1")
        a(f"s_cmp_ge_u32 {s(S_CNT)}, {self.c.spin_limit}")
        a(f"s_cbranch_scc1 {D}")
        if sleep: a(f"s_sleep {sleep}")
        load_fn()
        a(wait)
        a(f"s_branch {C}")
        a.label(D)

    def poll_pipe(self, load_fn, check_fn, done_fn, nloads, stagger, first_issued=True):
        a = self.a
        L0 = a.newlabel('PP'); D0 = a.newlabel('PD'); D1 = a.newlabel('PD'); E = a.newlabel('PE')
        a(f"s_mov_b32 {s(S_CNT)}, 0")
        if stagger: a(f"s_sleep {stagger}")
        load_fn(1)
        a.label(L0)
        for k, D in ((0, D0), (1, D1)):
            a(f"s_waitcnt vmcnt({nloads})")
            check_fn(k)
            a("s_cmp_eq_u64 vcc, exec")
            a(f"s_cbranch_scc1 {D}")
            load_fn(k)
        a(f"s_add_u32 {s(S_CNT)}, {s(S_CNT)}, 1")
        a(f"s_cmp_lt_u32 {s(S_CNT)}, {self.c.spin_limit}")
        a(f"s_cbranch_scc1 {L0}")
        a("s_waitcnt vmcnt(0)")
        a.label(D0)
        done_fn(0)
        a(f"s_branch {E}")
        a.label(D1)
        done_fn(1)
        a.label(E)

    def acc_rows_addr(self, dst, base):
        a = self.a
        a(f"v_and_b32 {v(dst)}, 1, {v(V_G4)}")
        a(f"v_lshlrev_b32 {v(dst)}, 9, {v(dst)}")
        a(f"v_lshl_add_u32 {v(dst)}, {v(V_N16)}, 5, {v(dst)}")
        a(f"s_lshl_b32 {s(ST)}, {s(S_W)}, 10")
        a(f"s_add_u32 {s(ST)}, {s(ST)}, {base}")
        a(f"v_add_u32 {v(dst)}, {s(ST)}, {v(dst)}")
    def write_acc_rows(self, ACC, addr):
        for c in range(0, 8, 2):
            self.a(f"ds_write2_b32 {v(addr)}, {v(ACC+4*c)}, {v(ACC+4*c+4)} offset0:{c} offset1:{c+1}")

    def checksum4(self, Q, X, t, SEL1, SEL2):
        a = self.a
        for j in range(4):
            q = Q + 4*j
            a(f"v_bitop3_b32 {v(t+j)}, {v(q)}, {v(q+1)}, {v(q+2)} bitop3:0x96")
        for j in range(4):
            a(f"v_xor_b32 {v(t+j)}, {v(t+j)}, {v(Q+4*j+3)}")
        for r in (8, 4, 2, 1):
            for j in range(4):
                a(f"v_xor_b32_dpp {v(t+j)}, {v(t+j)}, {v(t+j)} row_ror:{r} row_mask:0xf bank_mask:0xf")
        a(f"v_cndmask_b32 {v(t)}, {v(t)}, {v(t+1)}, {s(SEL1,2)}")
        a(f"v_cndmask_b32 {v(t+2)}, {v(t+2)}, {v(t+3)}, {s(SEL1,2)}")
        a(f"v_cndmask_b32 {v(X)}, {v(t)}, {v(t+2)}, {s(SEL2,2)}")

    def prologue(self):
        a = self.a
        if self.c.stamps: a("s_memrealtime s[100:101]")
        a("s_cmp_ge_u32 s2, 256")
        a("s_cbranch_scc1 L_EXIT")
        a("s_load_dwordx16 s[16:31], s[0:1], 0")
        a("s_load_dwordx8 s[32:39], s[0:1], 64")
        a("s_load_dwordx4 s[40:43], s[0:1], 96")
        a("v_lshrrev_b32 v5, 6, v0")
        a(f"v_and_b32 {v(V_L)}, 63, v0")
        a(f"v_readfirstlane_b32 {s(S_W)}, v5")
        a(f"v_lshrrev_b32 {v(V_G4)}, 4, {v(V_L)}")
        a(f"v_and_b32 {v(V_N16)}, 15, {v(V_L)}")
        a(f"v_bfe_u32 {v(V_RS)}, {v(V_N16)}, 2, 1")
        a(f"s_and_b32 {s(ST+2)}, s2, 7")
        a(f"s_lshr_b32 {s(ST+3)}, s2, 3")
        if self.c.xsplit:
            a(f"s_lshr_b32 {s(S_TYPE)}, {s(ST+2)}, 2")
            a(f"s_and_b32 {s(ST+2)}, {s(ST+2)}, 3")
            a(f"s_lshl_b32 {s(S_J)}, {s(ST+2)}, 5")
            a(f"s_add_u32 {s(S_J)}, {s(S_J)}, {s(ST+3)}")
        else:
            a(f"s_and_b32 {s(S_TYPE)}, {s(ST+3)}, 1")
            a(f"s_lshr_b32 {s(ST+3)}, {s(ST+3)}, 1")
            a(f"s_lshl_b32 {s(S_J)}, {s(ST+2)}, 4")
            a(f"s_add_u32 {s(S_J)}, {s(S_J)}, {s(ST+3)}")
        a(f"s_lshr_b32 {s(S_H)}, {s(S_J)}, 2")
        a(f"s_and_b32 {s(S_RQ)}, {s(S_J)}, 3")
        a(f"s_cmp_eq_u32 {s(S_TYPE)}, 0")
        a(f"s_cselect_b32 s79, {self.c.hs}, {self.c.hsy}")
        a(f"s_mov_b32 {s(S_PLO)}, 0x05040100")
        a(f"s_mov_b32 {s(S_PHI)}, 0x07060302")
        a(f"s_mov_b32 {s(S_SC)}, {f32hex(SCALE_LOG2E)}")
        a(f"v_lshlrev_b32 v5, 15, {v(V_G4)}")
        a(f"v_lshl_add_u32 v5, {v(V_N16)}, 4, v5")
        a(f"v_mul_u32_u24 v6, 1152, {v(V_RS)}")
        a(f"v_lshl_add_u32 v6, {v(V_G4)}, 3, v6")
        a("s_waitcnt lgkmcnt(0)")
        a(f"s_load_dword {s(S_T)}, {s(P_WS0,2)}, {EPOCH}")
        a(f"s_mov_b64 {s(P_WS,2)}, {s(P_WS0,2)}")
        a(f"s_mov_b32 {s(SEL1)}, 0xaaaaaaaa"); a(f"s_mov_b32 {s(SEL1+1)}, 0xaaaaaaaa")
        a(f"s_mov_b32 {s(SEL2)}, 0xcccccccc"); a(f"s_mov_b32 {s(SEL2+1)}, 0xcccccccc")
        self.srd_sel(SRD_X, P_BX, P_AX, 2304, 2304)
        self.srd_sel(SRD_W, P_BWQ, P_AWQ, 4718592, 4718592)
        if self.c.stamps:
            a("v_mov_b32 v0, 0")
            a("v_writelane_b32 v0, s100, 31")
        self.stamp(0)

    def srds_rest(self):
        self.srd(SRD_WS, P_WS0, WS_SIZE)
        self.srd_sel(SRD_ST, P_AK, P_CKV, 67108864, 16777216)
        self.srd_sel(SRD_V, P_AV, P_WUV, 67108864, 4194304)
        self.srd(SRD_U, P_WUK, 4194304)
        self.srd_sel(SRD_WO, P_AWO, P_BWO, 4718592, 4718592)
        self.srd(SRD_OUT, P_OUT, 4608)

    XF, XF2, L1, L2, F1, ACC1 = 16, 18, 20, 36, 52, 68
    def p1_loads(self):
        a = self.a
        V_WQ, V_X = 5, 6
        def loads(u_const, XFr, Lr):
            t = ST
            a(f"s_mul_i32 {s(t)}, {s(S_RQ)}, 144")
            if u_const is not None:
                a(f"s_add_u32 {s(t)}, {s(t)}, {16*u_const}")
            else:
                a(f"s_lshl_b32 {s(t+1)}, {s(S_W)}, 4")
                a(f"s_add_u32 {s(t)}, {s(t)}, {s(t+1)}")
            a(f"s_lshl_b32 {s(t+1)}, {s(t)}, 1")
            a(f"buffer_load_dwordx2 {v(XFr,2)}, {v(V_X)}, {s(SRD_X,4)}, {s(t+1)} offen")
            a(f"s_lshl_b32 {s(t)}, {s(t)}, 13")
            self.hshift(t+1)
            a(f"s_lshl_b32 {s(t+1)}, {s(t+1)}, 8")
            a(f"s_add_u32 {s(t)}, {s(t)}, {s(t+1)}")
            for jr in range(4):
                a(f"buffer_load_dwordx4 {v(Lr+4*jr,4)}, {v(V_WQ)}, {s(SRD_W,4)}, {s(t)} offen{self.ntw()}")
                if jr < 3: a(f"s_add_u32 {s(t)}, {s(t)}, 8192")
        LX = a.newlabel('LX')
        a(f"s_cmp_lg_u32 {s(S_W)}, 0")
        a(f"s_cbranch_scc1 {LX}")
        loads(8, self.XF2, self.L2)
        a.label(LX)
        loads(None, self.XF, self.L1)

    def p1_compute(self, branch, nyoung, hook=None):
        a = self.a
        self.acc_rows_addr(7, R1)
        self.tid_shl(5, 2, R1)
        self.tid_shl(6, 3)
        a(f"s_lshl_b32 {s(ST+1)}, s79, 2")
        a(f"s_add_u32 {s(ST+1)}, {s(ST+1)}, {s(S_J)}")
        a(f"s_and_b32 {s(ST+1)}, {s(ST+1)}, 127")
        a(f"s_add_u32 {s(ST+1)}, {s(ST+1)}, {branch*128}")
        a(f"s_lshl_b32 {s(ST+1)}, {s(ST+1)}, 11")
        if Q1: a(f"s_add_u32 {s(ST+1)}, {s(ST+1)}, {Q1}")
        a(f"s_waitcnt vmcnt({nyoung})")
        self.stamp(1)
        if hook is not None:
            a("v_mov_b32 v250, v7"); a(f"s_mov_b32 s78, {s(ST+1)}")
            hook()
            a("v_mov_b32 v7, v250"); a(f"s_mov_b32 {s(ST+1)}, s78")
        self.half_perm(self.L1, self.F1)
        self.half_mfma(self.ACC1, self.XF, self.F1, True)
        LY = a.newlabel('LY')
        a(f"s_cmp_lg_u32 {s(S_W)}, 0")
        a(f"s_cbranch_scc1 {LY}")
        self.half_perm(self.L2, self.L1)
        self.half_mfma(self.ACC1, self.XF2, self.L1, False)
        a.label(LY)
        self.write_acc_rows(self.ACC1, 7)
        self.barrier()
        a(f"s_add_u32 {s(S_T)}, {s(S_T)}, 0x{TAGINC:08x}")
        LZ = a.newlabel('LZ')
        a(f"s_cmp_ge_u32 {s(S_W)}, 4")
        a(f"s_cbranch_scc1 {LZ}")
        for w in range(8):
            a(f"ds_read_b32 {v(20+w)}, v5 offset:{w*1024}")
        a(f"v_mov_b32 v29, {s(S_T)}")
        a("s_waitcnt lgkmcnt(0)")
        a("v_add_f32 v20, v20, v21"); a("v_add_f32 v22, v22, v23"); a("v_add_f32 v24, v24, v25"); a("v_add_f32 v26, v26, v27")
        a("v_add_f32 v20, v20, v22"); a("v_add_f32 v24, v24, v26")
        a("v_add_f32 v28, v20, v24")
        a(f"buffer_store_dwordx2 v[28:29], v6, {s(SRD_WS,4)}, {s(ST+1)} offen {SC}")
        a.label(LZ)
        self.stamp(2)

    def q_addr(self, own_head_both_batches, dst):
        a = self.a; t = dst
        if own_head_both_batches:
            a(f"s_add_u32 {s(t)}, {s(S_H)}, 32")
            a(f"s_lshr_b32 {s(t+1)}, {s(S_W)}, 2")
        else:
            a(f"s_lshr_b32 {s(t)}, {s(S_J)}, 3")
            a(f"s_lshl_b32 {s(t)}, {s(t)}, 1")
            a(f"s_lshr_b32 {s(t+1)}, {s(S_W)}, 2")
            a(f"s_add_u32 {s(t)}, {s(t)}, {s(t+1)}")
            a(f"s_bfe_u32 {s(t+1)}, {s(S_J)}, 0x10002")
        a(f"s_lshl_b32 {s(t)}, {s(t)}, 3")
        a(f"s_add_u32 {s(t)}, {s(t)}, {s(t+1)}")
        a(f"s_and_b32 {s(t+1)}, {s(S_W)}, 3")
        a(f"s_lshl_b32 {s(t+1)}, {s(t+1)}, 1")
        a(f"s_add_u32 {s(t)}, {s(t)}, {s(t+1)}")
        a(f"s_lshl_b32 {s(t)}, {s(t)}, 10")
        if Q1: a(f"s_add_u32 {s(t)}, {s(t)}, {Q1}")

    def q_poll(self, t):
        a = self.a
        a(f"s_add_u32 {s(t+1)}, {s(t)}, {127*8}")
        self.spin_scalar(lambda: a(f"s_load_dwordx2 {s(S_PB,2)}, {s(P_WS,2)}, {s(t+1)} glc"),
                         lambda: a(f"s_cmp_eq_u32 {s(S_PB+1)}, {s(S_T)}"))
    def q_load(self, t, G):
        a = self.a
        a(f"v_lshlrev_b32 v5, 4, {v(V_L)}")
        a(f"buffer_load_dwordx4 {v(G,4)}, v5, {s(SRD_WS,4)}, {s(t)} offen {SC}")
    def q_finish(self, t, G, nafter, st_data=None):
        a = self.a
        a(f"s_lshl_b32 {s(ST)}, {s(S_W)}, 9")
        a(f"s_add_u32 {s(ST)}, {s(ST)}, {R2}")
        a(f"v_lshlrev_b32 v6, 3, {v(V_L)}")
        a(f"v_add_u32 v6, {s(ST)}, v6")
        def chk():
            a(f"v_cmp_eq_u32 vcc, {s(S_T)}, {v(G+1)}")
            a(f"v_cmp_eq_u32 {s(S_PB,2)}, {s(S_T)}, {v(G+3)}")
            a(f"s_and_b64 vcc, vcc, {s(S_PB,2)}")
        self.retry_vec(lambda: self.q_load(t, G), chk, f"s_waitcnt vmcnt({nafter})")
        if st_data is not None: self.stamp(st_data)
        a(f"ds_write2_b32 v6, {v(G)}, {v(G+2)} offset0:0 offset1:1")
        LQ = a.newlabel('LQ')
        a(f"s_lshl_b32 {s(ST)}, {s(S_W)}, 11")
        a(f"s_add_u32 {s(ST)}, {s(ST)}, {R2}")
        a(f"v_lshlrev_b32 v5, 3, {v(V_L)}")
        a(f"v_add_u32 v5, {s(ST)}, v5")
        a(f"s_lshl_b32 {s(ST)}, {s(S_W)}, 8")
        a(f"s_add_u32 {s(ST)}, {s(ST)}, {QL}")
        a(f"v_lshlrev_b32 v6, 2, {v(V_L)}")
        a(f"v_add_u32 v6, {s(ST)}, v6")
        self.barrier()
        a(f"s_cmp_ge_u32 {s(S_W)}, 2")
        a(f"s_cbranch_scc1 {LQ}")
        for r in range(4):
            a(f"ds_read_b64 {v(8+2*r,2)}, v5 offset:{r*512}")
        a("s_waitcnt lgkmcnt(0)")
        a("v_add_f32 v8, v8, v10"); a("v_add_f32 v9, v9, v11"); a("v_add_f32 v12, v12, v14"); a("v_add_f32 v13, v13, v15")
        a("v_add_f32 v8, v8, v12"); a("v_add_f32 v9, v9, v13")
        a("v_cvt_pk_bf16_f32 v8, v8, v9")
        a("ds_write_b32 v6, v8")
        a.label(LQ)
        a(f"v_lshlrev_b32 v5, 8, {v(V_RS)}")
        a(f"v_lshl_add_u32 v5, {v(V_G4)}, 4, v5")
        a(f"v_add_u32 v5, {QL}, v5")
        self.barrier()
    def q_gather(self, t, G, after_issue, nafter, st_poll=None, st_data=None):
        self.q_poll(t)
        if st_poll is not None: self.stamp(st_poll)
        self.q_load(t, G)
        after_issue()
        self.q_finish(t, G, nafter, st_data)

    def read_q_frags(self, QF):
        for i in range(4):
            self.a(f"ds_read_b128 {v(QF+4*i,4)}, v5 offset:{i*64}")

    def wo_dma_addr(self, A):
        a = self.a
        for i in range(5):
            a(f"v_add_u32 {v(A+i)}, {64*i}, {v(V_L)}")
            a(f"v_mul_u32_u24 v5, 3641, {v(A+i)}")
            a(f"v_lshrrev_b32 v5, 16, v5")
            a(f"v_lshlrev_b32 {v(A+i)}, 4, {v(A+i)}")
            a(f"v_mul_u32_u24 v5, 864, v5")
            a(f"v_add_u32 {v(A+i)}, {v(A+i)}, v5")
    def wo_dma(self, SRD, A, base, RS, which=range(5)):
        a = self.a; t = ST
        self.hshift5(t)
        a(f"s_lshl_b32 {s(t)}, {s(t)}, 7")
        a(f"s_lshl_b32 {s(t+1)}, {s(S_W)}, 4")
        a(f"s_add_u32 {s(t)}, {s(t)}, {s(t+1)}")
        a(f"s_mul_i32 {s(t)}, {s(t)}, 1152")
        a(f"s_mul_i32 {s(t+1)}, {s(S_RQ)}, 288")
        a(f"s_add_u32 {s(t)}, {s(t)}, {s(t+1)}")
        a(f"s_mul_i32 {s(t+1)}, {s(S_W)}, {RS}")
        for i in which:
            a(f"s_add_u32 m0, {s(t+1)}, {base + i*1024}")
            if i == 4: self.set_exec(0xffffffff)
            a(f"buffer_load_dwordx4 {v(A+i)}, {s(SRD,4)}, {s(t)} offen{' nt' if self.c.ntwo else ''} lds")
        self.set_exec(-1)
    def wo_frags(self, WF, WFX, base, RS):
        a = self.a; t = ST
        a(f"v_lshrrev_b32 v5, 1, {v(V_G4)}")
        a(f"v_mul_u32_u24 v5, {RS}, v5")
        a(f"v_and_b32 v6, 1, {v(V_G4)}")
        a(f"v_lshlrev_b32 v6, 3, v6")
        a(f"v_lshrrev_b32 v7, 2, {v(V_N16)}")
        a(f"v_add_u32 v6, v6, v7")
        a(f"v_mul_u32_u24 v6, 288, v6")
        a(f"v_add_u32 v5, v5, v6")
        a(f"v_and_b32 v6, 3, {v(V_N16)}")
        a(f"v_lshl_add_u32 v5, v6, 3, v5")
        a(f"s_lshl_b32 {s(t)}, {s(S_W)}, 5")
        a(f"s_add_u32 {s(t)}, {s(t)}, {base}")
        a(f"v_add_u32 v5, {s(t)}, v5")
        a(f"v_add_u32 v6, {4*RS}, v5")
        def reads(W, extra):
            for ks in range(4):
                for hf in range(2):
                    ad = 5 if ks < 2 else 6
                    a(f"ds_read_b64_tr_b16 {v(W+4*ks+2*hf,2)}, {v(ad)} offset:{(ks&1)*2*RS + hf*1152 + extra}")
        reads(WF, 0)
        LX = a.newlabel('WX')
        a(f"s_cmp_lg_u32 {s(S_W)}, 0")
        a(f"s_cbranch_scc1 {LX}")
        reads(WFX, 256)
        a.label(LX)
    def afrag_addr(self, dst, base):
        a = self.a
        a(f"v_and_b32 {v(dst)}, 1, {v(V_N16)}")
        a(f"v_lshlrev_b32 {v(dst)}, 8, {v(dst)}")
        a(f"v_lshl_add_u32 {v(dst)}, {v(V_G4)}, 4, {v(dst)}")
        a(f"v_add_u32 {v(dst)}, {base}, {v(dst)}")
    def afrag_reads(self, AF, addr):
        for ks in range(4):
            self.a(f"ds_read_b128 {v(AF+4*ks,4)}, {v(addr)} offset:{ks*64}")
    def chain4(self, D, AF, WF):
        for ks in range(4):
            cin = '0' if ks == 0 else v(D,4)
            self.a(f"v_mfma_f32_16x16x32_bf16 {v(D,4)}, {v(AF+4*ks,4)}, {v(WF+4*ks,4)}, {cin}")
    def pack_pair(self, D, x0, x1, t0, t1):
        a = self.a
        a(f"v_mov_b32_dpp {v(t0)}, {v(D)} quad_perm:[1,0,3,2] row_mask:0xf bank_mask:0xf")
        a(f"v_mov_b32_dpp {v(t1)}, {v(D+1)} quad_perm:[1,0,3,2] row_mask:0xf bank_mask:0xf")
        a(f"v_cndmask_b32 {v(x0)}, {v(D)}, {v(t1)}, {s(SEL1,2)}")
        a(f"v_cndmask_b32 {v(x1)}, {v(t0)}, {v(D+1)}, {s(SEL1,2)}")

    WUK = 100
    def x_roles(self):
        a = self.a
        a(f"s_lshr_b32 {s(S_G)}, {s(S_J)}, 3")
        a(f"s_bfe_u32 {s(S_B)}, {s(S_J)}, 0x10002")
        a(f"s_and_b32 {s(S_S)}, {s(S_J)}, 3")
        t = ST + 8
        a(f"s_lshl_b32 {s(t)}, {s(S_B)}, 4")
        a(f"s_add_u32 {s(t)}, {s(t)}, {s(S_G)}")
        a(f"s_lshl_b32 {s(t)}, {s(t)}, 13")
        a(f"s_lshl_b32 {s(t+1)}, {s(S_S)}, 9")
        a(f"s_add_u32 {s(t)}, {s(t)}, {s(t+1)}")
        a(f"s_add_u32 {s(t)}, {s(t)}, 6144")
        a(f"s_lshl_b32 {s(t)}, {s(t)}, 8")
        a(f"s_lshl_b32 {s(t+1)}, {s(S_W)}, 14")
        a(f"s_add_u32 {s(S_BASE)}, {s(t)}, {s(t+1)}")
    def x_wuk_loads(self):
        a = self.a; t = ST
        a(f"v_lshlrev_b32 v7, 13, {v(V_N16)}")
        a(f"v_lshl_add_u32 v7, {v(V_G4)}, 4, v7")
        a(f"s_lshl_b32 {s(t)}, {s(S_RQ)}, 7")
        a(f"s_lshl_b32 {s(t+1)}, {s(S_W)}, 4")
        a(f"s_add_u32 {s(t)}, {s(t)}, {s(t+1)}")
        a(f"s_lshl_b32 {s(t)}, {s(t)}, 13")
        a(f"s_lshl_b32 {s(t+1)}, {s(S_H)}, 8")
        a(f"s_add_u32 {s(t)}, {s(t)}, {s(t+1)}")
        for i in range(4):
            a(f"buffer_load_dwordx4 {v(self.WUK+4*i,4)}, v7, {s(SRD_U,4)}, {s(t)} offen offset:{i*64}{' nt' if self.c.ntuk else ''}")
    def x_kdma(self, kk0, kk1):
        a = self.a; t = ST
        if kk0 >= kk1: return
        a(f"v_xor_b32 v248, {v(V_N16)}, {v(V_G4)}")
        a(f"v_lshlrev_b32 v248, 4, v248")
        a(f"v_lshl_add_u32 v248, {v(V_G4)}, 8, v248")
        for k in range(1, 4):
            a(f"v_xor_b32 {v(248+k)}, {k<<6}, v248")
        a(f"s_lshl_b32 {s(t)}, {s(S_W)}, 14")
        for kk in range(kk0, kk1):
            a(f"s_add_u32 m0, {s(t)}, {IMG + kk*4096}")
            a(f"s_add_u32 {s(t+1)}, {s(S_BASE)}, {kk*4096}")
            for k in range(4):
                if self.c.xwin: a(f"s_waitcnt vmcnt({self.c.xwin-1})")
                a(f"buffer_load_dwordx4 {v(248+k)}, {s(SRD_ST,4)}, {s(t+1)} offen offset:{k*1024}{self.nts()} lds")

    def x_main(self):
        a = self.a; t = ST; c = self.c
        self.x_roles()
        if c.touch:
            a(f"s_load_dword s68, {s(P_AK,2)}, {s(S_BASE)}")
            a(f"s_load_dword s69, {s(P_AV,2)}, {s(S_BASE)}")
            self.hshift5(ST)
            a(f"s_mul_i32 {s(ST)}, {s(ST)}, {128*1152}")
            a(f"s_load_dword s70, {s(P_AWO,2)}, {s(ST)}")
            a(f"s_mov_b32 {s(ST+1)}, {OUTP}")
            a(f"s_load_dword s71, {s(P_WS,2)}, {s(ST+1)}")
        a("s_barrier")
        if not c.wuk_late: self.x_wuk_loads()
        self.x_kdma(0, c.n1_k)
        self.q_addr(True, ST+4)
        if c.wuk_late:
            self.p1_compute(1, 4*c.n1_k, hook=self.x_wuk_loads)
        else:
            self.p1_compute(1, 4 + 4*c.n1_k)
        self.x_kdma(c.n1_k, c.n1_k + c.n2_k)
        kdone = c.n1_k + c.n2_k
        GA = 240
        if c.early_qa:
            self.q_addr(False, ST+6)
            def aft():
                self.q_load(ST+6, GA)
                self.x_kdma(kdone, kdone + c.n4_k)
            self.q_gather(ST+4, 8, aft, 1 + 4*c.n4_k, 14, 15)
            kb = kdone
            kdone += c.n4_k
        else:
            self.q_gather(ST+4, 8, lambda: None, 0, 14, 15)
        self.stamp(3)
        QF = 16
        self.read_q_frags(QF)
        a(f"v_and_b32 v5, 1, {v(V_G4)}")
        a(f"v_lshlrev_b32 v6, 8, v5")
        a(f"v_lshl_add_u32 v7, {v(V_N16)}, 4, v6")
        a(f"v_add_u32 v7, {QAL}, v7")
        a(f"v_lshl_add_u32 v6, {v(V_N16)}, 1, v6")
        a(f"s_lshl_b32 {s(t)}, {s(S_W)}, 5")
        a(f"s_add_u32 {s(t)}, {s(t)}, {QAL}")
        a(f"v_add_u32 v6, {s(t)}, v6")
        a(f"v_lshlrev_b32 v14, 15, v5")
        a(f"v_lshl_add_u32 v14, {v(V_N16)}, 4, v14")
        a(f"v_lshlrev_b32 v15, 10, v5")
        a(f"v_lshl_add_u32 v15, {v(V_N16)}, 11, v15")
        a(f"s_lshl_b32 {s(t)}, {s(S_J)}, 8")
        a(f"s_add_u32 {s(t)}, {s(t)}, {QABS}")
        a(f"s_lshl_b32 {s(t+1)}, {s(S_J)}, 3")
        a(f"s_add_u32 {s(t+1)}, {s(t+1)}, {QM}")
        a("s_waitcnt lgkmcnt(0)")
        AQ = 32
        for i in range(4):
            cin = '0' if i == 0 else v(AQ,4)
            a(f"v_mfma_f32_16x16x32_bf16 {v(AQ,4)}, {v(QF+4*i,4)}, {v(self.WUK+4*i,4)}, {cin}")
        a(f"v_cvt_pk_bf16_f32 v8, {v(AQ)}, {v(AQ)}")
        a(f"ds_write_b16 v6, v8")
        self.barrier()
        LP = a.newlabel('BP')
        a(f"s_cmp_lg_u32 {s(S_W)}, 0")
        a(f"s_cbranch_scc1 {LP}")
        a(f"ds_read_b128 v[8:11], v7")
        a(f"v_mov_b32 v13, {s(S_T)}")
        a("s_waitcnt lgkmcnt(0)")
        self.set_exec(0xffffffff)
        a(f"buffer_store_dwordx4 v[8:11], v14, {s(SRD_WS,4)}, {s(t)} offen {SC}")
        self.set_exec(-1)
        a("v_bitop3_b32 v12, v8, v9, v10 bitop3:0x96"); a("v_xor_b32 v12, v12, v11")
        self.inrow('v_xor_b32', 12)
        self.set_exec(0x00ff00ff)
        a(f"buffer_store_dwordx2 v[12:13], v15, {s(SRD_WS,4)}, {s(t+1)} offen {SC}")
        self.set_exec(-1)
        a.label(LP)
        a("s_barrier")
        self.stamp(17)
        KF, S, VL, F, ACC = 32, 64, 96, 192, 224
        WA = 160
        k3 = min(4, kdone + c.n3_k)
        if c.early_qa:
            kx = max(kdone, c.kx)
            self.x_kdma(kdone, kx)
            self.q_finish(ST+6, GA, 4*(kx-kb), 18)
            self.stamp(9)
            self.read_q_frags(QF)
            self.x_kdma(kx, 4)
        else:
            self.x_kdma(kdone, k3)
            self.q_addr(False, ST+4)
            ka = min(4, k3 + c.k_after)
            self.q_gather(ST+4, 8, lambda: self.x_kdma(k3, ka), 4*(ka-k3), None, 18)
            self.stamp(9)
            self.read_q_frags(QF)
            self.x_kdma(ka, 4)
        a(f"v_lshlrev_b32 v6, 10, {v(V_G4)}")
        a(f"v_lshl_add_u32 v6, {v(V_N16)}, 4, v6")
        for u in range(2):
            for j in range(8):
                if j % 4 == 0:
                    a(f"s_add_u32 {s(t)}, {s(S_BASE)}, {(32*u + 16*(j>>2))*256}")
                if c.xwin and (c.xwinv or u == 0): a(f"s_waitcnt vmcnt({c.xwin-1})")
                a(f"buffer_load_dwordx4 {v(VL + 32*u + 4*j,4)}, v6, {s(SRD_V,4)}, {s(t)} offen offset:{(j&3)*256}{self.nts()}")
        self.wo_dma_addr(WA)
        a("s_waitcnt vmcnt(16)")
        a(f"v_xor_b32 v5, {v(V_N16)}, {v(V_G4)}")
        a(f"v_lshlrev_b32 v5, 4, v5")
        a(f"v_lshl_add_u32 v5, {v(V_N16)}, 8, v5")
        a(f"s_lshl_b32 {s(t)}, {s(S_W)}, 14")
        a(f"v_add_u32 v5, {s(t)}, v5")
        for i in range(1, 4):
            a(f"v_xor_b32 {v(5+i)}, {i<<6}, v5")
        def kread(tt, dst):
            for i in range(4):
                a(f"ds_read_b128 {v(dst+4*i,4)}, {v(5+i)} offset:{IMG + tt*4096}")
        kread(0, KF); kread(1, KF+16)
        for tt in range(4):
            cur = KF + 16*(tt & 1)
            a(f"s_waitcnt lgkmcnt({4 if tt < 3 else 0})")
            for i in range(4):
                cin = '0' if i == 0 else v(S+4*tt,4)
                a(f"v_mfma_f32_16x16x32_bf16 {v(S+4*tt,4)}, {v(cur+4*i,4)}, {v(QF+4*i,4)}, {cin}")
            if tt + 2 < 4:
                kread(tt+2, cur)
        self.wo_dma(SRD_WO, WA, IMG, 16384)
        M, Lsum, T1 = 10, 11, 12
        a(f"v_max3_f32 {v(M)}, {v(S)}, {v(S+1)}, {v(S+2)}")
        for r in range(3, 15, 2):
            a(f"v_max3_f32 {v(M)}, {v(M)}, {v(S+r)}, {v(S+r+1)}")
        a(f"v_max_f32 {v(M)}, {v(M)}, {v(S+15)}")
        self.xrow('v_max_f32', M, T1)
        a(f"v_mul_f32 {v(M)}, {s(S_SC)}, {v(M)}")
        for r in range(16):
            a(f"v_fma_f32 {v(S+r)}, {v(S+r)}, {s(S_SC)}, -{v(M)}")
        for r in range(16):
            a(f"v_exp_f32 {v(S+r)}, {v(S+r)}")
        PF = 32
        for u in range(2):
            for q in range(4):
                a(f"v_cvt_pk_bf16_f32 {v(PF+4*u+q)}, {v(S+8*u+2*q)}, {v(S+8*u+2*q+1)}")
        for r in range(0, 16, 2):
            a(f"v_add_f32 {v(S+r)}, {v(S+r)}, {v(S+r+1)}")
        for r in range(0, 16, 4):
            a(f"v_add_f32 {v(S+r)}, {v(S+r)}, {v(S+r+2)}")
        a(f"v_add_f32 {v(S)}, {v(S)}, {v(S+4)}"); a(f"v_add_f32 {v(S+8)}, {v(S+8)}, {v(S+12)}")
        a(f"v_add_f32 {v(Lsum)}, {v(S)}, {v(S+8)}")
        self.xrow('v_add_f32', Lsum, T1)
        a(f"s_lshl_b32 {s(t)}, {s(S_W)}, 4")
        a(f"s_add_u32 {s(t)}, {s(t)}, {ML}")
        a(f"v_lshlrev_b32 v5, 3, {v(V_RS)}")
        a(f"v_add_u32 v5, {s(t)}, v5")
        a(f"ds_write_b64 v5, {v(M,2)}")
        self.acc_rows_addr(7, OW)
        a(f"s_and_b32 {s(t)}, {s(S_W)}, 1")
        a(f"s_lshl_b32 {s(t+1)}, {s(t)}, 9")
        a(f"s_add_u32 {s(t+1)}, {s(t+1)}, {OW}")
        a(f"v_lshl_add_u32 v5, {v(V_L)}, 3, {s(t+1)}")
        a(f"s_lshl_b32 {s(t+1)}, {s(t)}, 3")
        a(f"s_add_u32 {s(t+1)}, {s(t+1)}, {ML}")
        a(f"v_mov_b32 v6, {s(t+1)}")
        a(f"s_lshl_b32 {s(t+2)}, {s(S_G)}, 1")
        a(f"s_add_u32 {s(t+2)}, {s(t+2)}, {s(t)}")
        a(f"s_lshl_b32 {s(t+3)}, {s(t+2)}, 2")
        a(f"s_add_u32 {s(t+3)}, {s(t+3)}, {s(S_S)}")
        a(f"s_lshl_b32 {s(t+3)}, {s(t+3)}, 1")
        a(f"s_add_u32 {s(t+3)}, {s(t+3)}, {s(S_B)}")
        a(f"s_lshl_b32 {s(t+3)}, {s(t+3)}, 10")
        a(f"s_add_u32 {s(t+3)}, {s(t+3)}, {OP}")
        a(f"v_lshlrev_b32 v8, 4, {v(V_L)}")
        self.stamp(4)
        for u in range(2):
            a(f"s_waitcnt vmcnt({(8 if u == 0 else 0) + 5})")
            self.full_perm(VL+32*u, F)
            for cc in range(8):
                cin = '0' if u == 0 else v(ACC+4*cc,4)
                a(f"v_mfma_f32_16x16x32_bf16 {v(ACC+4*cc,4)}, {v(PF+4*u,4)}, {v(F+4*cc,4)}, {cin}")
        self.stamp(5)
        self.write_acc_rows(ACC, 7)
        self.barrier()
        LZ = a.newlabel('AZ')
        a(f"s_cmp_ge_u32 {s(S_W)}, 2")
        a(f"s_cbranch_scc1 {LZ}")
        for w in range(8):
            a(f"ds_read_b64 {v(32+2*w,2)}, v6 offset:{w*16}")
        for w in range(8):
            a(f"ds_read_b64 {v(48+2*w,2)}, v5 offset:{w*1024}")
        a(f"v_mov_b32 v19, {s(S_T)}")
        a("s_waitcnt lgkmcnt(8)")
        a("v_max3_f32 v20, v32, v34, v36"); a("v_max3_f32 v20, v20, v38, v40"); a("v_max3_f32 v20, v20, v42, v44"); a("v_max_f32 v20, v20, v46")
        for w in range(8):
            a(f"v_sub_f32 {v(32+2*w)}, {v(32+2*w)}, v20")
        for w in range(8):
            a(f"v_exp_f32 {v(32+2*w)}, {v(32+2*w)}")
        a("v_mul_f32 v21, v33, v32")
        for w in range(1, 8):
            a(f"v_fmac_f32 v21, {v(33+2*w)}, {v(32+2*w)}")
        a(f"v_cndmask_b32 v18, v20, v21, {s(SEL1,2)}")
        a("s_waitcnt lgkmcnt(0)")
        a("v_mul_f32 v16, v48, v32"); a("v_mul_f32 v17, v49, v32")
        for w in range(1, 8):
            a(f"v_fmac_f32 v16, {v(48+2*w)}, {v(32+2*w)}")
            a(f"v_fmac_f32 v17, {v(49+2*w)}, {v(32+2*w)}")
        a(f"buffer_store_dwordx4 v[16:19], v8, {s(SRD_WS,4)}, {s(t+3)} offen {SC}")
        self.stamp(6)
        a("s_waitcnt vmcnt(1)")
        LZ2 = a.newlabel('AZ')
        a(f"s_branch {LZ2}")
        a.label(LZ)
        a("s_waitcnt vmcnt(0)")
        a.label(LZ2)
        a("s_barrier")
        self.p5(0, IMG, 16384, 11, 12)
        self.final_reduce(0)

    def final_reduce(self, branch):
        a = self.a; t = ST
        a(f"s_cmp_ge_u32 {s(S_J)}, 72")
        a("s_cbranch_scc1 L_END")
        a(f"s_cmp_lg_u32 {s(S_W)}, 0")
        a("s_cbranch_scc1 L_END")
        a(f"s_lshl_b32 {s(t+4)}, {s(S_J)}, 12")
        a(f"s_add_u32 {s(t+4)}, {s(t+4)}, {OUTP + branch*72*4096}")
        a(f"s_cmp_ge_u32 {s(S_J)}, 36")
        a(f"s_cselect_b32 {s(t+2)}, {2304 - 36*32}, 0")
        a(f"s_lshl_b32 {s(t+3)}, {s(S_J)}, 5")
        a(f"s_add_u32 {s(t+2)}, {s(t+2)}, {s(t+3)}")
        a(f"s_add_u32 {s(t+8)}, {s(t+2)}, {branch*1152}")
        a(f"v_lshlrev_b32 v5, 4, {v(V_L)}")
        a(f"v_lshlrev_b32 v6, 2, {v(V_L)}")
        def ldf(st=0):
            for k in range(4):
                a(f"buffer_load_dwordx4 {v(16+16*st+4*k,4)}, v5, {s(SRD_WS,4)}, {s(t+4)} offen offset:{k*1024} {SC}")
        def chkf(st=0):
            b = 16*st
            a(f"v_xor_b32 v8, {s(S_T)}, {v(17+b)}")
            for r in (19, 21, 23, 25, 27, 29, 31):
                a(f"v_bitop3_b32 v8, {v(r+b)}, {s(S_T)}, v8 bitop3:0xbe")
            a(f"v_cmp_eq_u32 vcc, 0, v8")
        def donef(st):
            b = 16*st
            a(f"v_add_f32 v10, {v(16+b)}, {v(20+b)}"); a(f"v_add_f32 v11, {v(24+b)}, {v(28+b)}"); a(f"v_add_f32 v12, {v(18+b)}, {v(22+b)}"); a(f"v_add_f32 v13, {v(26+b)}, {v(30+b)}")
            a("v_add_f32 v14, v10, v11"); a("v_add_f32 v15, v12, v13")
        ldf()
        if self.c.pipe5:
            self.poll_pipe(ldf, chkf, donef, 4, self.c.stag5)
        else:
            if self.c.stamps:
                a("s_waitcnt vmcnt(0)")
                self.stamp(16)
            self.retry_vec(ldf, chkf, "s_waitcnt vmcnt(0)", sleep=self.c.sleep5)
            a("v_add_f32 v16, v16, v20"); a("v_add_f32 v24, v24, v28"); a("v_add_f32 v17, v18, v22"); a("v_add_f32 v26, v26, v30")
            a("v_add_f32 v14, v16, v24"); a("v_add_f32 v15, v17, v26")
        self.stamp_cnt(20)
        self.stamp(19)
        a("v_add_f32_dpp v14, v14, v14 row_ror:8 row_mask:0xf bank_mask:0xf")
        a("v_add_f32_dpp v15, v15, v15 row_ror:8 row_mask:0xf bank_mask:0xf")
        self.xrow_multi('v_add_f32', [14, 15], [8, 9])
        a("v_cvt_pk_bf16_f32 v14, v14, v15")
        self.set_exec(0xff)
        a(f"buffer_store_dword v14, v6, {s(SRD_OUT,4)}, {s(t+8)} offen")
        if branch == 0:
            LE = a.newlabel('EP')
            a(f"s_cmp_lg_u32 {s(S_J)}, 0")
            a(f"s_cbranch_scc1 {LE}")
            a(f"v_mov_b32 v5, {EPOCH}")
            a(f"v_mov_b32 v6, {s(S_T)}")
            self.set_exec(1)
            a(f"buffer_store_dword v6, v5, {s(SRD_WS,4)}, 0 offen {SC}")
            a.label(LE)
        self.set_exec(-1)
        self.stamp(13)
        a("s_waitcnt vmcnt(0)")
        a("s_branch L_END")

    def y_roles(self):
        a = self.a
        a(f"s_lshr_b32 {s(S_B)}, {s(S_J)}, 6")
        a(f"s_and_b32 {s(S_S)}, {s(S_J)}, 63")
        t = ST + 8
        a(f"s_lshl_b32 {s(t)}, {s(S_J)}, 17")
        a(f"s_lshl_b32 {s(t+1)}, {s(S_W)}, 14")
        a(f"s_add_u32 {s(S_BASE)}, {s(t)}, {s(t+1)}")
    def ckv_dma(self, k0, k1):
        a = self.a; t = ST
        if k0 >= k1: return
        a(f"v_lshlrev_b32 v248, 4, {v(V_L)}")
        a(f"s_lshl_b32 {s(t)}, {s(S_W)}, 14")
        for k in range(k0, k1):
            f = ((k & 3) << 2) | ((k >> 2) & 3)
            a(f"v_xor_b32 v249, {f<<4}, v248")
            a(f"s_add_u32 m0, {s(t)}, {IMG + k*1024}")
            a(f"s_add_u32 {s(t+1)}, {s(S_BASE)}, {k*1024}")
            a(f"buffer_load_dwordx4 v249, {s(SRD_ST,4)}, {s(t+1)} offen{self.nts()} lds")

    def y_main(self):
        a = self.a; t = ST; c = self.c
        self.y_roles()
        if c.touch:
            a(f"s_lshl_b32 {s(ST)}, {s(S_RQ)}, 20")
            a(f"s_load_dword s68, {s(P_WUV,2)}, {s(ST)}")
            self.hshift5(ST)
            a(f"s_mul_i32 {s(ST)}, {s(ST)}, {128*1152}")
            a(f"s_load_dword s69, {s(P_BWO,2)}, {s(ST)}")
            for r, off in ((70, BPART), (71, BPART + 0x200000), (72, OUTP)):
                a(f"s_mov_b32 s73, {off}")
                a(f"s_load_dword s{r}, {s(P_WS,2)}, s73")
        a("s_barrier")
        self.ckv_dma(0, c.n1_ckv)
        self.p1_compute(0, c.n1_ckv)
        self.ckv_dma(c.n1_ckv, 16)
        GQ, GM = 16, 32
        a(f"s_lshl_b32 {s(t)}, {s(S_B)}, 10")
        a(f"s_lshl_b32 {s(t+1)}, {s(S_W)}, 7")
        a(f"s_add_u32 {s(t)}, {s(t)}, {s(t+1)}")
        a(f"s_and_b32 {s(t+1)}, {s(S_S)}, 7")
        a(f"s_lshl_b32 {s(t+1)}, {s(t+1)}, 11")
        a(f"s_add_u32 {s(t)}, {s(t)}, {s(t+1)}")
        a(f"s_add_u32 {s(t+5)}, {s(t)}, {QM}")
        a(f"s_lshl_b32 {s(t+4)}, {s(S_B)}, 15")
        a(f"s_lshl_b32 {s(t+1)}, {s(S_W)}, 12")
        a(f"s_add_u32 {s(t+4)}, {s(t+4)}, {s(t+1)}")
        a(f"s_add_u32 {s(t+4)}, {s(t+4)}, {QABS}")
        def e2ld():
            a(f"s_load_dwordx16 {s(S_PB,16)}, {s(P_WS,2)}, {s(t+5)} glc")
            a(f"s_load_dwordx16 {s(S_PB+16,16)}, {s(P_WS,2)}, {s(t+1)} glc")
        def okf():
            self.s_alltags([S_PB+2*i+1 for i in range(16)], t+2, t+3)
        a(f"s_add_u32 {s(t+1)}, {s(t+5)}, 64")
        self.spin_scalar(e2ld, okf)
        self.stamp(17)
        def ldq(first=False):
            fl = (self.c.qabs_first if first else SC)
            a(f"v_lshlrev_b32 v5, 4, {v(V_L)}")
            for j in range(4):
                a(f"buffer_load_dwordx4 {v(GQ+4*j,4)}, v5, {s(SRD_WS,4)}, {s(t+4)} offen offset:{j*1024} {fl}")
            a(f"v_and_b32 v6, 3, {v(V_N16)}")
            a(f"v_lshlrev_b32 v6, 5, v6")
            a(f"v_lshl_add_u32 v6, {v(V_G4)}, 3, v6")
            a(f"buffer_load_dwordx2 {v(GM,2)}, v6, {s(SRD_WS,4)}, {s(t+5)} offen {SC}")
        ldq(True)
        AFS, AFP, BFR = 64, 128, 224
        N32, HI = 8, 9
        a(f"v_and_b32 {v(N32)}, 31, {v(V_L)}")
        a(f"v_lshrrev_b32 {v(HI)}, 5, {v(V_L)}")
        KT, CH = t+6, t+7
        a(f"s_and_b32 {s(KT)}, {s(S_W)}, 3")
        a(f"s_lshr_b32 {s(CH)}, {s(S_W)}, 2")
        a(f"v_and_b32 v5, 3, {v(N32)}")
        a(f"v_lshlrev_b32 v5, 2, v5")
        a(f"v_bfe_u32 v6, {v(N32)}, 2, 2")
        a(f"v_or_b32 v5, v5, v6")
        a(f"v_xor_b32 v5, v5, {v(HI)}")
        a(f"v_lshlrev_b32 v5, 4, v5")
        a(f"v_lshl_add_u32 v5, {v(N32)}, 10, v5")
        a(f"s_lshl_b32 {s(t+2)}, {s(KT)}, 15")
        a(f"s_lshl_b32 {s(t+3)}, {s(CH)}, 9")
        a(f"s_add_u32 {s(t+2)}, {s(t+2)}, {s(t+3)}")
        a(f"v_add_u32 v56, {s(t+2)}, v5")
        for i in range(1, 8): a(f"v_xor_b32 {v(56+i)}, {i*32}, v56")
        a(f"v_lshrrev_b32 v5, 2, {v(V_N16)}")
        a(f"v_lshlrev_b32 v6, 2, v5")
        a(f"v_or_b32 v6, v6, {v(HI)}")
        a(f"v_and_b32 v7, 1, {v(V_G4)}")
        a(f"v_lshlrev_b32 v7, 1, v7")
        a(f"v_bfe_u32 v13, {v(V_N16)}, 1, 1")
        a(f"v_or_b32 v7, v7, v13")
        a(f"s_and_b32 {s(t+2)}, {s(S_W)}, 1")
        a(f"s_lshl_b32 {s(t+2)}, {s(t+2)}, 3")
        a(f"v_or_b32 v7, {s(t+2)}, v7")
        a(f"v_xor_b32 v6, v6, v7")
        a(f"v_lshlrev_b32 v6, 4, v6")
        a(f"v_and_b32 v7, 1, {v(V_N16)}")
        a(f"v_lshl_add_u32 v6, v7, 3, v6")
        a(f"v_lshl_add_u32 v5, {v(HI)}, 2, v5")
        a(f"v_lshl_add_u32 v6, v5, 10, v6")
        a(f"s_lshr_b32 {s(t+2)}, {s(S_W)}, 1")
        a(f"s_lshl_b32 {s(t+2)}, {s(t+2)}, 8")
        a(f"v_add_u32 v48, {s(t+2)}, v6")
        a(f"v_xor_b32 v49, 64, v48")
        a(f"v_xor_b32 v50, 32, v48")
        a(f"v_add_u32 v50, 8192, v50")
        a(f"v_xor_b32 v51, 64, v50")
        for r in range(4): a(f"v_add_u32 {v(52+r)}, 0x10000, {v(48+r)}")
        a("s_waitcnt vmcnt(5)")
        a("s_barrier")
        self.stamp(3)
        for i in range(16):
            a(f"ds_read_b128 {v(AFS+4*i,4)}, {v(56+(i&7))} offset:{256 if i >= 8 else 0}")
        if self.c.ldsdbg: self.stamp(31)
        for ks in range(8):
            base = 48 if ks < 4 else 52
            off = (ks & 3) * 16384
            d = AFP + 8*ks
            for tt in range(2):
                a(f"ds_read_b64_tr_b16 {v(d+4*tt,2)}, {v(base+tt)} offset:{off}")
                a(f"ds_read_b64_tr_b16 {v(d+4*tt+2,2)}, {v(base+2+tt)} offset:{off}")
        if self.c.ldsdbg: self.stamp(4)
        a(f"v_and_b32 v6, 15, {v(N32)}")
        a(f"v_xor_b32 v6, v6, {v(HI)}")
        a(f"v_lshlrev_b32 v6, 4, v6")
        a(f"v_lshl_add_u32 v6, {v(N32)}, 10, v6")
        a(f"s_add_u32 {s(t+3)}, {s(t+3)}, {QIMG}")
        a(f"v_add_u32 v56, {s(t+3)}, v6")
        for i in range(1, 8): a(f"v_xor_b32 {v(56+i)}, {i*32}, v56")
        for j in range(4):
            a(f"s_and_b32 {s(t)}, {s(S_W)}, 3")
            a(f"s_lshl_b32 {s(t)}, {s(t)}, 2")
            a(f"s_add_u32 {s(t)}, {s(t)}, {j}")
            a(f"s_lshl_b32 {s(t)}, {s(t)}, 4")
            a(f"v_lshlrev_b32 v5, 4, {v(V_L)}")
            a(f"v_xor_b32 v5, {s(t)}, v5")
            a(f"s_lshl_b32 {s(t+1)}, {s(S_W)}, 12")
            a(f"s_add_u32 {s(t+1)}, {s(t+1)}, {QIMG + j*1024}")
            a(f"v_add_u32 {v(48+j)}, {s(t+1)}, v5")
        def chkq():
            self.checksum4(GQ, 14, 10, SEL1, SEL2)
            a(f"v_cmp_eq_u32 vcc, v14, {v(GM)}")
            a(f"v_cmp_eq_u32 {s(S_PB,2)}, {s(S_T)}, {v(GM+1)}")
            a(f"s_and_b64 vcc, vcc, {s(S_PB,2)}")
        self.retry_vec(ldq, chkq, "s_waitcnt vmcnt(0)")
        self.stamp(18)
        for j in range(4):
            a(f"ds_write_b128 {v(48+j)}, {v(GQ+4*j,4)}")
        self.barrier()
        self.stamp(5)
        SA = 32
        def bread(i): a(f"ds_read_b128 {v(BFR+4*(i&7),4)}, {v(56+(i&7))} offset:{256 if i >= 8 else 0}")
        for i in range(8): bread(i)
        def wuv_addr(A0, A1):
            a(f"v_lshrrev_b32 {v(A0)}, 4, {v(V_L)}")
            a(f"v_lshlrev_b32 {v(A1)}, 1, {v(A0)}")
            a(f"v_xor_b32 {v(A1)}, {v(A1)}, {v(V_N16)}")
            a(f"v_lshlrev_b32 {v(A1)}, 4, {v(A1)}")
            a(f"v_lshl_add_u32 {v(A0)}, {v(A0)}, 13, {v(A1)}")
            a(f"v_xor_b32 {v(A1)}, {8<<4}, {v(A0)}")
        def wuv_issue(A0, A1):
            a(f"s_lshl_b32 {s(t)}, {s(S_RQ)}, 7")
            a(f"s_lshl_b32 {s(t+1)}, {s(S_W)}, 4")
            a(f"s_add_u32 {s(t)}, {s(t)}, {s(t+1)}")
            a(f"s_lshl_b32 {s(t)}, {s(t)}, 13")
            a(f"s_lshl_b32 {s(t+1)}, {s(S_H)}, 8")
            a(f"s_add_u32 {s(t)}, {s(t)}, {s(t+1)}")
            a(f"s_lshl_b32 {s(t+1)}, {s(S_W)}, 12")
            for i in range(4):
                a(f"s_add_u32 m0, {s(t+1)}, {WUVIMG + i*1024}")
                a(f"buffer_load_dwordx4 {v(A0 if (i&1) == 0 else A1)}, {s(SRD_V,4)}, {s(t)} offen{self.ntw()} lds")
                if i < 3: a(f"s_add_u32 {s(t)}, {s(t)}, {4*8192}")
        if not self.c.wuv_late:
            wuv_addr(5, 6); wuv_issue(5, 6)
        for i in range(16):
            left = min(7, 15 - i)
            a(f"s_waitcnt lgkmcnt({left})")
            cin = '0' if i == 0 else v(SA,16)
            a(f"v_mfma_f32_32x32x16_bf16 {v(SA,16)}, {v(AFS+4*i,4)}, {v(BFR+4*(i&7),4)}, {cin}")
            if i + 8 < 16: bread(i+8)
        a(f"s_lshl_b32 {s(t+2)}, {s(S_W)}, 11")
        a(f"s_add_u32 {s(t+2)}, {s(t+2)}, {SX}")
        a(f"v_lshlrev_b32 v7, 4, {v(V_L)}")
        a(f"v_add_u32 v5, {s(t+2)}, v7")
        a(f"s_xor_b32 {s(t+3)}, {s(S_W)}, 4")
        a(f"s_lshl_b32 {s(t+3)}, {s(t+3)}, 11")
        a(f"s_add_u32 {s(t+3)}, {s(t+3)}, {SX}")
        a(f"v_add_u32 v6, {s(t+3)}, v7")
        a(f"s_lshl_b32 {s(t+2)}, {s(S_W)}, 7")
        a(f"v_lshlrev_b32 v13, 2, {v(N32)}")
        a(f"v_add_u32 v14, {MX}, v13")
        a(f"v_add_u32 v15, {s(t+2)}, v14")
        a(f"s_lshl_b32 {s(t+3)}, {s(KT)}, 1")
        a(f"s_add_u32 {s(t+3)}, {s(t+3)}, {s(CH)}")
        a(f"s_lshl_b32 {s(t+3)}, {s(t+3)}, 10")
        a(f"s_add_u32 {s(t+3)}, {s(t+3)}, {PB}")
        a(f"v_add_u32 v56, {s(t+3)}, v7")
        a(f"v_add_u32 v57, {PB}, v7")
        a(f"v_add_u32 v58, {LS-MX}, v15")
        a(f"v_add_u32 v59, {LS-MX}, v14")
        self.stamp(28)
        a("s_barrier")
        SK = 48
        LC1 = a.newlabel('CH'); LC2 = a.newlabel('CH')
        a(f"s_cmp_eq_u32 {s(CH)}, 0")
        a(f"s_cbranch_scc0 {LC1}")
        a(f"ds_write_b128 v5, {v(SA+8,4)}"); a(f"ds_write_b128 v5, {v(SA+12,4)} offset:1024")
        a(f"s_branch {LC2}")
        a.label(LC1)
        a(f"ds_write_b128 v5, {v(SA,4)}"); a(f"ds_write_b128 v5, {v(SA+4,4)} offset:1024")
        for r in range(8): a(f"v_mov_b32 {v(SA+r)}, {v(SA+8+r)}")
        a.label(LC2)
        self.barrier()
        self.stamp(29)
        a(f"ds_read_b128 {v(SK,4)}, v6"); a(f"ds_read_b128 {v(SK+4,4)}, v6 offset:1024")
        a("s_waitcnt lgkmcnt(0)")
        for r in range(8): a(f"v_add_f32 {v(SK+r)}, {v(SK+r)}, {v(SA+r)}")
        M, Lsum, T1 = 10, 11, 12
        a(f"v_max3_f32 {v(M)}, {v(SK)}, {v(SK+1)}, {v(SK+2)}")
        a(f"v_max3_f32 {v(M)}, {v(M)}, {v(SK+3)}, {v(SK+4)}")
        a(f"v_max3_f32 {v(M)}, {v(M)}, {v(SK+5)}, {v(SK+6)}")
        a(f"v_max_f32 {v(M)}, {v(M)}, {v(SK+7)}")
        self.xhalf('v_max_f32', M, T1)
        a(f"ds_write_b32 v15, {v(M)}")
        self.barrier()
        self.stamp(30)
        for w in range(8):
            a(f"ds_read_b32 {v(32+w)}, v14 offset:{w*128}")
        a("s_waitcnt lgkmcnt(0)")
        a(f"v_max3_f32 {v(M)}, v32, v33, v34"); a(f"v_max3_f32 {v(M)}, {v(M)}, v35, v36"); a(f"v_max3_f32 {v(M)}, {v(M)}, v37, v38"); a(f"v_max_f32 {v(M)}, {v(M)}, v39")
        a(f"v_mul_f32 {v(M)}, {s(S_SC)}, {v(M)}")
        for r in range(8): a(f"v_fma_f32 {v(SK+r)}, {v(SK+r)}, {s(S_SC)}, -{v(M)}")
        for r in range(8): a(f"v_exp_f32 {v(SK+r)}, {v(SK+r)}")
        for q in range(4): a(f"v_cvt_pk_bf16_f32 {v(40+q)}, {v(SK+2*q)}, {v(SK+2*q+1)}")
        a(f"ds_write_b128 v56, {v(40,4)}")
        for q in range(4): a(f"v_add_f32 {v(SK+2*q)}, {v(SK+2*q)}, {v(SK+2*q+1)}")
        a(f"v_add_f32 {v(SK)}, {v(SK)}, {v(SK+2)}"); a(f"v_add_f32 {v(SK+4)}, {v(SK+4)}, {v(SK+6)}")
        a(f"v_add_f32 {v(Lsum)}, {v(SK)}, {v(SK+4)}")
        self.xhalf('v_add_f32', Lsum, T1)
        a(f"ds_write_b32 v58, {v(Lsum)}")
        self.barrier()
        self.stamp(6)
        PF, ACC2 = 64, 96
        for ks in range(8):
            a(f"ds_read_b128 {v(PF+4*ks,4)}, v57 offset:{ks*1024}")
        for w in range(8):
            a(f"ds_read_b32 {v(32+w)}, v59 offset:{w*128}")
        for ks in range(8):
            a(f"s_waitcnt lgkmcnt({min(15, 15-ks)})")
            for tt in range(2):
                cin = '0' if ks == 0 else v(ACC2+16*tt,16)
                a(f"v_mfma_f32_32x32x16_bf16 {v(ACC2+16*tt,16)}, {v(AFP+8*ks+4*tt,4)}, {v(PF+4*ks,4)}, {cin}")
        a(f"v_and_b32 v5, 15, {v(N32)}")
        a(f"s_and_b32 {s(t+2)}, {s(S_W)}, 1")
        a(f"s_lshl_b32 {s(t+2)}, {s(t+2)}, 3")
        a(f"v_xor_b32 v5, {s(t+2)}, v5")
        a(f"v_lshlrev_b32 v5, 4, v5")
        a(f"v_lshl_add_u32 v5, {v(HI)}, 3, v5")
        a(f"v_lshl_add_u32 v5, {v(N32)}, 10, v5")
        a(f"s_lshr_b32 {s(t+2)}, {s(S_W)}, 1")
        a(f"s_lshl_b32 {s(t+2)}, {s(t+2)}, 8")
        a(f"v_add_u32 v48, {s(t+2)}, v5")
        for x in range(1, 8): a(f"v_xor_b32 {v(48+x)}, {x<<4}, v48")
        for j in range(4):
            a(f"s_and_b32 {s(t+2)}, {s(S_W)}, 3")
            a(f"s_lshl_b32 {s(t+2)}, {s(t+2)}, 2")
            a(f"s_add_u32 {s(t+2)}, {s(t+2)}, {j}")
            a(f"s_lshl_b32 {s(t+2)}, {s(t+2)}, 4")
            a(f"v_lshlrev_b32 v5, 4, {v(V_L)}")
            a(f"v_xor_b32 v5, {s(t+2)}, v5")
            a(f"s_lshl_b32 {s(t+3)}, {s(S_W)}, 12")
            a(f"s_add_u32 {s(t+3)}, {s(t+3)}, {j*1024}")
            a(f"v_add_u32 {v(56+j)}, {s(t+3)}, v5")
        a("s_waitcnt lgkmcnt(0)")
        a("v_add_f32 v32, v32, v33"); a("v_add_f32 v34, v34, v35"); a("v_add_f32 v36, v36, v37"); a("v_add_f32 v38, v38, v39")
        a("v_add_f32 v32, v32, v34"); a("v_add_f32 v36, v36, v38")
        a(f"v_add_f32 {v(Lsum)}, v32, v36")
        a(f"v_lshlrev_b32 v6, 3, {v(N32)}")
        a(f"v_add_u32 v6, {MX}, v6")
        a(f"ds_write_b64 v6, {v(M,2)}")
        a(f"v_and_b32 v6, 3, {v(V_N16)}")
        a(f"s_lshl_b32 {s(t+2)}, {s(S_W)}, 5")
        a(f"s_add_u32 {s(t+2)}, {s(t+2)}, {MX}")
        a(f"v_lshlrev_b32 v7, 3, v6")
        a(f"v_add_u32 v7, {s(t+2)}, v7")
        a(f"v_lshlrev_b32 v6, 6, v6")
        a(f"v_lshl_add_u32 v6, {v(V_G4)}, 4, v6")
        a(f"s_lshl_b32 {s(t+2)}, {s(S_W)}, 8")
        a(f"s_lshl_b32 {s(t+3)}, {s(S_J)}, 11")
        a(f"s_add_u32 {s(t+2)}, {s(t+2)}, {s(t+3)}")
        a(f"s_add_u32 {s(t+2)}, {s(t+2)}, {BM}")
        a(f"s_lshl_b32 {s(t+3)}, {s(S_J)}, 15")
        a(f"s_lshl_b32 {s(t+4)}, {s(S_W)}, 12")
        a(f"s_add_u32 {s(t+3)}, {s(t+3)}, {s(t+4)}")
        a(f"s_add_u32 {s(t+3)}, {s(t+3)}, {BPART}")
        a(f"v_lshlrev_b32 v5, 4, {v(V_L)}")
        self.stamp(7)
        for tt in range(2):
            for q in range(4):
                r0 = ACC2 + 16*tt + 4*q
                a(f"v_cvt_pk_bf16_f32 {v(r0)}, {v(r0)}, {v(r0+1)}")
                a(f"v_cvt_pk_bf16_f32 {v(r0+1)}, {v(r0+2)}, {v(r0+3)}")
                a(f"ds_write_b64 {v(48+4*tt+q)}, {v(r0,2)}")
        a("s_waitcnt vmcnt(0)")
        self.barrier()
        OR = 32
        for j in range(4):
            a(f"ds_read_b128 {v(OR+4*j,4)}, {v(56+j)}")
        a(f"ds_read_b64 v[48:49], v7")
        a(f"v_mov_b32 v51, {s(S_T)}")
        a("s_waitcnt lgkmcnt(0)")
        for j in range(4):
            a(f"buffer_store_dwordx4 {v(OR+4*j,4)}, v5, {s(SRD_WS,4)}, {s(t+3)} offen offset:{j*1024} {SC}")
        self.checksum4(OR, 50, 10, SEL1, SEL2)
        self.set_exec(0x000f000f000f000f)
        a(f"buffer_store_dwordx4 v[48:51], v6, {s(SRD_WS,4)}, {s(t+2)} offen {SC}")
        self.set_exec(-1)
        self.stamp(8)
        WUVF = 164
        self.wo_dma_addr(192)
        DL, DM, DF, ACC = 64, 80, 84, 100
        a(f"s_lshl_b32 {s(t+4)}, {s(S_W)}, 19")
        a(f"s_lshl_b32 {s(t+2)}, {s(S_J)}, 8")
        a(f"s_add_u32 {s(t+4)}, {s(t+4)}, {s(t+2)}")
        a(f"s_add_u32 {s(t+4)}, {s(t+4)}, {BPART}")
        a(f"s_lshl_b32 {s(t+5)}, {s(S_W)}, 15")
        a(f"s_lshl_b32 {s(t+2)}, {s(S_J)}, 4")
        a(f"s_add_u32 {s(t+5)}, {s(t+5)}, {s(t+2)}")
        a(f"s_add_u32 {s(t+5)}, {s(t+5)}, {BM}")
        MLX = SCR + 8192
        a(f"v_and_b32 v6, 3, {v(V_N16)}")
        a(f"v_lshl_add_u32 v6, {v(V_G4)}, 2, v6")
        a(f"v_lshlrev_b32 v14, 2, v6")
        a(f"s_and_b32 {s(t+2)}, {s(S_W)}, 3")
        a(f"s_lshl_b32 {s(t+2)}, {s(t+2)}, 4")
        a(f"s_lshl_b32 {s(t+2)}, {s(t+2)}, 2")
        a(f"v_lshlrev_b32 v15, 4, {v(V_G4)}")
        a(f"v_add_u32 v15, {s(t+2)}, v15")
        a(f"v_add_u32 v13, 8, v15")
        a(f"v_lshlrev_b32 v7, 17, {v(V_G4)}")
        a(f"v_lshl_add_u32 v7, {v(V_N16)}, 4, v7")
        def ldp():
            for j in range(4):
                a(f"s_add_u32 {s(t+2)}, {s(t+4)}, {j*32768}")
                a(f"buffer_load_dwordx4 {v(DL+4*j,4)}, v7, {s(SRD_WS,4)}, {s(t+2)} offen {SC}")
        a(f"v_lshrrev_b32 v5, 2, {v(V_N16)}")
        a(f"v_bfe_u32 v6, {v(V_N16)}, 1, 1")
        a(f"s_lshl_b32 {s(t+2)}, {s(S_W)}, 1")
        a(f"v_or_b32 v6, {s(t+2)}, v6")
        a(f"v_lshlrev_b32 v8, 1, v5")
        a(f"v_xor_b32 v6, v6, v8")
        a(f"v_lshlrev_b32 v6, 4, v6")
        a(f"v_lshl_add_u32 v5, {v(V_G4)}, 3, v5")
        a(f"v_lshl_add_u32 v6, v5, 8, v6")
        a(f"v_and_b32 v5, 1, {v(V_N16)}")
        a(f"v_lshl_add_u32 v5, v5, 3, v6")
        a(f"v_add_u32 v5, {WUVIMG}, v5")
        a(f"v_xor_b32 v6, {8<<4}, v5")
        def wuv_frags(A0, A1):
            for ks in range(4):
                a(f"ds_read_b64_tr_b16 {v(WUVF+4*ks,2)}, {v(A0)} offset:{ks*8192}")
                a(f"ds_read_b64_tr_b16 {v(WUVF+4*ks+2,2)}, {v(A1)} offset:{ks*8192 + 1024}")
        if not self.c.wuv_late: wuv_frags(5, 6)
        else:
            if self.c.wuv_late == 4: a("v_mov_b32 v60, v5"); a("v_mov_b32 v61, v6")
            else: a("v_mov_b32 v18, v5"); a("v_mov_b32 v19, v6")
            wuv_addr(20, 21)
        a(f"s_lshl_b32 {s(t+6)}, {s(S_W)}, 7")
        a(f"s_add_u32 {s(t+6)}, {s(t+6)}, {MLX}")
        a(f"v_lshl_add_u32 v10, {v(V_L)}, 3, {s(t+6)}")
        a(f"s_lshr_b32 {s(t+6)}, {s(S_W)}, 2")
        a(f"s_lshl_b32 {s(t+6)}, {s(t+6)}, 9")
        a(f"s_add_u32 {s(t+6)}, {s(t+6)}, {MLX}")
        a(f"v_lshl_add_u32 v11, {v(V_L)}, 3, {s(t+6)}")
        a(f"v_lshlrev_b32 v9, 11, {v(V_L)}")
        def ldm():
            a(f"buffer_load_dwordx4 {v(DM,4)}, v9, {s(SRD_WS,4)}, {s(t+5)} offen {SC}")
        def ldboth():
            ldm()
            self.set_exec(-1)
            ldp()
            self.set_exec(0xffff)
        nx = 0
        if self.c.wuv_late == 3:
            wuv_issue(20, 21)
            a("s_waitcnt vmcnt(4)")
        elif self.c.wo_when == 2:
            self.wo_dma(SRD_WO, 192, WOIMG_Y, 4608)
            a("s_waitcnt vmcnt(5)")
        elif self.c.e3ack: a("s_waitcnt vmcnt(0)")
        self.stamp(26)
        self.set_exec(0xffff)
        ldboth()
        if self.c.wuv_late in (1, 4) or self.c.wo_when == 1:
            self.set_exec(-1)
            if self.c.wuv_late in (1, 4): wuv_issue(20, 21); nx += 4
            if self.c.wo_when == 1: self.wo_dma(SRD_WO, 192, WOIMG_Y, 4608); nx += 5
            self.set_exec(0xffff)
        def chkm():
            a(f"v_cmp_eq_u32 vcc, {s(S_T)}, {v(DM+3)}")
        if self.c.e3il == 2:
            LC = a.newlabel('FC'); LD = a.newlabel('FD')
            a(f"s_mov_b32 {s(S_CNT)}, 0")
            a.label(LC)
            a("s_waitcnt vmcnt(4)" if self.c.e3early else "s_waitcnt vmcnt(0)")
            chkm()
            a("s_andn2_b32 s75, 0xffff, vcc_lo")
            self.set_exec(-1)
            a(f"ds_bpermute_b32 v12, v14, {v(DM+2)}")
            if self.c.e3early: a("s_waitcnt vmcnt(0)")
            self.checksum4(DL, 16, 32, SEL1, SEL2)
            a("s_waitcnt lgkmcnt(0)")
            a("v_cmp_ne_u32 vcc, v16, v12")
            a("s_and_b32 s76, vcc_lo, 0xf")
            a("s_or_b32 s75, s75, s76")
            a("s_lshr_b32 s76, vcc_lo, 12")
            a("s_and_b32 s76, s76, 0xf0")
            a("s_or_b32 s75, s75, s76")
            a("s_and_b32 s76, vcc_hi, 0xf")
            a("s_lshl_b32 s76, s76, 8")
            a("s_or_b32 s75, s75, s76")
            a("s_lshr_b32 s76, vcc_hi, 4")
            a("s_and_b32 s76, s76, 0xf000")
            a("s_or_b32 s77, s75, s76")
            a(f"s_cbranch_scc0 {LD}")
            a(f"s_add_u32 {s(S_CNT)}, {s(S_CNT)}, 1")
            a(f"s_cmp_ge_u32 {s(S_CNT)}, {self.c.spin_limit}")
            a(f"s_cbranch_scc1 {LD}")
            if self.c.e3sleep: a(f"s_sleep {self.c.e3sleep}")
            a(f"s_mov_b32 exec_lo, s77")
            a(f"s_mov_b32 exec_hi, 0")
            ldm()
            for j in range(4):
                LS_ = a.newlabel('MS')
                a(f"s_bfe_i32 s75, s77, {j | (1 << 16)}")
                a(f"s_bfe_i32 s76, s77, {(4+j) | (1 << 16)}")
                a(f"s_pack_ll_b32_b16 exec_lo, s75, s76")
                a(f"s_bfe_i32 s75, s77, {(8+j) | (1 << 16)}")
                a(f"s_bfe_i32 s76, s77, {(12+j) | (1 << 16)}")
                a(f"s_pack_ll_b32_b16 exec_hi, s75, s76")
                a(f"s_add_u32 {s(t+2)}, {s(t+4)}, {j*32768}")
                a(f"s_cbranch_execz {LS_}")
                a(f"buffer_load_dwordx4 {v(DL+4*j,4)}, v7, {s(SRD_WS,4)}, {s(t+2)} offen {SC}")
                a.label(LS_)
            a("s_waitcnt vmcnt(0)")
            self.set_exec(0xffff)
            a(f"s_branch {LC}")
            a.label(LD)
            self.set_exec(0xffff)
        elif self.c.e3mask:
            def ldmiss():
                a(f"s_andn2_b32 s77, 0xffff, vcc_lo")
                a(f"s_mov_b32 exec_lo, s77")
                ldm()
                for j in range(4):
                    LS_ = a.newlabel('MS')
                    a(f"s_bfe_i32 s75, s77, {j | (1 << 16)}")
                    a(f"s_bfe_i32 s76, s77, {(4+j) | (1 << 16)}")
                    a(f"s_pack_ll_b32_b16 exec_lo, s75, s76")
                    a(f"s_bfe_i32 s75, s77, {(8+j) | (1 << 16)}")
                    a(f"s_bfe_i32 s76, s77, {(12+j) | (1 << 16)}")
                    a(f"s_pack_ll_b32_b16 exec_hi, s75, s76")
                    a(f"s_add_u32 {s(t+2)}, {s(t+4)}, {j*32768}")
                    a(f"s_cbranch_execz {LS_}")
                    a(f"buffer_load_dwordx4 {v(DL+4*j,4)}, v7, {s(SRD_WS,4)}, {s(t+2)} offen {SC}")
                    a.label(LS_)
                self.set_exec(0xffff)
            self.retry_vec(ldmiss, chkm, f"s_waitcnt vmcnt({4+nx})", sleep=self.c.e3sleep, wait="s_waitcnt vmcnt(0)")
        elif not self.c.e3scal:
            self.retry_vec(ldboth, chkm, f"s_waitcnt vmcnt({4+nx})", sleep=self.c.e3sleep, wait="s_waitcnt vmcnt(4)")
            if self.c.wuv_late == 1:
                LW = a.newlabel('WL')
                a(f"s_cmp_lg_u32 {s(S_CNT)}, 0")
                a(f"s_cbranch_scc1 {LW}")
                a(f"s_waitcnt vmcnt({5 if self.c.wo_when == 1 else 0})")
                a.label(LW)
        else:
            LC = a.newlabel('EC'); LD = a.newlabel('ED'); LM = a.newlabel('EM'); LP = a.newlabel('EP'); LN = a.newlabel('EN')
            a(f"s_mov_b32 {s(S_CNT)}, 0")
            a.label(LC)
            a("s_waitcnt vmcnt(4)")
            chkm()
            a("s_cmp_eq_u64 vcc, exec")
            a(f"s_cbranch_scc1 {LD}")
            a(f"s_andn2_b32 s77, 0xffff, vcc_lo")
            a.label(LM)
            a(f"s_ff1_i32_b32 s76, s77")
            a(f"s_lshl_b32 s75, s76, 11")
            a(f"s_add_u32 s75, s75, {s(t+5)}")
            a.label(LP)
            a(f"s_add_u32 {s(S_CNT)}, {s(S_CNT)}, 1")
            a(f"s_cmp_ge_u32 {s(S_CNT)}, {self.c.spin_limit}")
            a(f"s_cbranch_scc1 {LD}")
            a(f"s_load_dwordx4 {s(S_PB,4)}, {s(P_WS,2)}, s75 glc")
            a("s_waitcnt lgkmcnt(0)")
            a(f"s_cmp_eq_u32 {s(S_PB+3)}, {s(S_T)}")
            a(f"s_cbranch_scc0 {LP}")
            a(f"s_bitset0_b32 s77, s76")
            a(f"s_cmp_lg_u32 s77, 0")
            a(f"s_cbranch_scc1 {LM}")
            ldboth()
            a(f"s_branch {LC}")
            a.label(LD)
        a(f"ds_write_b64 v10, {v(DM,2)}")
        self.set_exec(-1)
        self.stamp_cnt(27)
        self.stamp(14)
        il = self.c.e3il
        if self.c.wo_when == 0 and not il: self.wo_dma(SRD_WO, 192, WOIMG_Y, 4608)
        self.barrier()
        a(f"ds_read_b64 {v(DM,2)}, v11")
        if il != 2: a(f"ds_bpermute_b32 v12, v14, {v(DM+2)}")
        plan = {3: ([0, 1], [2, 3], [4]), 4: ([0, 1, 2], [3, 4], []), 5: ([0], [1, 2], [3, 4])}.get(self.c.e3wo)
        if self.c.wo_when == 0 and il and self.c.e3wo == 0: self.wo_dma(SRD_WO, 192, WOIMG_Y, 4608)
        if plan: self.wo_dma(SRD_WO, 192, WOIMG_Y, 4608, plan[0])
        a("s_waitcnt lgkmcnt(0)")
        if self.c.wuv_late in (1, 3): wuv_frags(18, 19)
        self.stamp(25)
        def capture(fn):
            rec = []; keep = self.a; self.a = rec.append
            try: fn(rec.append)
            finally: self.a = keep
            return rec
        def wpart1(a):
            a(f"v_mov_b32 v8, {v(DM)}")
            self.inrow('v_max_f32', 8); self.xrow('v_max_f32', 8, 9)
            a(f"v_sub_f32 v8, {v(DM)}, v8")
            a(f"v_exp_f32 v8, v8")
            a(f"v_mul_f32 v10, v8, {v(DM+1)}")
        def wpart2(a):
            self.inrow('v_add_f32', 10); self.xrow('v_add_f32', 10, 9)
            a(f"v_rcp_f32 v10, v10")
            a(f"v_mul_f32 v8, v8, v10")
            a(f"v_mov_b32_dpp v9, v8 row_shl:1 row_mask:0xf bank_mask:0xf")
            a(f"v_cvt_pk_bf16_f32 v8, v8, v9")
            a(f"ds_bpermute_b32 v52, v15, v8")
            a(f"ds_bpermute_b32 v53, v13, v8")
        if not il:
            wpart1(a); wpart2(a)
        elif il == 2:
            W = capture(wpart1) + capture(wpart2)
            P = capture(lambda a_: self.half_perm(DL, DF))
            while W or P:
                if W: a(W.pop(0))
                if W: a(W.pop(0))
                if P: a(P.pop(0))
        else:
            wpart1(a)
            if plan and self.c.wuv_late == 4:
                LA = a.newlabel('WA'); LB = a.newlabel('WB')
                a(f"s_cmp_lg_u32 {s(S_CNT)}, 0")
                a(f"s_cbranch_scc1 {LA}")
                a(f"s_waitcnt vmcnt({len(plan[0]) + 4})")
                a(f"s_branch {LB}")
                a.label(LA)
                a(f"s_waitcnt vmcnt({len(plan[0])})")
                a.label(LB)
            elif plan: a(f"s_waitcnt vmcnt({len(plan[0])})")
            else: a("s_waitcnt vmcnt(5)" if (self.c.wo_when == 0 and self.c.e3wo == 0) else "s_waitcnt vmcnt(0)")
            W = capture(wpart2)
            C = capture(lambda a_: self.checksum4(DL, 11, 32, SEL1, SEL2))
            P = capture(lambda a_: self.half_perm(DL, DF))
            while W or C:
                if W: a(W.pop(0))
                for _ in range(2):
                    if C: a(C.pop(0))
            for x in P: a(x)
        a(f"s_lshl_b32 {s(t+2)}, {s(S_W)}, 9")
        a(f"s_add_u32 {s(t+2)}, {s(t+2)}, {CW}")
        a(f"v_lshlrev_b32 v5, 5, {v(V_N16)}")
        a(f"v_add_u32 v5, {s(t+2)}, v5")
        a(f"v_lshlrev_b32 v6, 11, {v(V_RS)}")
        a(f"v_lshl_add_u32 v6, {v(V_G4)}, 4, v6")
        a(f"s_lshl_b32 {s(t+2)}, {s(S_W)}, 6")
        a(f"s_add_u32 {s(t+2)}, {s(t+2)}, {CW}")
        a(f"v_add_u32 v6, {s(t+2)}, v6")
        a("s_waitcnt lgkmcnt(0)")
        def chkp():
            self.checksum4(DL, 11, 32, SEL1, SEL2)
            a(f"v_cmp_eq_u32 vcc, v11, v12")
        if not il:
            self.retry_vec(ldp, chkp, "s_waitcnt vmcnt(5)" if self.c.wo_when == 0 else "s_waitcnt vmcnt(0)", sleep=1)
            self.stamp(9)
            self.half_perm(DL, DF)
        elif il == 2:
            self.stamp(9)
        else:
            LOK = a.newlabel('EK')
            a(f"v_cmp_eq_u32 vcc, v11, v12")
            a("s_cmp_eq_u64 vcc, exec")
            a(f"s_cbranch_scc1 {LOK}")
            ldp()
            self.retry_vec(ldp, chkp, "s_waitcnt vmcnt(0)", sleep=1)
            self.half_perm(DL, DF)
            a.label(LOK)
            self.stamp(9)
        self.half_mfma(ACC, 52, DF, True)
        if il and self.c.e3wo == 1: self.wo_dma(SRD_WO, 192, WOIMG_Y, 4608)
        if plan: self.wo_dma(SRD_WO, 192, WOIMG_Y, 4608, plan[1])
        a(f"v_lshlrev_b32 v7, 8, {v(V_RS)}")
        a(f"v_lshl_add_u32 v7, {v(V_G4)}, 3, v7")
        a(f"s_lshl_b32 {s(t+2)}, {s(S_W)}, 5")
        a(f"s_add_u32 {s(t+2)}, {s(t+2)}, {XL2}")
        a(f"v_add_u32 v7, {s(t+2)}, v7")
        self.afrag_addr(14, XL2)
        a(f"v_and_b32 v15, 1, {v(V_N16)}")
        a(f"v_lshlrev_b32 v15, 10, v15")
        a(f"v_lshrrev_b32 v13, 1, {v(V_N16)}")
        a(f"v_lshl_add_u32 v15, v13, 4, v15")
        a(f"s_add_u32 {s(t+3)}, {s(S_J)}, 128")
        a(f"s_lshl_b32 {s(t+3)}, {s(t+3)}, 11")
        a(f"s_lshl_b32 {s(t+2)}, {s(S_W)}, 7")
        a(f"s_add_u32 {s(t+3)}, {s(t+3)}, {s(t+2)}")
        a(f"s_add_u32 {s(t+3)}, {s(t+3)}, {OP}")
        a(f"v_mov_b32 v10, 0"); a(f"v_mov_b32 v11, 0.25")
        a(f"v_cndmask_b32 v10, v10, v11, {s(SEL2,2)}")
        a(f"v_mov_b32 v11, {s(S_T)}")
        self.set_exec(0xffff)
        self.write_acc_rows(ACC, 5)
        self.set_exec(-1)
        self.barrier()
        for q in range(4):
            a(f"ds_read_b128 {v(16+4*q,4)}, v6 offset:{q*512}")
        if il and self.c.e3wo == 2: self.wo_dma(SRD_WO, 192, WOIMG_Y, 4608)
        if plan and plan[2]: self.wo_dma(SRD_WO, 192, WOIMG_Y, 4608, plan[2])
        a("s_waitcnt lgkmcnt(0)")
        for j in range(4):
            a(f"v_add_f32 {v(16+j)}, {v(16+j)}, {v(20+j)}")
            a(f"v_add_f32 {v(24+j)}, {v(24+j)}, {v(28+j)}")
        for j in range(4):
            a(f"v_add_f32 {v(16+j)}, {v(16+j)}, {v(24+j)}")
        a("v_cvt_pk_bf16_f32 v52, v16, v17"); a("v_cvt_pk_bf16_f32 v53, v18, v19")
        self.set_exec(0x0011001100110011)
        a("ds_write_b64 v7, v[52:53]")
        self.set_exec(-1)
        if self.c.wuv_late == 4: a("s_waitcnt vmcnt(5)")
        self.barrier()
        if self.c.wuv_late == 4: wuv_frags(60, 61)
        self.afrag_reads(16, 14)
        a("s_waitcnt lgkmcnt(0)")
        self.chain4(64, 16, WUVF)
        self.pack_pair(64, 8, 9, 12, 13)
        self.set_exec(0xffff)
        a(f"buffer_store_dwordx4 v[8:11], v15, {s(SRD_WS,4)}, {s(t+3)} offen {SC}")
        self.set_exec(-1)
        self.stamp(10)
        a("s_waitcnt vmcnt(1)")
        a("s_barrier")
        self.p5(1, WOIMG_Y, 4608, 11, 12)
        self.final_reduce(1)

    def p5(self, branch, wbase, RS, st_x, st_pub):
        a = self.a; t = ST
        WF, WFX, AF, G = 132, 148, 16, 48
        a(f"v_lshrrev_b32 v14, 2, {v(V_N16)}")
        a(f"v_lshlrev_b32 v14, 11, v14")
        a(f"v_and_b32 v15, 1, {v(V_N16)}")
        a(f"v_lshl_add_u32 v14, v15, 10, v14")
        a(f"v_lshl_add_u32 v14, {v(V_G4)}, 5, v14")
        a(f"v_and_b32 v13, 2, {v(V_N16)}")
        a(f"v_lshl_add_u32 v14, v13, 3, v14")
        self.hshift5(t+5)
        a(f"s_add_u32 {s(t+4)}, {s(t+5)}, {branch*32}")
        a(f"s_lshl_b32 {s(t+4)}, {s(t+4)}, 13")
        a(f"s_lshl_b32 {s(t+2)}, {s(S_W)}, 7")
        a(f"s_add_u32 {s(t+4)}, {s(t+4)}, {s(t+2)}")
        a(f"s_add_u32 {s(t+4)}, {s(t+4)}, {OP}")
        G2 = 52
        def ldt(st=0):
            a(f"buffer_load_dwordx4 {v(G2 if st else G,4)}, v14, {s(SRD_WS,4)}, {s(t+4)} offen {SC}")
        def chkt(st=0):
            a(f"v_cmp_eq_u32 vcc, {s(S_T)}, {v((G2 if st else G)+3)}")
        G3 = 56
        def donet(st):
            for r in range(3): a(f"v_mov_b32 {v(G3+r)}, {v((G2 if st else G)+r)}")
        ldt()
        self.wo_frags(WF, WFX, wbase, RS)
        a(f"v_lshlrev_b32 v7, 8, v15")
        a(f"v_lshl_add_u32 v7, {v(V_G4)}, 3, v7")
        a(f"v_lshl_add_u32 v7, v13, 1, v7")
        a(f"s_lshl_b32 {s(t+2)}, {s(S_W)}, 5")
        a(f"s_add_u32 {s(t+2)}, {s(t+2)}, {XL}")
        a(f"v_add_u32 v7, {s(t+2)}, v7")
        self.afrag_addr(6, XL)
        a(f"v_mul_u32_u24 v15, {36*4096}, v15")
        a(f"v_lshrrev_b32 v13, 1, {v(V_N16)}")
        a(f"v_lshl_add_u32 v15, v13, 4, v15")
        a(f"s_mul_i32 {s(t+6)}, {s(S_RQ)}, {9*4096}")
        a(f"s_lshl_b32 {s(t+2)}, {s(t+5)}, 7")
        a(f"s_add_u32 {s(t+6)}, {s(t+6)}, {s(t+2)}")
        a(f"s_add_u32 {s(t+6)}, {s(t+6)}, {OUTP + branch*72*4096}")
        a(f"s_add_u32 {s(t+7)}, {s(t+6)}, {8*4096}")
        a(f"s_lshl_b32 {s(t+2)}, {s(S_W)}, 12")
        a(f"s_add_u32 {s(t+6)}, {s(t+6)}, {s(t+2)}")
        a(f"v_mov_b32 v105, {s(S_T)}"); a(f"v_mov_b32 v107, {s(S_T)}")
        a(f"v_mov_b32 v109, {s(S_T)}"); a(f"v_mov_b32 v111, {s(S_T)}")
        if self.c.pipep5:
            self.poll_pipe(ldt, chkt, donet, 1, self.c.stagp5)
        else:
            self.retry_vec(ldt, chkt, "s_waitcnt vmcnt(0)", sleep=self.c.sleep5)
        if self.c.pipep5: G = G3
        self.stamp(24)
        self.stamp_cnt(21)
        if self.c.dbg:
            a("s_waitcnt lgkmcnt(0)")
            a(f"s_lshl_b32 {s(t+8)}, s2, 3")
            a(f"s_add_u32 {s(t+8)}, {s(t+8)}, {s(S_W)}")
            a(f"s_lshl_b32 {s(t+8)}, {s(t+8)}, 12")
            a(f"s_add_u32 {s(t+8)}, {s(t+8)}, 0x1000000")
            a(f"v_lshlrev_b32 v12, 6, {v(V_L)}")
            for q in range(4):
                a(f"buffer_store_dwordx4 {v(WF+4*q,4)}, v12, {s(SRD_WS,4)}, {s(t+8)} offen offset:{q*16}")
        a(f"v_mov_b32_dpp v9, {v(G+2)} quad_perm:[2,3,0,1] row_mask:0xf bank_mask:0xf")
        a(f"v_cndmask_b32 v8, {v(G+2)}, v9, {s(SEL2,2)}")
        a(f"v_cndmask_b32 v9, v9, {v(G+2)}, {s(SEL2,2)}")
        a(f"v_max_f32_dpp v10, v8, v8 row_ror:4 row_mask:0xf bank_mask:0xf")
        a(f"v_max_f32_dpp v10, v10, v10 row_ror:8 row_mask:0xf bank_mask:0xf")
        a(f"v_sub_f32 v8, v8, v10")
        a(f"v_exp_f32 v8, v8")
        a(f"v_mul_f32 v9, v8, v9")
        a(f"v_mul_f32 v10, v8, {v(G)}")
        a(f"v_mul_f32 v11, v8, {v(G+1)}")
        for r in (4, 8):
            for x in (9, 10, 11):
                a(f"v_add_f32_dpp {v(x)}, {v(x)}, {v(x)} row_ror:{r} row_mask:0xf bank_mask:0xf")
        a("v_rcp_f32 v9, v9")
        a("v_mul_f32 v10, v10, v9"); a("v_mul_f32 v11, v11, v9")
        a("v_cvt_pk_bf16_f32 v10, v10, v11")
        self.set_exec(0x000f000f000f000f)
        a("ds_write_b32 v7, v10")
        self.set_exec(-1)
        self.barrier()
        self.stamp(st_x)
        self.afrag_reads(AF, 6)
        a("s_waitcnt lgkmcnt(0)")
        self.chain4(64, AF, WF)
        LO = a.newlabel('TO')
        a(f"s_cmp_lg_u32 {s(S_W)}, 0")
        a(f"s_cbranch_scc1 {LO}")
        self.chain4(68, AF, WFX)
        self.pack_pair(68, 108, 110, 12, 13)
        self.set_exec(0xffff)
        a(f"buffer_store_dwordx4 v[108:111], v15, {s(SRD_WS,4)}, {s(t+7)} offen {SC}")
        self.set_exec(-1)
        a.label(LO)
        self.pack_pair(64, 104, 106, 12, 13)
        self.set_exec(0xffff)
        a(f"buffer_store_dwordx4 v[104:107], v15, {s(SRD_WS,4)}, {s(t+6)} offen {SC}")
        self.set_exec(-1)
        self.stamp(st_pub)

    def build(self):
        a = self.a; c = self.c
        self.prologue()
        self.p1_loads()
        self.srds_rest()
        if c.warm:
            a("s_lshr_b32 s72, s2, 3")
            a("s_lshl_b32 s72, s72, 3")
            a(f"s_add_u32 s72, s72, {s(S_W)}")
            a("s_cmp_ge_u32 s72, WARM_NSEG")
            a("s_cbranch_scc1 L_WARM_RET")
            a("s_lshl_b32 s72, s72, 2")
            a("s_getpc_b64 s[74:75]")
            a.label("L_WARM_PC")
            a("s_add_u32 s74, s74, s72")
            a("s_addc_u32 s75, s75, 0")
            a("s_add_u32 s74, s74, L_WARM_TAB-L_WARM_PC")
            a("s_addc_u32 s75, s75, 0")
            a("s_mov_b64 exec, 0")
            a("s_setpc_b64 s[74:75]")
            a.label("L_WARM_RET")
            a("s_mov_b64 exec, -1")
        a(f"s_cmp_eq_u32 {s(S_TYPE)}, 0")
        a("s_cbranch_scc0 L_Y0")
        self.x_main()
        a.label("L_Y0")
        self.y_main()
        a.label("L_END")
        self.stamp_dump()
        a.label("L_EXIT")
        a("s_endpgm")
        body = a.finalize()
        hdr = open(os.path.join(os.path.dirname(os.path.abspath(__file__)), 'header.txt')).read()
        out = hdr
        out += f"; @launch grid=(256,1,1) block=(512,1,1) lds={LDS_BYTES}\n"
        out += f""".amdgcn_target "amdgcn-amd-amdhsa--gfx950"
.text
.globl {NAME}_kernel
.p2align 8
.type {NAME}_kernel,@function
{NAME}_kernel:
"""
        out += body
        out += f""".section .rodata,"a"
.p2align 6
.amdhsa_kernel {NAME}_kernel
  .amdhsa_next_free_vgpr 256
  .amdhsa_next_free_sgpr 102
  .amdhsa_accum_offset 256
  .amdhsa_group_segment_fixed_size 0
  .amdhsa_kernarg_size 112
  .amdhsa_user_sgpr_count 2
  .amdhsa_user_sgpr_kernarg_segment_ptr 1
  .amdhsa_system_sgpr_workgroup_id_x 1
.end_amdhsa_kernel
"""
        if c.warm: out = self.add_hops(out, c.warm)
        return out

    def add_hops(self, txt, gran):
        import subprocess, re
        def sizes(t):
            open('_w.s', 'w').write(t)
            subprocess.run(["clang", "-x", "assembler", "-target", "amdgcn-amd-amdhsa", "-mcpu=gfx950", "-c", "_w.s", "-o", "_w.o"], check=True)
            d = subprocess.run(["llvm-objdump", "-d", "--mcpu=gfx950", "_w.o"], capture_output=True, text=True).stdout
            return [int(m.group(1), 16) for m in re.finditer(r"// ([0-9A-F]{12}):", d)]
        lines = txt.split('\n')
        def isins(l):
            t = l.strip()
            return l.startswith('    ') and t and not t.startswith(';') and not t.startswith('.') and not t.endswith(':')
        k0 = next(i for i, l in enumerate(lines) if l.strip().startswith(NAME + '_kernel:'))
        kend = max(i for i, l in enumerate(lines) if l.strip() == 's_endpgm')
        probe = '\n'.join(lines[:kend + 1] + ['L_WARM_TAB:', '    s_endpgm'] + lines[kend + 1:]).replace('WARM_NSEG', '0x12345')
        ad = sizes(probe)
        idx = [i for i in range(k0, kend + 1) if isins(lines[i])]
        assert len(ad) == len(idx) + 1, (len(ad), len(idx))
        size = {i: ad[n + 1] - ad[n] for n, i in enumerate(idx)}
        ret = next(i for i, l in enumerate(lines) if l.strip() == 'L_WARM_RET:')
        out = []; addr = 0; hops = []; last = None
        for i, l in enumerate(lines[:kend + 1]):
            if i in size:
                if i > ret + 1:
                    if last is None: last = addr // gran
                    elif addr // gran != last and i != kend:
                        last = addr // gran
                        out.append(f'@@HOP{len(hops)}'); hops.append(addr); addr += 4
                addr += size[i]
            out.append(l)
        M = len(hops); K = (M + 255) // 256; nseg = (M + K - 1) // K
        res = []
        for l in out:
            if l.startswith('@@HOP'):
                h = int(l[5:])
                tgt = f'L_HOP{h+1}' if ((h + 1) % K and h + 1 < M) else 'L_WARM_RET'
                res.append(f'L_HOP{h}:'); res.append(f'    s_cbranch_execz {tgt}')
            else: res.append(l)
        res.append('L_WARM_TAB:')
        for g in range(nseg): res.append(f'    s_branch L_HOP{g*K}')
        res.append('    s_endpgm')
        print('hops', M, 'K', K, 'nseg', nseg, 'code bytes', addr)
        return '\n'.join(res + lines[kend + 1:]).replace('WARM_NSEG', str(nseg))

if __name__ == '__main__':
    cfg = Cfg()
    outp = f"cdna_kernels/{NAME}.s"
    for arg in sys.argv[1:]:
        if arg.startswith('-o='): outp = arg[3:]
        elif '=' in arg:
            k, val = arg.split('=')
            setattr(cfg, k, val.replace('+', ' ') if isinstance(getattr(cfg, k), str) else type(getattr(cfg, k))(int(val)))
    g = Gen(cfg)
    txt = g.build()
    open(outp, 'w').write(txt)
    print("wrote", outp, "lines", txt.count('\n'), "nops inserted", g.a.ninserted)
```

```python
import sys, os, struct
sys.path.insert(0, os.path.dirname(os.path.abspath(__file__)))
from asmlib import Asm, v, s

NAME = "concat_heads__sliding_block_cached__compressed_kv_cla__decode"

class Cfg:
    nt_stream = True
    nt_w = True
    n1_ckv = 4
    n1_k = 0
    n2_k = 0
    n3_k = 0
    spin_limit = 300000
    sleep5 = 1
    e3scal = 0
    wuv_late = 0
    e3wo = 4
    e3early = 1
    e3il = 1
    warm = 0
    e3mask = 0
    wo_when = 0
    xwin = 0
    xwinv = 1
    ntwo = 1
    ntuk = 1
    kx = 4
    qabs_first = ''
    touch = 0
    pipe5 = 1
    stag5 = 10
    pipep5 = 0
    stagp5 = 8
    ldsdbg = 0
    k_after = 4
    early_qa = 1
    n4_k = 0
    e3ack = 1
    e3sleep = 4
    hs = 6
    hsy = 4
    wuk_late = 0
    hs5 = 4
    ackdbg = 0
    xsplit = 0
    dbg = 0
    stamps = False

Q1   = 0x000000
QABS = 0x080000
QM   = 0x090000
EPOCH= 0x0A0000
DONE = 0x0A1000
OP   = 0x100000
OM   = 0x180000
BM   = 0x1C0000
BPART= 0x200000
OUTP = 0x600000
STMP = 0x900000
WS_SIZE = 268435456

IMG = 0
SCR = 131072
R1 = SCR; R2 = SCR + 8192; QL = SCR + 12288; QAL = SCR + 12800
QIMG = SCR
SX = SCR; MX = SCR + 16384; LS = SCR + 17408; PB = SCR + 18432
OW = SCR; ML = SCR + 8192
CW = SCR; XL2 = SCR + 4096
XL = SCR + 12288 + 1024
WUVIMG = IMG + 32768; WOIMG_Y = IMG + 65536
LDS_BYTES = 163840

S_W = 3; S_J = 4; S_TYPE = 5; S_H = 6; S_RQ = 7; S_T = 8
S_B = 9; S_S = 10; S_G = 11
S_PLO = 12; S_PHI = 13; S_SC = 14; S_BASE = 15
P_AX, P_AK, P_AV, P_AWQ, P_AWO, P_BX, P_CKV, P_BWQ = 16, 18, 20, 22, 24, 26, 28, 30
P_WUK, P_WUV, P_BWO, P_OUT = 32, 34, 36, 38
P_DBG, P_WS0 = 40, 42
SRD_X = 44; SRD_W = 48; SRD_ST = 52; SRD_V = 56; SRD_WO = 60; SRD_U = 64
SRD_WS = 80; SRD_OUT = 84; P_WS = 88; SEL1 = 0; SEL2 = 90
ST = 92
S_CNT = 5
S_PB = 16
V_L, V_G4, V_N16, V_RS = 1, 2, 3, 4
SC = "sc0 sc1"
SCALE_LOG2E = 0.08838834764831845 * 1.4426950408889634
TAGINC = 0x9e3779b9
def f32hex(x): return '0x%08x' % struct.unpack('<I', struct.pack('<f', x))[0]

class Gen:
    def __init__(self, cfg):
        self.c = cfg
        self.a = Asm()

    def srd(self, dst, ptr, size):
        a = self.a
        a(f"s_mov_b32 {s(dst)}, {s(ptr)}")
        a(f"s_and_b32 {s(dst+1)}, {s(ptr+1)}, 0xffff")
        a(f"s_mov_b32 {s(dst+2)}, {size}")
        a(f"s_mov_b32 {s(dst+3)}, 0x20000")
    def srd_sel(self, dst, ptrX, ptrY, sizeX, sizeY):
        a = self.a
        a(f"s_cmp_eq_u32 {s(S_TYPE)}, 0")
        a(f"s_cselect_b32 {s(dst)}, {s(ptrX)}, {s(ptrY)}")
        a(f"s_cselect_b32 {s(dst+1)}, {s(ptrX+1)}, {s(ptrY+1)}")
        if sizeX == sizeY:
            a(f"s_mov_b32 {s(dst+2)}, {sizeX}")
        else:
            a(f"s_mov_b32 {s(dst+2)}, {sizeY}")
            a(f"s_cselect_b32 {s(dst+2)}, {sizeX}, {s(dst+2)}")
        a(f"s_and_b32 {s(dst+1)}, {s(dst+1)}, 0xffff")
        a(f"s_mov_b32 {s(dst+3)}, 0x20000")
    def hshift(self, dst):
        self.a(f"s_add_u32 {s(dst)}, {s(S_H)}, s79")
        self.a(f"s_and_b32 {s(dst)}, {s(dst)}, 31")
    def hshift5(self, dst):
        self.a(f"s_add_u32 {s(dst)}, {s(S_H)}, {self.c.hs5}")
        self.a(f"s_and_b32 {s(dst)}, {s(dst)}, 31")
    def set_exec(self, mask):
        a = self.a
        if mask == -1:
            a("s_mov_b64 exec, -1"); return
        a(f"s_mov_b32 exec_lo, 0x{mask & 0xffffffff:08x}")
        a(f"s_mov_b32 exec_hi, 0x{mask >> 32:08x}")
    def ntw(self): return ' nt' if self.c.nt_w else ''
    def nts(self): return ' nt' if self.c.nt_stream else ''

    def stamp(self, idx):
        if not self.c.stamps: return
        a = self.a
        a(f"s_memrealtime vcc")
        a(f"s_waitcnt lgkmcnt(0)")
        a(f"v_writelane_b32 v0, vcc_lo, {idx}")
    def stamp_cnt(self, idx):
        if not self.c.stamps: return
        self.a(f"v_writelane_b32 v0, {s(S_CNT)}, {idx}")
    def stamp_dump(self):
        if not self.c.stamps: return
        a = self.a
        a(f"s_lshl_b32 s98, s2, 3")
        a(f"s_add_u32 s98, s98, {s(S_W)}")
        a(f"s_lshl_b32 s98, s98, 7")
        a(f"s_add_u32 s98, s98, {STMP}")
        a(f"v_lshlrev_b32 v58, 2, {v(V_L)}")
        self.set_exec(0xffffffff)
        a(f"buffer_store_dword v0, v58, {s(SRD_WS,4)}, s98 offen")
        self.set_exec(-1)
    def tid_shl(self, dst, sh, add=0, st=None):
        a = self.a
        st = ST + 9 if st is None else st
        a(f"s_lshl_b32 {s(st)}, {s(S_W)}, {6+sh}")
        if add: a(f"s_add_u32 {s(st)}, {s(st)}, {add}")
        a(f"v_lshl_add_u32 {v(dst)}, {v(V_L)}, {sh}, {s(st)}")

    def half_perm(self, L, F):
        a = self.a
        for i in range(4):
            for jj in range(2):
                lo = L + (2*jj)*4 + i; hi = L + (2*jj+1)*4 + i
                a(f"v_perm_b32 {v(F + (2*i)*2 + jj)}, {v(hi)}, {v(lo)}, {s(S_PLO)}")
                a(f"v_perm_b32 {v(F + (2*i+1)*2 + jj)}, {v(hi)}, {v(lo)}, {s(S_PHI)}")
    def full_perm(self, L, F):
        a = self.a
        for i in range(4):
            for jj in range(4):
                lo = L + (2*jj)*4 + i; hi = L + (2*jj+1)*4 + i
                a(f"v_perm_b32 {v(F + (2*i)*4 + jj)}, {v(hi)}, {v(lo)}, {s(S_PLO)}")
                a(f"v_perm_b32 {v(F + (2*i+1)*4 + jj)}, {v(hi)}, {v(lo)}, {s(S_PHI)}")
    def half_mfma(self, ACC, AF, F, first):
        a = self.a
        for c in range(8):
            cin = '0' if first else v(ACC + 4*c, 4)
            a(f"v_mfma_f32_16x16x16_bf16 {v(ACC+4*c,4)}, {v(AF,2)}, {v(F+2*c,2)}, {cin}")
    def xrow(self, op, x, t):
        a = self.a
        a(f"v_mov_b32 {v(t)}, {v(x)}")
        a(f"v_permlane16_swap_b32 {v(x)}, {v(t)}")
        a(f"{op} {v(x)}, {v(x)}, {v(t)}")
        a(f"v_mov_b32 {v(t)}, {v(x)}")
        a(f"v_permlane32_swap_b32 {v(x)}, {v(t)}")
        a(f"{op} {v(x)}, {v(x)}, {v(t)}")
    def xrow_multi(self, op, xs, ts):
        a = self.a
        for sw in ('v_permlane16_swap_b32', 'v_permlane32_swap_b32'):
            for x, t in zip(xs, ts): a(f"v_mov_b32 {v(t)}, {v(x)}")
            for x, t in zip(xs, ts): a(f"{sw} {v(x)}, {v(t)}")
            for x, t in zip(xs, ts): a(f"{op} {v(x)}, {v(x)}, {v(t)}")
    def xhalf(self, op, x, t):
        a = self.a
        a(f"v_mov_b32 {v(t)}, {v(x)}")
        a(f"v_permlane32_swap_b32 {v(x)}, {v(t)}")
        a(f"{op} {v(x)}, {v(x)}, {v(t)}")
    def inrow(self, op, x):
        a = self.a
        for r in (8, 4, 2, 1):
            a(f"{op}_dpp {v(x)}, {v(x)}, {v(x)} row_ror:{r} row_mask:0xf bank_mask:0xf")
    def barrier(self):
        self.a("s_waitcnt lgkmcnt(0)")
        self.a("s_barrier")

    def spin_scalar(self, load_fn, ok_fn, sleep=0):
        a = self.a
        L = a.newlabel('SP'); D = a.newlabel('SD')
        a(f"s_mov_b32 {s(S_CNT)}, 0")
        a.label(L)
        load_fn()
        a("s_waitcnt lgkmcnt(0)")
        ok_fn()
        a(f"s_cbranch_scc1 {D}")
        if sleep: a(f"s_sleep {sleep}")
        a(f"s_add_u32 {s(S_CNT)}, {s(S_CNT)}, 1")
        a(f"s_cmp_lt_u32 {s(S_CNT)}, {self.c.spin_limit}")
        a(f"s_cbranch_scc1 {L}")
        a.label(D)

    def s_alltags(self, regs, t0, t1):
        a = self.a
        a(f"s_xor_b32 {s(t0)}, {s(regs[0])}, {s(S_T)}")
        for r in regs[1:]:
            a(f"s_xor_b32 {s(t1)}, {s(r)}, {s(S_T)}")
            a(f"s_or_b32 {s(t0)}, {s(t0)}, {s(t1)}")
        a(f"s_cmp_eq_u32 {s(t0)}, 0")

    def retry_vec(self, load_fn, check_fn, first_wait, sleep=0, wait="s_waitcnt vmcnt(0)"):
        a = self.a
        C = a.newlabel('RC'); D = a.newlabel('RD')
        a(f"s_mov_b32 {s(S_CNT)}, 0")
        a(first_wait)
        a.label(C)
        check_fn()
        a("s_cmp_eq_u64 vcc, exec")
        a(f"s_cbranch_scc1 {D}")
        a(f"s_add_u32 {s(S_CNT)}, {s(S_CNT)}, 1")
        a(f"s_cmp_ge_u32 {s(S_CNT)}, {self.c.spin_limit}")
        a(f"s_cbranch_scc1 {D}")
        if sleep: a(f"s_sleep {sleep}")
        load_fn()
        a(wait)
        a(f"s_branch {C}")
        a.label(D)

    def poll_pipe(self, load_fn, check_fn, done_fn, nloads, stagger, first_issued=True):
        a = self.a
        L0 = a.newlabel('PP'); D0 = a.newlabel('PD'); D1 = a.newlabel('PD'); E = a.newlabel('PE')
        a(f"s_mov_b32 {s(S_CNT)}, 0")
        if stagger: a(f"s_sleep {stagger}")
        load_fn(1)
        a.label(L0)
        for k, D in ((0, D0), (1, D1)):
            a(f"s_waitcnt vmcnt({nloads})")
            check_fn(k)
            a("s_cmp_eq_u64 vcc, exec")
            a(f"s_cbranch_scc1 {D}")
            load_fn(k)
        a(f"s_add_u32 {s(S_CNT)}, {s(S_CNT)}, 1")
        a(f"s_cmp_lt_u32 {s(S_CNT)}, {self.c.spin_limit}")
        a(f"s_cbranch_scc1 {L0}")
        a("s_waitcnt vmcnt(0)")
        a.label(D0)
        done_fn(0)
        a(f"s_branch {E}")
        a.label(D1)
        done_fn(1)
        a.label(E)

    def acc_rows_addr(self, dst, base):
        a = self.a
        a(f"v_and_b32 {v(dst)}, 1, {v(V_G4)}")
        a(f"v_lshlrev_b32 {v(dst)}, 9, {v(dst)}")
        a(f"v_lshl_add_u32 {v(dst)}, {v(V_N16)}, 5, {v(dst)}")
        a(f"s_lshl_b32 {s(ST)}, {s(S_W)}, 10")
        a(f"s_add_u32 {s(ST)}, {s(ST)}, {base}")
        a(f"v_add_u32 {v(dst)}, {s(ST)}, {v(dst)}")
    def write_acc_rows(self, ACC, addr):
        for c in range(0, 8, 2):
            self.a(f"ds_write2_b32 {v(addr)}, {v(ACC+4*c)}, {v(ACC+4*c+4)} offset0:{c} offset1:{c+1}")

    def checksum4(self, Q, X, t, SEL1, SEL2):
        a = self.a
        for j in range(4):
            q = Q + 4*j
            a(f"v_bitop3_b32 {v(t+j)}, {v(q)}, {v(q+1)}, {v(q+2)} bitop3:0x96")
        for j in range(4):
            a(f"v_xor_b32 {v(t+j)}, {v(t+j)}, {v(Q+4*j+3)}")
        for r in (8, 4, 2, 1):
            for j in range(4):
                a(f"v_xor_b32_dpp {v(t+j)}, {v(t+j)}, {v(t+j)} row_ror:{r} row_mask:0xf bank_mask:0xf")
        a(f"v_cndmask_b32 {v(t)}, {v(t)}, {v(t+1)}, {s(SEL1,2)}")
        a(f"v_cndmask_b32 {v(t+2)}, {v(t+2)}, {v(t+3)}, {s(SEL1,2)}")
        a(f"v_cndmask_b32 {v(X)}, {v(t)}, {v(t+2)}, {s(SEL2,2)}")

    def prologue(self):
        a = self.a
        if self.c.stamps: a("s_memrealtime s[100:101]")
        a("s_cmp_ge_u32 s2, 256")
        a("s_cbranch_scc1 L_EXIT")
        a("s_load_dwordx16 s[16:31], s[0:1], 0")
        a("s_load_dwordx8 s[32:39], s[0:1], 64")
        a("s_load_dwordx4 s[40:43], s[0:1], 96")
        a("v_lshrrev_b32 v5, 6, v0")
        a(f"v_and_b32 {v(V_L)}, 63, v0")
        a(f"v_readfirstlane_b32 {s(S_W)}, v5")
        a(f"v_lshrrev_b32 {v(V_G4)}, 4, {v(V_L)}")
        a(f"v_and_b32 {v(V_N16)}, 15, {v(V_L)}")
        a(f"v_bfe_u32 {v(V_RS)}, {v(V_N16)}, 2, 1")
        a(f"s_and_b32 {s(ST+2)}, s2, 7")
        a(f"s_lshr_b32 {s(ST+3)}, s2, 3")
        if self.c.xsplit:
            a(f"s_lshr_b32 {s(S_TYPE)}, {s(ST+2)}, 2")
            a(f"s_and_b32 {s(ST+2)}, {s(ST+2)}, 3")
            a(f"s_lshl_b32 {s(S_J)}, {s(ST+2)}, 5")
            a(f"s_add_u32 {s(S_J)}, {s(S_J)}, {s(ST+3)}")
        else:
            a(f"s_and_b32 {s(S_TYPE)}, {s(ST+3)}, 1")
            a(f"s_lshr_b32 {s(ST+3)}, {s(ST+3)}, 1")
            a(f"s_lshl_b32 {s(S_J)}, {s(ST+2)}, 4")
            a(f"s_add_u32 {s(S_J)}, {s(S_J)}, {s(ST+3)}")
        a(f"s_lshr_b32 {s(S_H)}, {s(S_J)}, 2")
        a(f"s_and_b32 {s(S_RQ)}, {s(S_J)}, 3")
        a(f"s_cmp_eq_u32 {s(S_TYPE)}, 0")
        a(f"s_cselect_b32 s79, {self.c.hs}, {self.c.hsy}")
        a(f"s_mov_b32 {s(S_PLO)}, 0x05040100")
        a(f"s_mov_b32 {s(S_PHI)}, 0x07060302")
        a(f"s_mov_b32 {s(S_SC)}, {f32hex(SCALE_LOG2E)}")
        a(f"v_lshlrev_b32 v5, 15, {v(V_G4)}")
        a(f"v_lshl_add_u32 v5, {v(V_N16)}, 4, v5")
        a(f"v_mul_u32_u24 v6, 1152, {v(V_RS)}")
        a(f"v_lshl_add_u32 v6, {v(V_G4)}, 3, v6")
        a("s_waitcnt lgkmcnt(0)")
        a(f"s_load_dword {s(S_T)}, {s(P_WS0,2)}, {EPOCH}")
        a(f"s_mov_b64 {s(P_WS,2)}, {s(P_WS0,2)}")
        a(f"s_mov_b32 {s(SEL1)}, 0xaaaaaaaa"); a(f"s_mov_b32 {s(SEL1+1)}, 0xaaaaaaaa")
        a(f"s_mov_b32 {s(SEL2)}, 0xcccccccc"); a(f"s_mov_b32 {s(SEL2+1)}, 0xcccccccc")
        self.srd_sel(SRD_X, P_BX, P_AX, 2304, 2304)
        self.srd_sel(SRD_W, P_BWQ, P_AWQ, 4718592, 4718592)
        if self.c.stamps:
            a("v_mov_b32 v0, 0")
            a("v_writelane_b32 v0, s100, 31")
        self.stamp(0)

    def srds_rest(self):
        self.srd(SRD_WS, P_WS0, WS_SIZE)
        self.srd_sel(SRD_ST, P_AK, P_CKV, 67108864, 16777216)
        self.srd_sel(SRD_V, P_AV, P_WUV, 67108864, 4194304)
        self.srd(SRD_U, P_WUK, 4194304)
        self.srd_sel(SRD_WO, P_AWO, P_BWO, 4718592, 4718592)
        self.srd(SRD_OUT, P_OUT, 4608)

    XF, XF2, L1, L2, F1, ACC1 = 16, 18, 20, 36, 52, 68
    def p1_loads(self):
        a = self.a
        V_WQ, V_X = 5, 6
        def loads(u_const, XFr, Lr):
            t = ST
            a(f"s_mul_i32 {s(t)}, {s(S_RQ)}, 144")
            if u_const is not None:
                a(f"s_add_u32 {s(t)}, {s(t)}, {16*u_const}")
            else:
                a(f"s_lshl_b32 {s(t+1)}, {s(S_W)}, 4")
                a(f"s_add_u32 {s(t)}, {s(t)}, {s(t+1)}")
            a(f"s_lshl_b32 {s(t+1)}, {s(t)}, 1")
            a(f"buffer_load_dwordx2 {v(XFr,2)}, {v(V_X)}, {s(SRD_X,4)}, {s(t+1)} offen")
            a(f"s_lshl_b32 {s(t)}, {s(t)}, 13")
            self.hshift(t+1)
            a(f"s_lshl_b32 {s(t+1)}, {s(t+1)}, 8")
            a(f"s_add_u32 {s(t)}, {s(t)}, {s(t+1)}")
            for jr in range(4):
                a(f"buffer_load_dwordx4 {v(Lr+4*jr,4)}, {v(V_WQ)}, {s(SRD_W,4)}, {s(t)} offen{self.ntw()}")
                if jr < 3: a(f"s_add_u32 {s(t)}, {s(t)}, 8192")
        LX = a.newlabel('LX')
        a(f"s_cmp_lg_u32 {s(S_W)}, 0")
        a(f"s_cbranch_scc1 {LX}")
        loads(8, self.XF2, self.L2)
        a.label(LX)
        loads(None, self.XF, self.L1)

    def p1_compute(self, branch, nyoung, hook=None):
        a = self.a
        self.acc_rows_addr(7, R1)
        self.tid_shl(5, 2, R1)
        self.tid_shl(6, 3)
        a(f"s_lshl_b32 {s(ST+1)}, s79, 2")
        a(f"s_add_u32 {s(ST+1)}, {s(ST+1)}, {s(S_J)}")
        a(f"s_and_b32 {s(ST+1)}, {s(ST+1)}, 127")
        a(f"s_add_u32 {s(ST+1)}, {s(ST+1)}, {branch*128}")
        a(f"s_lshl_b32 {s(ST+1)}, {s(ST+1)}, 11")
        if Q1: a(f"s_add_u32 {s(ST+1)}, {s(ST+1)}, {Q1}")
        a(f"s_waitcnt vmcnt({nyoung})")
        self.stamp(1)
        if hook is not None:
            a("v_mov_b32 v250, v7"); a(f"s_mov_b32 s78, {s(ST+1)}")
            hook()
            a("v_mov_b32 v7, v250"); a(f"s_mov_b32 {s(ST+1)}, s78")
        self.half_perm(self.L1, self.F1)
        self.half_mfma(self.ACC1, self.XF, self.F1, True)
        LY = a.newlabel('LY')
        a(f"s_cmp_lg_u32 {s(S_W)}, 0")
        a(f"s_cbranch_scc1 {LY}")
        self.half_perm(self.L2, self.L1)
        self.half_mfma(self.ACC1, self.XF2, self.L1, False)
        a.label(LY)
        self.write_acc_rows(self.ACC1, 7)
        self.barrier()
        a(f"s_add_u32 {s(S_T)}, {s(S_T)}, 0x{TAGINC:08x}")
        LZ = a.newlabel('LZ')
        a(f"s_cmp_ge_u32 {s(S_W)}, 4")
        a(f"s_cbranch_scc1 {LZ}")
        for w in range(8):
            a(f"ds_read_b32 {v(20+w)}, v5 offset:{w*1024}")
        a(f"v_mov_b32 v29, {s(S_T)}")
        a("s_waitcnt lgkmcnt(0)")
        a("v_add_f32 v20, v20, v21"); a("v_add_f32 v22, v22, v23"); a("v_add_f32 v24, v24, v25"); a("v_add_f32 v26, v26, v27")
        a("v_add_f32 v20, v20, v22"); a("v_add_f32 v24, v24, v26")
        a("v_add_f32 v28, v20, v24")
        a(f"buffer_store_dwordx2 v[28:29], v6, {s(SRD_WS,4)}, {s(ST+1)} offen {SC}")
        a.label(LZ)
        self.stamp(2)

    def q_addr(self, own_head_both_batches, dst):
        a = self.a; t = dst
        if own_head_both_batches:
            a(f"s_add_u32 {s(t)}, {s(S_H)}, 32")
            a(f"s_lshr_b32 {s(t+1)}, {s(S_W)}, 2")
        else:
            a(f"s_lshr_b32 {s(t)}, {s(S_J)}, 3")
            a(f"s_lshl_b32 {s(t)}, {s(t)}, 1")
            a(f"s_lshr_b32 {s(t+1)}, {s(S_W)}, 2")
            a(f"s_add_u32 {s(t)}, {s(t)}, {s(t+1)}")
            a(f"s_bfe_u32 {s(t+1)}, {s(S_J)}, 0x10002")
        a(f"s_lshl_b32 {s(t)}, {s(t)}, 3")
        a(f"s_add_u32 {s(t)}, {s(t)}, {s(t+1)}")
        a(f"s_and_b32 {s(t+1)}, {s(S_W)}, 3")
        a(f"s_lshl_b32 {s(t+1)}, {s(t+1)}, 1")
        a(f"s_add_u32 {s(t)}, {s(t)}, {s(t+1)}")
        a(f"s_lshl_b32 {s(t)}, {s(t)}, 10")
        if Q1: a(f"s_add_u32 {s(t)}, {s(t)}, {Q1}")

    def q_poll(self, t):
        a = self.a
        a(f"s_add_u32 {s(t+1)}, {s(t)}, {127*8}")
        self.spin_scalar(lambda: a(f"s_load_dwordx2 {s(S_PB,2)}, {s(P_WS,2)}, {s(t+1)} glc"),
                         lambda: a(f"s_cmp_eq_u32 {s(S_PB+1)}, {s(S_T)}"))
    def q_load(self, t, G):
        a = self.a
        a(f"v_lshlrev_b32 v5, 4, {v(V_L)}")
        a(f"buffer_load_dwordx4 {v(G,4)}, v5, {s(SRD_WS,4)}, {s(t)} offen {SC}")
    def q_finish(self, t, G, nafter, st_data=None):
        a = self.a
        a(f"s_lshl_b32 {s(ST)}, {s(S_W)}, 9")
        a(f"s_add_u32 {s(ST)}, {s(ST)}, {R2}")
        a(f"v_lshlrev_b32 v6, 3, {v(V_L)}")
        a(f"v_add_u32 v6, {s(ST)}, v6")
        def chk():
            a(f"v_cmp_eq_u32 vcc, {s(S_T)}, {v(G+1)}")
            a(f"v_cmp_eq_u32 {s(S_PB,2)}, {s(S_T)}, {v(G+3)}")
            a(f"s_and_b64 vcc, vcc, {s(S_PB,2)}")
        self.retry_vec(lambda: self.q_load(t, G), chk, f"s_waitcnt vmcnt({nafter})")
        if st_data is not None: self.stamp(st_data)
        a(f"ds_write2_b32 v6, {v(G)}, {v(G+2)} offset0:0 offset1:1")
        LQ = a.newlabel('LQ')
        a(f"s_lshl_b32 {s(ST)}, {s(S_W)}, 11")
        a(f"s_add_u32 {s(ST)}, {s(ST)}, {R2}")
        a(f"v_lshlrev_b32 v5, 3, {v(V_L)}")
        a(f"v_add_u32 v5, {s(ST)}, v5")
        a(f"s_lshl_b32 {s(ST)}, {s(S_W)}, 8")
        a(f"s_add_u32 {s(ST)}, {s(ST)}, {QL}")
        a(f"v_lshlrev_b32 v6, 2, {v(V_L)}")
        a(f"v_add_u32 v6, {s(ST)}, v6")
        self.barrier()
        a(f"s_cmp_ge_u32 {s(S_W)}, 2")
        a(f"s_cbranch_scc1 {LQ}")
        for r in range(4):
            a(f"ds_read_b64 {v(8+2*r,2)}, v5 offset:{r*512}")
        a("s_waitcnt lgkmcnt(0)")
        a("v_add_f32 v8, v8, v10"); a("v_add_f32 v9, v9, v11"); a("v_add_f32 v12, v12, v14"); a("v_add_f32 v13, v13, v15")
        a("v_add_f32 v8, v8, v12"); a("v_add_f32 v9, v9, v13")
        a("v_cvt_pk_bf16_f32 v8, v8, v9")
        a("ds_write_b32 v6, v8")
        a.label(LQ)
        a(f"v_lshlrev_b32 v5, 8, {v(V_RS)}")
        a(f"v_lshl_add_u32 v5, {v(V_G4)}, 4, v5")
        a(f"v_add_u32 v5, {QL}, v5")
        self.barrier()
    def q_gather(self, t, G, after_issue, nafter, st_poll=None, st_data=None):
        self.q_poll(t)
        if st_poll is not None: self.stamp(st_poll)
        self.q_load(t, G)
        after_issue()
        self.q_finish(t, G, nafter, st_data)

    def read_q_frags(self, QF):
        for i in range(4):
            self.a(f"ds_read_b128 {v(QF+4*i,4)}, v5 offset:{i*64}")

    def wo_dma_addr(self, A):
        a = self.a
        for i in range(5):
            a(f"v_add_u32 {v(A+i)}, {64*i}, {v(V_L)}")
            a(f"v_mul_u32_u24 v5, 3641, {v(A+i)}")
            a(f"v_lshrrev_b32 v5, 16, v5")
            a(f"v_lshlrev_b32 {v(A+i)}, 4, {v(A+i)}")
            a(f"v_mul_u32_u24 v5, 864, v5")
            a(f"v_add_u32 {v(A+i)}, {v(A+i)}, v5")
    def wo_dma(self, SRD, A, base, RS, which=range(5)):
        a = self.a; t = ST
        self.hshift5(t)
        a(f"s_lshl_b32 {s(t)}, {s(t)}, 7")
        a(f"s_lshl_b32 {s(t+1)}, {s(S_W)}, 4")
        a(f"s_add_u32 {s(t)}, {s(t)}, {s(t+1)}")
        a(f"s_mul_i32 {s(t)}, {s(t)}, 1152")
        a(f"s_mul_i32 {s(t+1)}, {s(S_RQ)}, 288")
        a(f"s_add_u32 {s(t)}, {s(t)}, {s(t+1)}")
        a(f"s_mul_i32 {s(t+1)}, {s(S_W)}, {RS}")
        for i in which:
            a(f"s_add_u32 m0, {s(t+1)}, {base + i*1024}")
            if i == 4: self.set_exec(0xffffffff)
            a(f"buffer_load_dwordx4 {v(A+i)}, {s(SRD,4)}, {s(t)} offen{' nt' if self.c.ntwo else ''} lds")
        self.set_exec(-1)
    def wo_frags(self, WF, WFX, base, RS):
        a = self.a; t = ST
        a(f"v_lshrrev_b32 v5, 1, {v(V_G4)}")
        a(f"v_mul_u32_u24 v5, {RS}, v5")
        a(f"v_and_b32 v6, 1, {v(V_G4)}")
        a(f"v_lshlrev_b32 v6, 3, v6")
        a(f"v_lshrrev_b32 v7, 2, {v(V_N16)}")
        a(f"v_add_u32 v6, v6, v7")
        a(f"v_mul_u32_u24 v6, 288, v6")
        a(f"v_add_u32 v5, v5, v6")
        a(f"v_and_b32 v6, 3, {v(V_N16)}")
        a(f"v_lshl_add_u32 v5, v6, 3, v5")
        a(f"s_lshl_b32 {s(t)}, {s(S_W)}, 5")
        a(f"s_add_u32 {s(t)}, {s(t)}, {base}")
        a(f"v_add_u32 v5, {s(t)}, v5")
        a(f"v_add_u32 v6, {4*RS}, v5")
        def reads(W, extra):
            for ks in range(4):
                for hf in range(2):
                    ad = 5 if ks < 2 else 6
                    a(f"ds_read_b64_tr_b16 {v(W+4*ks+2*hf,2)}, {v(ad)} offset:{(ks&1)*2*RS + hf*1152 + extra}")
        reads(WF, 0)
        LX = a.newlabel('WX')
        a(f"s_cmp_lg_u32 {s(S_W)}, 0")
        a(f"s_cbranch_scc1 {LX}")
        reads(WFX, 256)
        a.label(LX)
    def afrag_addr(self, dst, base):
        a = self.a
        a(f"v_and_b32 {v(dst)}, 1, {v(V_N16)}")
        a(f"v_lshlrev_b32 {v(dst)}, 8, {v(dst)}")
        a(f"v_lshl_add_u32 {v(dst)}, {v(V_G4)}, 4, {v(dst)}")
        a(f"v_add_u32 {v(dst)}, {base}, {v(dst)}")
    def afrag_reads(self, AF, addr):
        for ks in range(4):
            self.a(f"ds_read_b128 {v(AF+4*ks,4)}, {v(addr)} offset:{ks*64}")
    def chain4(self, D, AF, WF):
        for ks in range(4):
            cin = '0' if ks == 0 else v(D,4)
            self.a(f"v_mfma_f32_16x16x32_bf16 {v(D,4)}, {v(AF+4*ks,4)}, {v(WF+4*ks,4)}, {cin}")
    def pack_pair(self, D, x0, x1, t0, t1):
        a = self.a
        a(f"v_mov_b32_dpp {v(t0)}, {v(D)} quad_perm:[1,0,3,2] row_mask:0xf bank_mask:0xf")
        a(f"v_mov_b32_dpp {v(t1)}, {v(D+1)} quad_perm:[1,0,3,2] row_mask:0xf bank_mask:0xf")
        a(f"v_cndmask_b32 {v(x0)}, {v(D)}, {v(t1)}, {s(SEL1,2)}")
        a(f"v_cndmask_b32 {v(x1)}, {v(t0)}, {v(D+1)}, {s(SEL1,2)}")

    WUK = 100
    def x_roles(self):
        a = self.a
        a(f"s_lshr_b32 {s(S_G)}, {s(S_J)}, 3")
        a(f"s_bfe_u32 {s(S_B)}, {s(S_J)}, 0x10002")
        a(f"s_and_b32 {s(S_S)}, {s(S_J)}, 3")
        t = ST + 8
        a(f"s_lshl_b32 {s(t)}, {s(S_B)}, 4")
        a(f"s_add_u32 {s(t)}, {s(t)}, {s(S_G)}")
        a(f"s_lshl_b32 {s(t)}, {s(t)}, 13")
        a(f"s_lshl_b32 {s(t+1)}, {s(S_S)}, 9")
        a(f"s_add_u32 {s(t)}, {s(t)}, {s(t+1)}")
        a(f"s_add_u32 {s(t)}, {s(t)}, 6144")
        a(f"s_lshl_b32 {s(t)}, {s(t)}, 8")
        a(f"s_lshl_b32 {s(t+1)}, {s(S_W)}, 14")
        a(f"s_add_u32 {s(S_BASE)}, {s(t)}, {s(t+1)}")
    def x_wuk_loads(self):
        a = self.a; t = ST
        a(f"v_lshlrev_b32 v7, 13, {v(V_N16)}")
        a(f"v_lshl_add_u32 v7, {v(V_G4)}, 4, v7")
        a(f"s_lshl_b32 {s(t)}, {s(S_RQ)}, 7")
        a(f"s_lshl_b32 {s(t+1)}, {s(S_W)}, 4")
        a(f"s_add_u32 {s(t)}, {s(t)}, {s(t+1)}")
        a(f"s_lshl_b32 {s(t)}, {s(t)}, 13")
        a(f"s_lshl_b32 {s(t+1)}, {s(S_H)}, 8")
        a(f"s_add_u32 {s(t)}, {s(t)}, {s(t+1)}")
        for i in range(4):
            a(f"buffer_load_dwordx4 {v(self.WUK+4*i,4)}, v7, {s(SRD_U,4)}, {s(t)} offen offset:{i*64}{' nt' if self.c.ntuk else ''}")
    def x_kdma(self, kk0, kk1):
        a = self.a; t = ST
        if kk0 >= kk1: return
        a(f"v_xor_b32 v248, {v(V_N16)}, {v(V_G4)}")
        a(f"v_lshlrev_b32 v248, 4, v248")
        a(f"v_lshl_add_u32 v248, {v(V_G4)}, 8, v248")
        for k in range(1, 4):
            a(f"v_xor_b32 {v(248+k)}, {k<<6}, v248")
        a(f"s_lshl_b32 {s(t)}, {s(S_W)}, 14")
        for kk in range(kk0, kk1):
            a(f"s_add_u32 m0, {s(t)}, {IMG + kk*4096}")
            a(f"s_add_u32 {s(t+1)}, {s(S_BASE)}, {kk*4096}")
            for k in range(4):
                if self.c.xwin: a(f"s_waitcnt vmcnt({self.c.xwin-1})")
                a(f"buffer_load_dwordx4 {v(248+k)}, {s(SRD_ST,4)}, {s(t+1)} offen offset:{k*1024}{self.nts()} lds")

    def x_main(self):
        a = self.a; t = ST; c = self.c
        self.x_roles()
        if c.touch:
            a(f"s_load_dword s68, {s(P_AK,2)}, {s(S_BASE)}")
            a(f"s_load_dword s69, {s(P_AV,2)}, {s(S_BASE)}")
            self.hshift5(ST)
            a(f"s_mul_i32 {s(ST)}, {s(ST)}, {128*1152}")
            a(f"s_load_dword s70, {s(P_AWO,2)}, {s(ST)}")
            a(f"s_mov_b32 {s(ST+1)}, {OUTP}")
            a(f"s_load_dword s71, {s(P_WS,2)}, {s(ST+1)}")
        a("s_barrier")
        if not c.wuk_late: self.x_wuk_loads()
        self.x_kdma(0, c.n1_k)
        self.q_addr(True, ST+4)
        if c.wuk_late:
            self.p1_compute(1, 4*c.n1_k, hook=self.x_wuk_loads)
        else:
            self.p1_compute(1, 4 + 4*c.n1_k)
        self.x_kdma(c.n1_k, c.n1_k + c.n2_k)
        kdone = c.n1_k + c.n2_k
        GA = 240
        if c.early_qa:
            self.q_addr(False, ST+6)
            def aft():
                self.q_load(ST+6, GA)
                self.x_kdma(kdone, kdone + c.n4_k)
            self.q_gather(ST+4, 8, aft, 1 + 4*c.n4_k, 14, 15)
            kb = kdone
            kdone += c.n4_k
        else:
            self.q_gather(ST+4, 8, lambda: None, 0, 14, 15)
        self.stamp(3)
        QF = 16
        self.read_q_frags(QF)
        a(f"v_and_b32 v5, 1, {v(V_G4)}")
        a(f"v_lshlrev_b32 v6, 8, v5")
        a(f"v_lshl_add_u32 v7, {v(V_N16)}, 4, v6")
        a(f"v_add_u32 v7, {QAL}, v7")
        a(f"v_lshl_add_u32 v6, {v(V_N16)}, 1, v6")
        a(f"s_lshl_b32 {s(t)}, {s(S_W)}, 5")
        a(f"s_add_u32 {s(t)}, {s(t)}, {QAL}")
        a(f"v_add_u32 v6, {s(t)}, v6")
        a(f"v_lshlrev_b32 v14, 15, v5")
        a(f"v_lshl_add_u32 v14, {v(V_N16)}, 4, v14")
        a(f"v_lshlrev_b32 v15, 10, v5")
        a(f"v_lshl_add_u32 v15, {v(V_N16)}, 11, v15")
        a(f"s_lshl_b32 {s(t)}, {s(S_J)}, 8")
        a(f"s_add_u32 {s(t)}, {s(t)}, {QABS}")
        a(f"s_lshl_b32 {s(t+1)}, {s(S_J)}, 3")
        a(f"s_add_u32 {s(t+1)}, {s(t+1)}, {QM}")
        a("s_waitcnt lgkmcnt(0)")
        AQ = 32
        for i in range(4):
            cin = '0' if i == 0 else v(AQ,4)
            a(f"v_mfma_f32_16x16x32_bf16 {v(AQ,4)}, {v(QF+4*i,4)}, {v(self.WUK+4*i,4)}, {cin}")
        a(f"v_cvt_pk_bf16_f32 v8, {v(AQ)}, {v(AQ)}")
        a(f"ds_write_b16 v6, v8")
        self.barrier()
        LP = a.newlabel('BP')
        a(f"s_cmp_lg_u32 {s(S_W)}, 0")
        a(f"s_cbranch_scc1 {LP}")
        a(f"ds_read_b128 v[8:11], v7")
        a(f"v_mov_b32 v13, {s(S_T)}")
        a("s_waitcnt lgkmcnt(0)")
        self.set_exec(0xffffffff)
        a(f"buffer_store_dwordx4 v[8:11], v14, {s(SRD_WS,4)}, {s(t)} offen {SC}")
        self.set_exec(-1)
        a("v_bitop3_b32 v12, v8, v9, v10 bitop3:0x96"); a("v_xor_b32 v12, v12, v11")
        self.inrow('v_xor_b32', 12)
        self.set_exec(0x00ff00ff)
        a(f"buffer_store_dwordx2 v[12:13], v15, {s(SRD_WS,4)}, {s(t+1)} offen {SC}")
        self.set_exec(-1)
        a.label(LP)
        a("s_barrier")
        self.stamp(17)
        KF, S, VL, F, ACC = 32, 64, 96, 192, 224
        WA = 160
        k3 = min(4, kdone + c.n3_k)
        if c.early_qa:
            kx = max(kdone, c.kx)
            self.x_kdma(kdone, kx)
            self.q_finish(ST+6, GA, 4*(kx-kb), 18)
            self.stamp(9)
            self.read_q_frags(QF)
            self.x_kdma(kx, 4)
        else:
            self.x_kdma(kdone, k3)
            self.q_addr(False, ST+4)
            ka = min(4, k3 + c.k_after)
            self.q_gather(ST+4, 8, lambda: self.x_kdma(k3, ka), 4*(ka-k3), None, 18)
            self.stamp(9)
            self.read_q_frags(QF)
            self.x_kdma(ka, 4)
        a(f"v_lshlrev_b32 v6, 10, {v(V_G4)}")
        a(f"v_lshl_add_u32 v6, {v(V_N16)}, 4, v6")
        for u in range(2):
            for j in range(8):
                if j % 4 == 0:
                    a(f"s_add_u32 {s(t)}, {s(S_BASE)}, {(32*u + 16*(j>>2))*256}")
                if c.xwin and (c.xwinv or u == 0): a(f"s_waitcnt vmcnt({c.xwin-1})")
                a(f"buffer_load_dwordx4 {v(VL + 32*u + 4*j,4)}, v6, {s(SRD_V,4)}, {s(t)} offen offset:{(j&3)*256}{self.nts()}")
        self.wo_dma_addr(WA)
        a("s_waitcnt vmcnt(16)")
        a(f"v_xor_b32 v5, {v(V_N16)}, {v(V_G4)}")
        a(f"v_lshlrev_b32 v5, 4, v5")
        a(f"v_lshl_add_u32 v5, {v(V_N16)}, 8, v5")
        a(f"s_lshl_b32 {s(t)}, {s(S_W)}, 14")
        a(f"v_add_u32 v5, {s(t)}, v5")
        for i in range(1, 4):
            a(f"v_xor_b32 {v(5+i)}, {i<<6}, v5")
        def kread(tt, dst):
            for i in range(4):
                a(f"ds_read_b128 {v(dst+4*i,4)}, {v(5+i)} offset:{IMG + tt*4096}")
        kread(0, KF); kread(1, KF+16)
        for tt in range(4):
            cur = KF + 16*(tt & 1)
            a(f"s_waitcnt lgkmcnt({4 if tt < 3 else 0})")
            for i in range(4):
                cin = '0' if i == 0 else v(S+4*tt,4)
                a(f"v_mfma_f32_16x16x32_bf16 {v(S+4*tt,4)}, {v(cur+4*i,4)}, {v(QF+4*i,4)}, {cin}")
            if tt + 2 < 4:
                kread(tt+2, cur)
        self.wo_dma(SRD_WO, WA, IMG, 16384)
        M, Lsum, T1 = 10, 11, 12
        a(f"v_max3_f32 {v(M)}, {v(S)}, {v(S+1)}, {v(S+2)}")
        for r in range(3, 15, 2):
            a(f"v_max3_f32 {v(M)}, {v(M)}, {v(S+r)}, {v(S+r+1)}")
        a(f"v_max_f32 {v(M)}, {v(M)}, {v(S+15)}")
        self.xrow('v_max_f32', M, T1)
        a(f"v_mul_f32 {v(M)}, {s(S_SC)}, {v(M)}")
        for r in range(16):
            a(f"v_fma_f32 {v(S+r)}, {v(S+r)}, {s(S_SC)}, -{v(M)}")
        for r in range(16):
            a(f"v_exp_f32 {v(S+r)}, {v(S+r)}")
        PF = 32
        for u in range(2):
            for q in range(4):
                a(f"v_cvt_pk_bf16_f32 {v(PF+4*u+q)}, {v(S+8*u+2*q)}, {v(S+8*u+2*q+1)}")
        for r in range(0, 16, 2):
            a(f"v_add_f32 {v(S+r)}, {v(S+r)}, {v(S+r+1)}")
        for r in range(0, 16, 4):
            a(f"v_add_f32 {v(S+r)}, {v(S+r)}, {v(S+r+2)}")
        a(f"v_add_f32 {v(S)}, {v(S)}, {v(S+4)}"); a(f"v_add_f32 {v(S+8)}, {v(S+8)}, {v(S+12)}")
        a(f"v_add_f32 {v(Lsum)}, {v(S)}, {v(S+8)}")
        self.xrow('v_add_f32', Lsum, T1)
        a(f"s_lshl_b32 {s(t)}, {s(S_W)}, 4")
        a(f"s_add_u32 {s(t)}, {s(t)}, {ML}")
        a(f"v_lshlrev_b32 v5, 3, {v(V_RS)}")
        a(f"v_add_u32 v5, {s(t)}, v5")
        a(f"ds_write_b64 v5, {v(M,2)}")
        self.acc_rows_addr(7, OW)
        a(f"s_and_b32 {s(t)}, {s(S_W)}, 1")
        a(f"s_lshl_b32 {s(t+1)}, {s(t)}, 9")
        a(f"s_add_u32 {s(t+1)}, {s(t+1)}, {OW}")
        a(f"v_lshl_add_u32 v5, {v(V_L)}, 3, {s(t+1)}")
        a(f"s_lshl_b32 {s(t+1)}, {s(t)}, 3")
        a(f"s_add_u32 {s(t+1)}, {s(t+1)}, {ML}")
        a(f"v_mov_b32 v6, {s(t+1)}")
        a(f"s_lshl_b32 {s(t+2)}, {s(S_G)}, 1")
        a(f"s_add_u32 {s(t+2)}, {s(t+2)}, {s(t)}")
        a(f"s_lshl_b32 {s(t+3)}, {s(t+2)}, 2")
        a(f"s_add_u32 {s(t+3)}, {s(t+3)}, {s(S_S)}")
        a(f"s_lshl_b32 {s(t+3)}, {s(t+3)}, 1")
        a(f"s_add_u32 {s(t+3)}, {s(t+3)}, {s(S_B)}")
        a(f"s_lshl_b32 {s(t+3)}, {s(t+3)}, 10")
        a(f"s_add_u32 {s(t+3)}, {s(t+3)}, {OP}")
        a(f"v_lshlrev_b32 v8, 4, {v(V_L)}")
        self.stamp(4)
        for u in range(2):
            a(f"s_waitcnt vmcnt({(8 if u == 0 else 0) + 5})")
            self.full_perm(VL+32*u, F)
            for cc in range(8):
                cin = '0' if u == 0 else v(ACC+4*cc,4)
                a(f"v_mfma_f32_16x16x32_bf16 {v(ACC+4*cc,4)}, {v(PF+4*u,4)}, {v(F+4*cc,4)}, {cin}")
        self.stamp(5)
        self.write_acc_rows(ACC, 7)
        self.barrier()
        LZ = a.newlabel('AZ')
        a(f"s_cmp_ge_u32 {s(S_W)}, 2")
        a(f"s_cbranch_scc1 {LZ}")
        for w in range(8):
            a(f"ds_read_b64 {v(32+2*w,2)}, v6 offset:{w*16}")
        for w in range(8):
            a(f"ds_read_b64 {v(48+2*w,2)}, v5 offset:{w*1024}")
        a(f"v_mov_b32 v19, {s(S_T)}")
        a("s_waitcnt lgkmcnt(8)")
        a("v_max3_f32 v20, v32, v34, v36"); a("v_max3_f32 v20, v20, v38, v40"); a("v_max3_f32 v20, v20, v42, v44"); a("v_max_f32 v20, v20, v46")
        for w in range(8):
            a(f"v_sub_f32 {v(32+2*w)}, {v(32+2*w)}, v20")
        for w in range(8):
            a(f"v_exp_f32 {v(32+2*w)}, {v(32+2*w)}")
        a("v_mul_f32 v21, v33, v32")
        for w in range(1, 8):
            a(f"v_fmac_f32 v21, {v(33+2*w)}, {v(32+2*w)}")
        a(f"v_cndmask_b32 v18, v20, v21, {s(SEL1,2)}")
        a("s_waitcnt lgkmcnt(0)")
        a("v_mul_f32 v16, v48, v32"); a("v_mul_f32 v17, v49, v32")
        for w in range(1, 8):
            a(f"v_fmac_f32 v16, {v(48+2*w)}, {v(32+2*w)}")
            a(f"v_fmac_f32 v17, {v(49+2*w)}, {v(32+2*w)}")
        a(f"buffer_store_dwordx4 v[16:19], v8, {s(SRD_WS,4)}, {s(t+3)} offen {SC}")
        self.stamp(6)
        a("s_waitcnt vmcnt(1)")
        LZ2 = a.newlabel('AZ')
        a(f"s_branch {LZ2}")
        a.label(LZ)
        a("s_waitcnt vmcnt(0)")
        a.label(LZ2)
        a("s_barrier")
        self.p5(0, IMG, 16384, 11, 12)
        self.final_reduce(0)

    def final_reduce(self, branch):
        a = self.a; t = ST
        a(f"s_cmp_ge_u32 {s(S_J)}, 72")
        a("s_cbranch_scc1 L_END")
        a(f"s_cmp_lg_u32 {s(S_W)}, 0")
        a("s_cbranch_scc1 L_END")
        a(f"s_lshl_b32 {s(t+4)}, {s(S_J)}, 12")
        a(f"s_add_u32 {s(t+4)}, {s(t+4)}, {OUTP + branch*72*4096}")
        a(f"s_cmp_ge_u32 {s(S_J)}, 36")
        a(f"s_cselect_b32 {s(t+2)}, {2304 - 36*32}, 0")
        a(f"s_lshl_b32 {s(t+3)}, {s(S_J)}, 5")
        a(f"s_add_u32 {s(t+2)}, {s(t+2)}, {s(t+3)}")
        a(f"s_add_u32 {s(t+8)}, {s(t+2)}, {branch*1152}")
        a(f"v_lshlrev_b32 v5, 4, {v(V_L)}")
        a(f"v_lshlrev_b32 v6, 2, {v(V_L)}")
        def ldf(st=0):
            for k in range(4):
                a(f"buffer_load_dwordx4 {v(16+16*st+4*k,4)}, v5, {s(SRD_WS,4)}, {s(t+4)} offen offset:{k*1024} {SC}")
        def chkf(st=0):
            b = 16*st
            a(f"v_xor_b32 v8, {s(S_T)}, {v(17+b)}")
            for r in (19, 21, 23, 25, 27, 29, 31):
                a(f"v_bitop3_b32 v8, {v(r+b)}, {s(S_T)}, v8 bitop3:0xbe")
            a(f"v_cmp_eq_u32 vcc, 0, v8")
        def donef(st):
            b = 16*st
            a(f"v_add_f32 v10, {v(16+b)}, {v(20+b)}"); a(f"v_add_f32 v11, {v(24+b)}, {v(28+b)}"); a(f"v_add_f32 v12, {v(18+b)}, {v(22+b)}"); a(f"v_add_f32 v13, {v(26+b)}, {v(30+b)}")
            a("v_add_f32 v14, v10, v11"); a("v_add_f32 v15, v12, v13")
        ldf()
        if self.c.pipe5:
            self.poll_pipe(ldf, chkf, donef, 4, self.c.stag5)
        else:
            if self.c.stamps:
                a("s_waitcnt vmcnt(0)")
                self.stamp(16)
            self.retry_vec(ldf, chkf, "s_waitcnt vmcnt(0)", sleep=self.c.sleep5)
            a("v_add_f32 v16, v16, v20"); a("v_add_f32 v24, v24, v28"); a("v_add_f32 v17, v18, v22"); a("v_add_f32 v26, v26, v30")
            a("v_add_f32 v14, v16, v24"); a("v_add_f32 v15, v17, v26")
        self.stamp_cnt(20)
        self.stamp(19)
        a("v_add_f32_dpp v14, v14, v14 row_ror:8 row_mask:0xf bank_mask:0xf")
        a("v_add_f32_dpp v15, v15, v15 row_ror:8 row_mask:0xf bank_mask:0xf")
        self.xrow_multi('v_add_f32', [14, 15], [8, 9])
        a("v_cvt_pk_bf16_f32 v14, v14, v15")
        self.set_exec(0xff)
        a(f"buffer_store_dword v14, v6, {s(SRD_OUT,4)}, {s(t+8)} offen")
        if branch == 0:
            LE = a.newlabel('EP')
            a(f"s_cmp_lg_u32 {s(S_J)}, 0")
            a(f"s_cbranch_scc1 {LE}")
            a(f"v_mov_b32 v5, {EPOCH}")
            a(f"v_mov_b32 v6, {s(S_T)}")
            self.set_exec(1)
            a(f"buffer_store_dword v6, v5, {s(SRD_WS,4)}, 0 offen {SC}")
            a.label(LE)
        self.set_exec(-1)
        self.stamp(13)
        a("s_waitcnt vmcnt(0)")
        a("s_branch L_END")

    def y_roles(self):
        a = self.a
        a(f"s_lshr_b32 {s(S_B)}, {s(S_J)}, 6")
        a(f"s_and_b32 {s(S_S)}, {s(S_J)}, 63")
        t = ST + 8
        a(f"s_lshl_b32 {s(t)}, {s(S_J)}, 17")
        a(f"s_lshl_b32 {s(t+1)}, {s(S_W)}, 14")
        a(f"s_add_u32 {s(S_BASE)}, {s(t)}, {s(t+1)}")
    def ckv_dma(self, k0, k1):
        a = self.a; t = ST
        if k0 >= k1: return
        a(f"v_lshlrev_b32 v248, 4, {v(V_L)}")
        a(f"s_lshl_b32 {s(t)}, {s(S_W)}, 14")
        for k in range(k0, k1):
            f = ((k & 3) << 2) | ((k >> 2) & 3)
            a(f"v_xor_b32 v249, {f<<4}, v248")
            a(f"s_add_u32 m0, {s(t)}, {IMG + k*1024}")
            a(f"s_add_u32 {s(t+1)}, {s(S_BASE)}, {k*1024}")
            a(f"buffer_load_dwordx4 v249, {s(SRD_ST,4)}, {s(t+1)} offen{self.nts()} lds")

    def y_main(self):
        a = self.a; t = ST; c = self.c
        self.y_roles()
        if c.touch:
            a(f"s_lshl_b32 {s(ST)}, {s(S_RQ)}, 20")
            a(f"s_load_dword s68, {s(P_WUV,2)}, {s(ST)}")
            self.hshift5(ST)
            a(f"s_mul_i32 {s(ST)}, {s(ST)}, {128*1152}")
            a(f"s_load_dword s69, {s(P_BWO,2)}, {s(ST)}")
            for r, off in ((70, BPART), (71, BPART + 0x200000), (72, OUTP)):
                a(f"s_mov_b32 s73, {off}")
                a(f"s_load_dword s{r}, {s(P_WS,2)}, s73")
        a("s_barrier")
        self.ckv_dma(0, c.n1_ckv)
        self.p1_compute(0, c.n1_ckv)
        self.ckv_dma(c.n1_ckv, 16)
        GQ, GM = 16, 32
        a(f"s_lshl_b32 {s(t)}, {s(S_B)}, 10")
        a(f"s_lshl_b32 {s(t+1)}, {s(S_W)}, 7")
        a(f"s_add_u32 {s(t)}, {s(t)}, {s(t+1)}")
        a(f"s_and_b32 {s(t+1)}, {s(S_S)}, 7")
        a(f"s_lshl_b32 {s(t+1)}, {s(t+1)}, 11")
        a(f"s_add_u32 {s(t)}, {s(t)}, {s(t+1)}")
        a(f"s_add_u32 {s(t+5)}, {s(t)}, {QM}")
        a(f"s_lshl_b32 {s(t+4)}, {s(S_B)}, 15")
        a(f"s_lshl_b32 {s(t+1)}, {s(S_W)}, 12")
        a(f"s_add_u32 {s(t+4)}, {s(t+4)}, {s(t+1)}")
        a(f"s_add_u32 {s(t+4)}, {s(t+4)}, {QABS}")
        def e2ld():
            a(f"s_load_dwordx16 {s(S_PB,16)}, {s(P_WS,2)}, {s(t+5)} glc")
            a(f"s_load_dwordx16 {s(S_PB+16,16)}, {s(P_WS,2)}, {s(t+1)} glc")
        def okf():
            self.s_alltags([S_PB+2*i+1 for i in range(16)], t+2, t+3)
        a(f"s_add_u32 {s(t+1)}, {s(t+5)}, 64")
        self.spin_scalar(e2ld, okf)
        self.stamp(17)
        def ldq(first=False):
            fl = (self.c.qabs_first if first else SC)
            a(f"v_lshlrev_b32 v5, 4, {v(V_L)}")
            for j in range(4):
                a(f"buffer_load_dwordx4 {v(GQ+4*j,4)}, v5, {s(SRD_WS,4)}, {s(t+4)} offen offset:{j*1024} {fl}")
            a(f"v_and_b32 v6, 3, {v(V_N16)}")
            a(f"v_lshlrev_b32 v6, 5, v6")
            a(f"v_lshl_add_u32 v6, {v(V_G4)}, 3, v6")
            a(f"buffer_load_dwordx2 {v(GM,2)}, v6, {s(SRD_WS,4)}, {s(t+5)} offen {SC}")
        ldq(True)
        AFS, AFP, BFR = 64, 128, 224
        N32, HI = 8, 9
        a(f"v_and_b32 {v(N32)}, 31, {v(V_L)}")
        a(f"v_lshrrev_b32 {v(HI)}, 5, {v(V_L)}")
        KT, CH = t+6, t+7
        a(f"s_and_b32 {s(KT)}, {s(S_W)}, 3")
        a(f"s_lshr_b32 {s(CH)}, {s(S_W)}, 2")
        a(f"v_and_b32 v5, 3, {v(N32)}")
        a(f"v_lshlrev_b32 v5, 2, v5")
        a(f"v_bfe_u32 v6, {v(N32)}, 2, 2")
        a(f"v_or_b32 v5, v5, v6")
        a(f"v_xor_b32 v5, v5, {v(HI)}")
        a(f"v_lshlrev_b32 v5, 4, v5")
        a(f"v_lshl_add_u32 v5, {v(N32)}, 10, v5")
        a(f"s_lshl_b32 {s(t+2)}, {s(KT)}, 15")
        a(f"s_lshl_b32 {s(t+3)}, {s(CH)}, 9")
        a(f"s_add_u32 {s(t+2)}, {s(t+2)}, {s(t+3)}")
        a(f"v_add_u32 v56, {s(t+2)}, v5")
        for i in range(1, 8): a(f"v_xor_b32 {v(56+i)}, {i*32}, v56")
        a(f"v_lshrrev_b32 v5, 2, {v(V_N16)}")
        a(f"v_lshlrev_b32 v6, 2, v5")
        a(f"v_or_b32 v6, v6, {v(HI)}")
        a(f"v_and_b32 v7, 1, {v(V_G4)}")
        a(f"v_lshlrev_b32 v7, 1, v7")
        a(f"v_bfe_u32 v13, {v(V_N16)}, 1, 1")
        a(f"v_or_b32 v7, v7, v13")
        a(f"s_and_b32 {s(t+2)}, {s(S_W)}, 1")
        a(f"s_lshl_b32 {s(t+2)}, {s(t+2)}, 3")
        a(f"v_or_b32 v7, {s(t+2)}, v7")
        a(f"v_xor_b32 v6, v6, v7")
        a(f"v_lshlrev_b32 v6, 4, v6")
        a(f"v_and_b32 v7, 1, {v(V_N16)}")
        a(f"v_lshl_add_u32 v6, v7, 3, v6")
        a(f"v_lshl_add_u32 v5, {v(HI)}, 2, v5")
        a(f"v_lshl_add_u32 v6, v5, 10, v6")
        a(f"s_lshr_b32 {s(t+2)}, {s(S_W)}, 1")
        a(f"s_lshl_b32 {s(t+2)}, {s(t+2)}, 8")
        a(f"v_add_u32 v48, {s(t+2)}, v6")
        a(f"v_xor_b32 v49, 64, v48")
        a(f"v_xor_b32 v50, 32, v48")
        a(f"v_add_u32 v50, 8192, v50")
        a(f"v_xor_b32 v51, 64, v50")
        for r in range(4): a(f"v_add_u32 {v(52+r)}, 0x10000, {v(48+r)}")
        a("s_waitcnt vmcnt(5)")
        a("s_barrier")
        self.stamp(3)
        for i in range(16):
            a(f"ds_read_b128 {v(AFS+4*i,4)}, {v(56+(i&7))} offset:{256 if i >= 8 else 0}")
        if self.c.ldsdbg: self.stamp(31)
        for ks in range(8):
            base = 48 if ks < 4 else 52
            off = (ks & 3) * 16384
            d = AFP + 8*ks
            for tt in range(2):
                a(f"ds_read_b64_tr_b16 {v(d+4*tt,2)}, {v(base+tt)} offset:{off}")
                a(f"ds_read_b64_tr_b16 {v(d+4*tt+2,2)}, {v(base+2+tt)} offset:{off}")
        if self.c.ldsdbg: self.stamp(4)
        a(f"v_and_b32 v6, 15, {v(N32)}")
        a(f"v_xor_b32 v6, v6, {v(HI)}")
        a(f"v_lshlrev_b32 v6, 4, v6")
        a(f"v_lshl_add_u32 v6, {v(N32)}, 10, v6")
        a(f"s_add_u32 {s(t+3)}, {s(t+3)}, {QIMG}")
        a(f"v_add_u32 v56, {s(t+3)}, v6")
        for i in range(1, 8): a(f"v_xor_b32 {v(56+i)}, {i*32}, v56")
        for j in range(4):
            a(f"s_and_b32 {s(t)}, {s(S_W)}, 3")
            a(f"s_lshl_b32 {s(t)}, {s(t)}, 2")
            a(f"s_add_u32 {s(t)}, {s(t)}, {j}")
            a(f"s_lshl_b32 {s(t)}, {s(t)}, 4")
            a(f"v_lshlrev_b32 v5, 4, {v(V_L)}")
            a(f"v_xor_b32 v5, {s(t)}, v5")
            a(f"s_lshl_b32 {s(t+1)}, {s(S_W)}, 12")
            a(f"s_add_u32 {s(t+1)}, {s(t+1)}, {QIMG + j*1024}")
            a(f"v_add_u32 {v(48+j)}, {s(t+1)}, v5")
        def chkq():
            self.checksum4(GQ, 14, 10, SEL1, SEL2)
            a(f"v_cmp_eq_u32 vcc, v14, {v(GM)}")
            a(f"v_cmp_eq_u32 {s(S_PB,2)}, {s(S_T)}, {v(GM+1)}")
            a(f"s_and_b64 vcc, vcc, {s(S_PB,2)}")
        self.retry_vec(ldq, chkq, "s_waitcnt vmcnt(0)")
        self.stamp(18)
        for j in range(4):
            a(f"ds_write_b128 {v(48+j)}, {v(GQ+4*j,4)}")
        self.barrier()
        self.stamp(5)
        SA = 32
        def bread(i): a(f"ds_read_b128 {v(BFR+4*(i&7),4)}, {v(56+(i&7))} offset:{256 if i >= 8 else 0}")
        for i in range(8): bread(i)
        def wuv_addr(A0, A1):
            a(f"v_lshrrev_b32 {v(A0)}, 4, {v(V_L)}")
            a(f"v_lshlrev_b32 {v(A1)}, 1, {v(A0)}")
            a(f"v_xor_b32 {v(A1)}, {v(A1)}, {v(V_N16)}")
            a(f"v_lshlrev_b32 {v(A1)}, 4, {v(A1)}")
            a(f"v_lshl_add_u32 {v(A0)}, {v(A0)}, 13, {v(A1)}")
            a(f"v_xor_b32 {v(A1)}, {8<<4}, {v(A0)}")
        def wuv_issue(A0, A1):
            a(f"s_lshl_b32 {s(t)}, {s(S_RQ)}, 7")
            a(f"s_lshl_b32 {s(t+1)}, {s(S_W)}, 4")
            a(f"s_add_u32 {s(t)}, {s(t)}, {s(t+1)}")
            a(f"s_lshl_b32 {s(t)}, {s(t)}, 13")
            a(f"s_lshl_b32 {s(t+1)}, {s(S_H)}, 8")
            a(f"s_add_u32 {s(t)}, {s(t)}, {s(t+1)}")
            a(f"s_lshl_b32 {s(t+1)}, {s(S_W)}, 12")
            for i in range(4):
                a(f"s_add_u32 m0, {s(t+1)}, {WUVIMG + i*1024}")
                a(f"buffer_load_dwordx4 {v(A0 if (i&1) == 0 else A1)}, {s(SRD_V,4)}, {s(t)} offen{self.ntw()} lds")
                if i < 3: a(f"s_add_u32 {s(t)}, {s(t)}, {4*8192}")
        if not self.c.wuv_late:
            wuv_addr(5, 6); wuv_issue(5, 6)
        for i in range(16):
            left = min(7, 15 - i)
            a(f"s_waitcnt lgkmcnt({left})")
            cin = '0' if i == 0 else v(SA,16)
            a(f"v_mfma_f32_32x32x16_bf16 {v(SA,16)}, {v(AFS+4*i,4)}, {v(BFR+4*(i&7),4)}, {cin}")
            if i + 8 < 16: bread(i+8)
        a(f"s_lshl_b32 {s(t+2)}, {s(S_W)}, 11")
        a(f"s_add_u32 {s(t+2)}, {s(t+2)}, {SX}")
        a(f"v_lshlrev_b32 v7, 4, {v(V_L)}")
        a(f"v_add_u32 v5, {s(t+2)}, v7")
        a(f"s_xor_b32 {s(t+3)}, {s(S_W)}, 4")
        a(f"s_lshl_b32 {s(t+3)}, {s(t+3)}, 11")
        a(f"s_add_u32 {s(t+3)}, {s(t+3)}, {SX}")
        a(f"v_add_u32 v6, {s(t+3)}, v7")
        a(f"s_lshl_b32 {s(t+2)}, {s(S_W)}, 7")
        a(f"v_lshlrev_b32 v13, 2, {v(N32)}")
        a(f"v_add_u32 v14, {MX}, v13")
        a(f"v_add_u32 v15, {s(t+2)}, v14")
        a(f"s_lshl_b32 {s(t+3)}, {s(KT)}, 1")
        a(f"s_add_u32 {s(t+3)}, {s(t+3)}, {s(CH)}")
        a(f"s_lshl_b32 {s(t+3)}, {s(t+3)}, 10")
        a(f"s_add_u32 {s(t+3)}, {s(t+3)}, {PB}")
        a(f"v_add_u32 v56, {s(t+3)}, v7")
        a(f"v_add_u32 v57, {PB}, v7")
        a(f"v_add_u32 v58, {LS-MX}, v15")
        a(f"v_add_u32 v59, {LS-MX}, v14")
        self.stamp(28)
        a("s_barrier")
        SK = 48
        LC1 = a.newlabel('CH'); LC2 = a.newlabel('CH')
        a(f"s_cmp_eq_u32 {s(CH)}, 0")
        a(f"s_cbranch_scc0 {LC1}")
        a(f"ds_write_b128 v5, {v(SA+8,4)}"); a(f"ds_write_b128 v5, {v(SA+12,4)} offset:1024")
        a(f"s_branch {LC2}")
        a.label(LC1)
        a(f"ds_write_b128 v5, {v(SA,4)}"); a(f"ds_write_b128 v5, {v(SA+4,4)} offset:1024")
        for r in range(8): a(f"v_mov_b32 {v(SA+r)}, {v(SA+8+r)}")
        a.label(LC2)
        self.barrier()
        self.stamp(29)
        a(f"ds_read_b128 {v(SK,4)}, v6"); a(f"ds_read_b128 {v(SK+4,4)}, v6 offset:1024")
        a("s_waitcnt lgkmcnt(0)")
        for r in range(8): a(f"v_add_f32 {v(SK+r)}, {v(SK+r)}, {v(SA+r)}")
        M, Lsum, T1 = 10, 11, 12
        a(f"v_max3_f32 {v(M)}, {v(SK)}, {v(SK+1)}, {v(SK+2)}")
        a(f"v_max3_f32 {v(M)}, {v(M)}, {v(SK+3)}, {v(SK+4)}")
        a(f"v_max3_f32 {v(M)}, {v(M)}, {v(SK+5)}, {v(SK+6)}")
        a(f"v_max_f32 {v(M)}, {v(M)}, {v(SK+7)}")
        self.xhalf('v_max_f32', M, T1)
        a(f"ds_write_b32 v15, {v(M)}")
        self.barrier()
        self.stamp(30)
        for w in range(8):
            a(f"ds_read_b32 {v(32+w)}, v14 offset:{w*128}")
        a("s_waitcnt lgkmcnt(0)")
        a(f"v_max3_f32 {v(M)}, v32, v33, v34"); a(f"v_max3_f32 {v(M)}, {v(M)}, v35, v36"); a(f"v_max3_f32 {v(M)}, {v(M)}, v37, v38"); a(f"v_max_f32 {v(M)}, {v(M)}, v39")
        a(f"v_mul_f32 {v(M)}, {s(S_SC)}, {v(M)}")
        for r in range(8): a(f"v_fma_f32 {v(SK+r)}, {v(SK+r)}, {s(S_SC)}, -{v(M)}")
        for r in range(8): a(f"v_exp_f32 {v(SK+r)}, {v(SK+r)}")
        for q in range(4): a(f"v_cvt_pk_bf16_f32 {v(40+q)}, {v(SK+2*q)}, {v(SK+2*q+1)}")
        a(f"ds_write_b128 v56, {v(40,4)}")
        for q in range(4): a(f"v_add_f32 {v(SK+2*q)}, {v(SK+2*q)}, {v(SK+2*q+1)}")
        a(f"v_add_f32 {v(SK)}, {v(SK)}, {v(SK+2)}"); a(f"v_add_f32 {v(SK+4)}, {v(SK+4)}, {v(SK+6)}")
        a(f"v_add_f32 {v(Lsum)}, {v(SK)}, {v(SK+4)}")
        self.xhalf('v_add_f32', Lsum, T1)
        a(f"ds_write_b32 v58, {v(Lsum)}")
        self.barrier()
        self.stamp(6)
        PF, ACC2 = 64, 96
        for ks in range(8):
            a(f"ds_read_b128 {v(PF+4*ks,4)}, v57 offset:{ks*1024}")
        for w in range(8):
            a(f"ds_read_b32 {v(32+w)}, v59 offset:{w*128}")
        for ks in range(8):
            a(f"s_waitcnt lgkmcnt({min(15, 15-ks)})")
            for tt in range(2):
                cin = '0' if ks == 0 else v(ACC2+16*tt,16)
                a(f"v_mfma_f32_32x32x16_bf16 {v(ACC2+16*tt,16)}, {v(AFP+8*ks+4*tt,4)}, {v(PF+4*ks,4)}, {cin}")
        a(f"v_and_b32 v5, 15, {v(N32)}")
        a(f"s_and_b32 {s(t+2)}, {s(S_W)}, 1")
        a(f"s_lshl_b32 {s(t+2)}, {s(t+2)}, 3")
        a(f"v_xor_b32 v5, {s(t+2)}, v5")
        a(f"v_lshlrev_b32 v5, 4, v5")
        a(f"v_lshl_add_u32 v5, {v(HI)}, 3, v5")
        a(f"v_lshl_add_u32 v5, {v(N32)}, 10, v5")
        a(f"s_lshr_b32 {s(t+2)}, {s(S_W)}, 1")
        a(f"s_lshl_b32 {s(t+2)}, {s(t+2)}, 8")
        a(f"v_add_u32 v48, {s(t+2)}, v5")
        for x in range(1, 8): a(f"v_xor_b32 {v(48+x)}, {x<<4}, v48")
        for j in range(4):
            a(f"s_and_b32 {s(t+2)}, {s(S_W)}, 3")
            a(f"s_lshl_b32 {s(t+2)}, {s(t+2)}, 2")
            a(f"s_add_u32 {s(t+2)}, {s(t+2)}, {j}")
            a(f"s_lshl_b32 {s(t+2)}, {s(t+2)}, 4")
            a(f"v_lshlrev_b32 v5, 4, {v(V_L)}")
            a(f"v_xor_b32 v5, {s(t+2)}, v5")
            a(f"s_lshl_b32 {s(t+3)}, {s(S_W)}, 12")
            a(f"s_add_u32 {s(t+3)}, {s(t+3)}, {j*1024}")
            a(f"v_add_u32 {v(56+j)}, {s(t+3)}, v5")
        a("s_waitcnt lgkmcnt(0)")
        a("v_add_f32 v32, v32, v33"); a("v_add_f32 v34, v34, v35"); a("v_add_f32 v36, v36, v37"); a("v_add_f32 v38, v38, v39")
        a("v_add_f32 v32, v32, v34"); a("v_add_f32 v36, v36, v38")
        a(f"v_add_f32 {v(Lsum)}, v32, v36")
        a(f"v_lshlrev_b32 v6, 3, {v(N32)}")
        a(f"v_add_u32 v6, {MX}, v6")
        a(f"ds_write_b64 v6, {v(M,2)}")
        a(f"v_and_b32 v6, 3, {v(V_N16)}")
        a(f"s_lshl_b32 {s(t+2)}, {s(S_W)}, 5")
        a(f"s_add_u32 {s(t+2)}, {s(t+2)}, {MX}")
        a(f"v_lshlrev_b32 v7, 3, v6")
        a(f"v_add_u32 v7, {s(t+2)}, v7")
        a(f"v_lshlrev_b32 v6, 6, v6")
        a(f"v_lshl_add_u32 v6, {v(V_G4)}, 4, v6")
        a(f"s_lshl_b32 {s(t+2)}, {s(S_W)}, 8")
        a(f"s_lshl_b32 {s(t+3)}, {s(S_J)}, 11")
        a(f"s_add_u32 {s(t+2)}, {s(t+2)}, {s(t+3)}")
        a(f"s_add_u32 {s(t+2)}, {s(t+2)}, {BM}")
        a(f"s_lshl_b32 {s(t+3)}, {s(S_J)}, 15")
        a(f"s_lshl_b32 {s(t+4)}, {s(S_W)}, 12")
        a(f"s_add_u32 {s(t+3)}, {s(t+3)}, {s(t+4)}")
        a(f"s_add_u32 {s(t+3)}, {s(t+3)}, {BPART}")
        a(f"v_lshlrev_b32 v5, 4, {v(V_L)}")
        self.stamp(7)
        for tt in range(2):
            for q in range(4):
                r0 = ACC2 + 16*tt + 4*q
                a(f"v_cvt_pk_bf16_f32 {v(r0)}, {v(r0)}, {v(r0+1)}")
                a(f"v_cvt_pk_bf16_f32 {v(r0+1)}, {v(r0+2)}, {v(r0+3)}")
                a(f"ds_write_b64 {v(48+4*tt+q)}, {v(r0,2)}")
        a("s_waitcnt vmcnt(0)")
        self.barrier()
        OR = 32
        for j in range(4):
            a(f"ds_read_b128 {v(OR+4*j,4)}, {v(56+j)}")
        a(f"ds_read_b64 v[48:49], v7")
        a(f"v_mov_b32 v51, {s(S_T)}")
        a("s_waitcnt lgkmcnt(0)")
        for j in range(4):
            a(f"buffer_store_dwordx4 {v(OR+4*j,4)}, v5, {s(SRD_WS,4)}, {s(t+3)} offen offset:{j*1024} {SC}")
        self.checksum4(OR, 50, 10, SEL1, SEL2)
        self.set_exec(0x000f000f000f000f)
        a(f"buffer_store_dwordx4 v[48:51], v6, {s(SRD_WS,4)}, {s(t+2)} offen {SC}")
        self.set_exec(-1)
        self.stamp(8)
        WUVF = 164
        self.wo_dma_addr(192)
        DL, DM, DF, ACC = 64, 80, 84, 100
        a(f"s_lshl_b32 {s(t+4)}, {s(S_W)}, 19")
        a(f"s_lshl_b32 {s(t+2)}, {s(S_J)}, 8")
        a(f"s_add_u32 {s(t+4)}, {s(t+4)}, {s(t+2)}")
        a(f"s_add_u32 {s(t+4)}, {s(t+4)}, {BPART}")
        a(f"s_lshl_b32 {s(t+5)}, {s(S_W)}, 15")
        a(f"s_lshl_b32 {s(t+2)}, {s(S_J)}, 4")
        a(f"s_add_u32 {s(t+5)}, {s(t+5)}, {s(t+2)}")
        a(f"s_add_u32 {s(t+5)}, {s(t+5)}, {BM}")
        MLX = SCR + 8192
        a(f"v_and_b32 v6, 3, {v(V_N16)}")
        a(f"v_lshl_add_u32 v6, {v(V_G4)}, 2, v6")
        a(f"v_lshlrev_b32 v14, 2, v6")
        a(f"s_and_b32 {s(t+2)}, {s(S_W)}, 3")
        a(f"s_lshl_b32 {s(t+2)}, {s(t+2)}, 4")
        a(f"s_lshl_b32 {s(t+2)}, {s(t+2)}, 2")
        a(f"v_lshlrev_b32 v15, 4, {v(V_G4)}")
        a(f"v_add_u32 v15, {s(t+2)}, v15")
        a(f"v_add_u32 v13, 8, v15")
        a(f"v_lshlrev_b32 v7, 17, {v(V_G4)}")
        a(f"v_lshl_add_u32 v7, {v(V_N16)}, 4, v7")
        def ldp():
            for j in range(4):
                a(f"s_add_u32 {s(t+2)}, {s(t+4)}, {j*32768}")
                a(f"buffer_load_dwordx4 {v(DL+4*j,4)}, v7, {s(SRD_WS,4)}, {s(t+2)} offen {SC}")
        a(f"v_lshrrev_b32 v5, 2, {v(V_N16)}")
        a(f"v_bfe_u32 v6, {v(V_N16)}, 1, 1")
        a(f"s_lshl_b32 {s(t+2)}, {s(S_W)}, 1")
        a(f"v_or_b32 v6, {s(t+2)}, v6")
        a(f"v_lshlrev_b32 v8, 1, v5")
        a(f"v_xor_b32 v6, v6, v8")
        a(f"v_lshlrev_b32 v6, 4, v6")
        a(f"v_lshl_add_u32 v5, {v(V_G4)}, 3, v5")
        a(f"v_lshl_add_u32 v6, v5, 8, v6")
        a(f"v_and_b32 v5, 1, {v(V_N16)}")
        a(f"v_lshl_add_u32 v5, v5, 3, v6")
        a(f"v_add_u32 v5, {WUVIMG}, v5")
        a(f"v_xor_b32 v6, {8<<4}, v5")
        def wuv_frags(A0, A1):
            for ks in range(4):
                a(f"ds_read_b64_tr_b16 {v(WUVF+4*ks,2)}, {v(A0)} offset:{ks*8192}")
                a(f"ds_read_b64_tr_b16 {v(WUVF+4*ks+2,2)}, {v(A1)} offset:{ks*8192 + 1024}")
        if not self.c.wuv_late: wuv_frags(5, 6)
        else:
            if self.c.wuv_late in (4, 5): a("v_mov_b32 v60, v5"); a("v_mov_b32 v61, v6")
            else: a("v_mov_b32 v18, v5"); a("v_mov_b32 v19, v6")
            wuv_addr(20, 21)
        a(f"s_lshl_b32 {s(t+6)}, {s(S_W)}, 7")
        a(f"s_add_u32 {s(t+6)}, {s(t+6)}, {MLX}")
        a(f"v_lshl_add_u32 v10, {v(V_L)}, 3, {s(t+6)}")
        a(f"s_lshr_b32 {s(t+6)}, {s(S_W)}, 2")
        a(f"s_lshl_b32 {s(t+6)}, {s(t+6)}, 9")
        a(f"s_add_u32 {s(t+6)}, {s(t+6)}, {MLX}")
        a(f"v_lshl_add_u32 v11, {v(V_L)}, 3, {s(t+6)}")
        a(f"v_lshlrev_b32 v9, 11, {v(V_L)}")
        def ldm():
            a(f"buffer_load_dwordx4 {v(DM,4)}, v9, {s(SRD_WS,4)}, {s(t+5)} offen {SC}")
        def ldboth():
            ldm()
            self.set_exec(-1)
            ldp()
            self.set_exec(0xffff)
        nx = 0
        if self.c.wuv_late == 3:
            wuv_issue(20, 21)
            a("s_waitcnt vmcnt(4)")
        elif self.c.wo_when == 2:
            self.wo_dma(SRD_WO, 192, WOIMG_Y, 4608)
            a("s_waitcnt vmcnt(5)")
        elif self.c.e3ack: a("s_waitcnt vmcnt(0)")
        self.stamp(26)
        self.set_exec(0xffff)
        ldboth()
        if self.c.wuv_late in (1, 4) or self.c.wo_when == 1:
            self.set_exec(-1)
            if self.c.wuv_late in (1, 4): wuv_issue(20, 21); nx += 4
            if self.c.wo_when == 1: self.wo_dma(SRD_WO, 192, WOIMG_Y, 4608); nx += 5
            self.set_exec(0xffff)
        def chkm():
            a(f"v_cmp_eq_u32 vcc, {s(S_T)}, {v(DM+3)}")
        if self.c.e3il == 2:
            LC = a.newlabel('FC'); LD = a.newlabel('FD')
            a(f"s_mov_b32 {s(S_CNT)}, 0")
            a.label(LC)
            a("s_waitcnt vmcnt(4)" if self.c.e3early else "s_waitcnt vmcnt(0)")
            chkm()
            a("s_andn2_b32 s75, 0xffff, vcc_lo")
            self.set_exec(-1)
            a(f"ds_bpermute_b32 v12, v14, {v(DM+2)}")
            if self.c.e3early: a("s_waitcnt vmcnt(0)")
            self.checksum4(DL, 16, 32, SEL1, SEL2)
            a("s_waitcnt lgkmcnt(0)")
            a("v_cmp_ne_u32 vcc, v16, v12")
            a("s_and_b32 s76, vcc_lo, 0xf")
            a("s_or_b32 s75, s75, s76")
            a("s_lshr_b32 s76, vcc_lo, 12")
            a("s_and_b32 s76, s76, 0xf0")
            a("s_or_b32 s75, s75, s76")
            a("s_and_b32 s76, vcc_hi, 0xf")
            a("s_lshl_b32 s76, s76, 8")
            a("s_or_b32 s75, s75, s76")
            a("s_lshr_b32 s76, vcc_hi, 4")
            a("s_and_b32 s76, s76, 0xf000")
            a("s_or_b32 s77, s75, s76")
            a(f"s_cbranch_scc0 {LD}")
            a(f"s_add_u32 {s(S_CNT)}, {s(S_CNT)}, 1")
            a(f"s_cmp_ge_u32 {s(S_CNT)}, {self.c.spin_limit}")
            a(f"s_cbranch_scc1 {LD}")
            if self.c.e3sleep: a(f"s_sleep {self.c.e3sleep}")
            a(f"s_mov_b32 exec_lo, s77")
            a(f"s_mov_b32 exec_hi, 0")
            ldm()
            for j in range(4):
                LS_ = a.newlabel('MS')
                a(f"s_bfe_i32 s75, s77, {j | (1 << 16)}")
                a(f"s_bfe_i32 s76, s77, {(4+j) | (1 << 16)}")
                a(f"s_pack_ll_b32_b16 exec_lo, s75, s76")
                a(f"s_bfe_i32 s75, s77, {(8+j) | (1 << 16)}")
                a(f"s_bfe_i32 s76, s77, {(12+j) | (1 << 16)}")
                a(f"s_pack_ll_b32_b16 exec_hi, s75, s76")
                a(f"s_add_u32 {s(t+2)}, {s(t+4)}, {j*32768}")
                a(f"s_cbranch_execz {LS_}")
                a(f"buffer_load_dwordx4 {v(DL+4*j,4)}, v7, {s(SRD_WS,4)}, {s(t+2)} offen {SC}")
                a.label(LS_)
            a("s_waitcnt vmcnt(0)")
            self.set_exec(0xffff)
            a(f"s_branch {LC}")
            a.label(LD)
            self.set_exec(0xffff)
        elif self.c.e3mask:
            def ldmiss():
                a(f"s_andn2_b32 s77, 0xffff, vcc_lo")
                a(f"s_mov_b32 exec_lo, s77")
                ldm()
                for j in range(4):
                    LS_ = a.newlabel('MS')
                    a(f"s_bfe_i32 s75, s77, {j | (1 << 16)}")
                    a(f"s_bfe_i32 s76, s77, {(4+j) | (1 << 16)}")
                    a(f"s_pack_ll_b32_b16 exec_lo, s75, s76")
                    a(f"s_bfe_i32 s75, s77, {(8+j) | (1 << 16)}")
                    a(f"s_bfe_i32 s76, s77, {(12+j) | (1 << 16)}")
                    a(f"s_pack_ll_b32_b16 exec_hi, s75, s76")
                    a(f"s_add_u32 {s(t+2)}, {s(t+4)}, {j*32768}")
                    a(f"s_cbranch_execz {LS_}")
                    a(f"buffer_load_dwordx4 {v(DL+4*j,4)}, v7, {s(SRD_WS,4)}, {s(t+2)} offen {SC}")
                    a.label(LS_)
                self.set_exec(0xffff)
            self.retry_vec(ldmiss, chkm, f"s_waitcnt vmcnt({4+nx})", sleep=self.c.e3sleep, wait="s_waitcnt vmcnt(0)")
        elif not self.c.e3scal:
            self.retry_vec(ldboth, chkm, f"s_waitcnt vmcnt({4+nx})", sleep=self.c.e3sleep, wait="s_waitcnt vmcnt(4)")
            if self.c.wuv_late == 1:
                LW = a.newlabel('WL')
                a(f"s_cmp_lg_u32 {s(S_CNT)}, 0")
                a(f"s_cbranch_scc1 {LW}")
                a(f"s_waitcnt vmcnt({5 if self.c.wo_when == 1 else 0})")
                a.label(LW)
        else:
            LC = a.newlabel('EC'); LD = a.newlabel('ED'); LM = a.newlabel('EM'); LP = a.newlabel('EP'); LN = a.newlabel('EN')
            a(f"s_mov_b32 {s(S_CNT)}, 0")
            a.label(LC)
            a("s_waitcnt vmcnt(4)")
            chkm()
            a("s_cmp_eq_u64 vcc, exec")
            a(f"s_cbranch_scc1 {LD}")
            a(f"s_andn2_b32 s77, 0xffff, vcc_lo")
            a.label(LM)
            a(f"s_ff1_i32_b32 s76, s77")
            a(f"s_lshl_b32 s75, s76, 11")
            a(f"s_add_u32 s75, s75, {s(t+5)}")
            a.label(LP)
            a(f"s_add_u32 {s(S_CNT)}, {s(S_CNT)}, 1")
            a(f"s_cmp_ge_u32 {s(S_CNT)}, {self.c.spin_limit}")
            a(f"s_cbranch_scc1 {LD}")
            a(f"s_load_dwordx4 {s(S_PB,4)}, {s(P_WS,2)}, s75 glc")
            a("s_waitcnt lgkmcnt(0)")
            a(f"s_cmp_eq_u32 {s(S_PB+3)}, {s(S_T)}")
            a(f"s_cbranch_scc0 {LP}")
            a(f"s_bitset0_b32 s77, s76")
            a(f"s_cmp_lg_u32 s77, 0")
            a(f"s_cbranch_scc1 {LM}")
            ldboth()
            a(f"s_branch {LC}")
            a.label(LD)
        a(f"ds_write_b64 v10, {v(DM,2)}")
        self.set_exec(-1)
        self.stamp_cnt(27)
        self.stamp(14)
        il = self.c.e3il
        if self.c.wo_when == 0 and not il: self.wo_dma(SRD_WO, 192, WOIMG_Y, 4608)
        self.barrier()
        a(f"ds_read_b64 {v(DM,2)}, v11")
        if il != 2: a(f"ds_bpermute_b32 v12, v14, {v(DM+2)}")
        plan = {3: ([0, 1], [2, 3], [4]), 4: ([0, 1, 2], [3, 4], []), 5: ([0], [1, 2], [3, 4])}.get(self.c.e3wo)
        if self.c.wo_when == 0 and il and self.c.e3wo == 0: self.wo_dma(SRD_WO, 192, WOIMG_Y, 4608)
        if self.c.wuv_late == 5:
            plan = {4: ([], [0, 1, 2], [3, 4]), 3: ([0], [1, 2], [3, 4])}[self.c.e3wo]
            wuv_issue(20, 21)
        if plan and plan[0]: self.wo_dma(SRD_WO, 192, WOIMG_Y, 4608, plan[0])
        a("s_waitcnt lgkmcnt(0)")
        if self.c.wuv_late in (1, 3): wuv_frags(18, 19)
        self.stamp(25)
        def capture(fn):
            rec = []; keep = self.a; self.a = rec.append
            try: fn(rec.append)
            finally: self.a = keep
            return rec
        def wpart1(a):
            a(f"v_mov_b32 v8, {v(DM)}")
            self.inrow('v_max_f32', 8); self.xrow('v_max_f32', 8, 9)
            a(f"v_sub_f32 v8, {v(DM)}, v8")
            a(f"v_exp_f32 v8, v8")
            a(f"v_mul_f32 v10, v8, {v(DM+1)}")
        def wpart2(a):
            self.inrow('v_add_f32', 10); self.xrow('v_add_f32', 10, 9)
            a(f"v_rcp_f32 v10, v10")
            a(f"v_mul_f32 v8, v8, v10")
            a(f"v_mov_b32_dpp v9, v8 row_shl:1 row_mask:0xf bank_mask:0xf")
            a(f"v_cvt_pk_bf16_f32 v8, v8, v9")
            a(f"ds_bpermute_b32 v52, v15, v8")
            a(f"ds_bpermute_b32 v53, v13, v8")
        if not il:
            wpart1(a); wpart2(a)
        elif il == 2:
            W = capture(wpart1) + capture(wpart2)
            P = capture(lambda a_: self.half_perm(DL, DF))
            while W or P:
                if W: a(W.pop(0))
                if W: a(W.pop(0))
                if P: a(P.pop(0))
        else:
            wpart1(a)
            if plan and self.c.wuv_late == 4:
                LA = a.newlabel('WA'); LB = a.newlabel('WB')
                a(f"s_cmp_lg_u32 {s(S_CNT)}, 0")
                a(f"s_cbranch_scc1 {LA}")
                a(f"s_waitcnt vmcnt({len(plan[0]) + 4})")
                a(f"s_branch {LB}")
                a.label(LA)
                a(f"s_waitcnt vmcnt({len(plan[0])})")
                a.label(LB)
            elif plan: a(f"s_waitcnt vmcnt({len(plan[0]) + (4 if self.c.wuv_late == 5 else 0)})")
            else: a("s_waitcnt vmcnt(5)" if (self.c.wo_when == 0 and self.c.e3wo == 0) else "s_waitcnt vmcnt(0)")
            W = capture(wpart2)
            C = capture(lambda a_: self.checksum4(DL, 11, 32, SEL1, SEL2))
            P = capture(lambda a_: self.half_perm(DL, DF))
            while W or C:
                if W: a(W.pop(0))
                for _ in range(2):
                    if C: a(C.pop(0))
            for x in P: a(x)
        a(f"s_lshl_b32 {s(t+2)}, {s(S_W)}, 9")
        a(f"s_add_u32 {s(t+2)}, {s(t+2)}, {CW}")
        a(f"v_lshlrev_b32 v5, 5, {v(V_N16)}")
        a(f"v_add_u32 v5, {s(t+2)}, v5")
        a(f"v_lshlrev_b32 v6, 11, {v(V_RS)}")
        a(f"v_lshl_add_u32 v6, {v(V_G4)}, 4, v6")
        a(f"s_lshl_b32 {s(t+2)}, {s(S_W)}, 6")
        a(f"s_add_u32 {s(t+2)}, {s(t+2)}, {CW}")
        a(f"v_add_u32 v6, {s(t+2)}, v6")
        a("s_waitcnt lgkmcnt(0)")
        def chkp():
            self.checksum4(DL, 11, 32, SEL1, SEL2)
            a(f"v_cmp_eq_u32 vcc, v11, v12")
        if not il:
            self.retry_vec(ldp, chkp, "s_waitcnt vmcnt(5)" if self.c.wo_when == 0 else "s_waitcnt vmcnt(0)", sleep=1)
            self.stamp(9)
            self.half_perm(DL, DF)
        elif il == 2:
            self.stamp(9)
        else:
            LOK = a.newlabel('EK')
            a(f"v_cmp_eq_u32 vcc, v11, v12")
            a("s_cmp_eq_u64 vcc, exec")
            a(f"s_cbranch_scc1 {LOK}")
            ldp()
            self.retry_vec(ldp, chkp, "s_waitcnt vmcnt(0)", sleep=1)
            self.half_perm(DL, DF)
            a.label(LOK)
            self.stamp(9)
        self.half_mfma(ACC, 52, DF, True)
        if il and self.c.e3wo == 1: self.wo_dma(SRD_WO, 192, WOIMG_Y, 4608)
        if plan: self.wo_dma(SRD_WO, 192, WOIMG_Y, 4608, plan[1])
        a(f"v_lshlrev_b32 v7, 8, {v(V_RS)}")
        a(f"v_lshl_add_u32 v7, {v(V_G4)}, 3, v7")
        a(f"s_lshl_b32 {s(t+2)}, {s(S_W)}, 5")
        a(f"s_add_u32 {s(t+2)}, {s(t+2)}, {XL2}")
        a(f"v_add_u32 v7, {s(t+2)}, v7")
        self.afrag_addr(14, XL2)
        a(f"v_and_b32 v15, 1, {v(V_N16)}")
        a(f"v_lshlrev_b32 v15, 10, v15")
        a(f"v_lshrrev_b32 v13, 1, {v(V_N16)}")
        a(f"v_lshl_add_u32 v15, v13, 4, v15")
        a(f"s_add_u32 {s(t+3)}, {s(S_J)}, 128")
        a(f"s_lshl_b32 {s(t+3)}, {s(t+3)}, 11")
        a(f"s_lshl_b32 {s(t+2)}, {s(S_W)}, 7")
        a(f"s_add_u32 {s(t+3)}, {s(t+3)}, {s(t+2)}")
        a(f"s_add_u32 {s(t+3)}, {s(t+3)}, {OP}")
        a(f"v_mov_b32 v10, 0"); a(f"v_mov_b32 v11, 0.25")
        a(f"v_cndmask_b32 v10, v10, v11, {s(SEL2,2)}")
        a(f"v_mov_b32 v11, {s(S_T)}")
        self.set_exec(0xffff)
        self.write_acc_rows(ACC, 5)
        self.set_exec(-1)
        self.barrier()
        for q in range(4):
            a(f"ds_read_b128 {v(16+4*q,4)}, v6 offset:{q*512}")
        if il and self.c.e3wo == 2: self.wo_dma(SRD_WO, 192, WOIMG_Y, 4608)
        if plan and plan[2]: self.wo_dma(SRD_WO, 192, WOIMG_Y, 4608, plan[2])
        a("s_waitcnt lgkmcnt(0)")
        for j in range(4):
            a(f"v_add_f32 {v(16+j)}, {v(16+j)}, {v(20+j)}")
            a(f"v_add_f32 {v(24+j)}, {v(24+j)}, {v(28+j)}")
        for j in range(4):
            a(f"v_add_f32 {v(16+j)}, {v(16+j)}, {v(24+j)}")
        a("v_cvt_pk_bf16_f32 v52, v16, v17"); a("v_cvt_pk_bf16_f32 v53, v18, v19")
        self.set_exec(0x0011001100110011)
        a("ds_write_b64 v7, v[52:53]")
        self.set_exec(-1)
        if self.c.wuv_late in (4, 5): a("s_waitcnt vmcnt(5)")
        self.barrier()
        if self.c.wuv_late in (4, 5): wuv_frags(60, 61)
        self.afrag_reads(16, 14)
        a("s_waitcnt lgkmcnt(0)")
        self.chain4(64, 16, WUVF)
        self.pack_pair(64, 8, 9, 12, 13)
        self.set_exec(0xffff)
        a(f"buffer_store_dwordx4 v[8:11], v15, {s(SRD_WS,4)}, {s(t+3)} offen {SC}")
        self.set_exec(-1)
        self.stamp(10)
        a("s_waitcnt vmcnt(1)")
        a("s_barrier")
        self.p5(1, WOIMG_Y, 4608, 11, 12)
        self.final_reduce(1)

    def p5(self, branch, wbase, RS, st_x, st_pub):
        a = self.a; t = ST
        WF, WFX, AF, G = 132, 148, 16, 48
        a(f"v_lshrrev_b32 v14, 2, {v(V_N16)}")
        a(f"v_lshlrev_b32 v14, 11, v14")
        a(f"v_and_b32 v15, 1, {v(V_N16)}")
        a(f"v_lshl_add_u32 v14, v15, 10, v14")
        a(f"v_lshl_add_u32 v14, {v(V_G4)}, 5, v14")
        a(f"v_and_b32 v13, 2, {v(V_N16)}")
        a(f"v_lshl_add_u32 v14, v13, 3, v14")
        self.hshift5(t+5)
        a(f"s_add_u32 {s(t+4)}, {s(t+5)}, {branch*32}")
        a(f"s_lshl_b32 {s(t+4)}, {s(t+4)}, 13")
        a(f"s_lshl_b32 {s(t+2)}, {s(S_W)}, 7")
        a(f"s_add_u32 {s(t+4)}, {s(t+4)}, {s(t+2)}")
        a(f"s_add_u32 {s(t+4)}, {s(t+4)}, {OP}")
        G2 = 52
        def ldt(st=0):
            a(f"buffer_load_dwordx4 {v(G2 if st else G,4)}, v14, {s(SRD_WS,4)}, {s(t+4)} offen {SC}")
        def chkt(st=0):
            a(f"v_cmp_eq_u32 vcc, {s(S_T)}, {v((G2 if st else G)+3)}")
        G3 = 56
        def donet(st):
            for r in range(3): a(f"v_mov_b32 {v(G3+r)}, {v((G2 if st else G)+r)}")
        ldt()
        self.wo_frags(WF, WFX, wbase, RS)
        a(f"v_lshlrev_b32 v7, 8, v15")
        a(f"v_lshl_add_u32 v7, {v(V_G4)}, 3, v7")
        a(f"v_lshl_add_u32 v7, v13, 1, v7")
        a(f"s_lshl_b32 {s(t+2)}, {s(S_W)}, 5")
        a(f"s_add_u32 {s(t+2)}, {s(t+2)}, {XL}")
        a(f"v_add_u32 v7, {s(t+2)}, v7")
        self.afrag_addr(6, XL)
        a(f"v_mul_u32_u24 v15, {36*4096}, v15")
        a(f"v_lshrrev_b32 v13, 1, {v(V_N16)}")
        a(f"v_lshl_add_u32 v15, v13, 4, v15")
        a(f"s_mul_i32 {s(t+6)}, {s(S_RQ)}, {9*4096}")
        a(f"s_lshl_b32 {s(t+2)}, {s(t+5)}, 7")
        a(f"s_add_u32 {s(t+6)}, {s(t+6)}, {s(t+2)}")
        a(f"s_add_u32 {s(t+6)}, {s(t+6)}, {OUTP + branch*72*4096}")
        a(f"s_add_u32 {s(t+7)}, {s(t+6)}, {8*4096}")
        a(f"s_lshl_b32 {s(t+2)}, {s(S_W)}, 12")
        a(f"s_add_u32 {s(t+6)}, {s(t+6)}, {s(t+2)}")
        a(f"v_mov_b32 v105, {s(S_T)}"); a(f"v_mov_b32 v107, {s(S_T)}")
        a(f"v_mov_b32 v109, {s(S_T)}"); a(f"v_mov_b32 v111, {s(S_T)}")
        if self.c.pipep5:
            self.poll_pipe(ldt, chkt, donet, 1, self.c.stagp5)
        else:
            self.retry_vec(ldt, chkt, "s_waitcnt vmcnt(0)", sleep=self.c.sleep5)
        if self.c.pipep5: G = G3
        self.stamp(24)
        self.stamp_cnt(21)
        if self.c.dbg:
            a("s_waitcnt lgkmcnt(0)")
            a(f"s_lshl_b32 {s(t+8)}, s2, 3")
            a(f"s_add_u32 {s(t+8)}, {s(t+8)}, {s(S_W)}")
            a(f"s_lshl_b32 {s(t+8)}, {s(t+8)}, 12")
            a(f"s_add_u32 {s(t+8)}, {s(t+8)}, 0x1000000")
            a(f"v_lshlrev_b32 v12, 6, {v(V_L)}")
            for q in range(4):
                a(f"buffer_store_dwordx4 {v(WF+4*q,4)}, v12, {s(SRD_WS,4)}, {s(t+8)} offen offset:{q*16}")
        a(f"v_mov_b32_dpp v9, {v(G+2)} quad_perm:[2,3,0,1] row_mask:0xf bank_mask:0xf")
        a(f"v_cndmask_b32 v8, {v(G+2)}, v9, {s(SEL2,2)}")
        a(f"v_cndmask_b32 v9, v9, {v(G+2)}, {s(SEL2,2)}")
        a(f"v_max_f32_dpp v10, v8, v8 row_ror:4 row_mask:0xf bank_mask:0xf")
        a(f"v_max_f32_dpp v10, v10, v10 row_ror:8 row_mask:0xf bank_mask:0xf")
        a(f"v_sub_f32 v8, v8, v10")
        a(f"v_exp_f32 v8, v8")
        a(f"v_mul_f32 v9, v8, v9")
        a(f"v_mul_f32 v10, v8, {v(G)}")
        a(f"v_mul_f32 v11, v8, {v(G+1)}")
        for r in (4, 8):
            for x in (9, 10, 11):
                a(f"v_add_f32_dpp {v(x)}, {v(x)}, {v(x)} row_ror:{r} row_mask:0xf bank_mask:0xf")
        a("v_rcp_f32 v9, v9")
        a("v_mul_f32 v10, v10, v9"); a("v_mul_f32 v11, v11, v9")
        a("v_cvt_pk_bf16_f32 v10, v10, v11")
        self.set_exec(0x000f000f000f000f)
        a("ds_write_b32 v7, v10")
        self.set_exec(-1)
        self.barrier()
        self.stamp(st_x)
        self.afrag_reads(AF, 6)
        a("s_waitcnt lgkmcnt(0)")
        self.chain4(64, AF, WF)
        LO = a.newlabel('TO')
        a(f"s_cmp_lg_u32 {s(S_W)}, 0")
        a(f"s_cbranch_scc1 {LO}")
        self.chain4(68, AF, WFX)
        self.pack_pair(68, 108, 110, 12, 13)
        self.set_exec(0xffff)
        a(f"buffer_store_dwordx4 v[108:111], v15, {s(SRD_WS,4)}, {s(t+7)} offen {SC}")
        self.set_exec(-1)
        a.label(LO)
        self.pack_pair(64, 104, 106, 12, 13)
        self.set_exec(0xffff)
        a(f"buffer_store_dwordx4 v[104:107], v15, {s(SRD_WS,4)}, {s(t+6)} offen {SC}")
        self.set_exec(-1)
        self.stamp(st_pub)

    def build(self):
        a = self.a; c = self.c
        self.prologue()
        self.p1_loads()
        self.srds_rest()
        if c.warm:
            a("s_lshr_b32 s72, s2, 3")
            a("s_lshl_b32 s72, s72, 3")
            a(f"s_add_u32 s72, s72, {s(S_W)}")
            a("s_cmp_ge_u32 s72, WARM_NSEG")
            a("s_cbranch_scc1 L_WARM_RET")
            a("s_lshl_b32 s72, s72, 2")
            a("s_getpc_b64 s[74:75]")
            a.label("L_WARM_PC")
            a("s_add_u32 s74, s74, s72")
            a("s_addc_u32 s75, s75, 0")
            a("s_add_u32 s74, s74, L_WARM_TAB-L_WARM_PC")
            a("s_addc_u32 s75, s75, 0")
            a("s_mov_b64 exec, 0")
            a("s_setpc_b64 s[74:75]")
            a.label("L_WARM_RET")
            a("s_mov_b64 exec, -1")
        a(f"s_cmp_eq_u32 {s(S_TYPE)}, 0")
        a("s_cbranch_scc0 L_Y0")
        self.x_main()
        a.label("L_Y0")
        self.y_main()
        a.label("L_END")
        self.stamp_dump()
        a.label("L_EXIT")
        a("s_endpgm")
        body = a.finalize()
        hdr = open(os.path.join(os.path.dirname(os.path.abspath(__file__)), 'header.txt')).read()
        out = hdr
        out += f"; @launch grid=(256,1,1) block=(512,1,1) lds={LDS_BYTES}\n"
        out += f""".amdgcn_target "amdgcn-amd-amdhsa--gfx950"
.text
.globl {NAME}_kernel
.p2align 8
.type {NAME}_kernel,@function
{NAME}_kernel:
"""
        out += body
        out += f""".section .rodata,"a"
.p2align 6
.amdhsa_kernel {NAME}_kernel
  .amdhsa_next_free_vgpr 256
  .amdhsa_next_free_sgpr 102
  .amdhsa_accum_offset 256
  .amdhsa_group_segment_fixed_size 0
  .amdhsa_kernarg_size 112
  .amdhsa_user_sgpr_count 2
  .amdhsa_user_sgpr_kernarg_segment_ptr 1
  .amdhsa_system_sgpr_workgroup_id_x 1
.end_amdhsa_kernel
"""
        if c.warm: out = self.add_hops(out, c.warm)
        import re
        out = re.sub(r"(?m)^(    s_sleep \d+)$", r"\1    ; back-off between two polls of a hand-off that another workgroup has not published yet", out)
        return out

    def add_hops(self, txt, gran):
        import subprocess, re
        def sizes(t):
            open('_w.s', 'w').write(t)
            subprocess.run(["clang", "-x", "assembler", "-target", "amdgcn-amd-amdhsa", "-mcpu=gfx950", "-c", "_w.s", "-o", "_w.o"], check=True)
            d = subprocess.run(["llvm-objdump", "-d", "--mcpu=gfx950", "_w.o"], capture_output=True, text=True).stdout
            return [int(m.group(1), 16) for m in re.finditer(r"// ([0-9A-F]{12}):", d)]
        lines = txt.split('\n')
        def isins(l):
            t = l.strip()
            return l.startswith('    ') and t and not t.startswith(';') and not t.startswith('.') and not t.endswith(':')
        k0 = next(i for i, l in enumerate(lines) if l.strip().startswith(NAME + '_kernel:'))
        kend = max(i for i, l in enumerate(lines) if l.strip() == 's_endpgm')
        probe = '\n'.join(lines[:kend + 1] + ['L_WARM_TAB:', '    s_endpgm'] + lines[kend + 1:]).replace('WARM_NSEG', '0x12345')
        ad = sizes(probe)
        idx = [i for i in range(k0, kend + 1) if isins(lines[i])]
        assert len(ad) == len(idx) + 1, (len(ad), len(idx))
        size = {i: ad[n + 1] - ad[n] for n, i in enumerate(idx)}
        ret = next(i for i, l in enumerate(lines) if l.strip() == 'L_WARM_RET:')
        out = []; addr = 0; hops = []; last = None
        for i, l in enumerate(lines[:kend + 1]):
            if i in size:
                if i > ret + 1:
                    if last is None: last = addr // gran
                    elif addr // gran != last and i != kend:
                        last = addr // gran
                        out.append(f'@@HOP{len(hops)}'); hops.append(addr); addr += 4
                addr += size[i]
            out.append(l)
        M = len(hops); K = (M + 255) // 256; nseg = (M + K - 1) // K
        res = []
        for l in out:
            if l.startswith('@@HOP'):
                h = int(l[5:])
                tgt = f'L_HOP{h+1}' if ((h + 1) % K and h + 1 < M) else 'L_WARM_RET'
                res.append(f'L_HOP{h}:'); res.append(f'    s_cbranch_execz {tgt}')
            else: res.append(l)
        res.append('L_WARM_TAB:')
        for g in range(nseg): res.append(f'    s_branch L_HOP{g*K}')
        res.append('    s_endpgm')
        print('hops', M, 'K', K, 'nseg', nseg, 'code bytes', addr)
        return '\n'.join(res + lines[kend + 1:]).replace('WARM_NSEG', str(nseg))

if __name__ == '__main__':
    cfg = Cfg()
    outp = f"cdna_kernels/{NAME}.s"
    for arg in sys.argv[1:]:
        if arg.startswith('-o='): outp = arg[3:]
        elif '=' in arg:
            k, val = arg.split('=')
            setattr(cfg, k, val.replace('+', ' ') if isinstance(getattr(cfg, k), str) else type(getattr(cfg, k))(int(val)))
    g = Gen(cfg)
    txt = g.build()
    open(outp, 'w').write(txt)
    print("wrote", outp, "lines", txt.count('\n'), "nops inserted", g.a.ninserted)
```
